```python
import torch

def _softmax(x, axis=-1):
    return torch.softmax(x, dim=axis)
def _gelu(x):
    return torch.nn.functional.gelu(x, approximate="tanh")
def _silu(x):
    return torch.nn.functional.silu(x)
def _sigmoid(x):
    return torch.sigmoid(x)
def _layernorm(x, axis=-1, eps=1e-5):
    m = x.mean(dim=axis, keepdim=True)
    v = x.var(dim=axis, keepdim=True, unbiased=False)
    return (x - m) / torch.sqrt(v + eps)
def _scatter_add(tgt, idx, src, axis=0):
    return tgt.clone().index_add_(axis, idx, src)
def _segment_sum(src, seg, n):
    out = torch.zeros((n,) + src.shape[1:], dtype=src.dtype)
    return out.index_add_(0, seg, src)
def _pad(x, pw):
    flat = tuple(v for pair in reversed(pw) for v in pair)
    return torch.nn.functional.pad(x, flat)

kernel_name = 'sequential_preLN__ssm_conv_s4d__glu_gated_geglu__prompt'

def setup_inputs():

    _w = (lambda a: (lambda t: t.to(torch.bfloat16) if t.is_floating_point() else t)(torch.as_tensor(a)))
    def _A_setup():
        Bsz, L, D, N = 1, 2048, 512, 128
        return {
            "u": _w((lambda *s: torch.randn(*s, dtype=torch.bfloat16) * 0.05)(Bsz, L, D)),
            "log_A_real": _w((lambda *s: torch.randn(*s, dtype=torch.bfloat16) * 6.4)(D, N) * 0.5),
            "A_imag": _w((lambda *s: torch.randn(*s, dtype=torch.bfloat16) * 0.05)(D, N) * 3.14),
            "C_real": _w((lambda *s: torch.randn(*s, dtype=torch.bfloat16) * 0.05)(D, N) / N ** 0.5),
            "C_imag": _w((lambda *s: torch.randn(*s, dtype=torch.bfloat16) * 0.05)(D, N) / N ** 0.5),
            "log_dt": _w((lambda *s: torch.randn(*s, dtype=torch.bfloat16) * 0.05)(D) * 0.5 - 4.0),
            "D_skip": _w((lambda *s: torch.randn(*s, dtype=torch.bfloat16) * 0.05)(D)),
        }
    _A_in = _A_setup()

    def _B_setup():
        B, S, Dm, Df = 1, 2048, 512, 1376
        return {
            "x": _w((lambda *s: torch.randn(*s, dtype=torch.bfloat16) * 0.05)(B, S, Dm)),
            "w_gate": _w((lambda *s: torch.randn(*s, dtype=torch.bfloat16) * 0.4)(Dm, Df) * (Dm ** -0.5)),
            "w_up": _w((lambda *s: torch.randn(*s, dtype=torch.bfloat16) * 0.4)(Dm, Df) * (Dm ** -0.5)),
            "w_down": _w((lambda *s: torch.randn(*s, dtype=torch.bfloat16) * 0.4)(Df, Dm) * (Df ** -0.5)),
        }
    _B_in = _B_setup()

    return {
        "A_u": _A_in["u"],
        "A_log_A_real": _A_in["log_A_real"],
        "A_A_imag": _A_in["A_imag"],
        "A_C_real": _A_in["C_real"],
        "A_C_imag": _A_in["C_imag"],
        "A_log_dt": _A_in["log_dt"],
        "A_D_skip": _A_in["D_skip"],
        "B_x": _B_in["x"],
        "B_w_gate": _B_in["w_gate"],
        "B_w_up": _B_in["w_up"],
        "B_w_down": _B_in["w_down"],
    }

def reference(A_u, A_log_A_real, A_A_imag, A_C_real, A_C_imag, A_log_dt, A_D_skip, B_x, B_w_gate, B_w_up, B_w_down):
    def _A_ref(u, log_A_real, A_imag, C_real, C_imag, log_dt, D_skip):
        L = u.shape[1]
        dt = torch.exp(log_dt)
        A = -torch.exp(log_A_real) + 1j * A_imag
        C = (C_real + 1j * C_imag) * dt[:, None]
        pos = (lambda x, dt: x.to(dt))(torch.arange(L), log_dt.dtype)
        P = torch.exp((A * dt[:, None])[:, :, None] * pos[None, None, :])
        K = 2.0 * torch.einsum("dn,dnl->dl", C, P).real
        L2 = 2 * L
        u_t = (lambda x, *d: x.permute(*d))(u, 0, 2, 1)
        Kf = (lambda x, *a, **k: torch.fft.rfft(x.float(), *a, **k))(K, L2)
        Uf = (lambda x, *a, **k: torch.fft.rfft(x.float(), *a, **k))(u_t, L2)
        y = (lambda x, *a, **k: torch.fft.irfft(x, *a, **k).to(torch.bfloat16))(Uf * Kf[None, :, :], L2)[:, :, :L]
        y = (lambda x, *d: x.permute(*d))(y, 0, 2, 1)
        return y + u * D_skip[None, None, :]

    def _B_ref(x, w_gate, w_up, w_down):
        g = torch.einsum("bsd,df->bsf", x, w_gate)
        u = torch.einsum("bsd,df->bsf", x, w_up)
        h = _gelu(g) * u
        return torch.einsum("bsf,fd->bsd", h, w_down)

    x = A_u
    h = x + _A_ref(_layernorm(x, axis=-1), A_log_A_real, A_A_imag, A_C_real, A_C_imag, A_log_dt, A_D_skip)
    h2 = h + _B_ref(_layernorm(h, axis=-1), B_w_gate, B_w_up, B_w_down)
    return h2
```

```python
import re

TRANS = ("v_exp_f32","v_log_f32","v_rcp_f32","v_rsq_f32","v_sqrt_f32","v_sin_f32","v_cos_f32","v_rcp_iflag_f32")

def _split_ops(s):
    out=[];cur="";d=0
    for ch in s:
        if ch=="[": d+=1
        if ch=="]": d-=1
        if ch=="," and d==0: out.append(cur.strip()); cur=""
        else: cur+=ch
    if cur.strip(): out.append(cur.strip())
    return out

_reg=re.compile(r"^-?(?:abs\(|\|)?([vas])(?:(\d+)|\[(\d+):(\d+)\])")
def regs(op):
    op=op.strip()
    t=op.split()[0] if op else ""
    if t in("vcc","vcc_lo","vcc_hi"): return {("s","vcc")}
    if t in("exec","exec_lo","exec_hi"): return {("s","exec")}
    if t=="m0": return {("s","m0")}
    m=_reg.match(t)
    if not m: return set()
    k=m.group(1)
    if m.group(2) is not None: return {(k,int(m.group(2)))}
    return {(k,i) for i in range(int(m.group(3)),int(m.group(4))+1)}

class Ins:
    __slots__=("text","mn","cls","dst","src","ws","passes","dpp","srcC","srcAB","lds","wide","data","lanesel","target")
    def __init__(self,text):
        self.text=text
        t=text.split(";")[0].strip()
        p=t.split(None,1)
        mn=p[0]; self.mn=mn
        ops=_split_ops(p[1]) if len(p)>1 else []
        self.dst=set(); self.src=set(); self.ws=1; self.passes=0
        self.dpp=("quad_perm" in t or "row_" in t or "wave_" in t); self.srcC=set(); self.srcAB=set()
        self.lds=False; self.wide=False; self.data=set(); self.lanesel=set(); self.target=None
        base=re.sub(r"_(e32|e64|dpp|sdwa)$","",mn)
        if mn=="s_nop": self.cls="nop"; self.ws=int(ops[0],0)+1; return
        if mn.startswith("v_mfma"):
            self.cls="mfma"; self.dst=regs(ops[0]); self.srcAB=regs(ops[1])|regs(ops[2]); self.srcC=regs(ops[3]); self.src=self.srcAB|self.srcC
            self.passes= 8 if "32x32" in mn else (4 if "16x16" in mn else 2)
            return
        if mn.startswith("v_"):
            self.cls="trans" if base in TRANS else "valu"
            if base.startswith("v_cmp"):
                self.dst=regs(ops[0]); rest=ops[1:]
                if base.startswith("v_cmpx"): self.dst|={("s","exec")}
            elif base in("v_add_co_u32","v_sub_co_u32","v_addc_co_u32","v_subb_co_u32","v_subrev_co_u32","v_div_scale_f32","v_mad_u64_u32"):
                self.dst=regs(ops[0])|regs(ops[1]); rest=ops[2:]
            elif base.startswith("v_permlane") and "swap" in base:
                self.dst=regs(ops[0])|regs(ops[1]); rest=ops
            else:
                self.dst=regs(ops[0]); rest=ops[1:]
            for o in rest: self.src|=regs(o)
            if base in("v_fmac_f32","v_dot2c_f32_bf16","v_writelane_b32") or self.dpp: self.src|={r for r in self.dst if r[0]!="s"}
            if base in("v_readlane_b32","v_writelane_b32"): self.lanesel=regs(ops[2])
            if base=="v_div_fmas_f32": self.src|={("s","vcc")}
            return
        if mn.startswith("ds_"):
            self.cls="ds"
            if "read" in mn or "permute" in mn or "swizzle" in mn or "rtn" in mn:
                self.dst=regs(ops[0]); rest=ops[1:]
            else: rest=ops
            for o in rest: self.src|=regs(o)
            return
        if mn.startswith(("buffer_","global_","flat_")):
            self.cls="vmem"
            self.lds = (" lds" in t) or ("_lds_" in mn)
            isload = "load" in mn and not self.lds
            israt = "atomic" in mn and " sc0" in t
            if not ops: return
            if isload or (israt and mn.startswith("global")):
                self.dst=regs(ops[0]); rest=ops[1:]
            else: rest=ops
            for o in rest: self.src|=regs(o)
            if "store" in mn and ("x3" in mn or "x4" in mn):
                self.wide=True
                self.data=regs(ops[0]) if mn.startswith("buffer") else regs(ops[1])
            if self.lds: self.src|={("s","m0")}
            return
        if mn.startswith(("s_load","s_buffer_load","s_memtime","s_memrealtime","s_atomic")):
            self.cls="smem"; self.dst=regs(ops[0]) if ops else set()
            for o in ops[1:]: self.src|=regs(o)
            return
        if mn.startswith(("s_cbranch","s_branch")):
            self.cls="branch"; self.target=ops[0]; return
        if mn.startswith("s_"):
            self.cls="salu"
            if mn.startswith(("s_cmp","s_waitcnt","s_barrier","s_endpgm","s_setprio","s_sleep","s_bitcmp","s_setreg","s_sethalt")):
                for o in ops: self.src|=regs(o)
            else:
                self.dst=regs(ops[0]) if ops else set()
                for o in ops[1:]: self.src|=regs(o)
                if "saveexec" in mn: self.dst|={("s","exec")}
            return
        self.cls="other"

def need(p,c):
    n=0
    pv = p.cls in("valu","trans")
    cv = c.cls in("valu","trans")
    pd_v={r for r in p.dst if r[0]!="s"}; pd_s={r for r in p.dst if r[0]=="s"}
    if pv:
        if c.cls=="mfma" and pd_v&c.src: n=max(n,2)
        if c.cls=="mfma" and ("s","exec") in pd_s: n=max(n,4)
        if c.cls=="vmem" and pd_s&c.src: n=max(n,5)
        if cv and pd_s&c.src: n=max(n,2)
        if cv and pd_s&c.lanesel: n=max(n,4)
        if cv and c.mn.startswith("v_div_fmas") and ("s","vcc") in pd_s: n=max(n,4)
        if cv and c.dpp and pd_v&c.src: n=max(n,2)
        if cv and c.dpp and ("s","exec") in pd_s: n=max(n,5)
        if cv and c.mn.startswith(("v_readlane","v_readfirstlane")) and pd_v&c.src: n=max(n,1)
        if cv and c.mn.startswith(("v_readlane","v_readfirstlane","v_writelane","v_permlane")) and ("s","exec") in pd_s: n=max(n,4)
        if cv and c.mn.startswith("v_permlane") and pd_v&c.src: n=max(n,2)
        if p.cls=="trans" and c.cls in("valu","mfma","ds","vmem") and pd_v&c.src: n=max(n,1)
        if ("sdwa" in p.text or ("op_sel" in p.text and not p.mn.startswith("v_pk_"))) and cv and pd_v&(c.src|c.dst): n=max(n,1)
        if p.mn.startswith("v_dot") and pd_v&(c.src|c.dst):
            if not(c.mn==p.mn): n=max(n,3)
            else:
                n=max(n,3) if (pd_v & (c.src - c.dst)) else n
        if c.cls=="salu" and pd_s&c.src: n=max(n,1)
        if c.cls=="branch" and c.mn.startswith("s_cbranch_vcc") and ("s","vcc") in pd_s: n=max(n,1)
    if p.cls=="mfma":
        t={2:5,4:8,8:12}[p.passes]
        if c.cls=="mfma":
            if p.dst&c.srcAB: n=max(n,t)
            if p.dst&c.srcC:
                if p.dst==c.srcC and p.passes==c.passes: n=max(n,2 if p.passes==2 else 0)
                else: n=max(n,{2:4,4:6,8:10}[p.passes])
            elif p.dst&c.dst: n=max(n,t)
        elif c.cls in("valu","trans","vmem","ds"):
            if p.dst&(c.src|c.dst): n=max(n,t)
            if cv and p.srcC&c.dst: n=max(n,{2:1,4:3,8:7}[p.passes])
    if p.cls=="vmem" and p.wide and p.data&c.dst: n=max(n,2)
    if p.cls=="salu" and ("s","m0") in p.dst and ((c.cls=="vmem" and c.lds) or "addtid" in c.mn or c.mn.startswith(("s_movrel","s_sendmsg"))): n=max(n,1)
    return n

def pad_hazards(lines):
    items=[]
    for l in lines:
        s=l.split(";")[0].strip()
        if not s or s.startswith(".") and not s.endswith(":"): items.append(("raw",l))
        elif s.endswith(":"): items.append(("label",s[:-1],l))
        else: items.append(("ins",Ins(l)))
    labelpos={it[1]:i for i,it in enumerate(items) if it[0]=="label"}
    out=[]; hist=[]
    def req(hist,c,extra=0):
        d=extra; worst=0
        for p in reversed(hist[-24:]):
            n=need(p,c)
            if n-d>worst: worst=n-d
            d+=p.ws
            if d>=20: break
        return worst
    def nops(k):
        r=[]
        while k>0:
            m=min(k,16); r.append(Ins(f"s_nop {m-1}")); k-=m
        return r
    for i,it in enumerate(items):
        if it[0]!="ins":
            out.append(it[-1]); continue
        c=it[1]
        k=req(hist,c)
        if c.cls=="branch" and c.target in labelpos:
            d=1; j=labelpos[c.target]
            while j<len(items) and d<20:
                if items[j][0]=="ins":
                    t=items[j][1]
                    k=max(k,req(hist,t,extra=d))
                    d+=t.ws
                    if t.mn in("s_branch","s_endpgm"): break
                j+=1
        for n in nops(k):
            out.append("    "+n.text); hist.append(n)
        out.append(c.text); hist.append(c)
        if c.mn in("s_branch","s_endpgm"): hist=[]
    return out

class Asm:
    def __init__(self): self.l=[]; self._n=0
    def __call__(self,s):
        for x in s.strip("\n").split("\n"):
            x=x.strip()
            if x: self.l.append(x if x.endswith(":") else "    "+x)
    def label(self,name): self.l.append(name+":")
    def newlabel(self,p="L"):
        self._n+=1; return f"{p}_{self._n}"
    def c(self,s): self.l.append("    ; "+s)

def vr(a,n=1): return f"v{a}" if n==1 else f"v[{a}:{a+n-1}]"
def sr(a,n=1): return f"s{a}" if n==1 else f"s[{a}:{a+n-1}]"
def ar(a,n=1): return f"a{a}" if n==1 else f"a[{a}:{a+n-1}]"
import struct
def f32(x): return "0x%08x"%struct.unpack("<I",struct.pack("<f",x))[0]
```

```python
import sys, math
from asmlib import *

NAME="sequential_preLN__ssm_conv_s4d__glu_gated_geglu__prompt"
WS_STATS=0x0000
WS_CS   =0x10000
WS_HT   =0x100000
WS_HM   =0x400000
LOG2E=1.4426950408889634
def split_hi_lo(x,bits=12):
    import struct
    u=struct.unpack("<I",struct.pack("<f",x))[0] & (0xffffffff<<(23-bits+1)) & 0xffffffff
    hi=struct.unpack("<f",struct.pack("<I",u))[0]
    return hi, x-hi
L2E_HI,L2E_LO=split_hi_lo(LOG2E)

def kd(name,vgpr,sgpr,acc=None):
    nv=vgpr; ao=acc if acc is not None else (vgpr+3)//4*4
    return f""".p2align 6
.amdhsa_kernel {name}
  .amdhsa_next_free_vgpr {nv}
  .amdhsa_next_free_sgpr {sgpr}
  .amdhsa_accum_offset {ao}
  .amdhsa_group_segment_fixed_size 0
  .amdhsa_kernarg_size 112
  .amdhsa_user_sgpr_count 2
  .amdhsa_user_sgpr_kernarg_segment_ptr 1
  .amdhsa_system_sgpr_workgroup_id_x 1
  .amdhsa_float_denorm_mode_32 3
.end_amdhsa_kernel"""

def head(A,name):
    A.l += [f".globl {name}", ".p2align 8", f".type {name},@function"]
    A.label(name)

def bf16round(A,dst,src):
    A(f"v_cvt_pk_bf16_f32 v{dst}, v{src}, v{src}")
    A(f"v_and_b32 v{dst}, 0xffff0000, v{dst}")

def wave_sum_dpp(A,regs_):
    for ctl in ("row_shr:1","row_shr:2","row_shr:4","row_shr:8"):
        for r in regs_:
            A(f"v_add_f32_dpp v{r}, v{r}, v{r} {ctl} row_mask:0xf bank_mask:0xf bound_ctrl:0")
    for r in regs_: A(f"v_add_f32_dpp v{r}, v{r}, v{r} row_bcast:15 row_mask:0xa bank_mask:0xf")
    for r in regs_: A(f"v_add_f32_dpp v{r}, v{r}, v{r} row_bcast:31 row_mask:0xc bank_mask:0xf")

def ln_finish(A,S,Q,T,n):
    A(f"v_mul_f32 v{S}, {f32(1.0/n)}, v{S}")
    A(f"v_mul_f32 v{T}, v{S}, v{S}")
    A(f"v_fma_f32 v{Q}, v{Q}, s{SK_INVN}, -v{T}")
    A(f"v_max_f32 v{Q}, 0, v{Q}")
    bf16round(A,Q,Q)
    A(f"v_add_f32 v{Q}, {f32(1e-5)}, v{Q}")
    bf16round(A,Q,Q)
    A(f"v_sqrt_f32 v{Q}, v{Q}")
SK_INVN=90

def row_stats(A,X,S,Q,T,sOnes):
    A(f"v_dot2_f32_bf16 v{S}, v{X}, s{sOnes}, 0")
    A(f"v_dot2_f32_bf16 v{Q}, v{X}, v{X}, 0")
    for j in range(1,4):
        A(f"v_dot2_f32_bf16 v{S}, v{X+j}, s{sOnes}, v{S}")
        A(f"v_dot2_f32_bf16 v{Q}, v{X+j}, v{X+j}, v{Q}")
    wave_sum_dpp(A,[S,Q])
    ln_finish(A,S,Q,T,512)
    A(f"v_cvt_pk_bf16_f32 v{S}, v{S}, v{Q}")

def gen_ks():
    A=Asm(); head(A,"ks_kernel")
    A(f"""
    s_cmp_ge_u32 s2, 256
    s_cbranch_scc1 ks_end
    s_load_dwordx2 s[4:5], s[0:1], 0
    s_load_dwordx2 s[6:7], s[0:1], 104
    s_lshl_b32 s8, s2, 13
    v_lshlrev_b32 v1, 4, v0
    v_add_u32 v1, s8, v1
    s_mov_b32 s9, 0x3f803f80
    s_mov_b32 s{SK_INVN}, {f32(1/512)}
    s_waitcnt lgkmcnt(0)
    global_load_dwordx4 v[4:7], v1, s[4:5]
    v_lshrrev_b32 v2, 6, v0
    v_lshlrev_b32 v2, 3, v2
    s_lshl_b32 s8, s2, 6
    v_add_u32 v2, s8, v2
    s_waitcnt vmcnt(0)
    """)
    row_stats(A,4,8,10,11,9)
    A(f"""
    v_mov_b32 v9, 0
    s_mov_b32 exec_lo, 0
    s_mov_b32 exec_hi, 0x80000000
    global_store_dwordx2 v2, v[8:9], s[6:7] offset:{WS_STATS}
    """)
    A.label("ks_end"); A("s_endpgm")
    return A.l, kd("ks_kernel",16,96)

EF_PITCH=528; EF_ROWS=72; EF_CH=EF_PITCH*EF_ROWS
KIMG=2*EF_CH+64; IMG=4160; KIMG_CH=4*IMG
UB=KIMG+2*KIMG_CH; U_CH=96*80
KA_LDS=UB+2*U_CH
YP=9216
def erows():
    m={}
    def add(a,r): m.setdefault(a,[]).append(r)
    for h in range(2):
        for i in range(4):
            add(4*h+i, 4*h+i)
            if i<3: add(4*h+4+i, 8+4*h+i)
            add(256+4*h+2*i, 16+4*h+i)
            if i<3: add(512+256*h+4*i, 24+4*h+i)
            add(1024+512*h+256*(i>>1)+8*(i&1), 32+4*h+i)
    return m

def cmul(A,d,a,b,t):
    A(f"v_mul_f32 v{t}, v{a}, v{b}")
    A(f"v_mul_f32 v{t+1}, v{a}, v{b+1}")
    A(f"v_fma_f32 v{d}, -v{a+1}, v{b+1}, v{t}")
    A(f"v_fma_f32 v{d+1}, v{a+1}, v{b}, v{t+1}")

def exp_bf16(A,x,t):
    A(f"v_mul_f32 v{t}, {f32(L2E_HI)}, v{x}")
    A(f"v_rndne_f32 v{t+1}, v{t}")
    A(f"v_sub_f32 v{t}, v{t}, v{t+1}")
    A(f"v_fmamk_f32 v{t}, v{x}, {f32(L2E_LO)}, v{t}")
    A(f"v_exp_f32 v{t}, v{t}")
    A(f"v_cvt_i32_f32 v{t+1}, v{t+1}")
    A(f"v_ldexp_f32 v{x}, v{t}, v{t+1}")
    bf16round(A,x,x)

def cexp(A,d,zr,zi,s,t):
    if s==1:
        A(f"v_exp_f32 v{t}, v{zr}")
        A(f"v_fract_f32 v{t+1}, v{zi}")
    else:
        A(f"v_mul_f32 v{t}, {f32(float(s))}, v{zr}")
        A(f"v_mul_f32 v{t+1}, {f32(float(s))}, v{zi}")
        A(f"v_exp_f32 v{t}, v{t}")
        A(f"v_fract_f32 v{t+1}, v{t+1}")
    A(f"v_cos_f32 v{d}, v{t+1}")
    A(f"v_sin_f32 v{d+1}, v{t+1}")
    A(f"v_mul_f32 v{d}, v{t}, v{d}")
    A(f"v_mul_f32 v{d+1}, v{t}, v{d+1}")

def gen_ka():
    A=Asm(); head(A,"ka_kernel")
    sW=36; sCH=37; sD0=38; sT=39; sT2=40; sHALF=41; sEX=42
    vL=1; vT=2
    vXC=4
    vST=8
    vP=16
    vAD=21
    vDS=22
    vX=24
    vUD=32
    vW=40
    A(f"""
    s_cmp_ge_u32 s2, 256
    s_cbranch_scc1 ka_end
    s_load_dwordx16 s[4:19], s[0:1], 0
    s_load_dwordx4 s[28:31], s[0:1], 96
    s_load_dwordx8 s[20:27], s[0:1], 64
    v_lshrrev_b32 v{vT}, 6, v0
    v_and_b32 v{vL}, 63, v0
    v_readfirstlane_b32 s{sW}, v{vT}
    s_and_b32 s{sT}, s2, 7
    s_lshl_b32 s{sT}, s{sT}, 6
    s_lshr_b32 s{sT2}, s2, 3
    s_lshl_b32 s{sT2}, s{sT2}, 1
    s_add_u32 s{sD0}, s{sT}, s{sT2}
    s_and_b32 s{sCH}, s{sW}, 1
    s_lshr_b32 s{sHALF}, s{sW}, 1
    s_and_b32 s{sHALF}, s{sHALF}, 1
    """)
    A(f"""
    s_add_u32 s{sT}, s{sD0}, s{sCH}
    s_lshl_b32 s{sT2}, s{sT}, 1
    v_mov_b32 v{vT+1}, s{sT2}
    s_lshl_b32 s{sT}, s{sT}, 8
    s_lshl_b32 s{sT2}, s{sHALF}, 7
    s_add_u32 s{sT}, s{sT}, s{sT2}
    v_lshl_add_u32 v{vT}, v{vL}, 1, s{sT}
    s_lshl_b32 s{sT}, s{sD0}, 1
    v_lshl_add_u32 v{vAD}, v0, 12, s{sT}
    v_mov_b32 v{vW}, s{sT}
    v_lshlrev_b32 v{vW+1}, 5, v0
    s_waitcnt lgkmcnt(0)
    global_load_ushort v{vP}, v{vT}, s[6:7]
    global_load_ushort v{vP+1}, v{vT}, s[8:9]
    global_load_ushort v{vP+4}, v{vT+1}, s[14:15]
    global_load_ushort v{vP+2}, v{vT}, s[10:11]
    global_load_ushort v{vP+3}, v{vT}, s[12:13]
    global_load_dword v{vDS}, v{vW}, s[16:17]
    """)
    for j in range(4): A(f"global_load_dword v{vXC+j}, v{vAD}, s[4:5] offset:{1024*j}")
    A(f"global_load_dwordx4 v[{vST}:{vST+3}], v{vW+1}, s[30:31] offset:{WS_STATS}")
    A(f"global_load_dwordx4 v[{vST+4}:{vST+7}], v{vW+1}, s[30:31] offset:{WS_STATS+16}")
    A(f"""
    v_mov_b32 v{vW+2}, 0
    v_mov_b32 v{vW+3}, 0
    v_lshlrev_b32 v{vW}, 3, v0
    v_cmp_gt_u32 vcc, 320, v0
    s_and_saveexec_b64 s[{sEX}:{sEX+1}], vcc
    v_add_u32 v{vW}, {UB}, v{vW}
    ds_write_b64 v{vW}, v[{vW+2}:{vW+3}]
    ds_write_b64 v{vW}, v[{vW+2}:{vW+3}] offset:{U_CH}
    s_mov_b64 exec, s[{sEX}:{sEX+1}]
    v_lshrrev_b32 v{vW}, 3, v{vL}
    v_mul_u32_u24 v{vW}, {IMG}, v{vW}
    v_and_b32 v{vW+1}, 7, v{vL}
    v_lshl_add_u32 v{vW}, v{vW+1}, 3, v{vW}
    v_add_u32 v{vW}, {KIMG+4096}, v{vW}
    ds_write_b64 v{vW}, v[{vW+2}:{vW+3}]
    """)
    A(f"""
    s_mul_i32 s{sT}, s{sCH}, {EF_CH}
    s_lshl_b32 s{sT2}, s{sHALF}, 8
    s_add_u32 s{sT}, s{sT}, s{sT2}
    v_lshl_add_u32 v{vAD}, v{vL}, 2, s{sT}
    s_waitcnt vmcnt(9)
    v_lshlrev_b32 v{vP}, 16, v{vP}
    v_lshlrev_b32 v{vP+1}, 16, v{vP+1}
    v_lshlrev_b32 v{vP+4}, 16, v{vP+4}
    """)
    exp_bf16(A,vP,vT); exp_bf16(A,vP+4,vT)
    zr=vP; zi=vP+1
    A(f"""
    v_mul_f32 v{zr}, v{zr}, v{vP+4}
    v_mul_f32 v{zi}, v{zi}, v{vP+4}
    v_mul_f32 v{zr}, {f32(-LOG2E)}, v{zr}
    v_mul_f32 v{zi}, 0.15915494, v{zi}
    s_cmp_ge_u32 s{sW}, 4
    s_cbranch_scc1 ka_frole
    """)
    er=erows()
    pk=[vW+30,vW+31,vW+32,vW+33]; pkc=[0]
    def put(reg,a):
        p=pk[pkc[0]%4]; pkc[0]+=1
        A(f"v_cvt_pk_bf16_f32 v{p}, v{reg}, v{reg+1}")
        for r in er[a]: A(f"ds_write_b32 v{vAD}, v{p} offset:{r*EF_PITCH}")
    w1=vW; w2=vW+2; w4=vW+4; w8=vW+6; wB=vW+8; q=vW+10; e=vW+12; e2=vW+14; t=vW+16; t2=vW+18
    A(f"v_sub_f32 v{zi}, 0, v{zi}")
    cexp(A,w1,zr,zi,1,t); cexp(A,wB,zr,zi,256,t2)
    A(f"""
    s_waitcnt vmcnt(7)
    v_lshlrev_b32 v{vP+2}, 16, v{vP+2}
    v_lshlrev_b32 v{vP+3}, 16, v{vP+3}
    v_mul_f32 v{q}, v{vP+2}, v{vP+4}
    v_mul_f32 v{q+1}, v{vP+3}, v{vP+4}
    v_add_f32 v{q}, v{q}, v{q}
    v_mul_f32 v{q+1}, -2.0, v{q+1}
    """)
    cmul(A,w2,w1,w1,t); cmul(A,w4,w2,w2,t); cmul(A,w8,w4,w4,t)
    put(q,0)
    src=q
    for a in range(1,11):
        cmul(A,e,src,w1,t); put(e,a); src=e
    cmul(A,q,q,wB,t2); put(q,256); src=q
    for a in range(2,12,2):
        cmul(A,e,src,w2,t); put(e,256+a); src=e
    for m in (2,3):
        cmul(A,q,q,wB,t2); put(q,256*m)
        cmul(A,e,q,w4,t); put(e,256*m+4)
        cmul(A,e2,q,w8,t); put(e2,256*m+8)
    for m in (4,5,6,7):
        cmul(A,q,q,wB,t2); put(q,256*m)
        cmul(A,e,q,w8,t); put(e,256*m+8)
    A("s_branch ka_ef_done")
    A.label("ka_frole")
    cexp(A,w8,zr,zi,8,t)
    def putf(reg,c):
        p=pk[pkc[0]%4]; pkc[0]+=1
        A(f"v_cvt_pk_bf16_f32 v{p}, v{reg}, v{reg+1}")
        A(f"ds_write_b32 v{vAD}, v{p} offset:{(40+c)*EF_PITCH}")
    A(f"v_mov_b32 v{pk[3]}, 0x3f80")
    A(f"ds_write_b32 v{vAD}, v{pk[3]} offset:{40*EF_PITCH}")
    putf(w8,1)
    cmul(A,w2,w8,w8,t); putf(w2,2)
    so=w8; se=w2
    for c in range(3,32):
        if c&1: cmul(A,e,so,w2,t); putf(e,c); so=e
        else:   cmul(A,e2,se,w2,t2); putf(e2,c); se=e2
    A.label("ka_ef_done")
    A("s_waitcnt lgkmcnt(0)")
    A("s_barrier")
    A(f"s_cmp_ge_u32 s{sW}, 4")
    A("s_cbranch_scc1 ka_norm")
    acc=vW+40
    fa=vW+56; fb=vW+88
    aA=vW; aB=vW+1; q5=vW+2; hh=vW+3
    A(f"""
    v_and_b32 v{q5}, 31, v{vL}
    v_lshrrev_b32 v{hh}, 5, v{vL}
    s_mul_i32 s{sT}, s{sCH}, {EF_CH}
    v_mul_u32_u24 v{aB}, {EF_PITCH}, v{q5}
    v_lshl_add_u32 v{aB}, v{hh}, 4, v{aB}
    v_add_u32 v{aB}, s{sT}, v{aB}
    s_mul_i32 s{sT2}, s{sHALF}, {32*EF_PITCH}
    v_add_u32 v{aA}, s{sT2}, v{aB}
    """)
    for blk in range(2):
        for s in range(8):
            A(f"ds_read_b128 v[{fa+4*s}:{fa+4*s+3}], v{aA} offset:{32*(8*blk+s)}")
            A(f"ds_read_b128 v[{fb+4*s}:{fb+4*s+3}], v{aB} offset:{40*EF_PITCH+32*(8*blk+s)}")
            if s>=4 or True: pass
        for s in range(8):
            A(f"s_waitcnt lgkmcnt({min(15,14-2*s)})")
            c = "0" if (blk==0 and s==0) else f"v[{acc}:{acc+15}]"
            A(f"v_mfma_f32_32x32x16_bf16 v[{acc}:{acc+15}], v[{fa+4*s}:{fa+4*s+3}], v[{fb+4*s}:{fb+4*s+3}], {c}")
    wa=vW+4; wa2=vW+5; pr=vW+8
    A(f"""
    s_mul_i32 s{sT}, s{sCH}, {KIMG_CH}
    s_add_u32 s{sT}, s{sT}, {KIMG}
    v_lshlrev_b32 v{wa2}, 4, v{q5}
    v_sub_u32 v{wa2}, s{sT}, v{wa2}
    s_cmp_eq_u32 s{sHALF}, 1
    s_cbranch_scc1 ka_img2
    """)
    npair=[0]
    def wwin(addr,k,rho,bbase,maxoff_b):
        lam=rho+3; iota=lam&3; b=bbase+(lam>>2)
        p=pr+2*(npair[0]%8); npair[0]+=1
        A(f"v_cvt_pk_bf16_f32 v{p}, v{k[rho+3]}, v{k[rho+2]}")
        A(f"v_cvt_pk_bf16_f32 v{p+1}, v{k[rho+1]}, v{k[rho]}")
        off=iota*IMG+8*(511-b)
        assert off>=0
        A(f"ds_write_b64 v{addr}, v[{p}:{p+1}] offset:{off}")
    A(f"""
    v_lshlrev_b32 v{wa}, 3, v{hh}
    v_sub_u32 v{wa}, v{wa2}, v{wa}
    v_lshlrev_b32 v{vW+6}, 9, v{hh}
    v_sub_u32 v{wa2}, v{wa2}, v{vW+6}
    v_cmp_eq_u32 vcc, 63, v{vL}
    v_cndmask_b32 v{acc+5}, v{acc+5}, v{acc+4}, vcc
    v_cndmask_b32 v{acc+11}, v{acc+11}, v{acc+10}, vcc
    """)
    k=[acc+i for i in range(7)]
    for rho in range(4): wwin(wa,k,rho,0,0)
    A(f"v_mov_b32 v{vW+7}, 0")
    A(f"s_mov_b64 exec, 1")
    z=vW+7
    kz=[z,z,z,acc,acc+1,acc+2]
    for rho in range(3):
        p=pr+2*(npair[0]%8); npair[0]+=1
        A(f"v_cvt_pk_bf16_f32 v{p}, v{kz[rho+3]}, v{kz[rho+2]}")
        A(f"v_cvt_pk_bf16_f32 v{p+1}, v{kz[rho+1]}, v{kz[rho]}")
        A(f"ds_write_b64 v{wa}, v[{p}:{p+1}] offset:{rho*IMG+8*511}")
    A(f"s_mov_b64 exec, -1")
    v=[acc+8+i for i in range(4)]
    k=[v[0],v[0],v[1],v[2],v[2],v[2],v[3]]
    for rho in range(4): wwin(wa,k,rho,64,0)
    v=[acc+12+i for i in range(3)]
    k=[v[i] for i in (0,0,0,1,1,1,2,2,2,2,2)]
    for rho in range(8): wwin(wa2,k,rho,128,0)
    A("s_branch ka_norm")
    A.label("ka_img2")
    A(f"""
    v_lshlrev_b32 v{vW+6}, 10, v{hh}
    v_sub_u32 v{wa2}, v{wa2}, v{vW+6}
    v_and_b32 v{vW+6}, 1, v{vL}
    v_cmp_eq_u32 vcc, 1, v{vW+6}
    v_cndmask_b32 v{acc+4}, v{acc}, v{acc+1}, vcc
    v_cndmask_b32 v{acc+5}, v{acc+2}, v{acc+3}, vcc
    """)
    for blk in range(2):
        v0_=acc+2*blk; v1_=v0_+1; T=acc+4+blk
        k=[v0_]*4+[T]+[v1_]*6
        for rho in range(8): wwin(wa2,k,rho,256+64*blk,0)
    A.label("ka_norm")
    m=vW; s_=vW+1; a0=vW+2; a1=vW+3; u0=vW+4; u1=vW+8; pu=vW+12
    A("s_waitcnt vmcnt(0)")
    for j in range(4):
        A(f"v_lshlrev_b32 v{vX+j}, 16, v{vXC+j}")
        A(f"v_and_b32 v{vX+4+j}, 0xffff0000, v{vXC+j}")
    for j in range(4):
        st=vST+2*j
        A(f"""
        v_and_b32 v{s_}, 0xffff0000, v{st}
        v_rcp_f32 v{s_}, v{s_}
        v_lshlrev_b32 v{m}, 16, v{st}
        v_sub_f32 v{a0}, v{vX+j}, v{m}
        v_sub_f32 v{a1}, v{vX+4+j}, v{m}
        v_cvt_pk_bf16_f32 v{a0}, v{a0}, v{a1}
        v_and_b32 v{a1}, 0xffff0000, v{a0}
        v_lshlrev_b32 v{a0}, 16, v{a0}
        v_mul_f32 v{u0+j}, v{a0}, v{s_}
        v_mul_f32 v{u1+j}, v{a1}, v{s_}
        """)
    A(f"""
    v_cvt_pk_bf16_f32 v{pu}, v{u0}, v{u0+1}
    v_cvt_pk_bf16_f32 v{pu+1}, v{u0+2}, v{u0+3}
    v_cvt_pk_bf16_f32 v{pu+2}, v{u1}, v{u1+1}
    v_cvt_pk_bf16_f32 v{pu+3}, v{u1+2}, v{u1+3}
    v_lshrrev_b32 v{m}, 3, v0
    v_mul_u32_u24 v{m}, 80, v{m}
    v_and_b32 v{s_}, 7, v0
    v_lshl_add_u32 v{m}, v{s_}, 3, v{m}
    v_add_u32 v{m}, {UB+32*80}, v{m}
    ds_write_b64 v{m}, v[{pu}:{pu+1}]
    ds_write_b64 v{m}, v[{pu+2}:{pu+3}] offset:{U_CH}
    v_and_b32 v{vDS+1}, 0xffff0000, v{vDS}
    v_lshlrev_b32 v{vDS}, 16, v{vDS}
    """)
    for c in range(2):
        for pp in range(2):
            r=pu+2*c+pp; d=vUD+4*c+2*pp
            A(f"""
            v_lshlrev_b32 v{d}, 16, v{r}
            v_and_b32 v{d+1}, 0xffff0000, v{r}
            v_mul_f32 v{d}, v{d}, v{vDS+c}
            v_mul_f32 v{d+1}, v{d+1}, v{vDS+c}
            v_cvt_pk_bf16_f32 v{d}, v{d}, v{d+1}
            v_and_b32 v{d+1}, 0xffff0000, v{d}
            v_lshlrev_b32 v{d}, 16, v{d}
            """)
    A("s_waitcnt lgkmcnt(0)")
    A("s_barrier")
    A(f"s_cmp_ge_u32 s{sW}, 4")
    A("s_cbranch_scc1 ka_aux")
    acc0=vW+40; acc1=vW+56
    NB=3
    fr=vW+72
    aK=vW; aU=vW+1
    A(f"""
    v_and_b32 v{q5}, 31, v{vL}
    v_lshrrev_b32 v{hh}, 5, v{vL}
    v_and_b32 v{aK}, 3, v{vL}
    v_mul_u32_u24 v{aK}, {IMG}, v{aK}
    v_lshl_add_u32 v{aK}, v{hh}, 4, v{aK}
    v_lshrrev_b32 v{aU}, 2, v{q5}
    v_lshlrev_b32 v{aU}, 3, v{aU}
    v_sub_u32 v{aK}, v{aK}, v{aU}
    s_mul_i32 s{sT}, s{sCH}, {KIMG_CH}
    s_add_u32 s{sT}, s{sT}, {KIMG+4088-2*(480+1024)}
    s_lshl_b32 s{sT2}, s{sHALF}, 10
    s_sub_u32 s{sT}, s{sT}, s{sT2}
    v_add_u32 v{aK}, s{sT}, v{aK}
    v_mul_u32_u24 v{aU}, 80, v{q5}
    v_lshl_add_u32 v{aU}, v{hh}, 4, v{aU}
    s_mul_i32 s{sT}, s{sCH}, {U_CH}
    s_add_u32 s{sT}, s{sT}, {UB+80*(32-15)}
    s_mul_i32 s{sT2}, s{sHALF}, {80*16}
    s_sub_u32 s{sT}, s{sT}, s{sT2}
    v_add_u32 v{aU}, s{sT}, v{aU}
    """)
    def loads(i):
        b=fr+16*(i%NB)
        ko=2*16*(31-i)
        mu=i>>1; nu=i&1
        uo=80*(15-mu)+32*(1-nu)
        A(f"ds_read_b64 v[{b}:{b+1}], v{aK} offset:{ko+2048}")
        A(f"ds_read_b64 v[{b+2}:{b+3}], v{aK} offset:{ko+2048+8}")
        A(f"ds_read_b128 v[{b+8}:{b+11}], v{aU} offset:{uo}")
        A(f"ds_read_b128 v[{b+12}:{b+15}], v{aU} offset:{uo+32*80}")
        A(f"ds_read_b64 v[{b+4}:{b+5}], v{aK} offset:{ko}")
        A(f"ds_read_b64 v[{b+6}:{b+7}], v{aK} offset:{ko+8}")
    loads(0); loads(1)
    for i in range(32):
        b=fr+16*(i%NB)
        more = (i+1<32)
        A(f"s_waitcnt lgkmcnt({6 if more else 0})")
        c0="0" if i==0 else f"v[{acc0}:{acc0+15}]"
        c1="0" if i==0 else f"v[{acc1}:{acc1+15}]"
        A(f"v_mfma_f32_32x32x16_bf16 v[{acc0}:{acc0+15}], v[{b}:{b+3}], v[{b+8}:{b+11}], {c0}")
        if i+2<32: loads(i+2)
        A(f"v_mfma_f32_32x32x16_bf16 v[{acc1}:{acc1+15}], v[{b}:{b+3}], v[{b+12}:{b+15}], {c1}")
        A(f"v_mfma_f32_32x32x16_bf16 v[{acc1}:{acc1+15}], v[{b+4}:{b+7}], v[{b+8}:{b+11}], v[{acc1}:{acc1+15}]")
    A(f"""
    v_mul_u32_u24 v{aK}, 144, v{q5}
    v_lshl_add_u32 v{aK}, v{hh}, 4, v{aK}
    s_lshl_b32 s{sT}, s{sCH}, 1
    s_add_u32 s{sT}, s{sT}, s{sHALF}
    s_mul_i32 s{sT}, s{sT}, {YP}
    v_add_u32 v{aK}, s{sT}, v{aK}
    """)
    for c,ac in ((0,acc0),(1,acc1)):
        for g in range(4):
            A(f"ds_write_b128 v{aK}, v[{ac+4*g}:{ac+4*g+3}] offset:{144*32*c+32*g}")
    A("s_branch ka_fin")
    A.label("ka_aux")
    gen_ka_aux(A,locals())
    A.label("ka_fin")
    A("s_waitcnt lgkmcnt(0)")
    A("s_barrier")
    y=vW+8
    A(f"""
    v_lshrrev_b32 v{vW}, 3, v0
    v_mul_u32_u24 v{vW}, 144, v{vW}
    v_and_b32 v{vW+1}, 7, v0
    v_lshl_add_u32 v{vW}, v{vW+1}, 4, v{vW}
    """)
    for k_ in range(4): A(f"ds_read_b128 v[{y+4*k_}:{y+4*k_+3}], v{vW} offset:{YP*k_}")
    A(f"""
    s_lshl_b32 s{sT}, s{sD0}, 12
    s_add_u32 s{sT}, s{sT}, {WS_HT}
    v_lshl_add_u32 v{vW+1}, v0, 3, s{sT}
    v_add_u32 v{vW+2}, 4096, v{vW+1}
    """)
    o=vW+4
    for c in range(2):
        A(f"s_waitcnt lgkmcnt({2-2*c})")
        for pp in range(2):
            a=y+8*c+2*pp
            A(f"""
            v_add_f32 v{a}, v{a}, v{a+4}
            v_add_f32 v{a+1}, v{a+1}, v{a+5}
            v_cvt_pk_bf16_f32 v{a}, v{a}, v{a+1}
            v_and_b32 v{a+1}, 0xffff0000, v{a}
            v_lshlrev_b32 v{a}, 16, v{a}
            v_add_f32 v{a}, v{a}, v{vUD+4*c+2*pp}
            v_add_f32 v{a+1}, v{a+1}, v{vUD+4*c+2*pp+1}
            v_cvt_pk_bf16_f32 v{a}, v{a}, v{a+1}
            v_and_b32 v{a+1}, 0xffff0000, v{a}
            v_lshlrev_b32 v{a}, 16, v{a}
            v_add_f32 v{a}, v{a}, v{vX+4*c+2*pp}
            v_add_f32 v{a+1}, v{a+1}, v{vX+4*c+2*pp+1}
            v_cvt_pk_bf16_f32 v{o+2*c+pp}, v{a}, v{a+1}
            """)
        A(f"global_store_dwordx2 v{vW+1+c}, v[{o+2*c}:{o+2*c+1}], s[30:31]")
    gen_ka_tail(A,locals())
    A.label("ka_end"); A("s_endpgm")
    return A.l, kd("ka_kernel",160,96)

def gen_ka_aux(A,L): pass
def gen_ka_tail(A,L): pass

def build(kernels, launches, path):
    src=open(f"cdna_kernels/{NAME}.s.ref").read().split("\n")
    hdr=[l for l in src if l.startswith(";") and "@launch" not in l and "Override launch" not in l and "grid=ceil" not in l]
    out=hdr+[f"; @launch kernel={k} grid=({g},1,1) block=({b},1,1) lds={l}" for k,g,b,l in launches]
    out+=['.amdgcn_target "amdgcn-amd-amdhsa--gfx950"',".text"]
    kds=[]
    for g in kernels:
        l,k=g(); out+=pad_hazards(l); kds.append(k)
    out+=['.section .rodata,"a"']+kds
    open(path,"w").write("\n".join(out)+"\n")

if __name__=="__main__":
    build([gen_ks,gen_ka],[("ks_kernel",256,512,0),("ka_kernel",256,512,KA_LDS)],"out.s")
    print("KA_LDS",KA_LDS)
```

```python
from gen import *
import gen

CS_SCR=4*YP
def gen_ka_aux(A,L):
    vW=L["vW"]; vL=L["vL"]; sW=L["sW"]; sT=L["sT"]; sT2=L["sT2"]; sEX=L["sEX"]
    ad=vW; d=vW+8; S=vW+40; t=vW+48
    A(f"""
    s_cmp_ge_u32 s2, 86
    s_cbranch_scc1 ka_fin
    s_cmp_ge_u32 s2, 43
    s_cselect_b32 s44, s22, s20
    s_cselect_b32 s45, s23, s21
    s_cselect_b32 s{sT}, 43, 0
    s_sub_u32 s{sT}, s2, s{sT}
    s_lshl_b32 s{sT}, s{sT}, 6
    s_sub_u32 s{sT2}, s{sW}, 4
    s_mul_i32 s{sT2}, s{sT2}, {128*2752}
    s_add_u32 s{sT}, s{sT}, s{sT2}
    v_lshrrev_b32 v{ad}, 2, v{vL}
    v_mul_u32_u24 v{ad}, 2752, v{ad}
    v_and_b32 v{ad+1}, 3, v{vL}
    v_lshl_add_u32 v{ad}, v{ad+1}, 4, v{ad}
    v_add_u32 v{ad}, s{sT}, v{ad}
    """)
    for i in range(8):
        A(f"global_load_dwordx4 v[{d+4*i}:{d+4*i+3}], v{ad}, s[44:45]")
        if i<7: A(f"v_add_u32 v{ad}, {16*2752}, v{ad}")
    for i in range(8):
        A(f"s_waitcnt vmcnt({7-i})")
        for j in range(4):
            r=d+4*i+j
            if i==0:
                A(f"v_lshlrev_b32 v{S+2*j}, 16, v{r}")
                A(f"v_and_b32 v{S+2*j+1}, 0xffff0000, v{r}")
            else:
                A(f"v_lshlrev_b32 v{t}, 16, v{r}")
                A(f"v_and_b32 v{t+1}, 0xffff0000, v{r}")
                A(f"v_add_f32 v{S+2*j}, v{S+2*j}, v{t}")
                A(f"v_add_f32 v{S+2*j+1}, v{S+2*j+1}, v{t+1}")
    for ctl in ("row_shr:4","row_shr:8"):
        for j in range(8):
            A(f"v_add_f32_dpp v{S+j}, v{S+j}, v{S+j} {ctl} row_mask:0xf bank_mask:0xf bound_ctrl:0")
    A(f"""
    s_sub_u32 s{sT2}, s{sW}, 4
    s_lshl_b32 s{sT2}, s{sT2}, 9
    s_add_u32 s{sT2}, s{sT2}, {CS_SCR}
    v_lshrrev_b32 v{ad}, 4, v{vL}
    v_lshlrev_b32 v{ad}, 7, v{ad}
    v_lshl_add_u32 v{ad}, v{ad+1}, 5, v{ad}
    v_add_u32 v{ad}, s{sT2}, v{ad}
    s_mov_b32 exec_lo, 0xf000f000
    s_mov_b32 exec_hi, 0xf000f000
    ds_write_b128 v{ad}, v[{S}:{S+3}]
    ds_write_b128 v{ad}, v[{S+4}:{S+7}] offset:16
    s_mov_b64 exec, -1
    """)
def gen_ka_tail(A,L):
    vW=L["vW"]; vL=L["vL"]; sW=L["sW"]; sT=L["sT"]
    d=vW+40
    A(f"""
    s_cmp_ge_u32 s2, 86
    s_cbranch_scc1 ka_end
    s_cmp_lg_u32 s{sW}, 4
    s_cbranch_scc1 ka_end
    v_and_b32 v{vW}, 31, v{vL}
    v_lshlrev_b32 v{vW+1}, 2, v{vW}
    """)
    for i in range(16): A(f"ds_read_b32 v{d+i}, v{vW+1} offset:{CS_SCR+128*i}")
    A("s_waitcnt lgkmcnt(0)")
    for st in (8,4,2,1):
        for i in range(st): A(f"v_add_f32 v{d+i}, v{d+i}, v{d+i+st}")
    A(f"""
    v_cvt_pk_bf16_f32 v{d+1}, v{d}, v{d}
    v_and_b32 v{d+1}, 0xffff0000, v{d+1}
    v_sub_f32 v{d+1}, v{d}, v{d+1}
    v_cvt_pk_bf16_f32 v{d+2}, v{d}, v{d+1}
    v_and_b32 v{d+3}, 0xffff0000, v{d+2}
    v_sub_f32 v{d+3}, v{d+1}, v{d+3}
    v_cvt_pk_bf16_f32 v{d+3}, v{d+3}, 0
    s_lshl_b32 s{sT}, s2, 8
    s_add_u32 s{sT}, s{sT}, {WS_CS}
    v_lshl_add_u32 v{vW}, v{vW}, 3, s{sT}
    s_mov_b64 exec, 0xffffffff
    global_store_dwordx2 v{vW}, v[{d+2}:{d+3}], s[30:31]
    """)
gen.gen_ka_aux=gen_ka_aux; gen.gen_ka_tail=gen_ka_tail

def srd(A,d,base,off,size):
    if off:
        A(f"s_add_u32 s{d}, s{base}, {off}")
        A(f"s_addc_u32 s{d+1}, s{base+1}, 0")
    else:
        A(f"s_mov_b32 s{d}, s{base}")
        A(f"s_mov_b32 s{d+1}, s{base+1}")
    A(f"s_mov_b32 s{d+2}, {size}")
    A(f"s_mov_b32 s{d+3}, 0x20000")

B_SLOT=20544; B_R=7; B_G=8192; B_U=8192+6144+32; B_SCR=B_SLOT*B_R; KB_LDS=B_SCR+4096
GC1=-2.0*math.sqrt(2.0/math.pi)*LOG2E; GC2=GC1*0.044715
def gen_kb():
    A=Asm(); head(A,"kb_kernel")
    sW=36; sMB=37; sCB=38; sT=39; sT2=40; sSL=41; sJ=42; sHO=43; sWO=44; sM0H=45; sM0W=46; sIS=47
    sH=48; sWt=52; sC=56; sO=60
    vL=1
    A(f"""
    s_cmp_ge_u32 s2, 256
    s_cbranch_scc1 kb_end
    s_and_b32 s{sT}, s2, 1
    s_lshl_b32 s{sT}, s{sT}, 3
    s_lshr_b32 s{sT2}, s2, 5
    s_add_u32 s{sCB}, s{sT}, s{sT2}
    s_cmp_ge_u32 s{sCB}, 15
    s_cbranch_scc1 kb_end
    s_load_dwordx4 s[20:23], s[0:1], 64
    s_load_dwordx2 s[30:31], s[0:1], 104
    s_and_b32 s{sT}, s2, 6
    s_lshl_b32 s{sT}, s{sT}, 1
    s_bfe_u32 s{sT2}, s2, 0x20003
    s_add_u32 s{sMB}, s{sT}, s{sT2}
    v_lshrrev_b32 v2, 6, v0
    v_and_b32 v{vL}, 63, v0
    v_readfirstlane_b32 s{sW}, v2
    s_mov_b32 s{SK_INVN}, {f32(1/512)}
    s_cmp_lt_u32 s{sW}, 4
    s_cbranch_scc1 kb_cons
    """)
    vH=2; vWo=3
    vSA=6; vT=8; vD=12; S=20; Q=28
    A(f"""
    s_sub_u32 s{sW}, s{sW}, 4
    v_lshrrev_b32 v{vT}, 4, v{vL}
    v_lshlrev_b32 v{vT+1}, 2, v{vT}
    v_and_b32 v{vT+2}, 15, v{vL}
    v_xor_b32 v{vT+1}, v{vT+1}, v{vT+2}
    v_lshlrev_b32 v{vT+1}, 4, v{vT+1}
    v_lshl_add_u32 v{vH}, v{vT}, 12, v{vT+1}
    v_lshl_add_u32 v{vSA}, v{vT}, 8, v{vT+1}
    s_lshl_b32 s{sT}, s{sW}, 11
    v_add_u32 v{vSA}, s{sT}, v{vSA}
    """)
    for v in range(3):
        A(f"""
        v_add_u32 v{vT}, {64*v}, v{vL}
        v_mul_u32_u24 v{vT+1}, 0xaaab, v{vT}
        v_lshrrev_b32 v{vT+1}, 19, v{vT+1}
        v_mul_u32_u24 v{vT+2}, 12, v{vT+1}
        v_sub_u32 v{vT+2}, v{vT}, v{vT+2}
        v_mul_u32_u24 v{vT+1}, 2752, v{vT+1}
        v_lshl_add_u32 v{vWo+v}, v{vT+2}, 4, v{vT+1}
        """)
    for j in range(16): A(f"v_mov_b32 v{S+j}, 0")
    A(f"""
    s_lshl_b32 s{sHO}, s{sW}, 15
    s_lshl_b32 s{sT}, s{sMB}, 8
    s_add_u32 s{sHO}, s{sHO}, s{sT}
    s_and_b32 s{sT}, s{sW}, 1
    s_mul_i32 s{sWO}, s{sT}, {16*2752}
    s_mul_i32 s{sT2}, s{sCB}, 192
    s_add_u32 s{sWO}, s{sWO}, s{sT2}
    s_mul_i32 s{sM0W}, s{sT}, 3072
    s_lshr_b32 s{sT}, s{sW}, 1
    s_mul_i32 s{sT}, s{sT}, {B_U-B_G}
    s_add_u32 s{sM0W}, s{sM0W}, s{sT}
    s_add_u32 s{sM0W}, s{sM0W}, {B_G}
    s_lshl_b32 s{sM0H}, s{sW}, 11
    s_mov_b32 s{sIS}, 0
    s_waitcnt lgkmcnt(0)
    s_cmp_ge_u32 s{sW}, 2
    s_cselect_b32 s{sWt}, s22, s20
    s_cselect_b32 s{sWt+1}, s23, s21
    s_mov_b32 s{sWt+2}, {512*2752}
    s_mov_b32 s{sWt+3}, 0x20000
    """)
    srd(A,sH,30,WS_HT,512*4096)
    def issue():
        A(f"""
        s_add_u32 m0, s{sIS}, s{sM0H}
        s_add_u32 s{sT}, s{sHO}, 16384
        buffer_load_dwordx4 v{vH}, s[{sH}:{sH+3}], s{sHO} offen lds
        s_add_u32 m0, m0, 1024
        s_add_u32 s{sHO}, s{sHO}, {32*4096}
        buffer_load_dwordx4 v{vH}, s[{sH}:{sH+3}], s{sT} offen lds
        s_add_u32 m0, s{sIS}, s{sM0W}
        s_add_u32 s{sIS}, s{sIS}, {B_SLOT}
        buffer_load_dwordx4 v{vWo}, s[{sWt}:{sWt+3}], s{sWO} offen lds
        s_add_u32 m0, m0, 1024
        s_cmp_ge_u32 s{sIS}, {B_SLOT*B_R}
        buffer_load_dwordx4 v{vWo+1}, s[{sWt}:{sWt+3}], s{sWO} offen lds
        s_cselect_b32 s{sIS}, 0, s{sIS}
        s_add_u32 m0, m0, 1024
        s_nop 0
        buffer_load_dwordx4 v{vWo+2}, s[{sWt}:{sWt+3}], s{sWO} offen lds
        s_add_u32 s{sWO}, s{sWO}, {32*2752}
        """)
    A(f"s_mov_b32 s{sJ}, 0")
    A.label("kb_pro")
    issue()
    A(f"""
    s_add_u32 s{sJ}, s{sJ}, 1
    s_cmp_lt_u32 s{sJ}, {B_R-1}
    s_cbranch_scc1 kb_pro
    s_mov_b32 s{sJ}, 0
    s_mov_b32 s{sSL}, 0
    """)
    A.label("kb_lloop")
    A(f"s_waitcnt vmcnt({5*(B_R-2)})")
    A("s_barrier")
    A(f"v_add_u32 v{vT}, s{sSL}, v{vSA}")
    A(f"ds_read_b128 v[{vD}:{vD+3}], v{vT}")
    A(f"ds_read_b128 v[{vD+4}:{vD+7}], v{vT} offset:1024")
    issue()
    A(f"""
    s_add_u32 s{sSL}, s{sSL}, {B_SLOT}
    s_cmp_ge_u32 s{sSL}, {B_SLOT*B_R}
    s_cselect_b32 s{sSL}, 0, s{sSL}
    """)
    for i in range(2):
        A(f"s_waitcnt lgkmcnt({1-i})")
        for j in range(4):
            r=vD+4*i+j
            A(f"""
            v_lshlrev_b32 v{vT}, 16, v{r}
            v_and_b32 v{vT+1}, 0xffff0000, v{r}
            v_add_f32 v{S+2*j}, v{S+2*j}, v{vT}
            v_add_f32 v{S+2*j+1}, v{S+2*j+1}, v{vT+1}
            v_fmac_f32 v{Q+2*j}, v{vT}, v{vT}
            v_fmac_f32 v{Q+2*j+1}, v{vT+1}, v{vT+1}
            """)
    A(f"""
    s_add_u32 s{sJ}, s{sJ}, 1
    s_cmp_lt_u32 s{sJ}, 16
    s_cbranch_scc1 kb_lloop
    """)
    for j in range(8): A(f"v_permlane32_swap_b32 v{S+j}, v{Q+j}")
    for j in range(8): A(f"v_add_f32 v{S+j}, v{S+j}, v{Q+j}")
    for j in range(4): A(f"v_permlane16_swap_b32 v{S+j}, v{S+j+4}")
    for j in range(4): A(f"v_add_f32 v{S+j}, v{S+j}, v{S+j+4}")
    A(f"""
    v_and_b32 v{vT}, 15, v{vL}
    v_lshlrev_b32 v{vT}, 5, v{vT}
    v_and_b32 v{vT+1}, 16, v{vL}
    v_add_u32 v{vT}, v{vT}, v{vT+1}
    v_and_b32 v{vT+1}, 32, v{vL}
    v_lshl_add_u32 v{vT}, v{vT+1}, 4, v{vT}
    s_lshl_b32 s{sT}, s{sW}, 10
    s_add_u32 s{sT}, s{sT}, {B_SCR}
    v_add_u32 v{vT}, s{sT}, v{vT}
    ds_write_b128 v{vT}, v[{S}:{S+3}]
    s_waitcnt lgkmcnt(0)
    s_barrier
    s_waitcnt vmcnt(0)
    s_endpgm
    """)
    A.label("kb_cons")
    sWT=43; sWF=44
    aH=2; aW=4; cH=6; cW=8; vT=10
    CSF=16
    FA=28; FB=48
    ACC=68
    A(f"""
    s_and_b32 s{sWT}, s{sW}, 1
    s_lshr_b32 s{sWF}, s{sW}, 1
    v_bfe_u32 v{vT}, v{vL}, 2, 2
    v_lshrrev_b32 v{vT+1}, 5, v{vL}
    v_lshl_add_u32 v{vT+1}, v{vT+1}, 3, v{vT}
    v_and_b32 v{vT+2}, 3, v{vL}
    v_bfe_u32 v{vT+3}, v{vL}, 4, 1
    v_lshlrev_b32 v{vT+4}, 8, v{vT+1}
    v_lshl_add_u32 v{vT+4}, v{vT+3}, 5, v{vT+4}
    v_lshl_add_u32 v{vT+4}, v{vT+2}, 3, v{vT+4}
    s_lshl_b32 s{sT}, s{sWT}, 1
    v_xor_b32 v{vT+5}, s{sT}, v{vT}
    v_lshl_add_u32 v{aH}, v{vT+5}, 6, v{vT+4}
    v_xor_b32 v{vT+5}, 1, v{vT+5}
    v_lshl_add_u32 v{aH+1}, v{vT+5}, 6, v{vT+4}
    v_mul_u32_u24 v{aW}, 192, v{vT+1}
    v_mul_u32_u24 v{vT+4}, {B_U-B_G}, v{vT+3}
    v_add_u32 v{aW}, v{aW}, v{vT+4}
    v_and_b32 v{vT+4}, 1, v{vL}
    v_lshl_add_u32 v{aW}, v{vT+4}, 4, v{aW}
    v_bfe_u32 v{vT+4}, v{vL}, 1, 1
    v_lshl_add_u32 v{aW}, v{vT+4}, 3, v{aW}
    s_mul_i32 s{sT}, s{sWF}, 96
    s_add_u32 s{sT}, s{sT}, {B_G}
    v_add_u32 v{aW}, s{sT}, v{aW}
    """)
    A(f"""
    v_and_b32 v{vT+4}, 1, v{vT}
    v_lshl_add_u32 v{vT+4}, v{vT+4}, 3, v{vT+2}
    v_lshrrev_b32 v{vT+5}, 1, v{vT}
    v_lshl_add_u32 v{vT+4}, v{vT+5}, 2, v{vT+4}
    v_mul_u32_u24 v{vT+5}, 1376, v{vT+3}
    v_add_u32 v{vT+4}, v{vT+4}, v{vT+5}
    s_mul_i32 s{sT}, s{sCB}, 96
    s_mul_i32 s{sT2}, s{sWF}, 48
    s_add_u32 s{sT}, s{sT}, s{sT2}
    v_add_lshl_u32 v{vT+4}, v{vT+4}, s{sT}, 3
    v_and_b32 v{vT+5}, 32, v{vL}
    v_lshl_add_u32 v{vT+4}, v{vT+5}, 20, v{vT+4}
    s_waitcnt lgkmcnt(0)
    """)
    srd(A,sC,30,WS_CS,2*1376*8)
    srd(A,sO,30,WS_HM,64*86*1024)
    for rt in range(3):
        A(f"buffer_load_dwordx2 v[{CSF+4*rt}:{CSF+4*rt+1}], v{vT+4}, s[{sC}:{sC+3}], 0 offen offset:{128*rt}")
        A(f"v_mov_b32 v{CSF+4*rt+2}, 0"); A(f"v_mov_b32 v{CSF+4*rt+3}, 0")
    for r in range(FB,FB+20): A(f"v_mov_b32 v{r}, 0")
    for r in range(ACC,ACC+96): A(f"v_mov_b32 v{r}, 0")
    A(f"s_mov_b32 s{sJ}, 0"); A(f"s_mov_b32 s{sSL}, 0")
    def rd(F,ks):
        out=[]
        for rt in range(3):
            for e in range(2):
                out.append(f"ds_read_b64_tr_b16 v[{F+8+4*rt+2*e}:{F+8+4*rt+2*e+1}], v{cW} offset:{(16*ks+4*e)*192+32*rt}")
            if rt<2:
                for e in range(2):
                    out.append(f"ds_read_b64_tr_b16 v[{F+4*rt+2*e}:{F+4*rt+2*e+1}], v{cH+rt} offset:{(16*ks+4*e)*256}")
        return out
    def mm(F):
        out=[]
        for rt in range(3):
            for ct in range(2):
                a=ACC+16*(2*rt+ct)
                out.append(f"v_mfma_f32_32x32x16_bf16 v[{a}:{a+15}], v[{F+8+4*rt}:{F+8+4*rt+3}], v[{F+4*ct}:{F+4*ct+3}], v[{a}:{a+15}]")
        return out
    def inter(ms,rs,per=3):
        i=0
        for m in ms:
            A(m)
            for _ in range(per):
                if i<len(rs): A(rs[i]); i+=1
    A.label("kb_cloop")
    A(f"""
    v_add_u32 v{cH}, s{sSL}, v{aH}
    v_add_u32 v{cH+1}, s{sSL}, v{aH+1}
    v_add_u32 v{cW}, s{sSL}, v{aW}
    s_add_u32 s{sSL}, s{sSL}, {B_SLOT}
    s_cmp_ge_u32 s{sSL}, {B_SLOT*B_R}
    s_cselect_b32 s{sSL}, 0, s{sSL}
    s_add_u32 s{sJ}, s{sJ}, 1
    s_barrier
    """)
    inter(mm(FB),rd(FA,0))
    A("s_waitcnt lgkmcnt(0)")
    inter(mm(FA),rd(FB,1))
    A(f"""
    s_cmp_lt_u32 s{sJ}, 16
    s_waitcnt lgkmcnt(0)
    s_cbranch_scc1 kb_cloop
    """)
    for m in mm(FB): A(m)
    X=FA
    A(f"""
    v_and_b32 v{vT}, 31, v{vL}
    v_lshlrev_b32 v{vT}, 2, v{vT}
    v_and_b32 v{vT+1}, 32, v{vL}
    v_lshl_add_u32 v{vT}, v{vT+1}, 4, v{vT}
    s_lshl_b32 s{sT}, s{sWT}, 8
    s_add_u32 s{sT}, s{sT}, {B_SCR}
    v_add_u32 v{vT}, s{sT}, v{vT}
    s_barrier
    """)
    for ct in range(2):
        for lw in range(4): A(f"ds_read_b32 v{X+4*ct+lw}, v{vT} offset:{1024*lw+128*ct}")
    A("s_waitcnt lgkmcnt(0)")
    BF=FB
    K1=X+8; K3=X+10; K2=X+12
    for ct in range(2):
        x=X+4*ct
        A(f"""
        v_add_f32 v{x}, v{x}, v{x+1}
        v_add_f32 v{x+2}, v{x+2}, v{x+3}
        v_add_f32 v{x}, v{x}, v{x+2}
        v_mov_b32 v{x+1}, v{x}
        v_permlane32_swap_b32 v{x}, v{x+1}
        """)
        ln_finish(A,x,x+1,x+2,512)
        bf16round(A,x+1,x+1)
        A(f"""
        v_cvt_pk_bf16_f32 v{BF+4*ct}, -v{x}, -v{x}
        v_cvt_pk_bf16_f32 v{BF+4*ct+1}, -v{x}, 0
        v_mov_b32 v{BF+4*ct+2}, 0
        v_mov_b32 v{BF+4*ct+3}, 0
        v_rcp_f32 v{x+2}, v{x+1}
        v_mul_f32 v{K2+ct}, v{x+1}, v{x+1}
        v_mul_f32 v{K1+ct}, {f32(GC1)}, v{x+2}
        v_mul_f32 v{x+3}, v{x+2}, v{x+2}
        v_mul_f32 v{x+3}, v{x+3}, v{x+2}
        v_mul_f32 v{K3+ct}, {f32(GC2)}, v{x+3}
        """)
    A("s_waitcnt vmcnt(0)")
    for rt in range(3):
        for ct in range(2):
            a=ACC+16*(2*rt+ct)
            A(f"v_mfma_f32_32x32x16_bf16 v[{a}:{a+15}], v[{CSF+4*rt}:{CSF+4*rt+3}], v[{BF+4*ct}:{BF+4*ct+3}], v[{a}:{a+15}]")
    A(f"""
    s_lshl_b32 s{sT}, s{sMB}, 2
    s_lshl_b32 s{sT2}, s{sWT}, 1
    s_add_u32 s{sT}, s{sT}, s{sT2}
    s_mul_i32 s{sT}, s{sT}, 86
    s_mul_i32 s{sJ}, s{sCB}, 6
    s_mul_i32 s{sT2}, s{sWF}, 3
    s_add_u32 s{sJ}, s{sJ}, s{sT2}
    s_add_u32 s{sT}, s{sT}, s{sJ}
    s_lshl_b32 s{sT}, s{sT}, 10
    s_add_u32 s{sT2}, s{sT}, {86*1024}
    v_lshlrev_b32 v{vT}, 4, v{vL}
    """)
    T=FB+8
    for rt in range(3):
        A(f"s_add_u32 s{sSL}, s{sJ}, {rt}")
        A(f"s_cmp_ge_u32 s{sSL}, 86")
        A("s_cbranch_scc1 kb_end")
        for ct in range(2):
            a=ACC+16*(2*rt+ct)
            for r in range(8): A(f"v_mul_f32 v{T+r}, v{a+r}, v{a+r}")
            for r in range(8): A(f"v_fma_f32 v{T+r}, v{T+r}, v{K3+ct}, v{K1+ct}")
            for r in range(8): A(f"v_mul_f32 v{T+r}, v{T+r}, v{a+r}")
            for r in range(8): A(f"v_exp_f32 v{T+r}, v{T+r}")
            for r in range(8): A(f"v_mul_f32 v{a+r}, v{a+r}, v{a+8+r}")
            for r in range(8): A(f"v_fma_f32 v{T+r}, v{T+r}, v{K2+ct}, v{K2+ct}")
            for r in range(8): A(f"v_rcp_f32 v{T+r}, v{T+r}")
            for r in range(8): A(f"v_mul_f32 v{a+r}, v{a+r}, v{T+r}")
            for r in range(4): A(f"v_cvt_pk_bf16_f32 v{a+8+r}, v{a+2*r}, v{a+2*r+1}")
            A(f"buffer_store_dwordx4 v[{a+8}:{a+11}], v{vT}, s[{sO}:{sO+3}], s{sT if ct==0 else sT2} offen offset:{1024*rt}")
    A.label("kb_end"); A("s_endpgm")
    return A.l, kd("kb_kernel",164,96)

C_SLOT=16384; C_R=9; C_RES=C_SLOT*C_R; KC_LDS=C_RES+8192; C_NST=22
def gen_kc():
    A=Asm(); head(A,"kc_kernel")
    sW=36; sTB=37; sNB=38; sT=39; sT2=40; sSL=41; sJ=42; sHO=43; sWO=44; sM0=45; sKB=46; sIS=47
    sH=48; sWd=52; sR=56; sO=60
    vL=1
    A(f"""
    s_cmp_ge_u32 s2, 256
    s_cbranch_scc1 kc_end
    s_load_dwordx4 s[24:27], s[0:1], 80
    s_load_dwordx2 s[30:31], s[0:1], 104
    s_and_b32 s{sT}, s2, 7
    s_lshl_b32 s{sT}, s{sT}, 2
    s_bfe_u32 s{sT2}, s2, 0x20003
    s_add_u32 s{sTB}, s{sT}, s{sT2}
    s_lshr_b32 s{sNB}, s2, 5
    v_lshrrev_b32 v2, 6, v0
    v_and_b32 v{vL}, 63, v0
    v_readfirstlane_b32 s{sW}, v2
    s_cmp_lt_u32 s{sW}, 4
    s_cbranch_scc1 kc_cons
    """)
    vH=2; vWo=3; vR=4; vT=8
    A(f"""
    s_sub_u32 s{sW}, s{sW}, 4
    v_lshlrev_b32 v{vH}, 4, v{vL}
    v_bfe_u32 v{vT}, v{vL}, 4, 1
    v_lshlrev_b32 v{vT}, 2, v{vT}
    v_and_b32 v{vT+1}, 7, v{vL}
    v_xor_b32 v{vT}, v{vT}, v{vT+1}
    v_lshlrev_b32 v{vT}, 4, v{vT}
    v_lshrrev_b32 v{vT+1}, 3, v{vL}
    v_lshl_add_u32 v{vWo}, v{vT+1}, 10, v{vT}
    v_lshl_add_u32 v{vR}, v{vT+1}, 12, v{vT}
    s_lshl_b32 s{sT}, s{sTB}, 1
    s_lshr_b32 s{sT2}, s{sW}, 1
    s_add_u32 s{sT}, s{sT}, s{sT2}
    s_mul_i32 s{sT}, s{sT}, 86
    s_and_b32 s{sKB}, s{sW}, 1
    s_lshl_b32 s{sKB}, s{sKB}, 1
    s_add_u32 s{sT}, s{sT}, s{sKB}
    s_lshl_b32 s{sHO}, s{sT}, 10
    s_lshl_b32 s{sWO}, s{sW}, 14
    s_lshl_b32 s{sT}, s{sNB}, 7
    s_add_u32 s{sWO}, s{sWO}, s{sT}
    s_lshl_b32 s{sM0}, s{sW}, 11
    s_mov_b32 s{sIS}, 0
    s_waitcnt lgkmcnt(0)
    """)
    srd(A,sH,30,WS_HM,64*86*1024)
    srd(A,sWd,24,0,1376*1024)
    srd(A,sR,30,WS_HT,512*4096)
    A(f"""
    s_lshl_b32 s{sT}, s{sNB}, 18
    s_lshl_b32 s{sT2}, s{sW}, 16
    s_add_u32 s{sT}, s{sT}, s{sT2}
    s_lshl_b32 s{sT2}, s{sTB}, 7
    s_add_u32 s{sT}, s{sT}, s{sT2}
    s_add_u32 m0, s{sM0}, {C_RES}
    s_add_u32 s{sT2}, s{sT}, {8*4096}
    buffer_load_dwordx4 v{vR}, s[{sR}:{sR+3}], s{sT} offen lds
    s_add_u32 m0, m0, 1024
    s_nop 0
    buffer_load_dwordx4 v{vR}, s[{sR}:{sR+3}], s{sT2} offen lds
    """)
    def issue():
        A(f"""
        s_add_u32 m0, s{sIS}, s{sM0}
        s_cmp_lt_u32 s{sKB}, 86
        s_cselect_b32 s{sT}, s{sHO}, 0x40000000
        buffer_load_dwordx4 v{vH}, s[{sH}:{sH+3}], s{sT} offen lds
        buffer_load_dwordx4 v{vH}, s[{sH}:{sH+3}], s{sT} offen offset:1024 lds
        s_add_u32 m0, m0, 8192
        s_add_u32 s{sT}, s{sWO}, 8192
        buffer_load_dwordx4 v{vWo}, s[{sWd}:{sWd+3}], s{sWO} offen lds
        s_add_u32 m0, m0, 1024
        s_add_u32 s{sIS}, s{sIS}, {C_SLOT}
        buffer_load_dwordx4 v{vWo}, s[{sWd}:{sWd+3}], s{sT} offen lds
        s_add_u32 s{sHO}, s{sHO}, 4096
        s_add_u32 s{sKB}, s{sKB}, 4
        s_add_u32 s{sWO}, s{sWO}, 65536
        s_cmp_ge_u32 s{sIS}, {C_SLOT*C_R}
        s_cselect_b32 s{sIS}, 0, s{sIS}
        """)
    A(f"s_mov_b32 s{sJ}, 0")
    A.label("kc_pro")
    issue()
    A(f"""
    s_add_u32 s{sJ}, s{sJ}, 1
    s_cmp_lt_u32 s{sJ}, {C_R-1}
    s_cbranch_scc1 kc_pro
    s_mov_b32 s{sJ}, 0
    s_waitcnt vmcnt({4*(C_R-1)})
    s_barrier
    """)
    A.label("kc_lloop")
    A(f"s_waitcnt vmcnt({4*(C_R-2)})")
    A("s_barrier")
    issue()
    A(f"""
    s_add_u32 s{sJ}, s{sJ}, 1
    s_cmp_lt_u32 s{sJ}, {C_NST}
    s_cbranch_scc1 kc_lloop
    s_waitcnt vmcnt(0)
    s_endpgm
    """)
    A.label("kc_cons")
    sWT=43; sWN=44
    aH=2; aW=3; cH=4; cW=5; aR=6; vT=8
    FA=16; FB=32; ACC=48
    A(f"""
    s_and_b32 s{sWT}, s{sW}, 1
    s_lshr_b32 s{sWN}, s{sW}, 1
    s_lshl_b32 s{sT}, s{sWT}, 12
    v_lshl_add_u32 v{aH}, v{vL}, 4, s{sT}
    v_bfe_u32 v{vT}, v{vL}, 2, 2
    v_lshrrev_b32 v{vT+1}, 5, v{vL}
    v_lshl_add_u32 v{vT+2}, v{vT+1}, 3, v{vT}
    v_lshlrev_b32 v{aW}, 7, v{vT+2}
    v_lshrrev_b32 v{vT+3}, 1, v{vT}
    v_xor_b32 v{vT+4}, s{sWN}, v{vT+3}
    v_lshl_add_u32 v{aW}, v{vT+4}, 6, v{aW}
    v_and_b32 v{vT+4}, 1, v{vL}
    v_lshl_add_u32 v{aW}, v{vT+4}, 5, v{aW}
    v_bfe_u32 v{vT+5}, v{vL}, 4, 1
    v_lshl_add_u32 v{aW}, v{vT+5}, 4, v{aW}
    v_bfe_u32 v{vT+4}, v{vL}, 1, 1
    v_lshl_add_u32 v{aW}, v{vT+4}, 3, v{aW}
    v_add_u32 v{aW}, 8192, v{aW}
    v_lshl_add_u32 v{vT+2}, v{vT+1}, 4, v{vT}
    v_lshlrev_b32 v{aR}, 7, v{vT+2}
    v_xor_b32 v{vT+4}, s{sWT}, v{vT+3}
    v_lshl_add_u32 v{aR}, v{vT+4}, 6, v{aR}
    v_lshl_add_u32 v{aR}, v{vT+5}, 5, v{aR}
    v_and_b32 v{vT+4}, 3, v{vL}
    v_lshl_add_u32 v{aR}, v{vT+4}, 3, v{aR}
    s_lshl_b32 s{sT}, s{sWN}, 12
    s_add_u32 s{sT}, s{sT}, {C_RES}
    v_add_u32 v{aR}, s{sT}, v{aR}
    """)
    for r in range(FB,FB+16): A(f"v_mov_b32 v{r}, 0")
    A("s_waitcnt lgkmcnt(0)")
    srd(A,sO,26,0,2048*1024)
    A("s_barrier")
    for q in range(4): A(f"ds_read_b64_tr_b16 v[{FA+2*q}:{FA+2*q+1}], v{aR} offset:{512*q}")
    A("s_waitcnt lgkmcnt(0)")
    for q in range(8):
        A(f"v_lshlrev_b32 v{ACC+2*q}, 16, v{FA+q}")
        A(f"v_and_b32 v{ACC+2*q+1}, 0xffff0000, v{FA+q}")
    A(f"s_mov_b32 s{sJ}, 0"); A(f"s_mov_b32 s{sSL}, 0")
    def rd(F,half):
        out=[]
        for i in range(2):
            ks=2*half+i
            out.append(f"ds_read_b128 v[{F+8*i}:{F+8*i+3}], v{cH} offset:{1024*ks}")
            for e in range(2):
                out.append(f"ds_read_b64_tr_b16 v[{F+8*i+4+2*e}:{F+8*i+5+2*e}], v{cW} offset:{(16*ks+4*e)*128}")
        return out
    def mm(F):
        return [f"v_mfma_f32_32x32x16_bf16 v[{ACC}:{ACC+15}], v[{F+8*i+4}:{F+8*i+7}], v[{F+8*i}:{F+8*i+3}], v[{ACC}:{ACC+15}]" for i in range(2)]
    A.label("kc_cloop")
    A(f"""
    v_add_u32 v{cH}, s{sSL}, v{aH}
    v_add_u32 v{cW}, s{sSL}, v{aW}
    s_add_u32 s{sSL}, s{sSL}, {C_SLOT}
    s_cmp_ge_u32 s{sSL}, {C_SLOT*C_R}
    s_cselect_b32 s{sSL}, 0, s{sSL}
    s_add_u32 s{sJ}, s{sJ}, 1
    s_barrier
    """)
    for r in rd(FA,0): A(r)
    for m in mm(FB): A(m)
    for r in rd(FB,1): A(r)
    A("s_waitcnt lgkmcnt(6)")
    for m in mm(FA): A(m)
    A(f"""
    s_cmp_lt_u32 s{sJ}, {C_NST}
    s_waitcnt lgkmcnt(0)
    s_cbranch_scc1 kc_cloop
    """)
    A(f"""
    v_and_b32 v{vT}, 31, v{vL}
    v_lshlrev_b32 v{vT}, 10, v{vT}
    v_and_b32 v{vT+1}, 32, v{vL}
    v_add_u32 v{vT}, v{vT}, v{vT+1}
    s_lshl_b32 s{sT}, s{sTB}, 16
    s_lshl_b32 s{sT2}, s{sWT}, 15
    s_add_u32 s{sT}, s{sT}, s{sT2}
    s_lshl_b32 s{sT2}, s{sNB}, 7
    s_add_u32 s{sT}, s{sT}, s{sT2}
    s_lshl_b32 s{sT2}, s{sWN}, 6
    s_add_u32 s{sT}, s{sT}, s{sT2}
    """)
    for q in range(8): A(f"v_cvt_pk_bf16_f32 v{FA+q}, v{ACC+2*q}, v{ACC+2*q+1}")
    A(f"buffer_store_dwordx4 v[{FA}:{FA+3}], v{vT}, s[{sO}:{sO+3}], s{sT} offen")
    A(f"buffer_store_dwordx4 v[{FA+4}:{FA+7}], v{vT}, s[{sO}:{sO+3}], s{sT} offen offset:16")
    A.label("kc_end"); A("s_endpgm")
    return A.l, kd("kc_kernel",64,96)

if __name__=="__main__":
    out=sys.argv[1] if len(sys.argv)>1 else "out.s"
    build([gen_ks,gen_ka,gen_kb,gen_kc],[("ks_kernel",256,512,0),("ka_kernel",256,512,KA_LDS),("kb_kernel",256,512,KB_LDS),("kc_kernel",256,512,KC_LDS)],out)
    print("LDS",KA_LDS,KB_LDS,KC_LDS)
```

```python
import sys, math, os, struct
from asmlib import *
NAME="sequential_preLN__ssm_conv_s4d__glu_gated_geglu__prompt"
WS_STATS=0x0000
WS_ST2  =0x4000
WS_FLAG =0x6000
WS_CS   =0x10000
WS_KD   =0x20000
WS_HT   =0x100000
WS_HM   =0x400000
WS_XT   =0xA00000
WS_DBG  =0xC00000
WS_W1   =0x1000000
WS_WD   =0x1400000
KD_CH=1536
LOG2E=1.4426950408889634
def split_hi_lo(x,bits=12):
    u=struct.unpack("<I",struct.pack("<f",x))[0] & (0xffffffff<<(23-bits+1)) & 0xffffffff
    hi=struct.unpack("<f",struct.pack("<I",u))[0]
    return hi, x-hi
L2E_HI,L2E_LO=split_hi_lo(LOG2E)
DBG=int(os.environ.get("DBG","0"))
X=os.environ.get("X","")
TIMER="s_memtime" if DBG==2 else "s_memrealtime"
SK_INVN=90
def kd(name,vgpr,sgpr,acc=None):
    ao=acc if acc is not None else (vgpr+3)//4*4
    return f""".p2align 6
.amdhsa_kernel {name}
  .amdhsa_next_free_vgpr {vgpr}
  .amdhsa_next_free_sgpr {sgpr}
  .amdhsa_accum_offset {ao}
  .amdhsa_group_segment_fixed_size 0
  .amdhsa_kernarg_size 112
  .amdhsa_user_sgpr_count 2
  .amdhsa_user_sgpr_kernarg_segment_ptr 1
  .amdhsa_system_sgpr_workgroup_id_x 1
  .amdhsa_float_denorm_mode_32 3
.end_amdhsa_kernel"""
def stamp(A,i):
    if DBG: A(f"{TIMER} s[{64+2*i}:{65+2*i}]")
def dump(A,kidx,n,sW,woff=0,ws=30):
    if not DBG: return
    A("s_mov_b64 exec, 1")
    A(f"{TIMER} s[{64+2*n}:{65+2*n}]")
    A(f"s_lshl_b32 s92, s2, 4")
    A(f"s_add_u32 s92, s92, s{sW}")
    A(f"s_add_u32 s92, s92, {woff}")
    A(f"s_lshl_b32 s92, s92, 6")
    A(f"s_add_u32 s92, s92, {WS_DBG+kidx*0x40000}")
    A("v_mov_b32 v2, s92")
    A("s_waitcnt lgkmcnt(0)")
    for i in range(n+1):
        A(f"v_mov_b32 v3, s{64+2*i}")
        A(f"global_store_dword v2, v3, s[{ws}:{ws+1}] offset:{4*i}")
def head(A,name):
    A.l += [f".globl {name}", ".p2align 8", f".type {name},@function"]
    A.label(name)
def bf16round(A,dst,src):
    A(f"v_cvt_pk_bf16_f32 v{dst}, v{src}, v{src}")
    A(f"v_and_b32 v{dst}, 0xffff0000, v{dst}")
def wave_sum_dpp(A,regs_):
    for ctl in ("row_shr:1","row_shr:2","row_shr:4","row_shr:8"):
        for r in regs_:
            A(f"v_add_f32_dpp v{r}, v{r}, v{r} {ctl} row_mask:0xf bank_mask:0xf bound_ctrl:0")
    for r in regs_: A(f"v_add_f32_dpp v{r}, v{r}, v{r} row_bcast:15 row_mask:0xa bank_mask:0xf")
    for r in regs_: A(f"v_add_f32_dpp v{r}, v{r}, v{r} row_bcast:31 row_mask:0xc bank_mask:0xf")
def ln_finish(A,S,Q,T,n):
    A(f"v_mul_f32 v{S}, {f32(1.0/n)}, v{S}")
    A(f"v_mul_f32 v{T}, v{S}, v{S}")
    A(f"v_fma_f32 v{Q}, v{Q}, s{SK_INVN}, -v{T}")
    A(f"v_max_f32 v{Q}, 0, v{Q}")
    bf16round(A,Q,Q)
    A(f"v_add_f32 v{Q}, {f32(1e-5)}, v{Q}")
    bf16round(A,Q,Q)
    A(f"v_sqrt_f32 v{Q}, v{Q}")
def srd(A,d,base,off,size):
    if off:
        A(f"s_add_u32 s{d}, s{base}, {off}")
        A(f"s_addc_u32 s{d+1}, s{base+1}, 0")
    else:
        A(f"s_mov_b32 s{d}, s{base}")
        A(f"s_mov_b32 s{d+1}, s{base+1}")
    A(f"s_mov_b32 s{d+2}, {size}")
    A(f"s_mov_b32 s{d+3}, 0x20000")
def build(kernels, launches, path):
    src=open(f"cdna_kernels/{NAME}.s.ref").read().split("\n")
    hdr=[l for l in src if l.startswith(";") and "@launch" not in l and "Override launch" not in l and "grid=ceil" not in l]
    out=hdr+[f"; @launch kernel={k} grid=({g},1,1) block=({b},1,1) lds={l}" for k,g,b,l in launches]
    out+=['.amdgcn_target "amdgcn-amd-amdhsa--gfx950"',".text"]
    kds=[]
    for g in kernels:
        l,k=g(); out+=pad_hazards(l); kds.append(k)
    out+=["code_end:", "    s_endpgm"]
    out+=['.section .rodata,"a"']+kds
    open(path,"w").write("\n".join(out)+"\n")
```

```python
from common import *

def cmul(A,d,a,b,t):
    A(f"v_pk_mul_f32 v[{t}:{t+1}], v[{a}:{a+1}], v[{b}:{b+1}] op_sel:[0,0] op_sel_hi:[0,1]")
    A(f"v_pk_fma_f32 v[{d}:{d+1}], v[{a}:{a+1}], v[{b}:{b+1}], v[{t}:{t+1}] op_sel:[1,1,0] op_sel_hi:[1,0,1] neg_lo:[1,0,0]")
def exp_bf16(A,x,t):
    A(f"v_mul_f32 v{t}, {f32(L2E_HI)}, v{x}")
    A(f"v_rndne_f32 v{t+1}, v{t}")
    A(f"v_sub_f32 v{t}, v{t}, v{t+1}")
    A(f"v_fmamk_f32 v{t}, v{x}, {f32(L2E_LO)}, v{t}")
    A(f"v_cvt_i32_f32 v{t+1}, v{t+1}")
    A(f"v_exp_f32 v{t}, v{t}")
    A(f"v_ldexp_f32 v{x}, v{t}, v{t+1}")
    bf16round(A,x,x)
def cexp(A,d,zr,zi,s,t):
    if s==1:
        A(f"v_exp_f32 v{t}, v{zr}")
        A(f"v_fract_f32 v{t+1}, v{zi}")
    else:
        A(f"v_mul_f32 v{t}, {f32(float(s))}, v{zr}")
        A(f"v_mul_f32 v{t+1}, {f32(float(s))}, v{zi}")
        A(f"v_exp_f32 v{t}, v{t}")
        A(f"v_fract_f32 v{t+1}, v{t+1}")
    A(f"v_cos_f32 v{d}, v{t+1}")
    A(f"v_sin_f32 v{d+1}, v{t+1}")
    A(f"v_mul_f32 v{d}, v{t}, v{d}")
    A(f"v_mul_f32 v{d+1}, v{t}, v{d+1}")
def row_stats(A,Xr,S,Q,T,sOnes):
    A(f"v_dot2_f32_bf16 v{S}, v{Xr}, s{sOnes}, 0")
    A(f"v_dot2_f32_bf16 v{Q}, v{Xr}, v{Xr}, 0")
    for j in range(1,4):
        A(f"v_dot2_f32_bf16 v{S}, v{Xr+j}, s{sOnes}, v{S}")
        A(f"v_dot2_f32_bf16 v{Q}, v{Xr+j}, v{Xr+j}, v{Q}")
    wave_sum_dpp(A,[S,Q])
    ln_finish(A,S,Q,T,512)
    A(f"v_cvt_pk_bf16_f32 v{S}, v{S}, v{Q}")

def code_prefetch(A,vt,first,sp):
    A(f"s_getpc_b64 s[{sp}:{sp+1}]")
    A(f"v_lshlrev_b32 v{vt}, 7, v0")
    A(f"v_min_u32 v{vt}, code_end-{first}-8, v{vt}")
    A(f"global_load_dword v{vt+1}, v{vt}, s[{sp}:{sp+1}]")

EF_PITCH=544; EF_CH=64*EF_PITCH
K0_LDS=2*EF_CH
def gen_k0():
    A=Asm(); head(A,"k0_kernel")
    sW=36; sCH=37; sG=38; sT=39; sT2=40; sHALF=41; sONE=42
    vL=1; vT=2; vXC=4; vXR=8; vP=12; vAD=17; vSA=18; vXA=19; vW=20
    A(f"""
    s_cmp_ge_u32 s2, 256
    s_cbranch_scc1 k0_end
    s_load_dwordx8 s[4:11], s[0:1], 0
    s_load_dwordx4 s[12:15], s[0:1], 32
    s_load_dwordx2 s[30:31], s[0:1], 104
    """)
    stamp(A,0)
    A(f"""
    v_lshrrev_b32 v{vT}, 6, v0
    v_and_b32 v{vL}, 63, v0
    v_readfirstlane_b32 s{sW}, v{vT}
    """)
    if "nopf" not in X:
        A.label("k0_pf")
        code_prefetch(A,vW,"k0_pf",44)
    A(f"""
    s_and_b32 s{sT}, s2, 7
    s_lshl_b32 s{sT}, s{sT}, 5
    s_lshr_b32 s{sT2}, s2, 3
    s_add_u32 s{sG}, s{sT}, s{sT2}
    s_and_b32 s{sCH}, s{sW}, 1
    s_bfe_u32 s{sHALF}, s{sW}, 0x10001
    s_mov_b32 s{sONE}, 0x3f803f80
    s_mov_b32 s{SK_INVN}, {f32(1/512)}
    s_lshl_b32 s{sT}, s{sG}, 1
    s_add_u32 s{sT}, s{sT}, s{sCH}
    s_lshl_b32 s{sT2}, s{sT}, 1
    v_mov_b32 v{vT+1}, s{sT2}
    s_lshl_b32 s{sT}, s{sT}, 8
    s_lshl_b32 s{sT2}, s{sHALF}, 7
    s_add_u32 s{sT}, s{sT}, s{sT2}
    v_lshl_add_u32 v{vT}, v{vL}, 1, s{sT}
    s_lshl_b32 s{sT}, s{sG}, 13
    v_lshl_add_u32 v{vAD}, v0, 4, s{sT}
    v_and_b32 v{vSA}, 1, v0
    v_lshrrev_b32 v{vXA}, 1, v0
    v_lshlrev_b32 v{vW+2}, 2, v{vXA}
    v_lshl_add_u32 v{vW+2}, v{vSA}, 12, v{vW+2}
    v_add_u32 v{vW+2}, s{sT}, v{vW+2}
    s_waitcnt lgkmcnt(0)
    global_load_ushort v{vP}, v{vT}, s[6:7]
    global_load_ushort v{vP+1}, v{vT}, s[8:9]
    global_load_ushort v{vP+4}, v{vT+1}, s[14:15]
    global_load_ushort v{vP+2}, v{vT}, s[10:11]
    global_load_ushort v{vP+3}, v{vT}, s[12:13]
    """)
    for j in range(4): A(f"global_load_dword v{vXC+j}, v{vW+2}, s[4:5] offset:{1024*j}")
    A(f"global_load_dwordx4 v[{vXR}:{vXR+3}], v{vAD}, s[4:5]")
    A(f"""
    s_lshl_b32 s{sT}, s{sG}, 5
    s_add_u32 s{sT2}, s{sT}, {WS_XT}
    v_lshlrev_b32 v{vXA}, 13, v{vXA}
    v_lshl_add_u32 v{vXA}, v{vSA}, 4, v{vXA}
    v_add_u32 v{vXA}, s{sT2}, v{vXA}
    s_lshl_b32 s{sT2}, s{sW}, 2
    s_add_u32 s{sT}, s{sT}, s{sT2}
    v_mov_b32 v{vSA}, s{sT}
    s_mul_i32 s{sT}, s{sCH}, {EF_CH}
    s_lshl_b32 s{sT2}, s{sHALF}, 8
    s_add_u32 s{sT}, s{sT}, s{sT2}
    v_lshl_add_u32 v{vAD}, v{vL}, 2, s{sT}
    s_waitcnt vmcnt(7)
    v_lshlrev_b32 v{vP}, 16, v{vP}
    v_lshlrev_b32 v{vP+1}, 16, v{vP+1}
    v_lshlrev_b32 v{vP+4}, 16, v{vP+4}
    """)
    stamp(A,1)
    exp_bf16(A,vP,vT); exp_bf16(A,vP+4,vW)
    zr=vP; zi=vP+1
    A(f"""
    v_mul_f32 v{zr}, v{zr}, v{vP+4}
    v_mul_f32 v{zi}, v{zi}, v{vP+4}
    v_mul_f32 v{zr}, {f32(-LOG2E)}, v{zr}
    v_mul_f32 v{zi}, 0.15915494, v{zi}
    s_cmp_ge_u32 s{sW}, 4
    s_cbranch_scc1 k0_frole
    """)
    pk=[vW+20,vW+21,vW+22,vW+23]; pkc=[0]
    def put(reg,row):
        p=pk[pkc[0]%4]; pkc[0]+=1
        A(f"v_cvt_pk_bf16_f32 v{p}, v{reg}, v{reg+1}")
        A(f"ds_write_b32 v{vAD}, v{p} offset:{row*EF_PITCH}")
    w1=vW; w2=vW+2; w4=vW+4; w8=vW+6; wB=vW+8; q=vW+10; e=vW+12; e2=vW+14; t=vW+16; t2=vW+18; t3=vW+24; e3=vW+26
    A(f"v_sub_f32 v{zi}, 0, v{zi}")
    cexp(A,w1,zr,zi,1,t); cexp(A,wB,zr,zi,256,t2)
    A(f"""
    s_waitcnt vmcnt(5)
    v_lshlrev_b32 v{vP+2}, 16, v{vP+2}
    v_lshlrev_b32 v{vP+3}, 16, v{vP+3}
    v_mul_f32 v{e}, v{vP+2}, v{vP+4}
    v_mul_f32 v{e+1}, v{vP+3}, v{vP+4}
    v_add_f32 v{e}, v{e}, v{e}
    v_mul_f32 v{e+1}, -2.0, v{e+1}
    """)
    cmul(A,w2,w1,w1,t); cmul(A,q,e,wB,t2); put(e,0)
    cmul(A,w4,w2,w2,t3)
    seqB=[("put",q,8),("mul",e2,q,w2),("mul",q,q,wB),("put",e2,9),("mul",e2,e2,w2),("put",q,12),("mul",e3,q,w4),("put",e2,10),("mul",e2,e2,w2),
          ("mul",q,q,wB),("put",e3,13),("put",e2,11),("put",q,14),("mul",e3,q,w4),("mul",q,q,wB),("put",e3,15),("put",q,16),("mul",q,q,wB),("put",q,20),
          ("mul",q,q,wB),("put",q,24),("mul",q,q,wB),("put",q,28),("mul",q,q,wB),("put",q,17)]
    seqA=[]
    for a in range(1,8): seqA+=[("mul",e,e,w1),("put",e,a)]
    ia=0; tt=[t2,t3]; tc=0
    for i,s in enumerate(seqB):
        if s[0]=="put": put(s[1],s[2])
        else: cmul(A,s[1],s[2],s[3],tt[tc%2]); tc+=1
        if (i<10 and i%3==0) or i>=15:
            if ia<len(seqA):
                x=seqA[ia]; ia+=1
                if x[0]=="put": put(x[1],x[2])
                else: cmul(A,x[1],x[2],x[3],t)
    while ia<len(seqA):
        x=seqA[ia]; ia+=1
        if x[0]=="put": put(x[1],x[2])
        else: cmul(A,x[1],x[2],x[3],t)
    def ln_part():
        A("s_waitcnt vmcnt(1)")
        A(f"global_store_dwordx4 v{vXA}, v[{vXC}:{vXC+3}], s[30:31]")
        A("s_waitcnt vmcnt(1)")
        row_stats(A,vXR,vT,vT+1,vW+28,sONE)
        A(f"""
        s_mov_b32 exec_lo, 0
        s_mov_b32 exec_hi, 0x80000000
        global_store_dword v{vSA}, v{vT}, s[30:31] offset:{WS_STATS}
        s_mov_b64 exec, -1
        """)
    ln_part()
    stamp(A,2)
    aA=vW; aB=vW+1; r16=vW+2; g4=vW+3; acc=vW+4; oA=vW+12; oB=vW+13; oC=vW+14; fr=vW+32
    A(f"""
    v_and_b32 v{r16}, 15, v{vL}
    v_lshrrev_b32 v{g4}, 4, v{vL}
    s_mul_i32 s{sT}, s{sCH}, {EF_CH}
    v_mul_u32_u24 v{aA}, {EF_PITCH}, v{r16}
    v_lshl_add_u32 v{aA}, v{g4}, 4, v{aA}
    v_add_u32 v{aA}, s{sT}, v{aA}
    s_mul_i32 s{sT2}, s{sHALF}, {16*EF_PITCH}
    v_add_u32 v{aB}, s{sT2}, v{aA}
    s_waitcnt lgkmcnt(0)
    s_barrier
    """)
    stamp(A,3)
    def rd(s):
        b=fr+12*s
        A(f"ds_read_b128 v[{b}:{b+3}], v{aB} offset:{32*EF_PITCH+64*s}")
        A(f"ds_read_b128 v[{b+4}:{b+7}], v{aA} offset:{64*s}")
        A(f"ds_read_b128 v[{b+8}:{b+11}], v{aA} offset:{16*EF_PITCH+64*s}")
    for s in range(4): rd(s)
    A(f"""
    s_lshl_b32 s{sT}, s{sHALF}, 4
    v_add_u32 v{r16}, s{sT}, v{r16}
    v_lshlrev_b32 v{oA}, 4, v{r16}
    v_lshl_add_u32 v{oA}, v{g4}, 3, v{oA}
    v_lshlrev_b32 v{oB}, 3, v{r16}
    v_add_u32 v{oB}, 512, v{oB}
    v_cmp_eq_u32 vcc, 2, v{g4}
    v_cndmask_b32 v{oA}, v{oA}, v{oB}, vcc
    v_lshlrev_b32 v{oB}, 2, v{r16}
    v_add_u32 v{oB}, 768, v{oB}
    v_cmp_eq_u32 vcc, 3, v{g4}
    v_cndmask_b32 v{oA}, v{oA}, v{oB}, vcc
    v_mov_b32 v{oB}, 4
    v_mov_b32 v{oC}, 128
    v_cndmask_b32 v{oB}, v{oB}, v{oC}, vcc
    s_lshl_b32 s{sT}, s{sG}, 1
    s_add_u32 s{sT}, s{sT}, s{sCH}
    s_mul_i32 s{sT}, s{sT}, {KD_CH}
    s_add_u32 s{sT}, s{sT}, {WS_KD}
    v_add_u32 v{oA}, s{sT}, v{oA}
    v_add_u32 v{oB}, v{oA}, v{oB}
    v_lshlrev_b32 v{oC}, 1, v{r16}
    v_lshl_add_u32 v{oC}, v{g4}, 6, v{oC}
    v_add_u32 v{oC}, s{sT}, v{oC}
    """)
    for s in range(8):
        b=fr+12*s
        n = 9 if s<=4 else 3*(7-s)
        A(f"s_waitcnt lgkmcnt({n})")
        c0="0" if s==0 else f"v[{acc}:{acc+3}]"; c1="0" if s==0 else f"v[{acc+4}:{acc+7}]"
        A(f"v_mfma_f32_16x16x32_bf16 v[{acc}:{acc+3}], v[{b+4}:{b+7}], v[{b}:{b+3}], {c0}")
        A(f"v_mfma_f32_16x16x32_bf16 v[{acc+4}:{acc+7}], v[{b+8}:{b+11}], v[{b}:{b+3}], {c1}")
        if s+4<8: rd(s+4)
    A(f"""
    v_cvt_pk_bf16_f32 v{acc}, v{acc}, v{acc+1}
    v_cvt_pk_bf16_f32 v{acc+1}, v{acc+2}, v{acc+3}
    v_cvt_pk_bf16_f32 v{acc+4}, v{acc+4}, v{acc+5}
    global_store_dword v{oA}, v{acc}, s[30:31]
    global_store_dword v{oB}, v{acc+1}, s[30:31]
    global_store_short v{oC}, v{acc+4}, s[30:31] offset:1024
    global_store_short_d16_hi v{oC}, v{acc+4}, s[30:31] offset:1280
    """)
    dump(A,0,4,sW)
    A("s_endpgm")
    A.label("k0_frole")
    cexp(A,w8,zr,zi,8,t)
    A(f"v_mov_b32 v{pk[3]}, 0x3f80")
    A(f"ds_write_b32 v{vAD}, v{pk[3]} offset:{32*EF_PITCH}")
    cmul(A,w2,w8,w8,t); put(w8,33)
    so=w8; se=w2; pend=[(w2,2)]
    for c in range(3,32):
        if c&1: cmul(A,e,so,w2,t); so=e; new=(e,c)
        else:   cmul(A,e2,se,w2,t2); se=e2; new=(e2,c)
        r,cc=pend.pop(); put(r,32+cc); pend.append(new)
    r,cc=pend.pop(); put(r,32+cc)
    stamp(A,2)
    A("s_waitcnt lgkmcnt(0)")
    A("s_barrier")
    stamp(A,3)
    ln_part()
    A(f"""
    s_mul_i32 s{sT}, s2, 48
    s_add_u32 s{sT}, s{sT}, {WS_ST2}
    v_lshl_add_u32 v{vT}, v{vL}, 2, s{sT}
    v_mov_b32 v{vT+1}, 0
    s_cmp_eq_u32 s{sW}, 7
    s_cselect_b64 exec, 0xfff, 0
    s_cbranch_execz k0_nz
    global_store_dword v{vT}, v{vT+1}, s[30:31]
    """)
    A.label("k0_nz")
    dump(A,0,4,sW)
    A.label("k0_end"); A("s_endpgm")
    return A.l, kd("k0_kernel",152,96)

YP=9216
CS_SCR=4*YP
KIMG=CS_SCR+2048+64; IMG=4160; KIMG_CH=4*IMG
UB=KIMG+2*KIMG_CH; U_CH=96*80
K1_LDS=UB+2*U_CH
def gen_k1():
    A=Asm(); head(A,"k1_kernel")
    sW=36; sCH=37; sCP=38; sT=39; sT2=40; sHALF=41; sEX=42; sROLE=44; sSEL=46
    vL=1; vT=2; vXC=4; vST=8; vK=12; vK2=16; vDS=18; q5=20; hh=21; vX=24; vUD=32; vW=40
    A(f"""
    s_cmp_ge_u32 s2, 256
    s_cbranch_scc1 k1_end
    s_load_dwordx2 s[30:31], s[0:1], 104
    s_load_dwordx2 s[16:17], s[0:1], 48
    s_load_dwordx8 s[20:27], s[0:1], 64
    """)
    stamp(A,0)
    A(f"""
    v_lshrrev_b32 v{vT}, 6, v0
    v_and_b32 v{vL}, 63, v0
    v_readfirstlane_b32 s{sW}, v{vT}
    v_and_b32 v{q5}, 31, v{vL}
    v_lshrrev_b32 v{hh}, 5, v{vL}
    s_and_b32 s{sT}, s2, 7
    s_lshl_b32 s{sT}, s{sT}, 5
    s_lshr_b32 s{sT2}, s2, 3
    s_add_u32 s{sCP}, s{sT}, s{sT2}
    s_and_b32 s{sCH}, s{sW}, 1
    s_lshr_b32 s{sROLE}, s{sW}, 1
    s_and_b32 s{sHALF}, s{sROLE}, 1
    s_lshl_b32 s{sT}, s{sCP}, 13
    s_add_u32 s{sT}, s{sT}, {WS_XT}
    v_lshl_add_u32 v{vW}, v0, 4, s{sT}
    v_lshlrev_b32 v{vW+1}, 4, v0
    s_lshl_b32 s{sT}, s{sCP}, 2
    v_mov_b32 v{vW+2}, s{sT}
    """)
    A(f"""
    s_cmp_eq_u32 s{sROLE}, 0
    s_cselect_b32 s50, 4, 1
    s_cselect_b32 s51, 3, 6
    s_cselect_b32 s52, 0, 768
    s_cmp_eq_u32 s{sROLE}, 1
    s_cselect_b32 s50, 2, s50
    s_cselect_b32 s51, 7, s51
    s_cselect_b32 s53, 0, 128
    s_mul_i32 s53, s53, s{sROLE}
    s_add_u32 s52, s52, s53
    v_lshlrev_b32 v{vW+3}, s50, v{q5}
    v_and_b32 v{vW+3}, -4, v{vW+3}
    v_lshlrev_b32 v{vW+4}, s51, v{hh}
    v_add_u32 v{vW+3}, v{vW+3}, v{vW+4}
    s_lshl_b32 s{sT}, s{sCP}, 1
    s_add_u32 s{sT}, s{sT}, s{sCH}
    s_mul_i32 s{sT}, s{sT}, {KD_CH}
    s_add_u32 s{sT}, s{sT}, {WS_KD}
    s_add_u32 s52, s52, s{sT}
    v_add_u32 v{vW+3}, s52, v{vW+3}
    v_lshlrev_b32 v{vW+4}, 3, v{q5}
    v_lshl_add_u32 v{vW+4}, v{hh}, 2, v{vW+4}
    v_add_u32 v{vW+4}, s{sT}, v{vW+4}
    s_waitcnt lgkmcnt(0)
    global_load_dwordx4 v[{vK}:{vK+3}], v{vW+3}, s[30:31]
    global_load_dwordx2 v[{vK2}:{vK2+1}], v{vW+4}, s[30:31] offset:512
    global_load_dwordx4 v[{vXC}:{vXC+3}], v{vW}, s[30:31]
    global_load_dwordx4 v[{vST}:{vST+3}], v{vW+1}, s[30:31] offset:{WS_STATS}
    global_load_dword v{vDS}, v{vW+2}, s[16:17]
    """)
    A(f"""
    v_mov_b32 v{vW+2}, 0
    v_mov_b32 v{vW+3}, 0
    v_lshlrev_b32 v{vW}, 3, v0
    v_cmp_gt_u32 vcc, 320, v0
    s_and_saveexec_b64 s[{sEX}:{sEX+1}], vcc
    v_add_u32 v{vW}, {UB}, v{vW}
    ds_write_b64 v{vW}, v[{vW+2}:{vW+3}]
    ds_write_b64 v{vW}, v[{vW+2}:{vW+3}] offset:{U_CH}
    s_mov_b64 exec, s[{sEX}:{sEX+1}]
    s_mul_i32 s{sT}, s{sW}, {IMG}
    s_add_u32 s{sT}, s{sT}, {KIMG+4096}
    v_lshl_add_u32 v{vW}, v{vL}, 3, s{sT}
    s_mov_b64 exec, 0x7f
    ds_write_b64 v{vW}, v[{vW+2}:{vW+3}]
    s_mov_b64 exec, -1
    s_mov_b32 s{sSEL}, 0x05040100
    s_mov_b32 s{sSEL+1}, 0x05040302
    s_mov_b32 s{sSEL+2}, 0x07060100
    s_mov_b32 s{sSEL+3}, 0x07060302
    """)
    wa=vW+4; wa2=vW+5; pr=vW+8
    A(f"""
    s_mul_i32 s{sT}, s{sCH}, {KIMG_CH}
    s_add_u32 s{sT}, s{sT}, {KIMG}
    v_lshlrev_b32 v{wa2}, 4, v{q5}
    v_sub_u32 v{wa2}, s{sT}, v{wa2}
    v_lshlrev_b32 v{wa}, 3, v{hh}
    v_sub_u32 v{wa}, v{wa2}, v{wa}
    v_lshlrev_b32 v{vW+6}, 9, v{hh}
    v_sub_u32 v{wa2}, v{wa2}, v{vW+6}
    s_cmp_ge_u32 s{sROLE}, 2
    s_cbranch_scc1 k1_r23
    s_cmp_eq_u32 s{sROLE}, 1
    s_cbranch_scc1 k1_r1
    """)
    npair=[0]
    def pairop(d,lo,hi):
        A(f"v_perm_b32 v{d}, v{hi[0]}, v{lo[0]}, s{sSEL+lo[1]+2*hi[1]}")
    def wwin(addr,k,rho,bbase):
        lam=rho+3; iota=lam&3; b=bbase+(lam>>2)
        p=pr+2*(npair[0]%8); npair[0]+=1
        pairop(p,k[rho+3],k[rho+2]); pairop(p+1,k[rho+1],k[rho])
        A(f"ds_write_b64 v{addr}, v[{p}:{p+1}] offset:{iota*IMG+8*(511-b)}")
    A(f"""
    v_cmp_eq_u32 vcc, 63, v{vL}
    v_mov_b32 v{vW+7}, 0
    s_waitcnt vmcnt(3)
    v_lshrrev_b32 v{vW+2}, 16, v{vK+2}
    v_perm_b32 v{vW+3}, v{vK+2}, v{vK+2}, s{sSEL}
    v_perm_b32 v{vW+6}, v{vK2+1}, v{vK2+1}, s{sSEL}
    v_cndmask_b32 v{vK+3}, v{vK+3}, v{vW+2}, vcc
    v_cndmask_b32 v{vK+2}, v{vK+2}, v{vW+3}, vcc
    v_cndmask_b32 v{vK2+1}, v{vK2+1}, v{vW+6}, vcc
    """)
    stamp(A,1)
    k=[(vK+i//2,i&1) for i in range(8)]
    for rho in range(4): wwin(wa,k,rho,0)
    v=[(vK2+i//2,i&1) for i in range(4)]
    k1=[v[0],v[0],v[1],v[2],v[2],v[2],v[3]]
    for rho in range(4): wwin(wa,k1,rho,64)
    A("s_mov_b64 exec, 1")
    z=(vW+7,0); kz=[z,z,z,k[0],k[1],k[2]]
    for rho in range(3):
        p=pr+2*(npair[0]%8); npair[0]+=1
        pairop(p,kz[rho+3],kz[rho+2]); pairop(p+1,kz[rho+1],kz[rho])
        A(f"ds_write_b64 v{wa}, v[{p}:{p+1}] offset:{rho*IMG+8*511}")
    A("s_mov_b64 exec, -1")
    A("s_branch k1_norm")
    A.label("k1_r1")
    A("s_waitcnt vmcnt(4)")
    stamp(A,1)
    v=[(vK+i//2,i&1) for i in range(3)]
    k=[v[i] for i in (0,0,0,1,1,1,2,2,2,2,2)]
    for rho in range(8): wwin(wa2,k,rho,128)
    A("s_branch k1_norm")
    A.label("k1_r23")
    A(f"""
    s_lshl_b32 s{sT}, s{sHALF}, 10
    v_subrev_u32 v{wa2}, s{sT}, v{wa2}
    v_and_b32 v{vW+6}, 1, v{vL}
    v_lshlrev_b32 v{vW+6}, 4, v{vW+6}
    s_waitcnt vmcnt(4)
    v_alignbit_b32 v{vK}, v{vK+1}, v{vK}, v{vW+6}
    v_lshrrev_b32 v{vK+1}, v{vW+6}, v{vK}
    """)
    stamp(A,1)
    k=[(vK,0)]*4+[(vK+1,0)]+[(vK,1)]*6
    for rho in range(8): wwin(wa2,k,rho,256)
    A.label("k1_norm")
    stamp(A,2)
    m=vW; s_=vW+1; u0=vW+24; u1=vW+28; pu=vW+32; a0=vW+2; a1=vW+3
    A(f"""
    v_lshrrev_b32 v{vW+6}, 3, v0
    v_mul_u32_u24 v{vW+6}, 80, v{vW+6}
    v_and_b32 v{s_}, 7, v0
    v_lshl_add_u32 v{vW+6}, v{s_}, 3, v{vW+6}
    v_add_u32 v{vW+6}, {UB+32*80}, v{vW+6}
    s_waitcnt vmcnt(1)
    """)
    for j in range(4):
        st=vST+j
        A(f"""
        v_and_b32 v{s_}, 0xffff0000, v{st}
        v_rcp_f32 v{s_}, v{s_}
        v_lshlrev_b32 v{vX+j}, 16, v{vXC+j}
        v_and_b32 v{vX+4+j}, 0xffff0000, v{vXC+j}
        v_lshlrev_b32 v{m}, 16, v{st}
        v_sub_f32 v{a0}, v{vX+j}, v{m}
        v_sub_f32 v{a1}, v{vX+4+j}, v{m}
        v_cvt_pk_bf16_f32 v{a0}, v{a0}, v{a1}
        v_and_b32 v{a1}, 0xffff0000, v{a0}
        v_lshlrev_b32 v{a0}, 16, v{a0}
        v_mul_f32 v{u0+j}, v{a0}, v{s_}
        v_mul_f32 v{u1+j}, v{a1}, v{s_}
        """)
    A(f"""
    v_cvt_pk_bf16_f32 v{pu}, v{u0}, v{u0+1}
    v_cvt_pk_bf16_f32 v{pu+1}, v{u0+2}, v{u0+3}
    v_cvt_pk_bf16_f32 v{pu+2}, v{u1}, v{u1+1}
    v_cvt_pk_bf16_f32 v{pu+3}, v{u1+2}, v{u1+3}
    ds_write_b64 v{vW+6}, v[{pu}:{pu+1}]
    ds_write_b64 v{vW+6}, v[{pu+2}:{pu+3}] offset:{U_CH}
    """)
    def calc_ud():
        A(f"""
        s_waitcnt vmcnt(0)
        v_and_b32 v{vDS+1}, 0xffff0000, v{vDS}
        v_lshlrev_b32 v{vDS}, 16, v{vDS}
        """)
        out=[]
        for c in range(2):
            for pp in range(2):
                r=pu+2*c+pp; d=vUD+4*c+2*pp
                out+=[f"v_lshlrev_b32 v{d}, 16, v{r}",f"v_and_b32 v{d+1}, 0xffff0000, v{r}",f"v_mul_f32 v{d}, v{d}, v{vDS+c}",f"v_mul_f32 v{d+1}, v{d+1}, v{vDS+c}",
                      f"v_cvt_pk_bf16_f32 v{d}, v{d}, v{d+1}",f"v_and_b32 v{d+1}, 0xffff0000, v{d}",f"v_lshlrev_b32 v{d}, 16, v{d}"]
        return out
    acc0=vW+40; acc1=vW+56; NB=4; fr=vW+72
    aK=vW; aU=vW+1; aY=vW+2
    A(f"""
    v_and_b32 v{aK}, 3, v{vL}
    v_mul_u32_u24 v{aK}, {IMG}, v{aK}
    v_lshl_add_u32 v{aK}, v{hh}, 4, v{aK}
    v_lshrrev_b32 v{aU}, 2, v{q5}
    v_lshlrev_b32 v{aU}, 3, v{aU}
    v_sub_u32 v{aK}, v{aK}, v{aU}
    s_mul_i32 s{sT}, s{sCH}, {KIMG_CH}
    s_add_u32 s{sT}, s{sT}, {KIMG+4088-2*(480+1024)}
    s_lshl_b32 s{sT2}, s{sHALF}, 10
    s_sub_u32 s{sT}, s{sT}, s{sT2}
    v_add_u32 v{aK}, s{sT}, v{aK}
    v_mul_u32_u24 v{aU}, 80, v{q5}
    v_lshl_add_u32 v{aU}, v{hh}, 4, v{aU}
    s_mul_i32 s{sT}, s{sCH}, {U_CH}
    s_add_u32 s{sT}, s{sT}, {UB+80*(32-15)}
    s_mul_i32 s{sT2}, s{sHALF}, {80*16}
    s_sub_u32 s{sT}, s{sT}, s{sT2}
    v_add_u32 v{aU}, s{sT}, v{aU}
    s_cmp_ge_u32 s{sW}, 4
    s_waitcnt lgkmcnt(0)
    s_barrier
    s_cbranch_scc1 k1_aux
    """)
    stamp(A,3)
    def loads(i):
        b=fr+16*(i%NB); ko=2*16*(31-i); mu=i>>1; nu=i&1; uo=80*(15-mu)+32*(1-nu)
        return [f"ds_read_b64 v[{b}:{b+1}], v{aK} offset:{ko+2048}",
                f"ds_read_b64 v[{b+2}:{b+3}], v{aK} offset:{ko+2048+8}",
                f"ds_read_b128 v[{b+8}:{b+11}], v{aU} offset:{uo}",
                f"ds_read_b64 v[{b+4}:{b+5}], v{aK} offset:{ko}",
                f"ds_read_b128 v[{b+12}:{b+15}], v{aU} offset:{uo+32*80}",
                f"ds_read_b64 v[{b+6}:{b+7}], v{aK} offset:{ko+8}"]
    for l in loads(0)+loads(1): A(l)
    extra=calc_ud()+[f"v_mul_u32_u24 v{aY}, 144, v{q5}",f"v_lshl_add_u32 v{aY}, v{hh}, 4, v{aY}",f"s_lshl_b32 s{sT}, s{sCH}, 1",f"s_add_u32 s{sT}, s{sT}, s{sHALF}",
          f"s_mul_i32 s{sT}, s{sT}, {YP}",f"v_add_u32 v{aY}, s{sT}, v{aY}"]
    for i in range(32):
        b=fr+16*(i%NB)
        L=loads(i+2) if i+2<32 else []
        A(f"s_waitcnt lgkmcnt({6 if i+1<32 else 0})")
        c0="0" if i==0 else f"v[{acc0}:{acc0+15}]"
        c1="0" if i==0 else f"v[{acc1}:{acc1+15}]"
        ms=[f"v_mfma_f32_32x32x16_bf16 v[{acc0}:{acc0+15}], v[{b}:{b+3}], v[{b+8}:{b+11}], {c0}",
            f"v_mfma_f32_32x32x16_bf16 v[{acc1}:{acc1+15}], v[{b}:{b+3}], v[{b+12}:{b+15}], {c1}",
            f"v_mfma_f32_32x32x16_bf16 v[{acc1}:{acc1+15}], v[{b+4}:{b+7}], v[{b+8}:{b+11}], v[{acc1}:{acc1+15}]"]
        for j in range(3):
            A(ms[j])
            for l in L[2*j:2*j+2]: A(l)
            if extra and i>=2: A(extra.pop(0))
    assert not extra
    stamp(A,4)
    for c,ac in ((0,acc0),(1,acc1)):
        for g in range(4):
            A(f"ds_write_b128 v{aY}, v[{ac+4*g}:{ac+4*g+3}] offset:{144*32*c+32*g}")
    A.label("k1_fin")
    y=vW+8
    A(f"""
    v_lshrrev_b32 v{vW}, 3, v0
    v_mul_u32_u24 v{vW}, 144, v{vW}
    v_and_b32 v{vW+1}, 7, v0
    v_lshl_add_u32 v{vW}, v{vW+1}, 4, v{vW}
    s_lshl_b32 s{sT}, s{sCP}, 9
    s_add_u32 s{sT}, s{sT}, {WS_HT}
    v_lshl_add_u32 v{vW+1}, v{q5}, 3, s{sT}
    v_lshrrev_b32 v{vW+2}, 5, v0
    v_lshl_add_u32 v{vW+1}, v{vW+2}, 17, v{vW+1}
    s_waitcnt lgkmcnt(0)
    s_barrier
    """)
    stamp(A,5)
    for k_ in range(4): A(f"ds_read_b128 v[{y+4*k_}:{y+4*k_+3}], v{vW} offset:{YP*k_}")
    o=vW+4
    for c in range(2):
        A(f"s_waitcnt lgkmcnt({2-2*c})")
        for pp in range(2):
            a=y+8*c+2*pp
            A(f"""
            v_add_f32 v{a}, v{a}, v{a+4}
            v_add_f32 v{a+1}, v{a+1}, v{a+5}
            v_cvt_pk_bf16_f32 v{a}, v{a}, v{a+1}
            v_and_b32 v{a+1}, 0xffff0000, v{a}
            v_lshlrev_b32 v{a}, 16, v{a}
            v_add_f32 v{a}, v{a}, v{vUD+4*c+2*pp}
            v_add_f32 v{a+1}, v{a+1}, v{vUD+4*c+2*pp+1}
            v_cvt_pk_bf16_f32 v{a}, v{a}, v{a+1}
            v_and_b32 v{a+1}, 0xffff0000, v{a}
            v_lshlrev_b32 v{a}, 16, v{a}
            v_add_f32 v{a}, v{a}, v{vX+4*c+2*pp}
            v_add_f32 v{a+1}, v{a+1}, v{vX+4*c+2*pp+1}
            v_cvt_pk_bf16_f32 v{o+2*c+pp}, v{a}, v{a+1}
            """)
        A(f"global_store_dwordx2 v{vW+1}, v[{o+2*c}:{o+2*c+1}], s[30:31] offset:{256*c}")
    d=vW+40
    A(f"""
    s_cmp_ge_u32 s2, 86
    s_cbranch_scc1 k1_done
    s_cmp_lg_u32 s{sW}, 4
    s_cbranch_scc1 k1_done
    v_lshlrev_b32 v{vW+1}, 2, v{q5}
    """)
    for i in range(16): A(f"ds_read_b32 v{d+i}, v{vW+1} offset:{CS_SCR+128*i}")
    A("s_waitcnt lgkmcnt(0)")
    for st in (8,4,2,1):
        for i in range(st): A(f"v_add_f32 v{d+i}, v{d+i}, v{d+i+st}")
    A(f"""
    v_cvt_pk_bf16_f32 v{d+1}, v{d}, v{d}
    v_and_b32 v{d+1}, 0xffff0000, v{d+1}
    v_sub_f32 v{d+1}, v{d}, v{d+1}
    v_cvt_pk_bf16_f32 v{d+2}, v{d}, v{d+1}
    v_and_b32 v{d+3}, 0xffff0000, v{d+2}
    v_sub_f32 v{d+3}, v{d+1}, v{d+3}
    v_cvt_pk_bf16_f32 v{d+3}, v{d+3}, 0
    s_lshl_b32 s{sT}, s2, 8
    s_add_u32 s{sT}, s{sT}, {WS_CS}
    v_lshl_add_u32 v{vW}, v{q5}, 3, s{sT}
    s_mov_b64 exec, 0xffffffff
    global_store_dwordx2 v{vW}, v[{d+2}:{d+3}], s[30:31]
    """)
    A.label("k1_done")
    dump(A,1,6,sW)
    A.label("k1_end"); A("s_endpgm")
    A.label("k1_aux")
    stamp(A,3)
    for l in calc_ud(): A(l)
    ad=vW; dd=vW+72; S=vW+40; t=vW+48
    def wpf():
        if "nopf" in X: return
        A(f"""
        s_lshr_b32 s{sT}, s2, 3
        s_lshl_b32 s{sT}, s{sT}, 2
        s_add_u32 s{sT}, s{sT}, s{sW}
        s_sub_u32 s{sT}, s{sT}, 4
        s_and_b32 s{sT2}, s2, 1
        s_lshl_b32 s{sT2}, s{sT2}, 7
        s_add_u32 s{sT2}, s{sT2}, s{sT}
        s_mul_i32 s{sT2}, s{sT2}, 12288
        s_add_u32 s{sT2}, s{sT2}, {WS_W1}
        s_mul_i32 s{sT}, s{sT}, {86*128}
        s_add_u32 s{sT}, s{sT}, {WS_WD}
        v_lshl_add_u32 v{ad+2}, v{vL}, 7, s{sT2}
        v_lshl_add_u32 v{ad+3}, v{vL}, 7, s{sT}
        global_load_dword v{vW+60}, v{ad+2}, s[30:31]
        global_load_dword v{vW+60}, v{ad+3}, s[30:31]
        v_add_u32 v{ad+2}, 8192, v{ad+2}
        v_add_u32 v{ad+3}, {8192-4096}, v{ad+3}
        v_cmp_gt_u32 vcc, 32, v{vL}
        v_cndmask_b32 v{ad+2}, v{ad+3}, v{ad+2}, vcc
        s_mov_b32 exec_hi, 0x3fffff
        global_load_dword v{vW+60}, v{ad+2}, s[30:31]
        s_mov_b64 exec, -1
        """)
    A(f"""
    s_cmp_lt_u32 s2, 86
    s_cbranch_scc1 k1_cs
    """)
    wpf()
    A("s_branch k1_fin")
    A.label("k1_cs")
    A(f"""
    s_cmp_ge_u32 s2, 43
    s_cselect_b32 s54, s22, s20
    s_cselect_b32 s55, s23, s21
    s_cselect_b32 s{sT}, 43, 0
    s_sub_u32 s{sT}, s2, s{sT}
    s_lshl_b32 s{sT}, s{sT}, 6
    s_sub_u32 s{sT2}, s{sW}, 4
    s_mul_i32 s{sT2}, s{sT2}, {128*2752}
    s_add_u32 s{sT}, s{sT}, s{sT2}
    v_lshrrev_b32 v{ad}, 2, v{vL}
    v_mul_u32_u24 v{ad}, 2752, v{ad}
    v_and_b32 v{ad+1}, 3, v{vL}
    v_lshl_add_u32 v{ad}, v{ad+1}, 4, v{ad}
    v_add_u32 v{ad}, s{sT}, v{ad}
    """)
    for i in range(8):
        A(f"global_load_dwordx4 v[{dd+4*i}:{dd+4*i+3}], v{ad}, s[54:55]")
        if i<7: A(f"v_add_u32 v{ad}, {16*2752}, v{ad}")
    wpf()
    for i in range(8):
        A(f"s_waitcnt vmcnt({7-i+(3 if 'nopf' not in X else 0)})")
        for j in range(4):
            r=dd+4*i+j
            if i==0:
                A(f"v_lshlrev_b32 v{S+2*j}, 16, v{r}")
                A(f"v_and_b32 v{S+2*j+1}, 0xffff0000, v{r}")
            else:
                A(f"v_lshlrev_b32 v{t}, 16, v{r}")
                A(f"v_and_b32 v{t+1}, 0xffff0000, v{r}")
                A(f"v_add_f32 v{S+2*j}, v{S+2*j}, v{t}")
                A(f"v_add_f32 v{S+2*j+1}, v{S+2*j+1}, v{t+1}")
    for ctl in ("row_shr:4","row_shr:8"):
        for j in range(8):
            A(f"v_add_f32_dpp v{S+j}, v{S+j}, v{S+j} {ctl} row_mask:0xf bank_mask:0xf bound_ctrl:0")
    A(f"""
    s_sub_u32 s{sT2}, s{sW}, 4
    s_lshl_b32 s{sT2}, s{sT2}, 9
    s_add_u32 s{sT2}, s{sT2}, {CS_SCR}
    v_lshrrev_b32 v{ad}, 4, v{vL}
    v_lshlrev_b32 v{ad}, 7, v{ad}
    v_lshl_add_u32 v{ad}, v{ad+1}, 5, v{ad}
    v_add_u32 v{ad}, s{sT2}, v{ad}
    s_mov_b32 exec_lo, 0xf000f000
    s_mov_b32 exec_hi, 0xf000f000
    ds_write_b128 v{ad}, v[{S}:{S+3}]
    ds_write_b128 v{ad}, v[{S+4}:{S+7}] offset:16
    s_mov_b64 exec, -1
    """)
    stamp(A,4)
    A("s_branch k1_fin")
    return A.l, kd("k1_kernel",176,96)
```

```python
from common import *
from k01 import cmul, exp_bf16, cexp, row_stats
EF_PITCH=544; EF_CH=64*EF_PITCH
XS=2*EF_CH; XS_PITCH=1024+16
K0_LDS=XS+8*XS_PITCH
WT=" sc0 sc1" if "nowt" not in X else ""
def gen_k0():
    A=Asm(); head(A,"k0_kernel")
    sW=36; sCH=37; sG=38; sT=39; sT2=40; sHALF=41; sONE=42; sDT=43
    vL=1; vT=2; vXC=4; vXR=8; vP=12; vAD=17; vSA=18; vXA=19; vW=20
    vRA=148; vRD=152
    A(f"""
    s_cmp_ge_u32 s2, 256
    s_cbranch_scc1 k0_end
    s_load_dwordx8 s[4:11], s[0:1], 0
    s_load_dwordx4 s[12:15], s[0:1], 32
    s_load_dwordx2 s[30:31], s[0:1], 104
    s_load_dwordx4 s[20:23], s[0:1], 64
    s_load_dwordx2 s[24:25], s[0:1], 80
    """)
    stamp(A,0)
    A(f"""
    v_lshrrev_b32 v{vT}, 6, v0
    v_and_b32 v{vL}, 63, v0
    v_readfirstlane_b32 s{sW}, v{vT}
    s_lshr_b32 s{sT2}, s2, 3
    """)
    if "nopf" not in X:
        A(f"""
        s_cmp_lt_u32 s{sT2}, 5
        s_cselect_b32 s{sT}, s{sW}, 0
        s_cmp_eq_u32 s{sT}, 7
        s_cbranch_scc0 k0_nopf
        s_getpc_b64 s[44:45]
        """)
        A.label("k0_pf")
        A(f"""
        s_lshl_b32 s{sT}, s{sT2}, 13
        v_lshl_add_u32 v{vW}, v{vL}, 7, s{sT}
        v_min_u32 v{vW}, code_end-k0_pf, v{vW}
        global_load_dword v{vRD+12}, v{vW}, s[44:45]
        """)
        A.label("k0_nopf")
    A(f"""
    s_and_b32 s{sT}, s2, 7
    s_lshl_b32 s{sT}, s{sT}, 5
    s_add_u32 s{sG}, s{sT}, s{sT2}
    s_and_b32 s{sCH}, s{sW}, 1
    s_bfe_u32 s{sHALF}, s{sW}, 0x10001
    s_mov_b32 s{sONE}, 0x3f803f80
    s_mov_b32 s{SK_INVN}, {f32(1/512)}
    s_lshl_b32 s{sT}, s{sG}, 1
    s_add_u32 s{sT}, s{sT}, s{sCH}
    s_lshl_b32 s{sT}, s{sT}, 8
    s_lshl_b32 s{sT2}, s{sHALF}, 7
    s_add_u32 s{sT}, s{sT}, s{sT2}
    v_lshl_add_u32 v{vT}, v{vL}, 1, s{sT}
    s_lshl_b32 s{sT}, s{sG}, 13
    v_lshl_add_u32 v{vAD}, v0, 4, s{sT}
    s_lshl_b32 s{sT2}, s{sG}, 2
    s_waitcnt lgkmcnt(0)
    s_load_dword s{sDT}, s[14:15], s{sT2}
    global_load_ushort v{vP}, v{vT}, s[6:7]
    global_load_ushort v{vP+1}, v{vT}, s[8:9]
    s_cmp_ge_u32 s{sW}, 4
    s_cbranch_scc1 k0_noc
    global_load_ushort v{vP+2}, v{vT}, s[10:11]
    global_load_ushort v{vP+3}, v{vT}, s[12:13]
    """)
    A.label("k0_noc")
    A(f"global_load_dwordx4 v[{vXR}:{vXR+3}], v{vAD}, s[4:5]")
    sROW=46
    A(f"""
    s_mul_i32 s{sT}, s2, {2*2752}
    v_min_u32 v{vW}, 343, v0
    v_lshl_add_u32 v{vRD+4}, v{vW}, 4, s{sT}
    s_sub_u32 s{sROW}, s{sW}, 2
    s_lshl_b32 s{sROW}, s{sROW}, 8
    s_add_u32 s{sROW}, s{sROW}, s2
    s_mul_i32 s{sT}, s{sROW}, 24386
    s_lshr_b32 s{sT}, s{sT}, 22
    s_mul_i32 s{sT2}, s{sT}, 172
    s_sub_u32 s{sT2}, s{sROW}, s{sT2}
    s_lshl_b32 s{sT}, s{sT}, 7
    s_lshl_b32 s47, s{sT2}, 13
    s_add_u32 s{sT}, s{sT}, s47
    s_and_b32 s{sT2}, s{sT2}, 1
    s_lshl_b32 s{sT2}, s{sT2}, 1
    v_bfe_u32 v{vW+1}, v{vL}, 4, 1
    v_or_b32 v{vW+1}, s{sT2}, v{vW+1}
    v_lshlrev_b32 v{vW+1}, 1, v{vW+1}
    v_and_b32 v{vW+2}, 7, v{vL}
    v_xor_b32 v{vW+1}, v{vW+1}, v{vW+2}
    v_lshrrev_b32 v{vW+2}, 3, v{vL}
    v_lshlrev_b32 v{vW+2}, 10, v{vW+2}
    v_lshl_add_u32 v{vW+1}, v{vW+1}, 4, v{vW+2}
    v_add_u32 v{vRD+8}, s{sT}, v{vW+1}
    """)
    A(f"""
    v_cmp_le_u32 vcc, 172, v{vW}
    v_subrev_u32 v{vW+1}, 172, v{vW}
    v_cndmask_b32 v{vW+1}, v{vW}, v{vW+1}, vcc
    v_mov_b32 v{vW+2}, 192
    v_cndmask_b32 v{vW+2}, 0, v{vW+2}, vcc
    v_mul_u32_u24 v{vW+3}, 0xaaab, v{vW+1}
    v_lshrrev_b32 v{vW+3}, 19, v{vW+3}
    v_mul_u32_u24 v{vW+3}, {16*12288-192}, v{vW+3}
    v_lshl_add_u32 v{vW+3}, v{vW+1}, 4, v{vW+3}
    s_lshr_b32 s{sT}, s2, 4
    s_mul_i32 s{sT}, s{sT}, 12288
    s_and_b32 s{sT2}, s2, 15
    s_mul_i32 s{sT2}, s{sT2}, 384
    s_add_u32 s{sT}, s{sT}, s{sT2}
    s_add_u32 s{sT}, s{sT}, {WS_W1}
    v_add3_u32 v{vRA}, v{vW+3}, v{vW+2}, s{sT}
    v_add_u32 v{vRA+1}, 6144, v{vRA}
    s_lshl_b32 s{sT}, s{sROW}, 10
    s_add_u32 s{sT}, s{sT}, {WS_WD}
    v_lshl_add_u32 v{vRA+2}, v{vL}, 4, s{sT}
    """)
    A(f"""
    v_and_b32 v{vSA}, 1, v0
    v_lshrrev_b32 v{vXA}, 1, v0
    v_mul_u32_u24 v{vXC}, {4*XS_PITCH}, v{vSA}
    v_lshl_add_u32 v{vXC}, v{vXA}, 2, v{vXC}
    v_add_u32 v{vXC}, {XS}, v{vXC}
    s_lshl_b32 s{sT}, s{sG}, 5
    s_add_u32 s{sT2}, s{sT}, {WS_XT}
    v_lshlrev_b32 v{vXA}, 13, v{vXA}
    v_lshl_add_u32 v{vXA}, v{vSA}, 4, v{vXA}
    v_add_u32 v{vXA}, s{sT2}, v{vXA}
    s_lshl_b32 s{sT2}, s{sW}, 2
    s_add_u32 s{sT}, s{sT}, s{sT2}
    v_mov_b32 v{vSA}, s{sT}
    s_mul_i32 s{sT}, s{sW}, {XS_PITCH}
    s_add_u32 s{sT}, s{sT}, {XS}
    v_lshl_add_u32 v{vXC+1}, v{vL}, 4, s{sT}
    s_mul_i32 s{sT}, s{sCH}, {EF_CH}
    s_lshl_b32 s{sT2}, s{sHALF}, 8
    s_add_u32 s{sT}, s{sT}, s{sT2}
    v_lshl_add_u32 v{vAD}, v{vL}, 2, s{sT}
    s_waitcnt lgkmcnt(0)
    s_lshl_b32 s{sT}, s{sDT}, 16
    s_and_b32 s{sT2}, s{sDT}, 0xffff0000
    s_cmp_eq_u32 s{sCH}, 0
    s_cselect_b32 s{sDT}, s{sT}, s{sT2}
    v_mov_b32 v{vP+4}, s{sDT}
    """)
    exp_bf16(A,vP+4,vW)
    A(f"""
    s_cmp_ge_u32 s{sW}, 6
    s_waitcnt vmcnt(0)
    s_cbranch_scc1 k0_now
    global_load_dwordx4 v[{vRD}:{vRD+3}], v{vRD+4}, s[20:21]
    global_load_dwordx4 v[{vRD+4}:{vRD+7}], v{vRD+4}, s[22:23]
    """)
    A.label("k0_now")
    A(f"""
    s_cmp_ge_u32 s{sROW}, 1376
    s_cbranch_scc1 k0_nod
    global_load_dwordx4 v[{vRD+8}:{vRD+11}], v{vRD+8}, s[24:25]
    """)
    A.label("k0_nod")
    A(f"ds_write_b128 v{vXC+1}, v[{vXR}:{vXR+3}]")
    zr=vP; zi=vP+1
    pk=[vW+20,vW+21,vW+22,vW+23]; pkc=[0]
    def put(reg,row):
        p=pk[pkc[0]%4]; pkc[0]+=1
        A(f"v_cvt_pk_bf16_f32 v{p}, v{reg}, v{reg+1}")
        A(f"ds_write_b32 v{vAD}, v{p} offset:{row*EF_PITCH}")
    w1=vW; w2=vW+2; w4=vW+4; w8=vW+6; wB=vW+8; q=vW+10; e=vW+12; e2=vW+14; t=vW+16; t2=vW+18; t3=vW+24; e3=vW+26
    def zsetup(n,neg):
        A(f"""
        v_lshlrev_b32 v{vP}, 16, v{vP}
        v_lshlrev_b32 v{vP+1}, 16, v{vP+1}
        """)
        stamp(A,1)
        exp_bf16(A,vP,vT)
        A(f"""
        v_mul_f32 v{zi}, v{zi}, v{vP+4}
        v_mul_f32 v{zr}, v{zr}, v{vP+4}
        v_mul_f32 v{zi}, {f32((-1 if neg else 1)/(2*math.pi))}, v{zi}
        v_mul_f32 v{zr}, {f32(-LOG2E)}, v{zr}
        """)
    def repack_store(hasW,lab):
        if hasW=="maybe":
            A(f"s_cmp_ge_u32 s{sW}, 6"); A(f"s_cbranch_scc1 {lab}_a")
        A(f"""
        v_cmp_gt_u32 vcc, 344, v0
        s_and_saveexec_b64 s[48:49], vcc
        {";" if "now1" in X else ""}global_store_dwordx4 v{vRA}, v[{vRD}:{vRD+3}], s[30:31]{WT}
        {";" if "now1" in X else ""}global_store_dwordx4 v{vRA+1}, v[{vRD+4}:{vRD+7}], s[30:31]{WT}
        s_mov_b64 exec, -1
        """)
        A.label(f"{lab}_a")
        A(f"""
        s_cmp_ge_u32 s{sROW}, 1376
        s_cbranch_scc1 {lab}_b
        {";" if "nowd" in X else ""}global_store_dwordx4 v{vRA+2}, v[{vRD+8}:{vRD+11}], s[30:31]{WT}
        """)
        A.label(f"{lab}_b")
    def stats_part():
        row_stats(A,vXR,vT,vT+1,vW+28,sONE)
        A(f"""
        s_mov_b32 exec_lo, 0
        s_mov_b32 exec_hi, 0x80000000
        global_store_dword v{vSA}, v{vT}, s[30:31] offset:{WS_STATS}
        s_mov_b64 exec, -1
        """)
    def xt_read():
        for j in (3,2,1,0): A(f"ds_read_b32 v{vXC+j}, v{vXC} offset:{XS_PITCH*j}")
    A(f"s_cmp_ge_u32 s{sW}, 4")
    A("s_cbranch_scc1 k0_frole")
    zsetup(5,True)
    cexp(A,w1,zr,zi,1,t); cexp(A,wB,zr,zi,256,t2)
    A(f"""
    v_lshlrev_b32 v{vP+2}, 16, v{vP+2}
    v_lshlrev_b32 v{vP+3}, 16, v{vP+3}
    v_mul_f32 v{e}, v{vP+2}, v{vP+4}
    v_mul_f32 v{e+1}, v{vP+3}, v{vP+4}
    v_add_f32 v{e}, v{e}, v{e}
    v_mul_f32 v{e+1}, -2.0, v{e+1}
    """)
    cmul(A,w2,w1,w1,t); cmul(A,q,e,wB,t2); put(e,0)
    cmul(A,w4,w2,w2,t3)
    seqB=[("put",q,8),("mul",e2,q,w2),("mul",q,q,wB),("put",e2,9),("mul",e2,e2,w2),("put",q,12),("mul",e3,q,w4),("put",e2,10),("mul",e2,e2,w2),
          ("mul",q,q,wB),("put",e3,13),("put",e2,11),("put",q,14),("mul",e3,q,w4),("mul",q,q,wB),("put",e3,15),("put",q,16),("mul",q,q,wB),("put",q,20),
          ("mul",q,q,wB),("put",q,24),("mul",q,q,wB),("put",q,28),("mul",q,q,wB),("put",q,17)]
    seqA=[]
    for a in range(1,8): seqA+=[("mul",e,e,w1),("put",e,a)]
    ia=0; tt=[t2,t3]; tc=0
    for i,s in enumerate(seqB):
        if s[0]=="put": put(s[1],s[2])
        else: cmul(A,s[1],s[2],s[3],tt[tc%2]); tc+=1
        if (i<10 and i%3==0) or i>=15:
            x=seqA[ia]; ia+=1
            if x[0]=="put": put(x[1],x[2])
            else: cmul(A,x[1],x[2],x[3],t)
    assert ia==len(seqA)
    stamp(A,2)
    aA=vW; aB=vW+1; r16=vW+2; g4=vW+3; acc=vW+4; oA=vW+12; oB=vW+13; oC=vW+14; fr=vW+32
    A(f"""
    v_and_b32 v{r16}, 15, v{vL}
    v_lshrrev_b32 v{g4}, 4, v{vL}
    s_mul_i32 s{sT}, s{sCH}, {EF_CH}
    v_mul_u32_u24 v{aA}, {EF_PITCH}, v{r16}
    v_lshl_add_u32 v{aA}, v{g4}, 4, v{aA}
    v_add_u32 v{aA}, s{sT}, v{aA}
    s_mul_i32 s{sT2}, s{sHALF}, {16*EF_PITCH}
    v_add_u32 v{aB}, s{sT2}, v{aA}
    s_lshl_b32 s{sT}, s{sHALF}, 4
    v_add_u32 v{r16}, s{sT}, v{r16}
    v_lshlrev_b32 v{oA}, 4, v{r16}
    v_lshl_add_u32 v{oA}, v{g4}, 3, v{oA}
    v_lshlrev_b32 v{oB}, 3, v{r16}
    v_add_u32 v{oB}, 512, v{oB}
    v_cmp_eq_u32 vcc, 2, v{g4}
    v_cndmask_b32 v{oA}, v{oA}, v{oB}, vcc
    v_lshlrev_b32 v{oB}, 2, v{r16}
    v_add_u32 v{oB}, 768, v{oB}
    v_cmp_eq_u32 vcc, 3, v{g4}
    v_cndmask_b32 v{oA}, v{oA}, v{oB}, vcc
    v_mov_b32 v{oB}, 4
    v_mov_b32 v{oC}, 128
    v_cndmask_b32 v{oB}, v{oB}, v{oC}, vcc
    s_lshl_b32 s{sT}, s{sG}, 1
    s_add_u32 s{sT}, s{sT}, s{sCH}
    s_mul_i32 s{sT}, s{sT}, {KD_CH}
    s_add_u32 s{sT}, s{sT}, {WS_KD}
    v_add_u32 v{oA}, s{sT}, v{oA}
    v_add_u32 v{oB}, v{oA}, v{oB}
    v_lshlrev_b32 v{oC}, 1, v{r16}
    v_lshl_add_u32 v{oC}, v{g4}, 6, v{oC}
    v_add_u32 v{oC}, s{sT}, v{oC}
    s_waitcnt lgkmcnt(0)
    s_barrier
    """)
    stamp(A,3)
    def rd(s):
        b=fr+12*s
        A(f"ds_read_b128 v[{b}:{b+3}], v{aB} offset:{32*EF_PITCH+64*s}")
        A(f"ds_read_b128 v[{b+4}:{b+7}], v{aA} offset:{64*s}")
        A(f"ds_read_b128 v[{b+8}:{b+11}], v{aA} offset:{16*EF_PITCH+64*s}")
    for s in range(4): rd(s)
    for s in range(8):
        b=fr+12*s
        n = 9 if s<=4 else 3*(7-s)+4
        A(f"s_waitcnt lgkmcnt({n})")
        c0="0" if s==0 else f"v[{acc}:{acc+3}]"; c1="0" if s==0 else f"v[{acc+4}:{acc+7}]"
        A(f"v_mfma_f32_16x16x32_bf16 v[{acc}:{acc+3}], v[{b+4}:{b+7}], v[{b}:{b+3}], {c0}")
        A(f"v_mfma_f32_16x16x32_bf16 v[{acc+4}:{acc+7}], v[{b+8}:{b+11}], v[{b}:{b+3}], {c1}")
        if s+4<8: rd(s+4)
        if s==4: xt_read()
    A(f"""
    s_waitcnt lgkmcnt(0)
    global_store_dwordx4 v{vXA}, v[{vXC}:{vXC+3}], s[30:31]
    v_cvt_pk_bf16_f32 v{acc}, v{acc}, v{acc+1}
    v_cvt_pk_bf16_f32 v{acc+1}, v{acc+2}, v{acc+3}
    v_cvt_pk_bf16_f32 v{acc+4}, v{acc+4}, v{acc+5}
    global_store_dword v{oA}, v{acc}, s[30:31]
    global_store_dword v{oB}, v{acc+1}, s[30:31]
    global_store_short v{oC}, v{acc+4}, s[30:31] offset:1024
    global_store_short_d16_hi v{oC}, v{acc+4}, s[30:31] offset:1280
    """)
    stats_part()
    A("s_waitcnt vmcnt(6)")
    repack_store(True,"k0_e")
    dump(A,0,4,sW)
    A("s_endpgm")
    A.label("k0_frole")
    zsetup(1,False)
    cexp(A,w8,zr,zi,8,t)
    A(f"v_mov_b32 v{pk[3]}, 0x3f80")
    A(f"ds_write_b32 v{vAD}, v{pk[3]} offset:{32*EF_PITCH}")
    cmul(A,w2,w8,w8,t); put(w8,33)
    so=w8; se=w2; pend=[(w2,2)]
    for c in range(3,32):
        if c&1: cmul(A,e,so,w2,t); so=e; new=(e,c)
        else:   cmul(A,e2,se,w2,t2); se=e2; new=(e2,c)
        r,cc=pend.pop(); put(r,32+cc); pend.append(new)
    r,cc=pend.pop(); put(r,32+cc)
    stamp(A,2)
    A("s_waitcnt lgkmcnt(0)")
    A("s_barrier")
    stamp(A,3)
    xt_read()
    stats_part()
    A(f"""
    s_waitcnt lgkmcnt(0)
    global_store_dwordx4 v{vXA}, v[{vXC}:{vXC+3}], s[30:31]
    s_waitcnt vmcnt(2)
    """)
    repack_store("maybe","k0_f")
    A(f"""
    s_mul_i32 s{sT}, s2, 48
    s_add_u32 s{sT}, s{sT}, {WS_ST2}
    v_lshl_add_u32 v{vT}, v{vL}, 2, s{sT}
    v_mov_b32 v{vT+1}, 0
    s_cmp_eq_u32 s{sW}, 7
    s_cselect_b64 exec, 0xfff, 0
    s_cbranch_execz k0_nz
    global_store_dword v{vT}, v{vT+1}, s[30:31]
    """)
    A.label("k0_nz")
    dump(A,0,4,sW)
    A.label("k0_end"); A("s_endpgm")
    return A.l, kd("k0_kernel",168,96)
```

```python
from common import *
GC1=-2.0*math.sqrt(2.0/math.pi)*LOG2E; GC2=GC1*0.044715
B_SLOT=20544; B_R=7; B_G=8192; B_U=8192+6144+32
X_RES=B_SLOT*B_R; X_BLK=X_RES+8192; X_CNT=X_BLK+8192
K2_LDS=X_CNT+16
NREG=6; SPIN=1<<16; NA=22
WS_SIZE=0x1600000
def wd_loc(b):
    if b>=37: return wd_loc(b-37)
    if b<2: return X_BLK+4096*b
    i=b-2; st=9+i//5
    return (st%B_R)*B_SLOT+4096*(i%5)
X_RED=wd_loc(7)
def bc(r): return f"v[{r}:{r+1}]"

def gen_k2():
    A=Asm(); head(A,"k2_kernel")
    sW=36; sMB=37; sCB=38; sT=39; sT2=40; sJ=42; sHO=43; sWO=44; sM0H=45; sM0W=46; sDO=47
    sS=48; sC=56; sOUT=12; sM0D=16; sSP=17
    vL=1
    A(f"""
    s_cmp_ge_u32 s2, 256
    s_cbranch_scc1 k2_end
    s_load_dwordx2 s[30:31], s[0:1], 104
    s_load_dwordx2 s[26:27], s[0:1], 88
    """)
    stamp(A,0)
    A(f"""
    s_and_b32 s{sT}, s2, 1
    s_lshl_b32 s{sT}, s{sT}, 3
    s_lshr_b32 s{sT2}, s2, 5
    s_add_u32 s{sCB}, s{sT}, s{sT2}
    s_and_b32 s{sT}, s2, 6
    s_lshl_b32 s{sT}, s{sT}, 1
    s_bfe_u32 s{sT2}, s2, 0x20003
    s_add_u32 s{sMB}, s{sT}, s{sT2}
    v_lshrrev_b32 v2, 6, v0
    v_and_b32 v{vL}, 63, v0
    v_readfirstlane_b32 s{sW}, v2
    v_mov_b32 v8, {X_CNT}
    v_mov_b32 v9, 0
    ds_write_b32 v8, v9
    s_mov_b32 s{sS+2}, {WS_SIZE}
    s_mov_b32 s{sS+3}, 0x20000
    s_cmp_eq_u32 s{sCB}, 15
    s_cbranch_scc1 k2_stats
    s_cmp_lt_u32 s{sW}, 4
    s_cbranch_scc1 k2_cons
    """)
    vH=2; vLin=3; vR=7; vT=10
    A(f"""
    s_sub_u32 s{sW}, s{sW}, 4
    v_lshrrev_b32 v{vT}, 4, v{vL}
    v_lshlrev_b32 v{vT+1}, 2, v{vT}
    v_and_b32 v{vT+2}, 15, v{vL}
    v_xor_b32 v{vT+1}, v{vT+1}, v{vT+2}
    v_lshlrev_b32 v{vT+1}, 4, v{vT+1}
    v_lshl_add_u32 v{vH}, v{vT}, 8, v{vT+1}
    v_lshlrev_b32 v{vLin}, 4, v{vL}
    s_lshl_b32 s{sM0H}, s{sW}, 11
    s_lshl_b32 s{sT}, s{sMB}, 17
    s_add_u32 s{sHO}, s{sM0H}, s{sT}
    s_add_u32 s{sHO}, s{sHO}, {WS_HT}
    s_mul_i32 s{sM0W}, s{sW}, 3072
    s_mul_i32 s{sWO}, s{sCB}, {16*12288}
    s_add_u32 s{sWO}, s{sWO}, s{sM0W}
    s_add_u32 s{sWO}, s{sWO}, {WS_W1}
    s_lshr_b32 s{sT}, s{sW}, 1
    s_lshl_b32 s{sT}, s{sT}, 5
    s_add_u32 s{sM0W}, s{sM0W}, s{sT}
    s_add_u32 s{sM0W}, s{sM0W}, {B_G}
    s_waitcnt lgkmcnt(0)
    s_mov_b32 s{sS}, s30
    s_mov_b32 s{sS+1}, s31
    """)
    SR=f"s[{sS}:{sS+3}]"
    def issue(st):
        sl=(st%B_R)*B_SLOT
        A(f"""
        s_add_u32 m0, s{sM0H}, {sl}
        s_nop 0
        buffer_load_dwordx4 v{vH}, {SR}, s{sHO} offen lds
        buffer_load_dwordx4 v{vH}, {SR}, s{sHO} offen offset:1024 lds
        s_add_u32 m0, s{sM0W}, {sl}
        s_add_u32 s{sHO}, s{sHO}, 8192
        buffer_load_dwordx4 v{vLin}, {SR}, s{sWO} offen lds
        buffer_load_dwordx4 v{vLin}, {SR}, s{sWO} offen offset:1024 lds
        buffer_load_dwordx4 v{vLin}, {SR}, s{sWO} offen offset:2048 lds
        s_add_u32 s{sWO}, s{sWO}, 12288
        """)
    def p2_setup():
        A(f"""
        s_and_b32 s{sT}, s{sCB}, 7
        s_mul_i32 s{sDO}, s{sT}, {43*4096}
        s_lshl_b32 s{sM0D}, s{sW}, 10
        s_add_u32 s{sDO}, s{sDO}, s{sM0D}
        s_add_u32 s{sDO}, s{sDO}, {WS_WD}
        v_bfe_u32 v{vT}, v{vL}, 4, 2
        v_lshlrev_b32 v{vT}, 1, v{vT}
        v_and_b32 v{vT+1}, 7, v{vL}
        v_xor_b32 v{vT}, v{vT}, v{vT+1}
        v_lshlrev_b32 v{vT}, 4, v{vT}
        v_lshrrev_b32 v{vT+2}, 3, v{vL}
        v_lshl_add_u32 v{vR}, v{vT+2}, 8, v{vT}
        """)
    def issue_wd(b):
        A(f"""
        s_add_u32 m0, s{sM0D}, {wd_loc(b)}
        s_add_u32 s{sT}, s{sDO}, {4096*b}
        buffer_load_dwordx4 v{vLin}, {SR}, s{sT} offen lds
        """)
    def issue_res():
        A(f"""
        s_and_b32 s{sT}, s{sCB}, 7
        s_lshl_b32 s{sT}, s{sT}, 14
        s_lshl_b32 s{sT2}, s{sW}, 12
        s_add_u32 s{sT}, s{sT}, s{sT2}
        s_lshl_b32 s{sT2}, s{sMB}, 17
        s_add_u32 s{sT}, s{sT}, s{sT2}
        s_lshr_b32 s{sT2}, s{sCB}, 3
        s_lshl_b32 s{sT2}, s{sT2}, 7
        s_add_u32 s{sT}, s{sT}, s{sT2}
        s_add_u32 s{sT}, s{sT}, {WS_HT}
        s_lshl_b32 s{sT2}, s{sW}, 11
        s_add_u32 m0, s{sT2}, {X_RES}
        s_add_u32 s{sT2}, s{sT}, 2048
        buffer_load_dwordx4 v{vR}, {SR}, s{sT} offen lds
        s_add_u32 m0, m0, 1024
        s_nop 0
        buffer_load_dwordx4 v{vR}, {SR}, s{sT2} offen lds
        """)
    stamp(A,1)
    PRE=int(os.environ.get("B_PRE","3"))
    for st in range(PRE): issue(st)
    p2_setup()
    stamp(A,2)
    issued=[(st,5) for st in range(PRE)]
    nxt=PRE; nb=0
    def after(j):
        idx=[i for i,(t,_) in enumerate(issued) if t==j][0]
        return sum(c for _,c in issued[idx+1:])
    WPI=int(os.environ.get("WPI","4"))
    def free(bk,j): return bk<2 or 9+(bk-2)//5 <= j-1
    for j in range(17):
        if j<16: A(f"s_waitcnt vmcnt({min(63,after(j))})")
        A("s_barrier")
        if j==0: stamp(A,3)
        if nxt<16:
            issue(nxt); issued.append((nxt,5)); nxt+=1
        else:
            c=0
            while nb<37 and free(nb,j) and (c<WPI or (j==16 and "nopause" in X)):
                issue_wd(nb); nb+=1; c+=1
            issued.append(("w",c))
    issue_res()
    if "nopause" not in X:
        A("s_barrier")
        while nb<37: issue_wd(nb); nb+=1
    assert nb==37
    stamp(A,4)
    def lbar(k):
        l=A.newlabel("k2_lb")
        A(f"""
        v_mov_b32 v9, 1
        s_mov_b64 exec, 1
        ds_add_u32 v8, v9
        s_mov_b64 exec, -1
        """)
        A.label(l)
        A(f"""
        ds_read_b32 v9, v8
        s_waitcnt lgkmcnt(0)
        v_cmp_gt_u32 vcc, {4*k}, v9
        s_cbranch_vccnz {l}
        """)
    aW=12; aRr=15; vF=16; vHo=17; vOo=18; vX=19
    ACC=20; RG=36; FW=RG+16*NREG; NH=12; FH=FW+32; aWn=FH+4*NH
    def p2_addr(grpB):
        A(f"""
        v_bfe_u32 v{vT}, v{vL}, 2, 2
        v_lshrrev_b32 v{vT+1}, 4, v{vL}
        v_lshl_add_u32 v{aW}, v{vT+1}, 3, v{vT}
        v_lshlrev_b32 v{aW}, 7, v{aW}
        v_and_b32 v{aW+1}, 3, v{vL}
        v_lshl_add_u32 v{aW}, v{aW+1}, 3, v{aW}
        v_lshrrev_b32 v{aW+2}, 1, v{vT}
        v_and_b32 v{vF}, 1, v{vT+1}
        v_lshl_or_b32 v{aW+2}, v{vF}, 1, v{aW+2}
        """)
        for nt in range(4):
            A(f"v_xor_b32 v{vF}, {nt}, v{aW+2}")
            A(f"v_lshl_add_u32 v{aWn+nt}, v{vF}, 5, v{aW}")
            A(f"v_add_u32 v{aWn+4+nt}, 0xf000, v{aWn+nt}")
            A(f"v_add_u32 v{aWn+8+nt}, 0x1e000, v{aWn+nt}")
        if not grpB:
            A(f"""
            v_lshl_add_u32 v{aRr}, v{vT+1}, 2, v{vT}
            v_lshlrev_b32 v{aRr}, 7, v{aRr}
            v_lshl_add_u32 v{aRr}, v{aW+1}, 3, v{aRr}
            v_xor_b32 v{vF}, s{sW}, v{aW+2}
            v_lshl_add_u32 v{aRr}, v{vF}, 5, v{aRr}
            v_add_u32 v{aRr}, {X_RES}, v{aRr}
            """)
        A(f"""
        v_lshlrev_b32 v{vHo}, 4, v{vL}
        v_and_b32 v{vOo}, 15, v{vL}
        v_lshlrev_b32 v{vOo}, 10, v{vOo}
        v_lshl_add_u32 v{vOo}, v{vT+1}, 3, v{vOo}
        s_lshl_b32 s{sT}, s{sW}, 12
        s_add_u32 s{sT}, s{sT}, {X_RED}
        v_add_u32 v{vX}, s{sT}, v{vHo}
        """)
        srd(A,sOUT,26,0,2048*1024)
        A(f"""
        s_lshl_b32 s{sT}, s{sMB}, 1
        s_lshr_b32 s{sT2}, s{sCB}, 3
        s_add_u32 s{sT}, s{sT}, s{sT2}
        s_lshl_b32 s{sJ}, s{sT}, 7
        s_add_u32 s{sJ}, s{sJ}, {WS_FLAG}
        s_lshl_b32 s{sT}, s{sT}, 2
        s_add_u32 s{sT}, s{sT}, s{sW}
        s_mul_i32 s{sHO}, s{sT}, {43*1024}
        s_add_u32 s{sHO}, s{sHO}, {WS_HM+(NA*1024 if grpB else 0)}
        s_lshl_b32 s{sWO}, s{sT}, 14
        s_and_b32 s{sT2}, s{sCB}, 7
        s_lshl_b32 s{sT2}, s{sT2}, 7
        s_add_u32 s{sWO}, s{sWO}, s{sT2}
        """)
    def rdw(dst,b):
        loc=wd_loc(b); win=loc//0xf000; off=loc-win*0xf000
        return [f"ds_read_b64_tr_b16 v[{dst+4*nt+2*e}:{dst+4*nt+2*e+1}], v{aWn+4*win+nt} offset:{off+512*e}" for nt in range(4) for e in range(2)]
    def p2_loop(b0,n,grpB):
        def ldh(s):
            d=FH+4*(s%NH)
            o=[f"buffer_load_dwordx4 v[{d}:{d+3}], v{vHo}, {SR}, s{sHO} offen offset:{1024*(s%4)}"]
            if s%4==3: o.append(f"s_add_u32 s{sHO}, s{sHO}, 4096")
            return o
        D=min(NH-1,int(os.environ.get("P2D","6"))); PD=NREG
        for s in range(D):
            for l in ldh(s): A(l)
        for s in range(n):
            src=RG+16*(s%8)
            nr=rdw(RG+16*((s+PD)%8),b0+s+PD) if s+PD<n else []
            lg=""
            if s>=NREG:
                out=8*(min(n,s+PD)-s-1)
                if out<=15: lg=f" lgkmcnt({out})"
            if s==8: A("s_barrier")
            A(f"s_waitcnt vmcnt({min(n,s+D)-s-1})"+lg)
            if s+D<n:
                for l in ldh(s+D): A(l)
            h=FH+4*(s%NH)
            for nt in range(4):
                c="0" if (grpB and s==0) else f"v[{ACC+4*nt}:{ACC+4*nt+3}]"
                A(f"v_mfma_f32_16x16x32_bf16 v[{ACC+4*nt}:{ACC+4*nt+3}], v[{src+4*nt}:{src+4*nt+3}], v[{h}:{h+3}], {c}")
                if nt==0 and nr: A("s_waitcnt lgkmcnt(7)")
                for r in nr[2*nt:2*nt+2]: A(r)
        stamp(A,7)
        give=ACC if grpB else ACC+8; keep=ACC+8 if grpB else ACC
        wo=0 if grpB else 2048; ro=2048 if grpB else 0
        A(f"""
        ds_write_b128 v{vX}, v[{give}:{give+3}] offset:{wo}
        ds_write_b128 v{vX}, v[{give+4}:{give+7}] offset:{wo+1024}
        s_waitcnt lgkmcnt(0)
        s_barrier
        ds_read_b128 v[{RG}:{RG+3}], v{vX} offset:{ro}
        ds_read_b128 v[{RG+4}:{RG+7}], v{vX} offset:{ro+1024}
        """)
        for i in range(2):
            A(f"s_waitcnt lgkmcnt({1-i})")
            for q in range(2):
                r=4*i+2*q
                A(f"v_pk_add_f32 {bc(keep+r)}, {bc(keep+r)}, {bc(RG+r)}")
            for q in range(2):
                r=4*i+2*q
                A(f"v_cvt_pk_bf16_f32 v{RG+8+2*i+q}, v{keep+r}, v{keep+r+1}")
            A(f"buffer_store_dwordx2 {bc(RG+8+2*i)}, v{vOo}, s[{sOUT}:{sOUT+3}], s{sWO} offen offset:{32*(i+(2 if grpB else 0))}")
    A.label("k2_p2")
    p2_addr(False)
    A(f"""
    v_min_u32 v{vF}, 28, v{vL}
    v_lshl_add_u32 v{vF}, v{vF}, 2, s{sJ}
    s_waitcnt vmcnt(0)
    """)
    lbar(1)
    stamp(A,5)
    for b in range(NREG):
        for r in rdw(RG+16*b,b): A(r)
    for q in range(4): A(f"ds_read_b64_tr_b16 v[{FW+2*q}:{FW+2*q+1}], v{aRr} offset:{2048*q}")
    A("s_waitcnt lgkmcnt(0)")
    lbar(2)
    for b in range(37,43): issue_wd(b)
    for q in range(8):
        A(f"v_lshlrev_b32 v{ACC+2*q}, 16, v{FW+q}")
        A(f"v_and_b32 v{ACC+2*q+1}, 0xffff0000, v{FW+q}")
    A(f"""
    s_mov_b32 s{sSP}, 0
    s_barrier
    s_cmp_lg_u32 s{sW}, 0
    s_cbranch_scc1 k2_polled
    """)
    A.label("k2_poll")
    A(f"""
    global_load_dword v{vT}, v{vF}, s[30:31] sc0 sc1
    s_add_u32 s{sSP}, s{sSP}, 1
    s_cmp_ge_u32 s{sSP}, {SPIN}
    s_cbranch_scc1 k2_polled
    s_waitcnt vmcnt(0)
    v_cmp_eq_u32 vcc, 0, v{vT}
    s_cbranch_vccnz k2_poll
    """)
    A.label("k2_polled")
    A("s_waitcnt vmcnt(0)")
    A("s_barrier")
    stamp(A,6)
    p2_loop(0,NA,False)
    dump(A,2,8,sW,4)
    A("s_endpgm")
    A.label("k2_cons")
    sWT=18; sWF=19
    aH=2; aWc=8; cT=11; CSF=18; FA=30; FB=50; CAC=70; vS=166; vSt=168
    A(f"""
    s_setprio 1
    s_and_b32 s{sWT}, s{sW}, 1
    s_lshr_b32 s{sWF}, s{sW}, 1
    v_bfe_u32 v{cT}, v{vL}, 2, 2
    v_lshrrev_b32 v{cT+1}, 5, v{vL}
    v_lshl_add_u32 v{cT+1}, v{cT+1}, 3, v{cT}
    v_and_b32 v{cT+2}, 3, v{vL}
    v_bfe_u32 v{cT+3}, v{vL}, 4, 1
    v_lshlrev_b32 v{cT+4}, 8, v{cT+1}
    v_lshl_add_u32 v{cT+4}, v{cT+3}, 5, v{cT+4}
    v_lshl_add_u32 v{cT+4}, v{cT+2}, 3, v{cT+4}
    s_lshl_b32 s{sT}, s{sWT}, 1
    v_xor_b32 v{cT+5}, s{sT}, v{cT}
    v_lshl_add_u32 v{aH}, v{cT+5}, 6, v{cT+4}
    v_xor_b32 v{cT+5}, 1, v{cT+5}
    v_lshl_add_u32 v{aH+1}, v{cT+5}, 6, v{cT+4}
    v_mul_u32_u24 v{aWc}, 192, v{cT+1}
    v_mul_u32_u24 v{cT+4}, {B_U-B_G}, v{cT+3}
    v_add_u32 v{aWc}, v{aWc}, v{cT+4}
    v_and_b32 v{cT+4}, 1, v{vL}
    v_lshl_add_u32 v{aWc}, v{cT+4}, 4, v{aWc}
    v_bfe_u32 v{cT+4}, v{vL}, 1, 1
    v_lshl_add_u32 v{aWc}, v{cT+4}, 3, v{aWc}
    s_mul_i32 s{sT}, s{sWF}, 96
    s_add_u32 s{sT}, s{sT}, {B_G}
    v_add_u32 v{aWc}, s{sT}, v{aWc}
    """)
    for g in (1,2):
        A(f"v_add_u32 v{aH+2*g}, {3*g*B_SLOT}, v{aH}")
        A(f"v_add_u32 v{aH+2*g+1}, {3*g*B_SLOT}, v{aH+1}")
        A(f"v_add_u32 v{aWc+g}, {3*g*B_SLOT}, v{aWc}")
    A(f"""
    v_and_b32 v{cT+4}, 1, v{cT}
    v_lshl_add_u32 v{cT+4}, v{cT+4}, 3, v{cT+2}
    v_lshrrev_b32 v{cT+5}, 1, v{cT}
    v_lshl_add_u32 v{cT+4}, v{cT+5}, 2, v{cT+4}
    v_mul_u32_u24 v{cT+5}, 1376, v{cT+3}
    v_add_u32 v{cT+4}, v{cT+4}, v{cT+5}
    s_mul_i32 s{sT}, s{sCB}, 96
    s_mul_i32 s{sT2}, s{sWF}, 48
    s_add_u32 s{sT}, s{sT}, s{sT2}
    v_add_lshl_u32 v{cT+4}, v{cT+4}, s{sT}, 3
    v_and_b32 v{cT+5}, 32, v{vL}
    v_lshl_add_u32 v{cT+4}, v{cT+5}, 20, v{cT+4}
    s_waitcnt lgkmcnt(0)
    s_mov_b32 s{sS}, s30
    s_mov_b32 s{sS+1}, s31
    """)
    srd(A,sC,30,WS_CS,2*1376*8)
    for rt in range(3):
        A(f"v_mov_b32 v{CSF+4*rt+2}, 0"); A(f"v_mov_b32 v{CSF+4*rt+3}, 0")
    A(f"""
    s_lshl_b32 s{sT}, s{sMB}, 9
    s_lshl_b32 s{sT2}, s{sWT}, 8
    s_add_u32 s{sT}, s{sT}, s{sT2}
    s_add_u32 s{sT}, s{sT}, {WS_ST2}
    v_and_b32 v{cT}, 31, v{vL}
    v_lshl_add_u32 v{vSt}, v{cT}, 2, s{sT}
    v_mul_u32_u24 v{cT+1}, {43*1024}, v{cT+3}
    v_lshl_add_u32 v{cT+1}, v{cT+5}, 3, v{cT+1}
    v_and_b32 v{cT}, 15, v{vL}
    v_lshl_add_u32 v{cT+1}, v{cT}, 4, v{cT+1}
    s_lshl_b32 s{sT}, s{sMB}, 1
    s_add_u32 s{sT}, s{sT}, s{sWT}
    s_lshl_b32 s45, s{sT}, 7
    s_lshl_b32 s46, s{sCB}, 3
    s_add_u32 s45, s45, s46
    s_lshl_b32 s46, s{sWF}, 2
    s_add_u32 s45, s45, s46
    s_add_u32 s45, s45, {WS_FLAG}
    v_mov_b32 v{vSt+1}, s45
    s_mul_i32 s{sT}, s{sT}, {4*43*1024}
    s_mul_i32 s{sJ}, s{sCB}, 6
    s_mul_i32 s{sT2}, s{sWF}, 3
    s_add_u32 s{sJ}, s{sJ}, s{sT2}
    s_lshl_b32 s{sT2}, s{sJ}, 9
    s_add_u32 s{sT}, s{sT}, s{sT2}
    s_add_u32 s{sT}, s{sT}, {WS_HM}
    s_add_u32 s{sT2}, s{sT}, {2*43*1024}
    """)
    def rd(F,st,ks):
        sl=st%B_R; g=sl//3; so=(sl%3)*B_SLOT
        def w(rt,e): return f"ds_read_b64_tr_b16 v[{F+8+4*rt+2*e}:{F+8+4*rt+2*e+1}], v{aWc+g} offset:{so+(16*ks+4*e)*192+32*rt}"
        def h(ct,e): return f"ds_read_b64_tr_b16 v[{F+4*ct+2*e}:{F+4*ct+2*e+1}], v{aH+2*g+ct} offset:{so+(16*ks+4*e)*256}"
        return [w(0,0),w(0,1),h(0,0),h(0,1),h(1,0),h(1,1),w(1,0),w(1,1),w(2,0),w(2,1)]
    first=[True]*6
    def mm(F):
        out=[]
        for rt in range(3):
            for ct in range(2):
                a=CAC+16*(2*rt+ct)
                c="0" if first[2*rt+ct] else f"v[{a}:{a+15}]"
                first[2*rt+ct]=False
                out.append(f"v_mfma_f32_32x32x16_bf16 v[{a}:{a+15}], v[{F+8+4*rt}:{F+8+4*rt+3}], v[{F+4*ct}:{F+4*ct+3}], {c}")
        return out
    need_before=[4,6,8,8,10,10]
    def phase(ms,rs,prev_pending):
        issued=0; per=[2,2,2,2,2,0]; lastw=None
        for i,m in enumerate(ms):
            if prev_pending:
                n=(10-need_before[i])+issued
                if lastw is None or need_before[i]>lastw:
                    A(f"s_waitcnt lgkmcnt({min(n,15)})"); lastw=need_before[i]
            A(m)
            for _ in range(per[i]):
                if issued<len(rs): A(rs[issued]); issued+=1
    def ldst():
        A(f"global_load_dword v{vS}, v{vSt}, s[30:31] sc0 sc1")
        A(f"global_load_dword v{vS+1}, v{vSt}, s[30:31] offset:128 sc0 sc1")
    stamp(A,1)
    for j in range(16):
        A("s_barrier")
        if j==0:
            for r in rd(FA,0,0): A(r)
            for rt in range(3):
                A(f"buffer_load_dwordx2 v[{CSF+4*rt}:{CSF+4*rt+1}], v{cT+4}, s[{sC}:{sC+3}], 0 offen offset:{128*rt}")
        else:
            phase(mm(FB),rd(FA,j,0),False)
        if j==12: ldst()
        phase(mm(FA),rd(FB,j,1),True)
        A("s_waitcnt lgkmcnt(0)")
    A("s_barrier")
    stamp(A,2)
    ms=mm(FB)
    A(ms[0])
    A(f"s_mov_b32 s{sSP}, 0")
    A.label("k2_stchk")
    A(f"""
    s_waitcnt vmcnt(0)
    v_min_u32 v{FA}, v{vS}, v{vS+1}
    v_cmp_eq_u32 vcc, 0, v{FA}
    s_cbranch_vccz k2_stok
    s_add_u32 s{sSP}, s{sSP}, 1
    s_cmp_ge_u32 s{sSP}, {SPIN}
    s_cbranch_scc1 k2_stok
    """)
    ldst()
    A("s_branch k2_stchk")
    A.label("k2_stok")
    BF=FA+8; K1=2; K3=6; K2=FA+16
    B=Asm()
    for ct in range(2):
        x=FA+4*ct
        B(f"""
        v_and_b32 v{x+1}, 0xffff0000, v{vS+ct}
        v_and_b32 v{BF+4*ct+1}, 0xffff, v{vS+ct}
        v_rcp_f32 v{x+2}, v{x+1}
        v_xor_b32 v{BF+4*ct+1}, 0x8000, v{BF+4*ct+1}
        v_mov_b32 v{BF+4*ct+2}, 0
        v_lshl_or_b32 v{BF+4*ct}, v{BF+4*ct+1}, 16, v{BF+4*ct+1}
        v_mov_b32 v{BF+4*ct+3}, 0
        v_mul_f32 v{K2+2*ct}, v{x+1}, v{x+1}
        v_mul_f32 v{K1+2*ct}, {f32(GC1)}, v{x+2}
        v_mul_f32 v{x+3}, v{x+2}, v{x+2}
        v_mul_f32 v{x+3}, v{x+3}, v{x+2}
        v_mul_f32 v{K3+2*ct}, {f32(GC2)}, v{x+3}
        """)
    bl=[l.strip() for l in B.l]
    for i,m in enumerate(ms[1:]):
        for l in bl[i*5:(i+1)*5]: A(l)
        A(m)
    for rt in range(3):
        for ct in range(2):
            a=CAC+16*(2*rt+ct)
            A(f"v_mfma_f32_32x32x16_bf16 v[{a}:{a+15}], v[{CSF+4*rt}:{CSF+4*rt+3}], v[{BF+4*ct}:{BF+4*ct+3}], v[{a}:{a+15}]")
    stamp(A,3)
    T=FB
    for rt in range(3):
        A(f"s_add_u32 s45, s{sJ}, {rt}")
        A(f"s_cmp_ge_u32 s45, 86")
        A("s_cbranch_scc1 k2_sig")
        for ct in range(2):
            a=CAC+16*(2*rt+ct); t=T+8*ct
            k1=K1+2*ct; k2=K2+2*ct; k3=K3+2*ct
            for r in range(0,8,2): A(f"v_pk_mul_f32 {bc(t+r)}, {bc(a+r)}, {bc(a+r)}")
            for r in range(0,8,2): A(f"v_pk_fma_f32 {bc(t+r)}, {bc(t+r)}, {bc(k3)}, {bc(k1)} op_sel_hi:[1,0,0]")
            for r in range(0,8,2): A(f"v_pk_mul_f32 {bc(t+r)}, {bc(t+r)}, {bc(a+r)}")
            for r in range(0,8,2):
                A(f"v_exp_f32 v{t+r}, v{t+r}")
                A(f"v_pk_mul_f32 {bc(a+r)}, {bc(a+r)}, {bc(a+8+r)}")
                A(f"v_exp_f32 v{t+r+1}, v{t+r+1}")
            for r in range(0,8,2): A(f"v_pk_fma_f32 {bc(t+r)}, {bc(t+r)}, {bc(k2)}, {bc(k2)} op_sel_hi:[1,0,0]")
            for r in range(8): A(f"v_rcp_f32 v{t+r}, v{t+r}")
            for r in range(0,8,2): A(f"v_pk_mul_f32 {bc(a+r)}, {bc(a+r)}, {bc(t+r)}")
            for r in range(4): A(f"v_cvt_pk_bf16_f32 v{a+8+r}, v{a+2*r}, v{a+2*r+1}")
            A(f"buffer_store_dwordx4 v[{a+8}:{a+11}], v{cT+1}, {SR}, s{sT if ct==0 else sT2} offen offset:{512*rt} sc0 sc1")
    A.label("k2_sig")
    if "nopause" not in X: A("s_barrier")
    stamp(A,4)
    p2_addr(True)
    A(f"""
    v_mov_b32 v{vS}, 1
    s_waitcnt vmcnt(0)
    s_mov_b64 exec, 1
    global_store_dword v{vSt+1}, v{vS}, s[30:31] sc0 sc1
    s_mov_b64 exec, -1
    """)
    A("s_setprio 0")
    stamp(A,5)
    A.label("k2_p2b")
    A("s_barrier")
    for b in range(NREG):
        for r in rdw(RG+16*b,NA+b): A(r)
    A("s_waitcnt vmcnt(0) lgkmcnt(0)")
    A("s_barrier")
    stamp(A,6)
    p2_loop(NA,43-NA,True)
    dump(A,2,8,sW)
    A("s_endpgm")
    A.label("k2_stats")
    vD=16; S=80; Q=88; U=96
    A(f"""
    s_lshl_b32 s{sT}, s{sMB}, 17
    s_lshl_b32 s{sT2}, s{sW}, 14
    s_add_u32 s{sT}, s{sT}, s{sT2}
    s_add_u32 s{sT}, s{sT}, {WS_HT}
    v_lshlrev_b32 v{vLin}, 4, v{vL}
    s_mov_b32 s{SK_INVN}, {f32(1/512)}
    s_waitcnt lgkmcnt(0)
    s_mov_b32 s{sS}, s30
    s_mov_b32 s{sS+1}, s31
    """)
    for i in range(16):
        A(f"buffer_load_dwordx4 v[{vD+4*i}:{vD+4*i+3}], v{vLin}, {SR}, s{sT} offen offset:{1024*(i%4)}")
        if i%4==3 and i<15: A(f"s_add_u32 s{sT}, s{sT}, 4096")
    for j in range(16): A(f"v_mov_b32 v{S+j}, 0")
    for i in range(16):
        A(f"s_waitcnt vmcnt({15-i})")
        for j in range(4):
            A(f"v_lshlrev_b32 v{U+2*j}, 16, v{vD+4*i+j}")
            A(f"v_and_b32 v{U+2*j+1}, 0xffff0000, v{vD+4*i+j}")
        for j in range(4):
            A(f"v_pk_add_f32 {bc(S+2*j)}, {bc(S+2*j)}, {bc(U+2*j)}")
            A(f"v_pk_fma_f32 {bc(Q+2*j)}, {bc(U+2*j)}, {bc(U+2*j)}, {bc(Q+2*j)}")
    for j in range(8): A(f"v_permlane32_swap_b32 v{S+j}, v{Q+j}")
    for j in range(8): A(f"v_add_f32 v{S+j}, v{S+j}, v{Q+j}")
    for j in range(4): A(f"v_permlane16_swap_b32 v{S+j}, v{S+j+4}")
    A(f"""
    v_and_b32 v{vT}, 15, v{vL}
    v_lshlrev_b32 v{vT}, 5, v{vT}
    v_and_b32 v{vT+1}, 16, v{vL}
    v_add_u32 v{vT}, v{vT}, v{vT+1}
    v_and_b32 v{vT+1}, 32, v{vL}
    v_lshl_add_u32 v{vT}, v{vT+1}, 4, v{vT}
    s_lshl_b32 s{sT}, s{sW}, 10
    v_add_u32 v{vT}, s{sT}, v{vT}
    """)
    for j in range(4): A(f"v_add_f32 v{S+j}, v{S+j}, v{S+j+4}")
    A(f"""
    ds_write_b128 v{vT}, v[{S}:{S+3}]
    s_waitcnt lgkmcnt(0)
    s_barrier
    s_cmp_ge_u32 s{sW}, 4
    s_cbranch_scc1 k2_st_p2
    s_cmp_ge_u32 s{sW}, 2
    s_cbranch_scc1 k2_st_exit
    v_lshlrev_b32 v{vT}, 2, v0
    """)
    for i in range(8):
        A(f"ds_read_b32 v{vD+i}, v{vT} offset:{1024*i}")
        A(f"ds_read_b32 v{vD+8+i}, v{vT} offset:{1024*i+512}")
    A("s_waitcnt lgkmcnt(0)")
    for st in (4,2,1):
        for i in range(st):
            A(f"v_add_f32 v{vD+i}, v{vD+i}, v{vD+i+st}")
            A(f"v_add_f32 v{vD+8+i}, v{vD+8+i}, v{vD+8+i+st}")
    ln_finish(A,vD,vD+8,vD+1,512)
    A(f"""
    v_cvt_pk_bf16_f32 v{vD}, v{vD}, v{vD+8}
    s_lshl_b32 s{sT}, s{sMB}, 9
    s_add_u32 s{sT}, s{sT}, {WS_ST2}
    v_add_u32 v{vT}, s{sT}, v{vT}
    global_store_dword v{vT}, v{vD}, s[30:31] sc0 sc1
    """)
    A.label("k2_st_exit")
    A("s_barrier")
    p2_addr(True)
    for i in range(1,6): stamp(A,i)
    A("s_branch k2_p2b")
    A.label("k2_st_p2")
    A("s_barrier")
    A(f"s_sub_u32 s{sW}, s{sW}, 4")
    p2_setup()
    issue_res()
    for b in range(37): issue_wd(b)
    for i in range(1,5): stamp(A,i)
    A("s_branch k2_p2")
    A.label("k2_end"); A("s_endpgm")
    return A.l, kd("k2_kernel",224,96)
```

```python
from common import *
import k01, k0n, k2g
out=sys.argv[1] if len(sys.argv)>1 else "out.s"
build([k0n.gen_k0,k01.gen_k1,k2g.gen_k2],[("k0_kernel",256,512,k0n.K0_LDS),("k1_kernel",256,512,k01.K1_LDS),("k2_kernel",256,512,k2g.K2_LDS)],out)
print("LDS",k0n.K0_LDS,k01.K1_LDS,k2g.K2_LDS)
```

```python
import sys, math, os, struct
from asmlib import *
NAME="sequential_preLN__ssm_conv_s4d__glu_gated_geglu__prompt"
WS_STATS=0x0000
WS_ST2  =0x4000
WS_ST3  =0x30000
WS_FLH  =0x34000
WS_FLAG =0x6000
WS_EPOCH=0x8000
WS_CS   =0x10000
WS_FL2  =0x80000
WS_KD   =0x40000
WS_HT   =0x100000
WS_HM   =0x400000
WS_XT   =0xA00000
WS_DBG  =0xC00000
WS_WD2  =0xA00000
WS_W1   =0x1000000
WS_WD   =0x1400000
WS_XG   =0x1600000
KD_CH=1536
LOG2E=1.4426950408889634
def split_hi_lo(x,bits=12):
    u=struct.unpack("<I",struct.pack("<f",x))[0] & (0xffffffff<<(23-bits+1)) & 0xffffffff
    hi=struct.unpack("<f",struct.pack("<I",u))[0]
    return hi, x-hi
L2E_HI,L2E_LO=split_hi_lo(LOG2E)
DBG=int(os.environ.get("DBG","0"))
X=os.environ.get("X","")
TIMER="s_memtime" if DBG==2 else "s_memrealtime"
SK_INVN=90
def kd(name,vgpr,sgpr,acc=None):
    ao=acc if acc is not None else (vgpr+3)//4*4
    return f""".p2align 6
.amdhsa_kernel {name}
  .amdhsa_next_free_vgpr {vgpr}
  .amdhsa_next_free_sgpr {sgpr}
  .amdhsa_accum_offset {ao}
  .amdhsa_group_segment_fixed_size 0
  .amdhsa_kernarg_size 112
  .amdhsa_user_sgpr_count 2
  .amdhsa_user_sgpr_kernarg_segment_ptr 1
  .amdhsa_system_sgpr_workgroup_id_x 1
  .amdhsa_float_denorm_mode_32 3
.end_amdhsa_kernel"""
def stamp(A,i):
    if DBG: A(f"{TIMER} s[{64+2*i}:{65+2*i}]")
def dump(A,kidx,n,sW,woff=0,ws=30):
    if not DBG: return
    A("s_mov_b64 exec, 1")
    A(f"{TIMER} s[{64+2*n}:{65+2*n}]")
    A(f"s_lshl_b32 s92, s2, 4")
    A(f"s_add_u32 s92, s92, s{sW}")
    A(f"s_add_u32 s92, s92, {woff}")
    A(f"s_lshl_b32 s92, s92, 6")
    A(f"s_add_u32 s92, s92, {WS_DBG+kidx*0x40000}")
    A("v_mov_b32 v2, s92")
    A("s_waitcnt lgkmcnt(0)")
    for i in range(n+1):
        A(f"v_mov_b32 v3, s{64+2*i}")
        A(f"global_store_dword v2, v3, s[{ws}:{ws+1}] offset:{4*i}")
def head(A,name):
    A.l += [f".globl {name}", ".p2align 8", f".type {name},@function"]
    A.label(name)
def bf16round(A,dst,src):
    A(f"v_cvt_pk_bf16_f32 v{dst}, v{src}, v{src}")
    A(f"v_and_b32 v{dst}, 0xffff0000, v{dst}")
def wave_sum_dpp(A,regs_):
    for ctl in ("row_shr:1","row_shr:2","row_shr:4","row_shr:8"):
        for r in regs_:
            A(f"v_add_f32_dpp v{r}, v{r}, v{r} {ctl} row_mask:0xf bank_mask:0xf bound_ctrl:0")
    for r in regs_: A(f"v_add_f32_dpp v{r}, v{r}, v{r} row_bcast:15 row_mask:0xa bank_mask:0xf")
    for r in regs_: A(f"v_add_f32_dpp v{r}, v{r}, v{r} row_bcast:31 row_mask:0xc bank_mask:0xf")
def ln_finish(A,S,Q,T,n):
    A(f"v_mul_f32 v{S}, {f32(1.0/n)}, v{S}")
    A(f"v_mul_f32 v{T}, v{S}, v{S}")
    A(f"v_fma_f32 v{Q}, v{Q}, s{SK_INVN}, -v{T}")
    A(f"v_max_f32 v{Q}, 0, v{Q}")
    bf16round(A,Q,Q)
    A(f"v_add_f32 v{Q}, {f32(1e-5)}, v{Q}")
    bf16round(A,Q,Q)
    A(f"v_sqrt_f32 v{Q}, v{Q}")
def srd(A,d,base,off,size):
    if off:
        A(f"s_add_u32 s{d}, s{base}, {off}")
        A(f"s_addc_u32 s{d+1}, s{base+1}, 0")
    else:
        A(f"s_mov_b32 s{d}, s{base}")
        A(f"s_mov_b32 s{d+1}, s{base+1}")
    A(f"s_mov_b32 s{d+2}, {size}")
    A(f"s_mov_b32 s{d+3}, 0x20000")
def build(kernels, launches, path):
    src=open(f"cdna_kernels/{NAME}.s.ref").read().split("\n")
    hdr=[l for l in src if l.startswith(";") and "@launch" not in l and "Override launch" not in l and "grid=ceil" not in l]
    out=hdr+[f"; @launch kernel={k} grid=({g},1,1) block=({b},1,1) lds={l}" for k,g,b,l in launches]
    out+=['.amdgcn_target "amdgcn-amd-amdhsa--gfx950"',".text"]
    kds=[]
    for g in kernels:
        l,k=g(); out+=pad_hazards(l); kds.append(k)
    out+=["code_end:", "    s_endpgm"]
    out+=['.section .rodata,"a"']+kds
    open(path,"w").write("\n".join(out)+"\n")
```

```python
from common import *
from k01 import cmul, exp_bf16, cexp, row_stats
EF_PITCH=544; EF_CH=64*EF_PITCH
YP=9216
WSLOT=12320; NWS=10; W_U=6176
YB=6*WSLOT
TB=YB
XS=TB+2*KD_CH
SC=XS+8*1280
PB=SC+64
KIMG=YB+4*YP+64; IMG=4160; KIMG_CH=4*IMG
UB=KIMG+2*KIMG_CH; U_CH=96*80
assert 2*EF_CH<=YB and UB+2*U_CH<=163824
X_CNT=163824
sTAG=34; sWt=8; sWO=12; sM0W=13; sCBg=14; sMBg=15; vWo=250
NPL=int(os.environ.get("NPL","6"))
def issue_w(A,st):
    A(f"""
    s_add_u32 m0, s{sM0W}, {(st%NWS)*WSLOT}
    s_nop 0
    buffer_load_dwordx4 v{vWo}, s[{sWt}:{sWt+3}], s{sWO} offen lds
    buffer_load_dwordx4 v{vWo+1}, s[{sWt}:{sWt+3}], s{sWO} offen offset:1024 lds
    buffer_load_dwordx4 v{vWo+2}, s[{sWt}:{sWt+3}], s{sWO} offen offset:2048 lds
    s_add_u32 s{sWO}, s{sWO}, {32*2752}
    """)
SPIN=1<<16
WT=" sc0 sc1"
def phaseA(A,tail):
    sW=36; sCH=37; sG=38; sT=39; sT2=40; sHALF=41; sONE=42; sDT=43; sROW=46; sDS=50; sROLE=51; sSEL=52; sU=56; sSP=57; sEP=58; sEX=60
    vL=1; vT=2; vXR=4; vXS=8; vP=12; vAD=17; q5=18; hh=19
    vXG=20; vSG=28
    vX=36; vUD=44; vGA=52; vSA=53
    vW=56
    vRA=200; vRD=204; vCS=216
    A(f"""
    s_cmp_ge_u32 s2, 256
    s_cbranch_scc1 m_end
    s_load_dwordx16 s[4:19], s[0:1], 0
    s_load_dwordx2 s[30:31], s[0:1], 104
    s_load_dwordx8 s[20:27], s[0:1], 64
    """)
    stamp(A,0)
    A("s_getpc_b64 s[44:45]")
    A.label("ka_pf")
    A(f"""
    v_lshlrev_b32 v{vW}, 7, v0
    v_lshrrev_b32 v{vT}, 6, v0
    v_and_b32 v{vL}, 63, v0
    v_readfirstlane_b32 s{sW}, v{vT}
    s_lshr_b32 s{sT2}, s2, 3
    s_cmp_lg_u32 s{sW}, 0
    s_cbranch_scc1 ka_nopf
    s_mov_b32 exec_hi, 0xff
    global_load_dword v{vRA+3}, v{vW}, s[44:45] offset:512
    s_mov_b32 exec_hi, -1
    """)
    A.label("ka_nopf")
    A(f"""
    s_and_b32 s{sT}, s2, 7
    s_lshl_b32 s{sG}, s{sT}, 5
    s_add_u32 s{sG}, s{sG}, s{sT2}
    s_and_b32 s{sCH}, s{sW}, 1
    s_lshr_b32 s{sROLE}, s{sW}, 1
    s_and_b32 s{sHALF}, s{sROLE}, 1
    v_and_b32 v{q5}, 31, v{vL}
    v_lshrrev_b32 v{hh}, 5, v{vL}
    s_lshl_b32 s{sT}, s{sT}, 7
    s_lshl_b32 s{sT2}, s{sT2}, 16
    s_add_u32 s{sT}, s{sT}, s{sT2}
    s_lshl_b32 s{sT2}, s{sROLE}, 14
    s_add_u32 s{sT}, s{sT}, s{sT2}
    s_lshl_b32 s{sT2}, s{sCH}, 6
    s_add_u32 s{sT}, s{sT}, s{sT2}
    v_lshrrev_b32 v{vW}, 2, v{vL}
    v_and_b32 v{vW+1}, 3, v{vL}
    v_lshlrev_b32 v{vW+2}, 10, v{vW}
    v_lshl_add_u32 v{vW+2}, v{vW+1}, 4, v{vW+2}
    v_add_u32 v{vW+2}, s{sT}, v{vW+2}
    s_lshl_b32 s{sT}, s{sG}, 13
    v_lshl_add_u32 v{vAD}, v0, 4, s{sT}
    s_lshl_b32 s{sT}, s{sG}, 9
    v_lshl_add_u32 v{vT}, v{vL}, 3, s{sT}
    s_lshl_b32 s{sT2}, s{sG}, 2
    s_cmp_eq_u32 s{sCH}, 0
    s_waitcnt lgkmcnt(0)
    s_cselect_b64 s[62:63], s[6:7], s[8:9]
    s_cselect_b64 s[60:61], s[10:11], s[12:13]
    s_cmp_eq_u32 s{sHALF}, 0
    s_cselect_b64 s[62:63], s[62:63], s[60:61]
    s_cmp_ge_u32 s{sW}, 4
    s_cbranch_scc1 ka_nop
    global_load_dwordx2 v[{vP}:{vP+1}], v{vT}, s[62:63]
    """)
    A.label("ka_nop")
    A(f"""
    s_load_dword s{sEP}, s[30:31], {WS_EPOCH}
    s_load_dword s{sDT}, s[14:15], s{sT2}
    s_load_dword s{sDS}, s[16:17], s{sT2}
    s_cmp_lg_u32 s{sW}, 7
    s_cbranch_scc1 ka_nw
    s_lshr_b32 s{sU}, s2, 3
    s_min_u32 s{sU}, s{sU}, 8
    s_lshl_b32 s{sU}, s{sU}, 13
    s_add_u32 s{sU}, s{sU}, 5632
    v_lshl_add_u32 v{vW+8}, v{vL}, 7, s{sU}
    v_min_u32 v{vW+8}, code_end-ka_pf, v{vW+8}
    v_mov_b32 v{vW+9}, 0x9000
    global_load_dword v{vRA+2}, v{vW+9}, s[30:31]
    global_load_dword v{vRA+3}, v{vW+8}, s[44:45]
    """)
    A.label("ka_nw")
    A(f"""
    global_load_dwordx4 v[{vXS}:{vXS+3}], v{vW+2}, s[4:5]
    global_load_dwordx4 v[{vXR}:{vXR+3}], v{vAD}, s[4:5]
    s_mov_b32 s{sONE}, 0x3f803f80
    s_mov_b32 s{SK_INVN}, {f32(1/512)}
    """)
    A(f"""
    s_mul_i32 s{sT}, s{sW}, 1280
    s_add_u32 s{sT}, s{sT}, {XS}
    v_mul_u32_u24 v{vW+3}, 80, v{vW}
    v_lshl_add_u32 v{vW+3}, v{vW+1}, 4, v{vW+3}
    v_add_u32 v{vW+3}, s{sT}, v{vW+3}
    v_and_b32 v{vW}, 7, v{vL}
    v_lshrrev_b32 v{vW+1}, 3, v{vL}
    v_mul_u32_u24 v{vW+4}, 160, v{vW}
    v_lshl_add_u32 v{vW+4}, v{vW+1}, 2, v{vW+4}
    v_add_u32 v{vW+4}, s{sT}, v{vW+4}
    s_and_b32 s{sT}, s2, 7
    s_lshl_b32 s{sT}, s{sT}, 19
    s_lshl_b32 s{sT2}, s{sCH}, 18
    s_add_u32 s{sT}, s{sT}, s{sT2}
    s_lshr_b32 s{sT2}, s2, 3
    s_lshl_b32 s{sT2}, s{sT2}, 9
    s_add_u32 s{sT}, s{sT}, s{sT2}
    s_lshl_b32 s{sT2}, s{sROLE}, 7
    s_add_u32 s{sT}, s{sT}, s{sT2}
    s_add_u32 s{sT}, s{sT}, {WS_XG}
    v_lshlrev_b32 v{vW+5}, 14, v{vW+1}
    v_lshl_add_u32 v{vW+5}, v{vW}, 4, v{vW+5}
    v_add_u32 v{vW+5}, s{sT}, v{vW+5}
    v_add_u32 v{vW+6}, {8*16384}, v{vW+5}
    s_lshl_b32 s{sT}, s{sG}, 6
    v_lshl_add_u32 v{vW+7}, v{vL}, 3, s{sT}
    v_lshlrev_b32 v{vSA}, 5, v0
    s_lshl_b32 s{sT}, s{sG}, 14
    s_add_u32 s{sT}, s{sT}, {WS_XG}
    v_add_u32 v{vGA}, s{sT}, v{vSA}
    s_mul_i32 s{sT}, s{sCH}, {EF_CH}
    s_lshl_b32 s{sT2}, s{sHALF}, 8
    s_add_u32 s{sT}, s{sT}, s{sT2}
    v_lshl_add_u32 v{vAD}, v{vL}, 2, s{sT}
    """)
    A(f"""
    v_mov_b32 v{vW+8}, 0
    v_mov_b32 v{vW+9}, 0
    v_lshlrev_b32 v{vW+10}, 3, v0
    v_cmp_gt_u32 vcc, 320, v0
    s_and_saveexec_b64 s[{sEX}:{sEX+1}], vcc
    v_add_u32 v{vW+10}, {UB}, v{vW+10}
    ds_write_b64 v{vW+10}, v[{vW+8}:{vW+9}]
    ds_write_b64 v{vW+10}, v[{vW+8}:{vW+9}] offset:{U_CH}
    s_mov_b64 exec, 0x7f
    s_mul_i32 s{sT}, s{sW}, {IMG}
    s_add_u32 s{sT}, s{sT}, {KIMG+4096}
    v_lshl_add_u32 v{vW+10}, v{vL}, 3, s{sT}
    ds_write_b64 v{vW+10}, v[{vW+8}:{vW+9}]
    v_mov_b32 v{vW+10}, {X_CNT}
    ds_write_b32 v{vW+10}, v{vW+8}
    s_mov_b64 exec, -1
    """)
    A(f"""
    s_lshl_b32 s{sT}, s{sW}, 9
    s_add_u32 s{sT}, s{sT}, {PB}
    v_lshl_add_u32 v{vW+11}, v{vL}, 3, s{sT}
    s_lshl_b32 s{sT}, s{sCH}, 8
    s_lshl_b32 s{sT2}, s{sHALF}, 7
    s_add_u32 s{sT}, s{sT}, s{sT2}
    s_add_u32 s{sT}, s{sT}, {PB}
    v_lshl_add_u32 v{vW+12}, v{vL}, 1, s{sT}
    s_waitcnt lgkmcnt(0)
    s_mul_i32 s{sTAG}, s{sEP}, 0x9e3779b1
    s_add_u32 s{sTAG}, s{sTAG}, 0x7f4a7c15
    s_lshl_b32 s{sT}, s{sDT}, 16
    s_and_b32 s{sT2}, s{sDT}, 0xffff0000
    s_cmp_eq_u32 s{sCH}, 0
    s_cselect_b32 s{sDT}, s{sT}, s{sT2}
    v_mov_b32 v{vP+4}, s{sDT}
    v_mov_b32 v{vXG+1}, s{sTAG}
    v_mov_b32 v{vXG+3}, s{sTAG}
    v_mov_b32 v{vXG+5}, s{sTAG}
    v_mov_b32 v{vXG+7}, s{sTAG}
    """)
    exp_bf16(A,vP+4,vW+8)
    A(f"""
    s_cmp_ge_u32 s{sW}, 4
    s_waitcnt vmcnt(1)
    ds_write_b128 v{vW+3}, v[{vXS}:{vXS+3}]
    ds_read_b32 v{vXG}, v{vW+4}
    ds_read_b32 v{vXG+2}, v{vW+4} offset:80
    ds_read_b32 v{vXG+4}, v{vW+4} offset:32
    ds_read_b32 v{vXG+6}, v{vW+4} offset:112
    s_cbranch_scc1 ka_nop2
    ds_write_b64 v{vW+11}, v[{vP}:{vP+1}]
    """)
    A.label("ka_nop2")
    A("s_waitcnt vmcnt(0)")
    stamp(A,1)
    B=Asm(); row_stats(B,vXR,vT,vT+1,vW+8,sONE); bl=[l.strip() for l in B.l]
    for l in bl[:10]: A(l)
    A(f"""
    s_waitcnt lgkmcnt(0)
    global_store_dwordx4 v{vW+5}, v[{vXG}:{vXG+3}], s[30:31]{WT}
    global_store_dwordx4 v{vW+6}, v[{vXG+4}:{vXG+7}], s[30:31]{WT}
    """)
    for l in bl[10:]: A(l)
    A(f"""
    s_lshl_b32 s{sT}, s{sW}, 2
    s_add_u32 s{sT}, s{sT}, {SC}
    v_mov_b32 v{vW+8}, s{sT}
    s_mov_b32 exec_lo, 0
    s_mov_b32 exec_hi, 0x80000000
    ds_write_b32 v{vW+8}, v{vT}
    s_mov_b64 exec, -1
    v_lshlrev_b32 v{vW+8}, 2, v{vL}
    v_add_u32 v{vW+8}, {SC}, v{vW+8}
    v_mov_b32 v{vT+1}, s{sTAG}
    s_cmp_lg_u32 s{sW}, 3
    s_waitcnt lgkmcnt(0)
    s_barrier
    s_cbranch_scc1 ka_nost
    s_mov_b64 exec, 0xff
    ds_read_b32 v{vT}, v{vW+8}
    s_waitcnt lgkmcnt(0)
    global_store_dwordx2 v{vW+7}, v[{vT}:{vT+1}], s[30:31] offset:{WS_STATS}{WT}
    s_mov_b64 exec, -1
    """)
    A.label("ka_nost")
    A(f"""
    ds_read_u16 v{vP}, v{vW+12}
    ds_read_u16 v{vP+1}, v{vW+12} offset:512
    ds_read_u16 v{vP+2}, v{vW+12} offset:1024
    ds_read_u16 v{vP+3}, v{vW+12} offset:1536
    s_waitcnt lgkmcnt(0)
    """)
    stamp(A,2)
    zr=vP; zi=vP+1
    pk=[vW+20,vW+21,vW+22,vW+23]; pkc=[0]
    def put(reg,row):
        p=pk[pkc[0]%4]; pkc[0]+=1
        A(f"v_cvt_pk_bf16_f32 v{p}, v{reg}, v{reg+1}")
        A(f"ds_write_b32 v{vAD}, v{p} offset:{row*EF_PITCH}")
    w1=vW; w2=vW+2; w4=vW+4; w8=vW+6; wB=vW+8; q=vW+10; e=vW+12; e2=vW+14; t=vW+16; t2=vW+18; t3=vW+24; e3=vW+26
    A(f"""
    v_lshlrev_b32 v{vP}, 16, v{vP}
    v_lshlrev_b32 v{vP+1}, 16, v{vP+1}
    """)
    exp_bf16(A,vP,vW+28)
    A(f"""
    v_mul_f32 v{zi}, v{zi}, v{vP+4}
    v_mul_f32 v{zr}, v{zr}, v{vP+4}
    v_mul_f32 v{zr}, {f32(-LOG2E)}, v{zr}
    s_cmp_ge_u32 s{sW}, 4
    s_cbranch_scc1 ka_frole
    v_mul_f32 v{zi}, {f32(-1/(2*math.pi))}, v{zi}
    """)
    def gload(sc):
        A(f"""
        global_load_dwordx4 v[{vXG}:{vXG+3}], v{vGA}, s[30:31]{sc}
        global_load_dwordx4 v[{vXG+4}:{vXG+7}], v{vGA}, s[30:31] offset:16{sc}
        global_load_dwordx4 v[{vSG}:{vSG+3}], v{vSA}, s[30:31] offset:{WS_STATS}{sc}
        global_load_dwordx4 v[{vSG+4}:{vSG+7}], v{vSA}, s[30:31] offset:{WS_STATS+16}{sc}
        """)
    cexp(A,w1,zr,zi,1,t); cexp(A,wB,zr,zi,256,t2)
    A(f"""
    v_lshlrev_b32 v{vP+2}, 16, v{vP+2}
    v_lshlrev_b32 v{vP+3}, 16, v{vP+3}
    v_mul_f32 v{e}, v{vP+2}, v{vP+4}
    v_mul_f32 v{e+1}, v{vP+3}, v{vP+4}
    v_add_f32 v{e}, v{e}, v{e}
    v_mul_f32 v{e+1}, -2.0, v{e+1}
    """)
    cmul(A,w2,w1,w1,t); cmul(A,q,e,wB,t2); put(e,0)
    cmul(A,w4,w2,w2,t3)
    seqB=[("put",q,8),("mul",e2,q,w2),("mul",q,q,wB),("put",e2,9),("mul",e2,e2,w2),("put",q,12),("mul",e3,q,w4),("put",e2,10),("mul",e2,e2,w2),
          ("mul",q,q,wB),("put",e3,13),("put",e2,11),("put",q,14),("mul",e3,q,w4),("mul",q,q,wB),("put",e3,15),("put",q,16),("mul",q,q,wB),("put",q,20),
          ("mul",q,q,wB),("put",q,24),("mul",q,q,wB),("put",q,28),("mul",q,q,wB),("put",q,17)]
    seqA=[]
    for a in range(1,8): seqA+=[("mul",e,e,w1),("put",e,a)]
    ia=0; tt=[t2,t3]; tc=0
    for i,s in enumerate(seqB):
        if s[0]=="put": put(s[1],s[2])
        else: cmul(A,s[1],s[2],s[3],tt[tc%2]); tc+=1
        if (i<10 and i%3==0) or i>=15:
            x=seqA[ia]; ia+=1
            if x[0]=="put": put(x[1],x[2])
            else: cmul(A,x[1],x[2],x[3],t)
    aA=vW; aB=vW+1; r16=vW+2; g4=vW+3; acc=vW+4; oA=vW+12; oB=vW+13; oC=vW+14; fr=vW+32
    A(f"""
    v_and_b32 v{r16}, 15, v{vL}
    v_lshrrev_b32 v{g4}, 4, v{vL}
    s_mul_i32 s{sT}, s{sCH}, {EF_CH}
    v_mul_u32_u24 v{aA}, {EF_PITCH}, v{r16}
    v_lshl_add_u32 v{aA}, v{g4}, 4, v{aA}
    v_add_u32 v{aA}, s{sT}, v{aA}
    s_mul_i32 s{sT2}, s{sHALF}, {16*EF_PITCH}
    v_add_u32 v{aB}, s{sT2}, v{aA}
    s_lshl_b32 s{sT}, s{sHALF}, 4
    v_add_u32 v{r16}, s{sT}, v{r16}
    v_lshlrev_b32 v{oA}, 4, v{r16}
    v_lshl_add_u32 v{oA}, v{g4}, 3, v{oA}
    v_lshlrev_b32 v{oB}, 3, v{r16}
    v_add_u32 v{oB}, 512, v{oB}
    v_cmp_eq_u32 vcc, 2, v{g4}
    v_cndmask_b32 v{oA}, v{oA}, v{oB}, vcc
    v_lshlrev_b32 v{oB}, 2, v{r16}
    v_add_u32 v{oB}, 768, v{oB}
    v_cmp_eq_u32 vcc, 3, v{g4}
    v_cndmask_b32 v{oA}, v{oA}, v{oB}, vcc
    v_mov_b32 v{oB}, 4
    v_mov_b32 v{oC}, 128
    v_cndmask_b32 v{oB}, v{oB}, v{oC}, vcc
    s_mul_i32 s{sT}, s{sCH}, {KD_CH}
    s_add_u32 s{sT}, s{sT}, {TB}
    v_add_u32 v{oA}, s{sT}, v{oA}
    v_add_u32 v{oB}, v{oA}, v{oB}
    v_lshlrev_b32 v{oC}, 1, v{r16}
    v_lshl_add_u32 v{oC}, v{g4}, 6, v{oC}
    v_add_u32 v{oC}, s{sT}, v{oC}
    s_waitcnt lgkmcnt(0)
    s_barrier
    """)
    stamp(A,3)
    def rd(s):
        b=fr+12*s
        A(f"ds_read_b128 v[{b}:{b+3}], v{aB} offset:{32*EF_PITCH+64*s}")
        A(f"ds_read_b128 v[{b+4}:{b+7}], v{aA} offset:{64*s}")
        A(f"ds_read_b128 v[{b+8}:{b+11}], v{aA} offset:{16*EF_PITCH+64*s}")
    for s in range(4): rd(s)
    for s in range(8):
        b=fr+12*s
        n = 9 if s<=4 else 3*(7-s)
        A(f"s_waitcnt lgkmcnt({n})")
        c0="0" if s==0 else f"v[{acc}:{acc+3}]"; c1="0" if s==0 else f"v[{acc+4}:{acc+7}]"
        A(f"v_mfma_f32_16x16x32_bf16 v[{acc}:{acc+3}], v[{b+4}:{b+7}], v[{b}:{b+3}], {c0}")
        A(f"v_mfma_f32_16x16x32_bf16 v[{acc+4}:{acc+7}], v[{b+8}:{b+11}], v[{b}:{b+3}], {c1}")
        if s+4<8: rd(s+4)
    A(f"""
    v_cvt_pk_bf16_f32 v{acc}, v{acc}, v{acc+1}
    v_cvt_pk_bf16_f32 v{acc+1}, v{acc+2}, v{acc+3}
    v_cvt_pk_bf16_f32 v{acc+4}, v{acc+4}, v{acc+5}
    ds_write_b32 v{oA}, v{acc}
    ds_write_b32 v{oB}, v{acc+1}
    ds_write_b16 v{oC}, v{acc+4} offset:1024
    ds_write_b16_d16_hi v{oC}, v{acc+4} offset:1280
    """)
    gload("")
    A(f"s_mov_b32 s{sU}, 1000")
    A("s_branch ka_tab")
    A.label("ka_frole")
    A(f"v_mul_f32 v{zi}, {f32(1/(2*math.pi))}, v{zi}")
    cexp(A,w8,zr,zi,8,t)
    A(f"v_mov_b32 v{pk[3]}, 0x3f80")
    A(f"ds_write_b32 v{vAD}, v{pk[3]} offset:{32*EF_PITCH}")
    cmul(A,w2,w8,w8,t); put(w8,33)
    so=w8; se=w2; pend=[(w2,2)]
    for c in range(3,32):
        if c&1: cmul(A,e,so,w2,t); so=e; new=(e,c)
        else:   cmul(A,e2,se,w2,t2); se=e2; new=(e2,c)
        r,cc=pend.pop(); put(r,32+cc); pend.append(new)
    r,cc=pend.pop(); put(r,32+cc)
    A("s_waitcnt lgkmcnt(0)")
    A("s_barrier")
    stamp(A,3)
    gload("")
    vCA=vRD
    A.label("ka_tab")
    vK=vW+32; vK2=vW+36; wa=vW+4; wa2=vW+5; pr=vW+8
    A(f"""
    s_cmp_eq_u32 s{sROLE}, 0
    s_cselect_b32 s{sSEL}, 4, 1
    s_cselect_b32 s{sSEL+1}, 3, 6
    s_cselect_b32 s{sSEL+2}, 0, 768
    s_cmp_eq_u32 s{sROLE}, 1
    s_cselect_b32 s{sSEL}, 2, s{sSEL}
    s_cselect_b32 s{sSEL+1}, 7, s{sSEL+1}
    s_cselect_b32 s{sSEL+3}, 0, 128
    s_mul_i32 s{sSEL+3}, s{sSEL+3}, s{sROLE}
    s_add_u32 s{sSEL+2}, s{sSEL+2}, s{sSEL+3}
    v_lshlrev_b32 v{vW+2}, s{sSEL}, v{q5}
    v_and_b32 v{vW+2}, -4, v{vW+2}
    v_lshlrev_b32 v{vW+3}, s{sSEL+1}, v{hh}
    v_add_u32 v{vW+2}, v{vW+2}, v{vW+3}
    s_mul_i32 s{sT}, s{sCH}, {KD_CH}
    s_add_u32 s{sT}, s{sT}, {TB}
    s_add_u32 s{sSEL+2}, s{sSEL+2}, s{sT}
    v_add_u32 v{vW+2}, s{sSEL+2}, v{vW+2}
    v_lshlrev_b32 v{vW+3}, 3, v{q5}
    v_lshl_add_u32 v{vW+3}, v{hh}, 2, v{vW+3}
    v_add_u32 v{vW+3}, s{sT}, v{vW+3}
    s_mul_i32 s{sT}, s{sCH}, {KIMG_CH}
    s_add_u32 s{sT}, s{sT}, {KIMG}
    v_lshlrev_b32 v{vW+7}, 4, v{q5}
    v_sub_u32 v{vW+7}, s{sT}, v{vW+7}
    v_lshlrev_b32 v{vW+6}, 3, v{hh}
    v_sub_u32 v{vW}, v{vW+7}, v{vW+6}
    v_lshlrev_b32 v{vW+6}, 9, v{hh}
    v_sub_u32 v{vW+1}, v{vW+7}, v{vW+6}
    s_mov_b32 s{sSEL}, 0x05040100
    s_mov_b32 s{sSEL+1}, 0x05040302
    s_mov_b32 s{sSEL+2}, 0x07060100
    s_mov_b32 s{sSEL+3}, 0x07060302
    s_waitcnt lgkmcnt(0)
    s_barrier
    ds_read2_b32 v[{vK}:{vK+1}], v{vW+2} offset0:0 offset1:1
    ds_read2_b32 v[{vK+2}:{vK+3}], v{vW+2} offset0:2 offset1:3
    ds_read2_b32 v[{vK2}:{vK2+1}], v{vW+3} offset0:128 offset1:129
    """)
    wa=vW; wa2=vW+1
    stamp(A,4)
    A(f"""
    s_cmp_ge_u32 s{sROLE}, 2
    s_cbranch_scc1 ka_r23
    s_cmp_eq_u32 s{sROLE}, 1
    s_cbranch_scc1 ka_r1
    """)
    npair=[0]
    def pairop(d,lo,hi): A(f"v_perm_b32 v{d}, v{hi[0]}, v{lo[0]}, s{sSEL+lo[1]+2*hi[1]}")
    def wwin(addr,k,rho,bbase):
        lam=rho+3; iota=lam&3; b=bbase+(lam>>2)
        p=pr+2*(npair[0]%8); npair[0]+=1
        pairop(p,k[rho+3],k[rho+2]); pairop(p+1,k[rho+1],k[rho])
        A(f"ds_write_b64 v{addr}, v[{p}:{p+1}] offset:{iota*IMG+8*(511-b)}")
    A(f"""
    v_cmp_eq_u32 vcc, 63, v{vL}
    v_mov_b32 v{vW+7}, 0
    s_waitcnt lgkmcnt(0)
    v_lshrrev_b32 v{vW+2}, 16, v{vK+2}
    v_perm_b32 v{vW+3}, v{vK+2}, v{vK+2}, s{sSEL}
    v_perm_b32 v{vW+6}, v{vK2+1}, v{vK2+1}, s{sSEL}
    v_cndmask_b32 v{vK+3}, v{vK+3}, v{vW+2}, vcc
    v_cndmask_b32 v{vK+2}, v{vK+2}, v{vW+3}, vcc
    v_cndmask_b32 v{vK2+1}, v{vK2+1}, v{vW+6}, vcc
    """)
    k=[(vK+i//2,i&1) for i in range(8)]
    for rho in range(4): wwin(wa,k,rho,0)
    v=[(vK2+i//2,i&1) for i in range(4)]
    k1=[v[0],v[0],v[1],v[2],v[2],v[2],v[3]]
    for rho in range(4): wwin(wa,k1,rho,64)
    A("s_mov_b64 exec, 1")
    z=(vW+7,0); kz=[z,z,z,k[0],k[1],k[2]]
    for rho in range(3):
        p=pr+2*(npair[0]%8); npair[0]+=1
        pairop(p,kz[rho+3],kz[rho+2]); pairop(p+1,kz[rho+1],kz[rho])
        A(f"ds_write_b64 v{wa}, v[{p}:{p+1}] offset:{rho*IMG+8*511}")
    A("s_mov_b64 exec, -1")
    A("s_branch ka_norm")
    A.label("ka_r1")
    A("s_waitcnt lgkmcnt(0)")
    v=[(vK+i//2,i&1) for i in range(3)]
    k=[v[i] for i in (0,0,0,1,1,1,2,2,2,2,2)]
    for rho in range(8): wwin(wa2,k,rho,128)
    A("s_branch ka_norm")
    A.label("ka_r23")
    A(f"""
    s_lshl_b32 s{sT}, s{sHALF}, 10
    v_subrev_u32 v{wa2}, s{sT}, v{wa2}
    v_and_b32 v{vW+6}, 1, v{vL}
    v_lshlrev_b32 v{vW+6}, 4, v{vW+6}
    s_waitcnt lgkmcnt(0)
    v_alignbit_b32 v{vK}, v{vK+1}, v{vK}, v{vW+6}
    v_lshrrev_b32 v{vK+1}, v{vW+6}, v{vK}
    """)
    k=[(vK,0)]*4+[(vK+1,0)]+[(vK,1)]*6
    for rho in range(8): wwin(wa2,k,rho,256)
    A.label("ka_norm")
    m=vW; s_=vW+1; u0=vW+24; u1=vW+28; pu=vW+32; a0=vW+2; a1=vW+3
    aK=vW+36; aU=vW+37; aY=vW+38
    A(f"""
    v_lshrrev_b32 v{vW+6}, 3, v0
    v_mul_u32_u24 v{vW+6}, 80, v{vW+6}
    v_and_b32 v{s_}, 7, v0
    v_lshl_add_u32 v{vW+6}, v{s_}, 3, v{vW+6}
    v_add_u32 v{vW+6}, {UB+32*80}, v{vW+6}
    v_and_b32 v{aK}, 3, v{vL}
    v_mul_u32_u24 v{aK}, {IMG}, v{aK}
    v_lshl_add_u32 v{aK}, v{hh}, 4, v{aK}
    v_lshrrev_b32 v{aU}, 2, v{q5}
    v_lshlrev_b32 v{aU}, 3, v{aU}
    v_sub_u32 v{aK}, v{aK}, v{aU}
    s_mul_i32 s{sT}, s{sCH}, {KIMG_CH}
    s_add_u32 s{sT}, s{sT}, {KIMG+4088-2*(480+1024)}
    s_lshl_b32 s{sT2}, s{sHALF}, 10
    s_sub_u32 s{sT}, s{sT}, s{sT2}
    v_add_u32 v{aK}, s{sT}, v{aK}
    v_mul_u32_u24 v{aU}, 80, v{q5}
    v_lshl_add_u32 v{aU}, v{hh}, 4, v{aU}
    s_mul_i32 s{sT}, s{sCH}, {U_CH}
    s_add_u32 s{sT}, s{sT}, {UB+80*(32-15)}
    s_mul_i32 s{sT2}, s{sHALF}, {80*16}
    s_sub_u32 s{sT}, s{sT}, s{sT2}
    v_add_u32 v{aU}, s{sT}, v{aU}
    s_mov_b32 s{sSP}, 0
    """)
    stamp(A,5)
    A.label("ka_chk")
    A("s_waitcnt vmcnt(0)")
    A.label("ka_chk2")
    A(f"""
    v_xor_b32 v{a0}, v{vXG+1}, v{vXG+3}
    v_xor_b32 v{a1}, v{vXG+5}, v{vXG+7}
    v_xor_b32 v{m}, s{sTAG}, v{vXG+1}
    v_or3_b32 v{a0}, v{a0}, v{a1}, v{m}
    v_xor_b32 v{a1}, s{sTAG}, v{vXG+5}
    v_xor_b32 v{m}, s{sTAG}, v{vSG+1}
    v_or3_b32 v{a0}, v{a0}, v{a1}, v{m}
    v_xor_b32 v{a1}, s{sTAG}, v{vSG+3}
    v_xor_b32 v{m}, s{sTAG}, v{vSG+5}
    v_or3_b32 v{a0}, v{a0}, v{a1}, v{m}
    v_xor_b32 v{a1}, s{sTAG}, v{vSG+7}
    v_or_b32 v{a0}, v{a0}, v{a1}
    v_cmp_ne_u32 vcc, 0, v{a0}
    s_cbranch_vccnz ka_retry
    """)
    A.label("ka_ok")
    stamp(A,6)
    for j in range(4):
        st=vSG+2*j; xc=vXG+2*j
        A(f"""
        v_and_b32 v{s_}, 0xffff0000, v{st}
        v_rcp_f32 v{s_}, v{s_}
        v_lshlrev_b32 v{vX+j}, 16, v{xc}
        v_and_b32 v{vX+4+j}, 0xffff0000, v{xc}
        v_lshlrev_b32 v{m}, 16, v{st}
        v_sub_f32 v{a0}, v{vX+j}, v{m}
        v_sub_f32 v{a1}, v{vX+4+j}, v{m}
        v_cvt_pk_bf16_f32 v{a0}, v{a0}, v{a1}
        v_and_b32 v{a1}, 0xffff0000, v{a0}
        v_lshlrev_b32 v{a0}, 16, v{a0}
        v_mul_f32 v{u0+j}, v{a0}, v{s_}
        v_mul_f32 v{u1+j}, v{a1}, v{s_}
        """)
    A(f"""
    v_cvt_pk_bf16_f32 v{pu}, v{u0}, v{u0+1}
    v_cvt_pk_bf16_f32 v{pu+1}, v{u0+2}, v{u0+3}
    v_cvt_pk_bf16_f32 v{pu+2}, v{u1}, v{u1+1}
    v_cvt_pk_bf16_f32 v{pu+3}, v{u1+2}, v{u1+3}
    ds_write_b64 v{vW+6}, v[{pu}:{pu+1}]
    ds_write_b64 v{vW+6}, v[{pu+2}:{pu+3}] offset:{U_CH}
    s_cmp_ge_u32 s{sW}, 4
    s_waitcnt lgkmcnt(0)
    s_barrier
    s_cbranch_scc1 ka_aux
    """)
    stamp(A,7)
    def calc_ud():
        out=[f"s_lshl_b32 s{sT}, s{sDS}, 16", f"s_and_b32 s{sT2}, s{sDS}, 0xffff0000"]
        for c in range(2):
            for pp in range(2):
                r=pu+2*c+pp; d=vUD+4*c+2*pp; sd=sT if c==0 else sT2
                out+=[f"v_lshlrev_b32 v{d}, 16, v{r}",f"v_and_b32 v{d+1}, 0xffff0000, v{r}",f"v_mul_f32 v{d}, s{sd}, v{d}",f"v_mul_f32 v{d+1}, s{sd}, v{d+1}",
                      f"v_cvt_pk_bf16_f32 v{d}, v{d}, v{d+1}",f"v_and_b32 v{d+1}, 0xffff0000, v{d}",f"v_lshlrev_b32 v{d}, 16, v{d}"]
        return out
    def epi_addr():
        return [f"v_lshrrev_b32 v{vW}, 3, v0",f"v_mul_u32_u24 v{vW}, 144, v{vW}",f"v_and_b32 v{vW+1}, 7, v0",f"v_lshl_add_u32 v{vW}, v{vW+1}, 4, v{vW}",f"v_add_u32 v{vW}, {YB}, v{vW}",
                f"s_lshl_b32 s{sT}, s{sG}, 9",f"s_add_u32 s{sT}, s{sT}, {WS_HT}",f"v_lshl_add_u32 v{vW+1}, v{q5}, 3, s{sT}",f"v_lshrrev_b32 v{vW+2}, 5, v0",
                f"v_lshl_add_u32 v{vW+1}, v{vW+2}, 17, v{vW+1}",
                f"s_lshl_b32 s{sT}, s{sW}, 10",f"s_lshl_b32 s{sT2}, s{sG}, 2",f"s_add_u32 s{sT}, s{sT}, s{sT2}",f"s_add_u32 s{sT}, s{sT}, {WS_FLH}",
                f"v_mov_b32 v{vW+2}, s{sT}",f"v_mov_b32 v{vW+3}, s{sTAG}"]
    acc0=vW+40; acc1=vW+56; NB=3; fr=vW+72
    def loads(i):
        b=fr+16*(i%NB); ko=2*16*(31-i); mu=i>>1; nu=i&1; uo=80*(15-mu)+32*(1-nu)
        return [f"ds_read_b64 v[{b}:{b+1}], v{aK} offset:{ko+2048}",
                f"ds_read_b64 v[{b+2}:{b+3}], v{aK} offset:{ko+2048+8}",
                f"ds_read_b128 v[{b+8}:{b+11}], v{aU} offset:{uo}",
                f"ds_read_b64 v[{b+4}:{b+5}], v{aK} offset:{ko}",
                f"ds_read_b128 v[{b+12}:{b+15}], v{aU} offset:{uo+32*80}",
                f"ds_read_b64 v[{b+6}:{b+7}], v{aK} offset:{ko+8}"]
    for l in loads(0)+loads(1): A(l)
    extra=calc_ud()+[f"v_mul_u32_u24 v{aY}, 144, v{q5}",f"v_lshl_add_u32 v{aY}, v{hh}, 4, v{aY}",f"s_lshl_b32 s{sT}, s{sCH}, 1",f"s_add_u32 s{sT}, s{sT}, s{sHALF}",
          f"s_mul_i32 s{sT}, s{sT}, {YP}",f"s_add_u32 s{sT}, s{sT}, {YB}",f"v_add_u32 v{aY}, s{sT}, v{aY}"]+epi_addr()
    for i in range(32):
        b=fr+16*(i%NB)
        L=loads(i+2) if i+2<32 else []
        A(f"s_waitcnt lgkmcnt({6 if i+1<32 else 0})")
        c0="0" if i==0 else f"v[{acc0}:{acc0+15}]"
        c1="0" if i==0 else f"v[{acc1}:{acc1+15}]"
        ms=[f"v_mfma_f32_32x32x16_bf16 v[{acc0}:{acc0+15}], v[{b}:{b+3}], v[{b+8}:{b+11}], {c0}",
            f"v_mfma_f32_32x32x16_bf16 v[{acc1}:{acc1+15}], v[{b}:{b+3}], v[{b+12}:{b+15}], {c1}",
            f"v_mfma_f32_32x32x16_bf16 v[{acc1}:{acc1+15}], v[{b+4}:{b+7}], v[{b+8}:{b+11}], v[{acc1}:{acc1+15}]"]
        for j in range(3):
            A(ms[j])
            for l in L[2*j:2*j+2]: A(l)
            if extra and i>=2: A(extra.pop(0))
    assert not extra
    stamp(A,8)
    for c,ac in ((0,acc0),(1,acc1)):
        for g in range(4):
            A(f"ds_write_b128 v{aY}, v[{ac+4*g}:{ac+4*g+3}] offset:{144*32*c+32*g}")
    A.label("ka_fin")
    y=vW+8
    A("s_waitcnt lgkmcnt(0)")
    A("s_barrier")
    stamp(A,9)
    for k_ in range(4): A(f"ds_read_b128 v[{y+4*k_}:{y+4*k_+3}], v{vW} offset:{YP*k_}")
    o=vW+4
    for c in range(2):
        A(f"s_waitcnt lgkmcnt({2-2*c})")
        for pp in range(2):
            a=y+8*c+2*pp
            A(f"""
            v_pk_add_f32 v[{a}:{a+1}], v[{a}:{a+1}], v[{a+4}:{a+5}]
            v_cvt_pk_bf16_f32 v{a}, v{a}, v{a+1}
            v_and_b32 v{a+1}, 0xffff0000, v{a}
            v_lshlrev_b32 v{a}, 16, v{a}
            v_pk_add_f32 v[{a}:{a+1}], v[{a}:{a+1}], v[{vUD+4*c+2*pp}:{vUD+4*c+2*pp+1}]
            v_cvt_pk_bf16_f32 v{a}, v{a}, v{a+1}
            v_and_b32 v{a+1}, 0xffff0000, v{a}
            v_lshlrev_b32 v{a}, 16, v{a}
            v_pk_add_f32 v[{a}:{a+1}], v[{a}:{a+1}], v[{vX+4*c+2*pp}:{vX+4*c+2*pp+1}]
            v_cvt_pk_bf16_f32 v{o+2*c+pp}, v{a}, v{a+1}
            """)
        A(f"global_store_dwordx2 v{vW+1}, v[{o+2*c}:{o+2*c+1}], s[30:31] offset:{256*c}{WT}")
    A(f"""
    s_barrier
    s_waitcnt vmcnt(0)
    s_mov_b64 exec, 1
    global_store_dword v{vW+2}, v{vW+3}, s[30:31]{WT}
    """)
    dump(A,1,10,sW)
    A("s_mov_b64 exec, -1")
    AA=A; A=tail
    A.label("ka_retry")
    A(f"""
    s_add_u32 s{sSP}, s{sSP}, 1
    s_cmp_ge_u32 s{sSP}, {SPIN}
    s_cbranch_scc1 ka_ok
    """)
    A("s_mov_b64 exec, vcc")
    gload(" sc0 sc1")
    A("s_mov_b64 exec, -1")
    A("s_branch ka_chk")
    A.label("ka_aux")
    stamp(A,7)
    ad=vW+40; S=vW+44; t=vW+52
    A(f"""
    s_sub_u32 s{sU}, s{sW}, 6
    s_lshl_b32 s{sU}, s{sU}, 8
    s_add_u32 s{sU}, s{sU}, s2
    s_cmp_ge_u32 s{sU}, 344
    s_cbranch_scc1 ka_nocs
    s_lshr_b32 s{sT}, s{sU}, 2
    s_cmp_ge_u32 s{sT}, 43
    s_cselect_b32 s62, s22, s20
    s_cselect_b32 s63, s23, s21
    s_cselect_b32 s{sT2}, 43, 0
    s_sub_u32 s{sT}, s{sT}, s{sT2}
    s_lshl_b32 s{sT}, s{sT}, 6
    s_and_b32 s{sT2}, s{sU}, 3
    s_mul_i32 s{sT2}, s{sT2}, {128*2752}
    s_add_u32 s{sT}, s{sT}, s{sT2}
    v_lshrrev_b32 v{vCA}, 2, v{vL}
    v_mul_u32_u24 v{vCA}, 2752, v{vCA}
    v_and_b32 v{vCA+1}, 3, v{vL}
    v_lshl_add_u32 v{vCA}, v{vCA+1}, 4, v{vCA}
    v_add_u32 v{vCA}, s{sT}, v{vCA}
    """)
    for i in range(8):
        A(f"global_load_dwordx4 v[{vCS+4*i}:{vCS+4*i+3}], v{vCA}, s[62:63]")
        if i<7: A(f"v_add_u32 v{vCA}, {16*2752}, v{vCA}")
    A.label("ka_nocs")
    c_=vW+56
    for v in range(3):
        A(f"""
        v_add_u32 v{c_}, {64*v}, v{vL}
        v_mul_u32_u24 v{c_+1}, 0xaaab, v{c_}
        v_lshrrev_b32 v{c_+1}, 19, v{c_+1}
        v_mul_u32_u24 v{c_+1}, {2752-192}, v{c_+1}
        v_lshl_add_u32 v{vWo+v}, v{vL}, 4, v{c_+1}
        """)
    A(f"""
    s_and_b32 s{sT}, s2, 1
    s_lshl_b32 s{sT}, s{sT}, 3
    s_lshr_b32 s{sT2}, s2, 5
    s_add_u32 s{sCBg}, s{sT}, s{sT2}
    s_mul_i32 s{sWO}, s{sCH}, {16*2752}
    s_mul_i32 s{sT2}, s{sCBg}, 192
    s_add_u32 s{sWO}, s{sWO}, s{sT2}
    s_mul_i32 s{sM0W}, s{sCH}, 3072
    s_mul_i32 s{sT}, s{sHALF}, {W_U}
    s_add_u32 s{sM0W}, s{sM0W}, s{sT}
    s_cmp_ge_u32 s{sW}, 6
    s_cselect_b32 s{sWt}, s22, s20
    s_cselect_b32 s{sWt+1}, s23, s21
    s_mov_b32 s{sWt+2}, {512*2752}
    s_mov_b32 s{sWt+3}, 0x20000
    """)
    for st in range(NPL//2): issue_w(A,st)
    A(f"""
    s_cmp_lg_u32 s{sW}, 4
    s_cbranch_scc1 ka_a3
    s_cmp_lg_u32 s2, 0
    s_cbranch_scc1 ka_a3
    s_add_u32 s{sT}, s{sEP}, 1
    v_mov_b32 v{t}, {WS_EPOCH}
    v_mov_b32 v{t+1}, s{sT}
    s_mov_b64 exec, 1
    global_store_dword v{t}, v{t+1}, s[30:31]
    """)
    A.label("ka_a3")
    A("s_mov_b64 exec, -1")
    for l in calc_ud()+epi_addr(): A(l)
    A(f"""
    s_cmp_ge_u32 s{sU}, 344
    s_cbranch_scc1 ka_pfw
    s_waitcnt vmcnt({3*(NPL//2)})
    """)
    for i in range(8):
        for j in range(4):
            r=vCS+4*i+j
            if i==0:
                A(f"v_lshlrev_b32 v{S+2*j}, 16, v{r}")
                A(f"v_and_b32 v{S+2*j+1}, 0xffff0000, v{r}")
            else:
                A(f"v_lshlrev_b32 v{t}, 16, v{r}")
                A(f"v_and_b32 v{t+1}, 0xffff0000, v{r}")
                A(f"v_add_f32 v{S+2*j}, v{S+2*j}, v{t}")
                A(f"v_add_f32 v{S+2*j+1}, v{S+2*j+1}, v{t+1}")
    for j in range(4): A(f"v_permlane32_swap_b32 v{S+j}, v{S+j+4}")
    for j in range(4): A(f"v_add_f32 v{S+j}, v{S+j}, v{S+j+4}")
    for j in range(2): A(f"v_permlane16_swap_b32 v{S+j}, v{S+j+2}")
    for j in range(2): A(f"v_add_f32 v{S+j}, v{S+j}, v{S+j+2}")
    for ctl in ("row_ror:8","row_ror:4"):
        for j in range(2): A(f"v_add_f32_dpp v{S+j}, v{S+j}, v{S+j} {ctl} row_mask:0xf bank_mask:0xf")
    d=S+2
    A(f"""
    v_and_b32 v{t}, 4, v{vL}
    v_cmp_ne_u32 vcc, 0, v{t}
    v_cndmask_b32 v{S}, v{S}, v{S+1}, vcc
    v_cvt_pk_bf16_f32 v{S+1}, v{S}, v{S}
    v_and_b32 v{S+1}, 0xffff0000, v{S+1}
    v_sub_f32 v{S+1}, v{S}, v{S+1}
    v_cvt_pk_bf16_f32 v{d}, v{S}, v{S+1}
    v_mov_b32 v{d+1}, s{sTAG}
    v_lshlrev_b32 v{ad}, 8, v{vCA+1}
    v_lshl_add_u32 v{ad}, v{hh}, 7, v{ad}
    v_and_b32 v{t+1}, 16, v{vL}
    v_lshl_add_u32 v{ad}, v{t+1}, 2, v{ad}
    v_lshl_add_u32 v{ad}, v{t}, 3, v{ad}
    s_lshr_b32 s{sT}, s{sU}, 2
    s_lshl_b32 s{sT}, s{sT}, 10
    s_and_b32 s{sT2}, s{sU}, 3
    s_lshl_b32 s{sT2}, s{sT2}, 3
    s_add_u32 s{sT}, s{sT}, s{sT2}
    s_add_u32 s{sT}, s{sT}, {WS_CS}
    v_add_u32 v{ad}, s{sT}, v{ad}
    s_mov_b32 exec_lo, 0x00ff00ff
    s_mov_b32 exec_hi, 0x00ff00ff
    global_store_dwordx2 v{ad}, v[{d}:{d+1}], s[30:31]{WT}
    s_mov_b64 exec, -1
    """)
    A.label("ka_pfw")
    for st in range(NPL//2,NPL): issue_w(A,st)
    stamp(A,8)
    A("s_branch ka_fin")
```

```python
from common import *
from mA import WSLOT,NWS,W_U,X_CNT,sTAG,sWt,sWO,sM0W,vWo,issue_w,NPL,WT
GC1=-2.0*math.sqrt(2.0/math.pi)*LOG2E; GC2=GC1*0.044715
HR=NWS*WSLOT; HRN=4; SPARE=HR+HRN*8192
NREG=6; SPIN=1<<16; NA=int(os.environ.get('NA','22'))
WS_SIZE=0x1000000
LOCS=[(SPARE,0)]
for st in list(range(6,16)):
    for i in range(3): LOCS.append(((st%NWS)*WSLOT+4096*i, st+1))
    if st>=13:
        for i in range(2): LOCS.append((HR+(st%HRN)*8192+4096*i, st+1))
assert len(LOCS)==37
X_RES=HR+(12%HRN)*8192
def wd_loc(b): return LOCS[b-37 if b>=37 else b][0]
X_RED=[wd_loc(b) for b in (6,7,8,9)]
def bc(r): return f"v[{r}:{r+1}]"

def phaseB(A):
    sW=36; sMB=37; sCB=38; sT=39; sT2=40; sJ=42; sHO=43; sOO=44; sM0H=45; sDO=47
    sS=48; sC=56; sOUT=60; sD=4; sM0D=16; sSP=17
    vL=1; vT=10
    SR=f"s[{sS}:{sS+3}]"
    stamp(A,0)
    A(f"""
    s_and_b32 s{sT}, s2, 1
    s_lshl_b32 s{sT}, s{sT}, 3
    s_lshr_b32 s{sT2}, s2, 5
    s_add_u32 s{sCB}, s{sT}, s{sT2}
    s_and_b32 s{sT}, s2, 6
    s_lshl_b32 s{sT}, s{sT}, 1
    s_bfe_u32 s{sT2}, s2, 0x20003
    s_add_u32 s{sMB}, s{sT}, s{sT2}
    v_mov_b32 v8, {X_CNT}
    s_mov_b32 s{sS}, s30
    s_mov_b32 s{sS+1}, s31
    s_mov_b32 s{sS+2}, {WS_SIZE}
    s_mov_b32 s{sS+3}, 0x20000
    s_cmp_lt_u32 s{sW}, 4
    s_cbranch_scc1 k2_lo
    """)
    vH=2; vLin=3; vR=7
    def p2_setup():
        A(f"""
        s_and_b32 s{sT}, s{sCB}, 7
        s_lshl_b32 s{sM0D}, s{sW}, 10
        v_bfe_u32 v{vT}, v{vL}, 4, 2
        v_lshlrev_b32 v{vT}, 1, v{vT}
        v_and_b32 v{vT+1}, 7, v{vL}
        v_xor_b32 v{vT}, v{vT}, v{vT+1}
        v_lshlrev_b32 v{vT}, 4, v{vT}
        v_lshrrev_b32 v{vT+2}, 3, v{vL}
        v_lshl_add_u32 v{vR}, v{vT+2}, 8, v{vT}
        s_lshl_b32 s{sDO}, s{sT}, 7
        s_lshl_b32 s{sT2}, s{sW}, 13
        s_add_u32 s{sDO}, s{sDO}, s{sT2}
        v_bfe_u32 v{vT}, v{vL}, 4, 1
        s_and_b32 s{sT}, s{sW}, 1
        s_lshl_b32 s{sT}, s{sT}, 1
        v_or_b32 v{vT}, s{sT}, v{vT}
        v_lshlrev_b32 v{vT}, 1, v{vT}
        v_xor_b32 v{vT}, v{vT}, v{vT+1}
        v_lshlrev_b32 v{vT}, 4, v{vT}
        v_lshl_add_u32 v{vLin}, v{vT+2}, 10, v{vT}
        """)
        srd(A,sD,24,0,1376*1024)
    def issue_wd(b):
        A(f"""
        s_add_u32 m0, s{sM0D}, {wd_loc(b)}
        s_add_u32 s{sT}, s{sDO}, {32768*b}
        buffer_load_dwordx4 v{vLin}, s[{sD}:{sD+3}], s{sT} offen lds
        """)
    def issue_res():
        A(f"""
        s_and_b32 s{sT}, s{sCB}, 7
        s_lshl_b32 s{sT}, s{sT}, 14
        s_lshl_b32 s{sT2}, s{sW}, 12
        s_add_u32 s{sT}, s{sT}, s{sT2}
        s_lshl_b32 s{sT2}, s{sMB}, 17
        s_add_u32 s{sT}, s{sT}, s{sT2}
        s_lshr_b32 s{sT2}, s{sCB}, 3
        s_lshl_b32 s{sT2}, s{sT2}, 7
        s_add_u32 s{sT}, s{sT}, s{sT2}
        s_add_u32 s{sT}, s{sT}, {WS_HT}
        s_lshl_b32 s{sT2}, s{sW}, 11
        s_add_u32 m0, s{sT2}, {X_RES}
        s_add_u32 s{sT2}, s{sT}, 2048
        buffer_load_dwordx4 v{vR}, {SR}, s{sT} offen lds
        s_add_u32 m0, m0, 1024
        s_nop 0
        buffer_load_dwordx4 v{vR}, {SR}, s{sT2} offen lds
        """)
    def issue_h(st):
        A(f"""
        s_add_u32 m0, s{sM0H}, {HR+(st%HRN)*8192}
        s_nop 0
        buffer_load_dwordx4 v{vH}, {SR}, s{sHO} offen lds
        buffer_load_dwordx4 v{vH}, {SR}, s{sHO} offen offset:1024 lds
        s_add_u32 s{sHO}, s{sHO}, 8192
        """)
    A(f"""
    s_cmp_eq_u32 s{sCB}, 15
    s_cbranch_scc1 k2_stats
    """)
    for st in range(NPL,NWS): issue_w(A,st)
    A(f"""
    s_sub_u32 s{sW}, s{sW}, 4
    v_lshrrev_b32 v{vT}, 4, v{vL}
    v_lshlrev_b32 v{vT+1}, 2, v{vT}
    v_and_b32 v{vT+2}, 15, v{vL}
    v_xor_b32 v{vT+1}, v{vT+1}, v{vT+2}
    v_lshlrev_b32 v{vT+1}, 4, v{vT+1}
    v_lshl_add_u32 v{vH}, v{vT}, 8, v{vT+1}
    s_lshl_b32 s{sM0H}, s{sW}, 11
    s_lshl_b32 s{sT}, s{sMB}, 17
    s_add_u32 s{sHO}, s{sM0H}, s{sT}
    s_add_u32 s{sHO}, s{sHO}, {WS_HT}
    """)
    p2_setup()
    issue_wd(0)
    stamp(A,1)
    A("s_barrier")
    stamp(A,2)
    issued=[]
    for st in range(HRN-1): issue_h(st); issued.append((("h",st),2))
    def after(keys):
        idx=max(i for i,(t,_) in enumerate(issued) if t in keys)
        return sum(c for _,c in issued[idx+1:])
    nb=1; WPI=int(os.environ.get("WPI","3"))
    for j in range(17):
        if j<16: A(f"s_waitcnt vmcnt({min(63,after({('h',j),('w',j)}))})")
        A("s_barrier")
        if j==0: stamp(A,3)
        if j+HRN-1<16: issue_h(j+HRN-1); issued.append((("h",j+HRN-1),2))
        if 1<=j and j+NWS-1<16: issue_w(A,j+NWS-1); issued.append((("w",j+NWS-1),3))
        c=0
        lim = 99 if j==16 else (WPI if j+HRN-1<16 else WPI+2)
        while nb<37 and LOCS[nb][1]<=j and c<lim:
            issue_wd(nb); nb+=1; c+=1
        if c: issued.append(("d",c))
        if j==13: issue_res(); issued.append(("r",2))
    assert nb==37
    stamp(A,4)
    def lbar(k):
        l=A.newlabel("k2_lb")
        A(f"""
        v_mov_b32 v9, 1
        s_mov_b64 exec, 1
        ds_add_u32 v8, v9
        s_mov_b64 exec, -1
        """)
        A.label(l)
        A(f"""
        ds_read_b32 v9, v8
        s_waitcnt lgkmcnt(0)
        v_cmp_gt_u32 vcc, {4*k}, v9
        s_cbranch_vccnz {l}
        """)
    aW=12; aRr=15; vF=16; vHo=17; vOo=18; vX=19
    NS=11; NPRE=int(os.environ.get('NPRE','10'))
    ACC=20; RG=36; FW=RG+16*(NS-1); NH=7; FH=RG+16*NS; aWn=FH+4*NH
    def p2_addr(grpB):
        A(f"""
        v_bfe_u32 v{vT}, v{vL}, 2, 2
        v_lshrrev_b32 v{vT+1}, 4, v{vL}
        v_lshl_add_u32 v{aW}, v{vT+1}, 3, v{vT}
        v_lshlrev_b32 v{aW}, 7, v{aW}
        v_and_b32 v{aW+1}, 3, v{vL}
        v_lshl_add_u32 v{aW}, v{aW+1}, 3, v{aW}
        v_lshrrev_b32 v{aW+2}, 1, v{vT}
        v_and_b32 v{vF}, 1, v{vT+1}
        v_lshl_or_b32 v{aW+2}, v{vF}, 1, v{aW+2}
        """)
        for nt in range(4):
            A(f"v_xor_b32 v{vF}, {nt}, v{aW+2}")
            A(f"v_lshl_add_u32 v{aWn+nt}, v{vF}, 5, v{aW}")
            A(f"v_add_u32 v{aWn+4+nt}, 0xf000, v{aWn+nt}")
            A(f"v_add_u32 v{aWn+8+nt}, 0x1e000, v{aWn+nt}")
        if not grpB:
            A(f"""
            v_lshl_add_u32 v{aRr}, v{vT+1}, 2, v{vT}
            v_lshlrev_b32 v{aRr}, 7, v{aRr}
            v_lshl_add_u32 v{aRr}, v{aW+1}, 3, v{aRr}
            v_xor_b32 v{vF}, s{sW}, v{aW+2}
            v_lshl_add_u32 v{aRr}, v{vF}, 5, v{aRr}
            v_add_u32 v{aRr}, {X_RES}, v{aRr}
            """)
        A(f"""
        v_lshlrev_b32 v{vHo}, 4, v{vL}
        v_and_b32 v{vOo}, 15, v{vL}
        v_lshlrev_b32 v{vOo}, 10, v{vOo}
        v_lshl_add_u32 v{vOo}, v{vT+1}, 3, v{vOo}
        s_lshl_b32 s{sT}, s{sW}, 12
        s_add_u32 s{sT}, s{sT}, {X_RED[1]-4096}
        s_cmp_eq_u32 s{sW}, 0
        s_cselect_b32 s{sT}, {X_RED[0]}, s{sT}
        v_add_u32 v{vX}, s{sT}, v{vHo}
        """)
        assert X_RED[2]==X_RED[1]+4096 and X_RED[3]==X_RED[1]+8192
        srd(A,sOUT,26,0,2048*1024)
        A(f"""
        s_lshl_b32 s{sT}, s{sMB}, 1
        s_lshr_b32 s{sT2}, s{sCB}, 3
        s_add_u32 s{sT}, s{sT}, s{sT2}
        s_lshl_b32 s{sJ}, s{sT}, 7
        s_add_u32 s{sJ}, s{sJ}, {WS_FLAG}
        s_lshl_b32 s{sT}, s{sT}, 2
        s_add_u32 s{sT}, s{sT}, s{sW}
        s_mul_i32 s{sHO}, s{sT}, {43*1024}
        s_add_u32 s{sHO}, s{sHO}, {WS_HM+(NA*1024 if grpB else 0)}
        s_lshl_b32 s{sOO}, s{sT}, 14
        s_and_b32 s{sT2}, s{sCB}, 7
        s_lshl_b32 s{sT2}, s{sT2}, 7
        s_add_u32 s{sOO}, s{sOO}, s{sT2}
        """)
    def rdw(dst,b):
        loc=wd_loc(b); win=loc//0xf000; off=loc-win*0xf000
        return [f"ds_read_b64_tr_b16 v[{dst+4*nt+2*e}:{dst+4*nt+2*e+1}], v{aWn+4*win+nt} offset:{off+512*e}" for nt in range(4) for e in range(2)]
    MIDB=3
    assert 37-NA-NPRE>=MIDB and NPRE>=10
    def p2_loop(b0,n,grpB):
        def ldh(s):
            d=FH+4*(s%NH)
            o=[f"buffer_load_dwordx4 v[{d}:{d+3}], v{vHo}, {SR}, s{sHO} offen offset:{1024*(s%4)}"]
            if s%4==3: o.append(f"s_add_u32 s{sHO}, s{sHO}, 4096")
            return o
        D=min(NH-1,int(os.environ.get("P2D","6"))); PD=NPRE
        for s in range(D):
            for l in ldh(s): A(l)
        for s in range(n):
            src=RG+16*(s%NS)
            nr=rdw(RG+16*((s+PD)%NS),b0+s+PD) if s+PD<n else []
            lg=""
            if s>=NPRE:
                out=8*(min(n,s+PD)-s-1)
                if out<=15: lg=f" lgkmcnt({out})"
            if s==MIDB: A("s_barrier")
            A(f"s_waitcnt vmcnt({min(n,s+D)-s-1})"+lg)
            if s+D<n:
                for l in ldh(s+D): A(l)
            h=FH+4*(s%NH)
            for nt in range(4):
                c="0" if (grpB and s==0) else f"v[{ACC+4*nt}:{ACC+4*nt+3}]"
                A(f"v_mfma_f32_16x16x32_bf16 v[{ACC+4*nt}:{ACC+4*nt+3}], v[{src+4*nt}:{src+4*nt+3}], v[{h}:{h+3}], {c}")
                if nt==0 and nr: A("s_waitcnt lgkmcnt(7)")
                for r in nr[2*nt:2*nt+2]: A(r)
        stamp(A,7)
        give=ACC if grpB else ACC+8; keep=ACC+8 if grpB else ACC
        wo=0 if grpB else 2048; ro=2048 if grpB else 0
        A(f"""
        ds_write_b128 v{vX}, v[{give}:{give+3}] offset:{wo}
        ds_write_b128 v{vX}, v[{give+4}:{give+7}] offset:{wo+1024}
        s_waitcnt lgkmcnt(0)
        s_barrier
        ds_read_b128 v[{RG}:{RG+3}], v{vX} offset:{ro}
        ds_read_b128 v[{RG+4}:{RG+7}], v{vX} offset:{ro+1024}
        """)
        for i in range(2):
            A(f"s_waitcnt lgkmcnt({1-i})")
            for q in range(2):
                r=4*i+2*q
                A(f"v_pk_add_f32 {bc(keep+r)}, {bc(keep+r)}, {bc(RG+r)}")
            for q in range(2):
                r=4*i+2*q
                A(f"v_cvt_pk_bf16_f32 v{RG+8+2*i+q}, v{keep+r}, v{keep+r+1}")
            A(f"buffer_store_dwordx2 {bc(RG+8+2*i)}, v{vOo}, s[{sOUT}:{sOUT+3}], s{sOO} offen offset:{32*(i+(2 if grpB else 0))}")
    A.label("k2_p2")
    p2_addr(False)
    A("s_waitcnt vmcnt(0)")
    lbar(1)
    stamp(A,5)
    for b in range(NREG):
        for r in rdw(RG+16*b,b): A(r)
    for q in range(4): A(f"ds_read_b64_tr_b16 v[{FW+2*q}:{FW+2*q+1}], v{aRr} offset:{2048*q}")
    A("s_waitcnt lgkmcnt(0)")
    lbar(2)
    for b in range(37,43): issue_wd(b)
    for b in range(NREG,NPRE):
        for r in rdw(RG+16*b,b): A(r)
    for q in range(8):
        A(f"v_lshlrev_b32 v{ACC+2*q}, 16, v{FW+q}")
        A(f"v_and_b32 v{ACC+2*q+1}, 0xffff0000, v{FW+q}")
    A("s_waitcnt lgkmcnt(0)")
    A("s_barrier")
    stamp(A,6)
    p2_loop(0,NA,False)
    dump(A,2,8,sW,4)
    A("s_endpgm")
    A.label("k2_lo")
    PF=200
    A(f"""
    s_lshr_b32 s{sT}, s{sMB}, 1
    s_lshl_b32 s{sT}, s{sT}, 10
    s_add_u32 s{sT}, s{sT}, {WS_FLH}
    v_lshl_add_u32 v{PF+4}, v{vL}, 4, s{sT}
    """)
    def hpoll(lab):
        A(f"""
        s_cmp_lg_u32 s{sW}, 0
        s_cbranch_scc1 {lab}_d
        s_mov_b32 s{sSP}, 0
        """)
        A.label(lab)
        A(f"""
        global_load_dwordx4 v[{PF}:{PF+3}], v{PF+4}, s[30:31] sc0 sc1
        s_add_u32 s{sSP}, s{sSP}, 1
        s_cmp_ge_u32 s{sSP}, {SPIN}
        s_cbranch_scc1 {lab}_d
        s_waitcnt vmcnt(0)
        v_xor_b32 v{PF}, s{sTAG}, v{PF}
        v_xor_b32 v{PF+1}, s{sTAG}, v{PF+1}
        v_xor_b32 v{PF+2}, s{sTAG}, v{PF+2}
        v_xor_b32 v{PF+3}, s{sTAG}, v{PF+3}
        v_or3_b32 v{PF}, v{PF}, v{PF+1}, v{PF+2}
        v_or_b32 v{PF}, v{PF}, v{PF+3}
        v_cmp_ne_u32 vcc, 0, v{PF}
        s_cbranch_vccnz {lab}
        """)
        A.label(lab+"_d")
    A(f"""
    s_cmp_eq_u32 s{sCB}, 15
    s_cbranch_scc1 k2_stats_lo
    """)
    sWT=18; sWF=19
    aH=2; aWc=4; cT=11; CSF=18; FA=30; FB=50; CAC=70; vS=166; vSt=170
    A(f"""
    s_setprio 1
    s_and_b32 s{sWT}, s{sW}, 1
    s_lshr_b32 s{sWF}, s{sW}, 1
    v_bfe_u32 v{cT}, v{vL}, 2, 2
    v_lshrrev_b32 v{cT+1}, 5, v{vL}
    v_lshl_add_u32 v{cT+1}, v{cT+1}, 3, v{cT}
    v_and_b32 v{cT+2}, 3, v{vL}
    v_bfe_u32 v{cT+3}, v{vL}, 4, 1
    v_lshlrev_b32 v{cT+4}, 8, v{cT+1}
    v_lshl_add_u32 v{cT+4}, v{cT+3}, 5, v{cT+4}
    v_lshl_add_u32 v{cT+4}, v{cT+2}, 3, v{cT+4}
    v_add_u32 v{cT+4}, {HR}, v{cT+4}
    s_lshl_b32 s{sT}, s{sWT}, 1
    v_xor_b32 v{cT+5}, s{sT}, v{cT}
    v_lshl_add_u32 v{aH}, v{cT+5}, 6, v{cT+4}
    v_xor_b32 v{cT+5}, 1, v{cT+5}
    v_lshl_add_u32 v{aH+1}, v{cT+5}, 6, v{cT+4}
    v_mul_u32_u24 v{aWc}, 192, v{cT+1}
    v_mul_u32_u24 v{cT+4}, {W_U}, v{cT+3}
    v_add_u32 v{aWc}, v{aWc}, v{cT+4}
    v_and_b32 v{cT+4}, 1, v{vL}
    v_lshl_add_u32 v{aWc}, v{cT+4}, 4, v{aWc}
    v_bfe_u32 v{cT+4}, v{vL}, 1, 1
    v_lshl_add_u32 v{aWc}, v{cT+4}, 3, v{aWc}
    s_mul_i32 s{sT}, s{sWF}, 96
    v_add_u32 v{aWc}, s{sT}, v{aWc}
    v_add_u32 v{aWc+1}, {5*WSLOT}, v{aWc}
    v_and_b32 v{cT+4}, 1, v{cT}
    v_lshl_add_u32 v{cT+4}, v{cT+4}, 3, v{cT+2}
    v_lshrrev_b32 v{cT+5}, 1, v{cT}
    v_lshl_add_u32 v{cT+4}, v{cT+5}, 2, v{cT+4}
    s_mul_i32 s{sT}, s{sCB}, 96
    s_mul_i32 s{sT2}, s{sWF}, 48
    s_add_u32 s{sT}, s{sT}, s{sT2}
    s_min_u32 s{sT}, s{sT}, {1376-48}
    s_mul_i32 s45, s{sCB}, 96
    v_mul_u32_u24 v{cT+5}, 1376, v{cT+3}
    v_add_u32 v{cT+4}, v{cT+4}, v{cT+5}
    v_and_b32 v{cT+5}, 32, v{vL}
    v_lshrrev_b32 v{cT+1}, 1, v{cT+5}
    v_lshl_add_u32 v{cT+4}, v{cT+4}, 5, v{cT+1}
    """)
    for rt in range(3):
        A(f"""
        s_add_u32 s{20+rt}, s45, s{sT2}
        s_add_u32 s{20+rt}, s{20+rt}, {16*rt}
        s_min_u32 s{20+rt}, s{20+rt}, {1376-16}
        s_lshl_b32 s{20+rt}, s{20+rt}, 5
        s_add_u32 s{20+rt}, s{20+rt}, {WS_CS}
        """)
    A(f"""
    s_lshl_b32 s{sT}, s{sMB}, 10
    s_lshl_b32 s{sT2}, s{sWT}, 9
    s_add_u32 s{sT}, s{sT}, s{sT2}
    s_add_u32 s{sT}, s{sT}, {WS_ST3}
    v_and_b32 v{cT}, 31, v{vL}
    v_lshl_add_u32 v{vSt}, v{cT}, 3, s{sT}
    v_mul_u32_u24 v{cT+1}, {43*1024}, v{cT+3}
    v_lshl_add_u32 v{cT+1}, v{cT+5}, 3, v{cT+1}
    v_and_b32 v{cT}, 15, v{vL}
    v_lshl_add_u32 v{cT+1}, v{cT}, 4, v{cT+1}
    s_lshl_b32 s{sT}, s{sMB}, 1
    s_add_u32 s{sT}, s{sT}, s{sWT}
    s_lshl_b32 s45, s{sT}, 7
    s_lshl_b32 s46, s{sCB}, 3
    s_add_u32 s45, s45, s46
    s_lshl_b32 s46, s{sWF}, 2
    s_add_u32 s45, s45, s46
    s_add_u32 s45, s45, {WS_FLAG}
    v_mov_b32 v{vSt+1}, s45
    s_mul_i32 s{sT}, s{sT}, {4*43*1024}
    s_mul_i32 s{sJ}, s{sCB}, 6
    s_mul_i32 s{sT2}, s{sWF}, 3
    s_add_u32 s{sJ}, s{sJ}, s{sT2}
    s_lshl_b32 s{sT2}, s{sJ}, 9
    s_add_u32 s{sT}, s{sT}, s{sT2}
    s_add_u32 s{sT}, s{sT}, {WS_HM}
    s_add_u32 s{sT2}, s{sT}, {2*43*1024}
    v_mov_b32 v{vS}, 0
    """)
    hpoll("k2_hp")
    def rd(F,st,ks):
        sl=st%NWS; g=sl//5; so=(sl%5)*WSLOT; ho=(st%HRN)*8192
        def w(rt,e): return f"ds_read_b64_tr_b16 v[{F+8+4*rt+2*e}:{F+8+4*rt+2*e+1}], v{aWc+g} offset:{so+(16*ks+4*e)*192+32*rt}"
        def h(ct,e): return f"ds_read_b64_tr_b16 v[{F+4*ct+2*e}:{F+4*ct+2*e+1}], v{aH+ct} offset:{ho+(16*ks+4*e)*256}"
        return [w(0,0),w(0,1),h(0,0),h(0,1),h(1,0),h(1,1),w(1,0),w(1,1),w(2,0),w(2,1)]
    first=[True]*6
    def mm(F):
        out=[]
        for rt in range(3):
            for ct in range(2):
                a=CAC+16*(2*rt+ct)
                c="0" if first[2*rt+ct] else f"v[{a}:{a+15}]"
                first[2*rt+ct]=False
                out.append(f"v_mfma_f32_32x32x16_bf16 v[{a}:{a+15}], v[{F+8+4*rt}:{F+8+4*rt+3}], v[{F+4*ct}:{F+4*ct+3}], {c}")
        return out
    need_before=[4,6,8,8,10,10]
    def phase(ms,rs,prev_pending):
        issued=0; per=[2,2,2,2,2,0]; lastw=None
        for i,m in enumerate(ms):
            if prev_pending:
                n=(10-need_before[i])+issued
                if lastw is None or need_before[i]>lastw:
                    A(f"s_waitcnt lgkmcnt({min(n,15)})"); lastw=need_before[i]
            A(m)
            for _ in range(per[i]):
                if issued<len(rs): A(rs[issued]); issued+=1
    def ldst():
        A(f"global_load_dwordx2 {bc(vS)}, v{vSt}, s[30:31] sc0 sc1")
        A(f"global_load_dwordx2 {bc(vS+2)}, v{vSt}, s[30:31] offset:256 sc0 sc1")
    def ldcs(sc):
        for rt in range(3):
            A(f"buffer_load_dwordx4 v[{CSF+4*rt}:{CSF+4*rt+3}], v{cT+4}, {SR}, s{20+rt} offen{sc}")
    BF=172; K1=180; K3=184; K2=188; XX=192
    def stat_fix():
        A(f"s_mov_b32 s{sSP}, 0")
        A.label("k2_stchk")
        A("s_waitcnt vmcnt(0)")
        tg=[vS+1,vS+3]+[CSF+4*rt+o for rt in range(3) for o in (1,3)]
        for i,r in enumerate(tg): A(f"v_xor_b32 v{XX+i}, s{sTAG}, v{r}")
        A(f"""
        v_or3_b32 v{XX}, v{XX}, v{XX+1}, v{XX+2}
        v_or3_b32 v{XX+3}, v{XX+3}, v{XX+4}, v{XX+5}
        v_or3_b32 v{XX}, v{XX}, v{XX+6}, v{XX+7}
        v_or_b32 v{XX}, v{XX}, v{XX+3}
        v_cmp_ne_u32 vcc, 0, v{XX}
        s_cbranch_vccnz k2_stretry
        """)
        A.label("k2_stok")
        for rt in range(3):
            A(f"v_mov_b32 v{CSF+4*rt+1}, 0"); A(f"v_mov_b32 v{CSF+4*rt+3}, 0")
        for ct in range(2):
            A(f"""
            v_and_b32 v{BF+4*ct+1}, 0xffff, v{vS+2*ct}
            v_xor_b32 v{BF+4*ct+1}, 0x8000, v{BF+4*ct+1}
            v_lshl_or_b32 v{BF+4*ct}, v{BF+4*ct+1}, 16, v{BF+4*ct+1}
            v_mov_b32 v{BF+4*ct+3}, 0
            v_mov_b32 v{BF+4*ct+2}, v{BF+4*ct}
            """)
        B=Asm()
        for ct in range(2):
            x=XX+4*ct
            B(f"""
            v_and_b32 v{x+1}, 0xffff0000, v{vS+2*ct}
            v_rcp_f32 v{x+2}, v{x+1}
            v_mul_f32 v{K2+2*ct}, v{x+1}, v{x+1}
            v_mul_f32 v{K1+2*ct}, {f32(GC1)}, v{x+2}
            v_mul_f32 v{x+3}, v{x+2}, v{x+2}
            v_mul_f32 v{x+3}, v{x+3}, v{x+2}
            v_mul_f32 v{K3+2*ct}, {f32(GC2)}, v{x+3}
            """)
        bl=[l.strip() for l in B.l]; i=0
        for rt in range(3):
            for ct in range(2):
                a=CAC+16*(2*rt+ct)
                A(f"v_mfma_f32_32x32x16_bf16 v[{a}:{a+15}], v[{CSF+4*rt}:{CSF+4*rt+3}], v[{BF+4*ct}:{BF+4*ct+3}], v[{a}:{a+15}]")
                for l in bl[i*3:(i+1)*3]: A(l)
                i+=1
    stamp(A,1)
    A("s_barrier")
    for j in range(16):
        A("s_barrier")
        if j==0:
            for r in rd(FA,0,0): A(r)
        else:
            phase(mm(FB),rd(FA,j,0),False)
        if j==2: A(f"global_load_dword v{vS+1}, v{vS}, s[26:27]")
        if j==4: ldcs("")
        if j==12: ldst()
        phase(mm(FA),rd(FB,j,1),True)
        if j==14: stat_fix()
        A("s_waitcnt lgkmcnt(0)")
    A("s_barrier")
    stamp(A,2)
    for m in mm(FB): A(m)
    stamp(A,3)
    T=FA
    for rt in range(3):
        A(f"s_add_u32 s45, s{sJ}, {rt}")
        A(f"s_cmp_ge_u32 s45, 86")
        A("s_cbranch_scc1 k2_sig")
        for ct in range(2):
            a=CAC+16*(2*rt+ct); t=T+8*ct
            k1=K1+2*ct; k2=K2+2*ct; k3=K3+2*ct
            for r in range(0,8,2): A(f"v_pk_mul_f32 {bc(t+r)}, {bc(a+r)}, {bc(a+r)}")
            for r in range(0,8,2): A(f"v_pk_fma_f32 {bc(t+r)}, {bc(t+r)}, {bc(k3)}, {bc(k1)} op_sel_hi:[1,0,0]")
            for r in range(0,8,2): A(f"v_pk_mul_f32 {bc(t+r)}, {bc(t+r)}, {bc(a+r)}")
            for r in range(0,8,2):
                A(f"v_exp_f32 v{t+r}, v{t+r}")
                A(f"v_pk_mul_f32 {bc(a+r)}, {bc(a+r)}, {bc(a+8+r)}")
                A(f"v_exp_f32 v{t+r+1}, v{t+r+1}")
            for r in range(0,8,2): A(f"v_pk_fma_f32 {bc(t+r)}, {bc(t+r)}, {bc(k2)}, {bc(k2)} op_sel_hi:[1,0,0]")
            for r in range(8): A(f"v_rcp_f32 v{t+r}, v{t+r}")
            for r in range(0,8,2): A(f"v_pk_mul_f32 {bc(a+r)}, {bc(a+r)}, {bc(t+r)}")
            for r in range(4): A(f"v_cvt_pk_bf16_f32 v{a+8+r}, v{a+2*r}, v{a+2*r+1}")
            A(f"buffer_store_dwordx4 v[{a+8}:{a+11}], v{cT+1}, {SR}, s{sT if ct==0 else sT2} offen offset:{512*rt} sc0 sc1")
    A.label("k2_sig")
    stamp(A,4)
    p2_addr(True)
    A(f"""
    v_mov_b32 v{vS}, s{sTAG}
    s_waitcnt vmcnt(0)
    s_mov_b64 exec, 1
    global_store_dword v{vSt+1}, v{vS}, s[30:31] sc0 sc1
    s_mov_b64 exec, -1
    s_setprio 0
    """)
    stamp(A,5)
    A.label("k2_p2b")
    A(f"""
    v_min_u32 v{vF}, 28, v{vL}
    v_lshl_add_u32 v{vF}, v{vF}, 2, s{sJ}
    s_mov_b32 s{sSP}, 0
    s_cmp_lg_u32 s{sW}, 0
    s_cbranch_scc1 k2_bw
    global_load_dword v{vT}, v{vF}, s[30:31] sc0 sc1
    """)
    A.label("k2_bw")
    A(f"""
    ds_read_b32 v9, v8
    s_waitcnt lgkmcnt(0)
    v_cmp_gt_u32 vcc, 4, v9
    s_cbranch_vccnz k2_bw
    """)
    for b in range(NPRE):
        for r in rdw(RG+16*b,NA+b): A(r)
    A(f"""
    s_cmp_lg_u32 s{sW}, 0
    s_cbranch_scc1 k2_polled
    """)
    A.label("k2_poll")
    A(f"""
    s_waitcnt vmcnt(0)
    v_cmp_ne_u32 vcc, s{sTAG}, v{vT}
    s_cbranch_vccz k2_polled
    s_add_u32 s{sSP}, s{sSP}, 1
    s_cmp_ge_u32 s{sSP}, {SPIN}
    s_cbranch_scc1 k2_polled
    global_load_dword v{vT}, v{vF}, s[30:31] sc0 sc1
    s_branch k2_poll
    """)
    A.label("k2_polled")
    A("s_waitcnt lgkmcnt(0)")
    A("s_barrier")
    stamp(A,6)
    p2_loop(NA,43-NA,True)
    dump(A,2,8,sW)
    A("s_endpgm")
    A.label("k2_stretry")
    A(f"""
    s_add_u32 s{sSP}, s{sSP}, 1
    s_cmp_ge_u32 s{sSP}, {SPIN}
    s_cbranch_scc1 k2_stok
    """)
    ldst(); ldcs(" sc0 sc1")
    A("s_branch k2_stchk")
    A.label("k2_stats_lo")
    hpoll("k2_hq")
    A.label("k2_stats")
    vD=16; S=80; Q=88; U=96
    A(f"""
    s_lshl_b32 s{sT}, s{sMB}, 17
    s_lshl_b32 s{sT2}, s{sW}, 14
    s_add_u32 s{sT}, s{sT}, s{sT2}
    s_add_u32 s{sT}, s{sT}, {WS_HT}
    v_lshlrev_b32 v{vLin}, 4, v{vL}
    s_barrier
    """)
    for i in range(16):
        A(f"buffer_load_dwordx4 v[{vD+4*i}:{vD+4*i+3}], v{vLin}, {SR}, s{sT} offen offset:{1024*(i%4)}")
        if i%4==3 and i<15: A(f"s_add_u32 s{sT}, s{sT}, 4096")
    for j in range(16): A(f"v_mov_b32 v{S+j}, 0")
    for i in range(16):
        A(f"s_waitcnt vmcnt({15-i})")
        for j in range(4):
            A(f"v_lshlrev_b32 v{U+2*j}, 16, v{vD+4*i+j}")
            A(f"v_and_b32 v{U+2*j+1}, 0xffff0000, v{vD+4*i+j}")
        for j in range(4):
            A(f"v_pk_add_f32 {bc(S+2*j)}, {bc(S+2*j)}, {bc(U+2*j)}")
            A(f"v_pk_fma_f32 {bc(Q+2*j)}, {bc(U+2*j)}, {bc(U+2*j)}, {bc(Q+2*j)}")
    for j in range(8): A(f"v_permlane32_swap_b32 v{S+j}, v{Q+j}")
    for j in range(8): A(f"v_add_f32 v{S+j}, v{S+j}, v{Q+j}")
    for j in range(4): A(f"v_permlane16_swap_b32 v{S+j}, v{S+j+4}")
    A(f"""
    v_and_b32 v{vT}, 15, v{vL}
    v_lshlrev_b32 v{vT}, 5, v{vT}
    v_and_b32 v{vT+1}, 16, v{vL}
    v_add_u32 v{vT}, v{vT}, v{vT+1}
    v_and_b32 v{vT+1}, 32, v{vL}
    v_lshl_add_u32 v{vT}, v{vT+1}, 4, v{vT}
    s_lshl_b32 s{sT}, s{sW}, 10
    v_add_u32 v{vT}, s{sT}, v{vT}
    """)
    for j in range(4): A(f"v_add_f32 v{S+j}, v{S+j}, v{S+j+4}")
    A(f"""
    ds_write_b128 v{vT}, v[{S}:{S+3}]
    s_waitcnt lgkmcnt(0)
    s_barrier
    s_cmp_ge_u32 s{sW}, 4
    s_cbranch_scc1 k2_st_p2
    s_cmp_ge_u32 s{sW}, 2
    s_cbranch_scc1 k2_st_exit
    v_lshlrev_b32 v{vT}, 2, v0
    """)
    for i in range(8):
        A(f"ds_read_b32 v{vD+i}, v{vT} offset:{1024*i}")
        A(f"ds_read_b32 v{vD+8+i}, v{vT} offset:{1024*i+512}")
    A("s_waitcnt lgkmcnt(0)")
    for st in (4,2,1):
        for i in range(st):
            A(f"v_add_f32 v{vD+i}, v{vD+i}, v{vD+i+st}")
            A(f"v_add_f32 v{vD+8+i}, v{vD+8+i}, v{vD+8+i+st}")
    ln_finish(A,vD,vD+8,vD+1,512)
    A(f"""
    v_cvt_pk_bf16_f32 v{vD}, v{vD}, v{vD+8}
    v_mov_b32 v{vD+1}, s{sTAG}
    s_lshl_b32 s{sT}, s{sMB}, 10
    s_add_u32 s{sT}, s{sT}, {WS_ST3}
    v_lshl_add_u32 v{vT}, v0, 3, s{sT}
    global_store_dwordx2 v{vT}, {bc(vD)}, s[30:31] sc0 sc1
    """)
    A.label("k2_st_exit")
    A("s_barrier")
    p2_addr(True)
    for i in range(1,6): stamp(A,i)
    A("s_branch k2_p2b")
    A.label("k2_st_p2")
    A("s_barrier")
    A(f"s_sub_u32 s{sW}, s{sW}, 4")
    p2_setup()
    issue_res()
    for b in range(37): issue_wd(b)
    for i in range(1,5): stamp(A,i)
    A("s_branch k2_p2")
```

```python
from common import *
import mA, mB
out=sys.argv[1] if len(sys.argv)>1 else "out.s"
KN=NAME+"_kernel"
def gen():
    A=Asm(); T=Asm(); head(A,KN)
    mA.phaseA(A,T)
    A("s_branch m_b")
    A.l+=T.l
    A.label("m_b")
    mB.phaseB(A)
    A.label("m_end"); A("s_endpgm")
    return A.l, kd(KN,256,96)
build([gen],[(KN,256,512,163840)],out)
if "list" not in X:
    s=open(out).read().replace(f"; @launch kernel={KN} grid","; @launch grid")
    open(out,"w").write(s)
```

```python
from common import *
from k01 import cmul, exp_bf16, cexp, row_stats
EF_PITCH=544; EF_CH=64*EF_PITCH
YP=9216
WSLOT=12320; NWS=10; W_U=6176
YB=6*WSLOT
TB=YB
XS=TB+2*KD_CH
SC=XS+8*1280
PB=SC+64
KIMG=YB+4*YP+64; IMG=4160; KIMG_CH=4*IMG
UB=KIMG+2*KIMG_CH; U_CH=96*80
assert 2*EF_CH<=YB and UB+2*U_CH<=163824
X_CNT=163776
sTAG=34; sWt=8; sWO=12; sM0W=13; sCBg=14; sMBg=15; vWo=253
NPL=int(os.environ.get("NPL","6"))
def issue_w(A,st):
    A(f"""
    s_add_u32 m0, s{sM0W}, {(st%NWS)*WSLOT}
    s_nop 0
    buffer_load_dwordx4 v{vWo}, s[{sWt}:{sWt+3}], s{sWO} offen lds
    buffer_load_dwordx4 v{vWo+1}, s[{sWt}:{sWt+3}], s{sWO} offen offset:1024 lds
    buffer_load_dwordx4 v{vWo+2}, s[{sWt}:{sWt+3}], s{sWO} offen offset:2048 lds
    s_add_u32 s{sWO}, s{sWO}, {32*2752}
    """)
SPIN=1<<16
WT=" sc0 sc1"
def phaseA(A,tail):
    sW=36; sCH=37; sG=38; sT=39; sT2=40; sHALF=41; sONE=42; sDT=43; sROW=46; sDS=50; sROLE=51; sSEL=52; sU=56; sSP=57; sEP=58; sEX=60
    vL=1; vT=2; vXR=4; vXS=8; vP=12; vAD=17; q5=18; hh=19
    vXG=20; vSG=28
    vX=36; vUD=44; vGA=52; vSA=53
    vW=56
    vRA=200; vRD=204; vCS=216
    A(f"""
    s_cmp_ge_u32 s2, 256
    s_cbranch_scc1 m_end
    s_load_dwordx16 s[4:19], s[0:1], 0
    s_load_dwordx2 s[30:31], s[0:1], 104
    s_load_dwordx8 s[20:27], s[0:1], 64
    """)
    stamp(A,0)
    A("s_getpc_b64 s[44:45]")
    A.label("ka_pf")
    A(f"""
    v_lshlrev_b32 v{vW}, 7, v0
    v_lshrrev_b32 v{vT}, 6, v0
    v_and_b32 v{vL}, 63, v0
    v_readfirstlane_b32 s{sW}, v{vT}
    s_lshr_b32 s{sT2}, s2, 3
    s_cmp_lg_u32 s{sW}, 0
    s_cbranch_scc1 ka_nopf
    s_mov_b32 exec_hi, 0xff
    global_load_dword v{vRA+3}, v{vW}, s[44:45] offset:512
    s_mov_b32 exec_hi, -1
    """)
    A.label("ka_nopf")
    A(f"""
    s_and_b32 s{sT}, s2, 7
    s_lshl_b32 s{sG}, s{sT}, 5
    s_add_u32 s{sG}, s{sG}, s{sT2}
    s_and_b32 s{sCH}, s{sW}, 1
    s_lshr_b32 s{sROLE}, s{sW}, 1
    s_and_b32 s{sHALF}, s{sROLE}, 1
    v_and_b32 v{q5}, 31, v{vL}
    v_lshrrev_b32 v{hh}, 5, v{vL}
    s_lshl_b32 s{sT}, s{sT}, 7
    s_lshl_b32 s{sT2}, s{sT2}, 16
    s_add_u32 s{sT}, s{sT}, s{sT2}
    s_lshl_b32 s{sT2}, s{sROLE}, 14
    s_add_u32 s{sT}, s{sT}, s{sT2}
    s_lshl_b32 s{sT2}, s{sCH}, 6
    s_add_u32 s{sT}, s{sT}, s{sT2}
    v_lshrrev_b32 v{vW}, 2, v{vL}
    v_and_b32 v{vW+1}, 3, v{vL}
    v_lshlrev_b32 v{vW+2}, 10, v{vW}
    v_lshl_add_u32 v{vW+2}, v{vW+1}, 4, v{vW+2}
    v_add_u32 v{vW+2}, s{sT}, v{vW+2}
    s_lshl_b32 s{sT}, s{sG}, 13
    v_lshl_add_u32 v{vAD}, v0, 4, s{sT}
    s_lshl_b32 s{sT}, s{sG}, 9
    v_lshl_add_u32 v{vT}, v{vL}, 3, s{sT}
    s_lshl_b32 s{sT2}, s{sG}, 2
    s_cmp_eq_u32 s{sCH}, 0
    s_waitcnt lgkmcnt(0)
    s_cselect_b64 s[62:63], s[6:7], s[8:9]
    s_cselect_b64 s[60:61], s[10:11], s[12:13]
    s_cmp_eq_u32 s{sHALF}, 0
    s_cselect_b64 s[62:63], s[62:63], s[60:61]
    s_cmp_ge_u32 s{sW}, 4
    s_cbranch_scc1 ka_nop
    global_load_dwordx2 v[{vP}:{vP+1}], v{vT}, s[62:63]
    """)
    A.label("ka_nop")
    A(f"""
    s_load_dword s{sEP}, s[30:31], {WS_EPOCH}
    s_load_dword s{sDT}, s[14:15], s{sT2}
    s_load_dword s{sDS}, s[16:17], s{sT2}
    global_load_dwordx4 v[{vXS}:{vXS+3}], v{vW+2}, s[4:5]
    global_load_dwordx4 v[{vXR}:{vXR+3}], v{vAD}, s[4:5]
    s_mov_b32 s{sONE}, 0x3f803f80
    s_mov_b32 s{SK_INVN}, {f32(1/512)}
    v_mov_b32 v{vW+9}, 0x9000
    global_load_dword v{vRA+2}, v{vW+9}, s[30:31]
    """)
    A(f"""
    s_mul_i32 s{sT}, s{sW}, 1280
    s_add_u32 s{sT}, s{sT}, {XS}
    v_mul_u32_u24 v{vW+3}, 80, v{vW}
    v_lshl_add_u32 v{vW+3}, v{vW+1}, 4, v{vW+3}
    v_add_u32 v{vW+3}, s{sT}, v{vW+3}
    v_and_b32 v{vW}, 7, v{vL}
    v_lshrrev_b32 v{vW+1}, 3, v{vL}
    v_mul_u32_u24 v{vW+4}, 160, v{vW}
    v_lshl_add_u32 v{vW+4}, v{vW+1}, 2, v{vW+4}
    v_add_u32 v{vW+4}, s{sT}, v{vW+4}
    s_and_b32 s{sT}, s2, 7
    s_lshl_b32 s{sT}, s{sT}, 19
    s_lshl_b32 s{sT2}, s{sCH}, 18
    s_add_u32 s{sT}, s{sT}, s{sT2}
    s_lshr_b32 s{sT2}, s2, 3
    s_lshl_b32 s{sT2}, s{sT2}, 9
    s_add_u32 s{sT}, s{sT}, s{sT2}
    s_lshl_b32 s{sT2}, s{sROLE}, 7
    s_add_u32 s{sT}, s{sT}, s{sT2}
    s_add_u32 s{sT}, s{sT}, {WS_XG}
    v_lshlrev_b32 v{vW+5}, 14, v{vW+1}
    v_lshl_add_u32 v{vW+5}, v{vW}, 4, v{vW+5}
    v_add_u32 v{vW+5}, s{sT}, v{vW+5}
    v_add_u32 v{vW+6}, {8*16384}, v{vW+5}
    s_lshl_b32 s{sT}, s{sG}, 6
    v_lshl_add_u32 v{vW+7}, v{vL}, 3, s{sT}
    v_lshlrev_b32 v{vSA}, 5, v0
    s_lshl_b32 s{sT}, s{sG}, 14
    s_add_u32 s{sT}, s{sT}, {WS_XG}
    v_add_u32 v{vGA}, s{sT}, v{vSA}
    s_mul_i32 s{sT}, s{sCH}, {EF_CH}
    s_lshl_b32 s{sT2}, s{sHALF}, 8
    s_add_u32 s{sT}, s{sT}, s{sT2}
    v_lshl_add_u32 v{vAD}, v{vL}, 2, s{sT}
    """)
    A(f"""
    v_mov_b32 v{vW+8}, 0
    v_mov_b32 v{vW+9}, 0
    v_lshlrev_b32 v{vW+10}, 3, v0
    v_cmp_gt_u32 vcc, 320, v0
    s_and_saveexec_b64 s[{sEX}:{sEX+1}], vcc
    v_add_u32 v{vW+10}, {UB}, v{vW+10}
    ds_write_b64 v{vW+10}, v[{vW+8}:{vW+9}]
    ds_write_b64 v{vW+10}, v[{vW+8}:{vW+9}] offset:{U_CH}
    s_mov_b64 exec, 0x7f
    s_mul_i32 s{sT}, s{sW}, {IMG}
    s_add_u32 s{sT}, s{sT}, {KIMG+4096}
    v_lshl_add_u32 v{vW+10}, v{vL}, 3, s{sT}
    ds_write_b64 v{vW+10}, v[{vW+8}:{vW+9}]
    v_lshlrev_b32 v{vW+10}, 3, v{vL}
    v_add_u32 v{vW+10}, {X_CNT}, v{vW+10}
    ds_write_b64 v{vW+10}, v[{vW+8}:{vW+9}]
    s_mov_b64 exec, -1
    """)
    A(f"""
    s_lshl_b32 s{sT}, s{sW}, 9
    s_add_u32 s{sT}, s{sT}, {PB}
    v_lshl_add_u32 v{vW+11}, v{vL}, 3, s{sT}
    s_lshl_b32 s{sT}, s{sCH}, 8
    s_lshl_b32 s{sT2}, s{sHALF}, 7
    s_add_u32 s{sT}, s{sT}, s{sT2}
    s_add_u32 s{sT}, s{sT}, {PB}
    v_lshl_add_u32 v{vW+12}, v{vL}, 1, s{sT}
    s_waitcnt lgkmcnt(0)
    s_mul_i32 s{sTAG}, s{sEP}, 0x9e3779b1
    s_add_u32 s{sTAG}, s{sTAG}, 0x7f4a7c15
    s_lshl_b32 s{sT}, s{sDT}, 16
    s_and_b32 s{sT2}, s{sDT}, 0xffff0000
    s_cmp_eq_u32 s{sCH}, 0
    s_cselect_b32 s{sDT}, s{sT}, s{sT2}
    v_mov_b32 v{vP+4}, s{sDT}
    v_mov_b32 v{vXG+1}, s{sTAG}
    v_mov_b32 v{vXG+3}, s{sTAG}
    v_mov_b32 v{vXG+5}, s{sTAG}
    v_mov_b32 v{vXG+7}, s{sTAG}
    """)
    exp_bf16(A,vP+4,vW+8)
    A(f"""
    s_cmp_ge_u32 s{sW}, 4
    s_waitcnt vmcnt(2)
    ds_write_b128 v{vW+3}, v[{vXS}:{vXS+3}]
    ds_read_b32 v{vXG}, v{vW+4}
    ds_read_b32 v{vXG+2}, v{vW+4} offset:80
    ds_read_b32 v{vXG+4}, v{vW+4} offset:32
    ds_read_b32 v{vXG+6}, v{vW+4} offset:112
    s_cbranch_scc1 ka_nop2
    ds_write_b64 v{vW+11}, v[{vP}:{vP+1}]
    """)
    A.label("ka_nop2")
    A("s_waitcnt vmcnt(1)")
    stamp(A,1)
    B=Asm(); row_stats(B,vXR,vT,vT+1,vW+8,sONE); bl=[l.strip() for l in B.l]
    for l in bl[:10]: A(l)
    A(f"""
    s_waitcnt lgkmcnt(0)
    global_store_dwordx4 v{vW+5}, v[{vXG}:{vXG+3}], s[30:31]{WT}
    global_store_dwordx4 v{vW+6}, v[{vXG+4}:{vXG+7}], s[30:31]{WT}
    """)
    for l in bl[10:]: A(l)
    A(f"""
    s_lshl_b32 s{sT}, s{sW}, 2
    s_add_u32 s{sT}, s{sT}, {SC}
    v_mov_b32 v{vW+8}, s{sT}
    s_mov_b32 exec_lo, 0
    s_mov_b32 exec_hi, 0x80000000
    ds_write_b32 v{vW+8}, v{vT}
    s_mov_b64 exec, -1
    v_lshlrev_b32 v{vW+8}, 2, v{vL}
    v_add_u32 v{vW+8}, {SC}, v{vW+8}
    v_mov_b32 v{vT+1}, s{sTAG}
    s_cmp_lg_u32 s{sW}, 3
    s_waitcnt lgkmcnt(0)
    s_barrier
    s_cbranch_scc1 ka_nost
    s_mov_b64 exec, 0xff
    ds_read_b32 v{vT}, v{vW+8}
    s_waitcnt lgkmcnt(0)
    global_store_dwordx2 v{vW+7}, v[{vT}:{vT+1}], s[30:31] offset:{WS_STATS}{WT}
    s_mov_b64 exec, -1
    """)
    A.label("ka_nost")
    A(f"""
    s_cmp_lt_u32 s{sW}, 4
    s_cbranch_scc1 ka_nowu
    """)
    RD=176; c2=vW+32
    def wdsrc(dst,srow):
        A(f"""
        s_mul_i32 s{sT}, s{srow}, 24386
        s_lshr_b32 s{sT}, s{sT}, 22
        s_mul_i32 s{sT2}, s{sT}, 172
        s_sub_u32 s{sT2}, s{srow}, s{sT2}
        s_lshl_b32 s{sT}, s{sT}, 7
        s_lshl_b32 s{sSP}, s{sT2}, 13
        s_add_u32 s{sT}, s{sT}, s{sSP}
        s_and_b32 s{sT2}, s{sT2}, 1
        s_lshl_b32 s{sT2}, s{sT2}, 6
        v_xor_b32 v{dst}, s{sT2}, v{c2+1}
        v_add_u32 v{dst}, s{sT}, v{dst}
        """)
    A(f"""
    v_bfe_u32 v{c2+1}, v{vL}, 4, 1
    v_lshlrev_b32 v{c2+1}, 1, v{c2+1}
    v_and_b32 v{c2}, 7, v{vL}
    v_xor_b32 v{c2+1}, v{c2+1}, v{c2}
    v_lshrrev_b32 v{c2}, 3, v{vL}
    v_lshlrev_b32 v{c2}, 10, v{c2}
    v_lshl_add_u32 v{c2+1}, v{c2+1}, 4, v{c2}
    s_sub_u32 s{sROW}, s{sW}, 4
    s_lshl_b32 s{sROW}, s{sROW}, 8
    s_add_u32 s{sROW}, s{sROW}, s2
    """)
    wdsrc(c2+2,sROW)
    A(f"""
    global_load_dwordx4 v[{RD}:{RD+3}], v{c2+2}, s[24:25]
    s_cmp_ge_u32 s{sROW}, {1376-1024}
    s_cbranch_scc1 ka_nod2
    s_add_u32 s{sU}, s{sROW}, 1024
    """)
    wdsrc(c2+2,sU)
    A(f"global_load_dwordx4 v[{RD+4}:{RD+7}], v{c2+2}, s[24:25]")
    A.label("ka_nod2")
    A(f"""
    s_cmp_eq_u32 s{sW}, 6
    s_cbranch_scc1 ka_nowu
    s_cmp_eq_u32 s{sCH}, 0
    s_cselect_b64 s[62:63], s[20:21], s[22:23]
    s_cselect_b64 s[60:61], s[24:25], s[44:45]
    s_cmp_eq_u32 s{sHALF}, 0
    s_cselect_b64 s[62:63], s[62:63], s[60:61]
    s_mul_i32 s{sT}, s2, {43*128}
    s_lshr_b32 s{sT2}, s2, 3
    s_lshl_b32 s{sT2}, s{sT2}, 10
    s_add_u32 s{sT2}, s{sT2}, 5632
    s_mov_b32 s{sU}, {1376*1024-4}
    s_cmp_eq_u32 s{sW}, 7
    s_cselect_b32 s{sT}, s{sT2}, s{sT}
    s_cselect_b32 s{sT2}, code_end-ka_pf, s{sU}
    s_cselect_b32 exec_lo, 0xff, -1
    s_cselect_b32 exec_hi, 0, 0x7ff
    v_lshl_add_u32 v{vW+8}, v{vL}, 7, s{sT}
    v_min_u32 v{vW+8}, s{sT2}, v{vW+8}
    global_load_dword v{vRA+3}, v{vW+8}, s[62:63]
    s_mov_b64 exec, -1
    """)
    A.label("ka_nowu")
    A(f"""
    ds_read_u16 v{vP}, v{vW+12}
    ds_read_u16 v{vP+1}, v{vW+12} offset:512
    ds_read_u16 v{vP+2}, v{vW+12} offset:1024
    ds_read_u16 v{vP+3}, v{vW+12} offset:1536
    s_waitcnt lgkmcnt(0)
    """)
    stamp(A,2)
    zr=vP; zi=vP+1
    pk=[vW+20,vW+21,vW+22,vW+23]; pkc=[0]
    def put(reg,row):
        p=pk[pkc[0]%4]; pkc[0]+=1
        A(f"v_cvt_pk_bf16_f32 v{p}, v{reg}, v{reg+1}")
        A(f"ds_write_b32 v{vAD}, v{p} offset:{row*EF_PITCH}")
    w1=vW; w2=vW+2; w4=vW+4; w8=vW+6; wB=vW+8; q=vW+10; e=vW+12; e2=vW+14; t=vW+16; t2=vW+18; t3=vW+24; e3=vW+26
    A(f"""
    v_lshlrev_b32 v{vP}, 16, v{vP}
    v_lshlrev_b32 v{vP+1}, 16, v{vP+1}
    """)
    exp_bf16(A,vP,vW+28)
    A(f"""
    v_mul_f32 v{zi}, v{zi}, v{vP+4}
    v_mul_f32 v{zr}, v{zr}, v{vP+4}
    v_mul_f32 v{zr}, {f32(-LOG2E)}, v{zr}
    s_cmp_ge_u32 s{sW}, 4
    s_cbranch_scc1 ka_frole
    v_mul_f32 v{zi}, {f32(-1/(2*math.pi))}, v{zi}
    """)
    def gload(sc):
        A(f"""
        global_load_dwordx4 v[{vXG}:{vXG+3}], v{vGA}, s[30:31]{sc}
        global_load_dwordx4 v[{vXG+4}:{vXG+7}], v{vGA}, s[30:31] offset:16{sc}
        global_load_dwordx4 v[{vSG}:{vSG+3}], v{vSA}, s[30:31] offset:{WS_STATS}{sc}
        global_load_dwordx4 v[{vSG+4}:{vSG+7}], v{vSA}, s[30:31] offset:{WS_STATS+16}{sc}
        """)
    cexp(A,w1,zr,zi,1,t); cexp(A,wB,zr,zi,256,t2)
    A(f"""
    v_lshlrev_b32 v{vP+2}, 16, v{vP+2}
    v_lshlrev_b32 v{vP+3}, 16, v{vP+3}
    v_mul_f32 v{e}, v{vP+2}, v{vP+4}
    v_mul_f32 v{e+1}, v{vP+3}, v{vP+4}
    v_add_f32 v{e}, v{e}, v{e}
    v_mul_f32 v{e+1}, -2.0, v{e+1}
    """)
    cmul(A,w2,w1,w1,t); cmul(A,q,e,wB,t2); put(e,0)
    cmul(A,w4,w2,w2,t3)
    seqB=[("put",q,8),("mul",e2,q,w2),("mul",q,q,wB),("put",e2,9),("mul",e2,e2,w2),("put",q,12),("mul",e3,q,w4),("put",e2,10),("mul",e2,e2,w2),
          ("mul",q,q,wB),("put",e3,13),("put",e2,11),("put",q,14),("mul",e3,q,w4),("mul",q,q,wB),("put",e3,15),("put",q,16),("mul",q,q,wB),("put",q,20),
          ("mul",q,q,wB),("put",q,24),("mul",q,q,wB),("put",q,28),("mul",q,q,wB),("put",q,17)]
    seqA=[]
    for a in range(1,8): seqA+=[("mul",e,e,w1),("put",e,a)]
    ia=0; tt=[t2,t3]; tc=0
    for i,s in enumerate(seqB):
        if s[0]=="put": put(s[1],s[2])
        else: cmul(A,s[1],s[2],s[3],tt[tc%2]); tc+=1
        if (i<10 and i%3==0) or i>=15:
            x=seqA[ia]; ia+=1
            if x[0]=="put": put(x[1],x[2])
            else: cmul(A,x[1],x[2],x[3],t)
    aA=vW; aB=vW+1; r16=vW+2; g4=vW+3; acc=vW+4; oA=vW+12; oB=vW+13; oC=vW+14; fr=vW+32
    A(f"""
    v_and_b32 v{r16}, 15, v{vL}
    v_lshrrev_b32 v{g4}, 4, v{vL}
    s_mul_i32 s{sT}, s{sCH}, {EF_CH}
    v_mul_u32_u24 v{aA}, {EF_PITCH}, v{r16}
    v_lshl_add_u32 v{aA}, v{g4}, 4, v{aA}
    v_add_u32 v{aA}, s{sT}, v{aA}
    s_mul_i32 s{sT2}, s{sHALF}, {16*EF_PITCH}
    v_add_u32 v{aB}, s{sT2}, v{aA}
    s_lshl_b32 s{sT}, s{sHALF}, 4
    v_add_u32 v{r16}, s{sT}, v{r16}
    v_lshlrev_b32 v{oA}, 4, v{r16}
    v_lshl_add_u32 v{oA}, v{g4}, 3, v{oA}
    v_lshlrev_b32 v{oB}, 3, v{r16}
    v_add_u32 v{oB}, 512, v{oB}
    v_cmp_eq_u32 vcc, 2, v{g4}
    v_cndmask_b32 v{oA}, v{oA}, v{oB}, vcc
    v_lshlrev_b32 v{oB}, 2, v{r16}
    v_add_u32 v{oB}, 768, v{oB}
    v_cmp_eq_u32 vcc, 3, v{g4}
    v_cndmask_b32 v{oA}, v{oA}, v{oB}, vcc
    v_mov_b32 v{oB}, 4
    v_mov_b32 v{oC}, 128
    v_cndmask_b32 v{oB}, v{oB}, v{oC}, vcc
    s_mul_i32 s{sT}, s{sCH}, {KD_CH}
    s_add_u32 s{sT}, s{sT}, {TB}
    v_add_u32 v{oA}, s{sT}, v{oA}
    v_add_u32 v{oB}, v{oA}, v{oB}
    v_lshlrev_b32 v{oC}, 1, v{r16}
    v_lshl_add_u32 v{oC}, v{g4}, 6, v{oC}
    v_add_u32 v{oC}, s{sT}, v{oC}
    s_waitcnt lgkmcnt(0)
    s_barrier
    """)
    stamp(A,3)
    def rd(s):
        b=fr+12*s
        A(f"ds_read_b128 v[{b}:{b+3}], v{aB} offset:{32*EF_PITCH+64*s}")
        A(f"ds_read_b128 v[{b+4}:{b+7}], v{aA} offset:{64*s}")
        A(f"ds_read_b128 v[{b+8}:{b+11}], v{aA} offset:{16*EF_PITCH+64*s}")
    for s in range(4): rd(s)
    for s in range(8):
        b=fr+12*s
        n = 9 if s<=4 else 3*(7-s)
        A(f"s_waitcnt lgkmcnt({n})")
        c0="0" if s==0 else f"v[{acc}:{acc+3}]"; c1="0" if s==0 else f"v[{acc+4}:{acc+7}]"
        A(f"v_mfma_f32_16x16x32_bf16 v[{acc}:{acc+3}], v[{b+4}:{b+7}], v[{b}:{b+3}], {c0}")
        A(f"v_mfma_f32_16x16x32_bf16 v[{acc+4}:{acc+7}], v[{b+8}:{b+11}], v[{b}:{b+3}], {c1}")
        if s+4<8: rd(s+4)
    A(f"""
    v_cvt_pk_bf16_f32 v{acc}, v{acc}, v{acc+1}
    v_cvt_pk_bf16_f32 v{acc+1}, v{acc+2}, v{acc+3}
    v_cvt_pk_bf16_f32 v{acc+4}, v{acc+4}, v{acc+5}
    ds_write_b32 v{oA}, v{acc}
    ds_write_b32 v{oB}, v{acc+1}
    ds_write_b16 v{oC}, v{acc+4} offset:1024
    ds_write_b16_d16_hi v{oC}, v{acc+4} offset:1280
    """)
    gload("")
    A(f"s_mov_b32 s{sU}, 1000")
    A("s_branch ka_tab")
    A.label("ka_frole")
    A(f"v_mul_f32 v{zi}, {f32(1/(2*math.pi))}, v{zi}")
    cexp(A,w8,zr,zi,8,t)
    A(f"v_mov_b32 v{pk[3]}, 0x3f80")
    A(f"ds_write_b32 v{vAD}, v{pk[3]} offset:{32*EF_PITCH}")
    cmul(A,w2,w8,w8,t); put(w8,33)
    so=w8; se=w2; pend=[(w2,2)]
    for c in range(3,32):
        if c&1: cmul(A,e,so,w2,t); so=e; new=(e,c)
        else:   cmul(A,e2,se,w2,t2); se=e2; new=(e2,c)
        r,cc=pend.pop(); put(r,32+cc); pend.append(new)
    r,cc=pend.pop(); put(r,32+cc)
    A("s_waitcnt lgkmcnt(0)")
    A("s_barrier")
    stamp(A,3)
    gload("")
    vCA=vRD
    A.label("ka_tab")
    vK=vW+32; vK2=vW+36; wa=vW+4; wa2=vW+5; pr=vW+8
    A(f"""
    s_cmp_eq_u32 s{sROLE}, 0
    s_cselect_b32 s{sSEL}, 4, 1
    s_cselect_b32 s{sSEL+1}, 3, 6
    s_cselect_b32 s{sSEL+2}, 0, 768
    s_cmp_eq_u32 s{sROLE}, 1
    s_cselect_b32 s{sSEL}, 2, s{sSEL}
    s_cselect_b32 s{sSEL+1}, 7, s{sSEL+1}
    s_cselect_b32 s{sSEL+3}, 0, 128
    s_mul_i32 s{sSEL+3}, s{sSEL+3}, s{sROLE}
    s_add_u32 s{sSEL+2}, s{sSEL+2}, s{sSEL+3}
    v_lshlrev_b32 v{vW+2}, s{sSEL}, v{q5}
    v_and_b32 v{vW+2}, -4, v{vW+2}
    v_lshlrev_b32 v{vW+3}, s{sSEL+1}, v{hh}
    v_add_u32 v{vW+2}, v{vW+2}, v{vW+3}
    s_mul_i32 s{sT}, s{sCH}, {KD_CH}
    s_add_u32 s{sT}, s{sT}, {TB}
    s_add_u32 s{sSEL+2}, s{sSEL+2}, s{sT}
    v_add_u32 v{vW+2}, s{sSEL+2}, v{vW+2}
    v_lshlrev_b32 v{vW+3}, 3, v{q5}
    v_lshl_add_u32 v{vW+3}, v{hh}, 2, v{vW+3}
    v_add_u32 v{vW+3}, s{sT}, v{vW+3}
    s_mul_i32 s{sT}, s{sCH}, {KIMG_CH}
    s_add_u32 s{sT}, s{sT}, {KIMG}
    v_lshlrev_b32 v{vW+7}, 4, v{q5}
    v_sub_u32 v{vW+7}, s{sT}, v{vW+7}
    v_lshlrev_b32 v{vW+6}, 3, v{hh}
    v_sub_u32 v{vW}, v{vW+7}, v{vW+6}
    v_lshlrev_b32 v{vW+6}, 9, v{hh}
    v_sub_u32 v{vW+1}, v{vW+7}, v{vW+6}
    s_mov_b32 s{sSEL}, 0x05040100
    s_mov_b32 s{sSEL+1}, 0x05040302
    s_mov_b32 s{sSEL+2}, 0x07060100
    s_mov_b32 s{sSEL+3}, 0x07060302
    s_waitcnt lgkmcnt(0)
    s_barrier
    ds_read2_b32 v[{vK}:{vK+1}], v{vW+2} offset0:0 offset1:1
    ds_read2_b32 v[{vK+2}:{vK+3}], v{vW+2} offset0:2 offset1:3
    ds_read2_b32 v[{vK2}:{vK2+1}], v{vW+3} offset0:128 offset1:129
    """)
    wa=vW; wa2=vW+1
    stamp(A,4)
    A(f"""
    s_cmp_ge_u32 s{sROLE}, 2
    s_cbranch_scc1 ka_r23
    s_cmp_eq_u32 s{sROLE}, 1
    s_cbranch_scc1 ka_r1
    """)
    npair=[0]
    def pairop(d,lo,hi): A(f"v_perm_b32 v{d}, v{hi[0]}, v{lo[0]}, s{sSEL+lo[1]+2*hi[1]}")
    def wwin(addr,k,rho,bbase):
        lam=rho+3; iota=lam&3; b=bbase+(lam>>2)
        p=pr+2*(npair[0]%8); npair[0]+=1
        pairop(p,k[rho+3],k[rho+2]); pairop(p+1,k[rho+1],k[rho])
        A(f"ds_write_b64 v{addr}, v[{p}:{p+1}] offset:{iota*IMG+8*(511-b)}")
    A(f"""
    v_cmp_eq_u32 vcc, 63, v{vL}
    v_mov_b32 v{vW+7}, 0
    s_waitcnt lgkmcnt(0)
    v_lshrrev_b32 v{vW+2}, 16, v{vK+2}
    v_perm_b32 v{vW+3}, v{vK+2}, v{vK+2}, s{sSEL}
    v_perm_b32 v{vW+6}, v{vK2+1}, v{vK2+1}, s{sSEL}
    v_cndmask_b32 v{vK+3}, v{vK+3}, v{vW+2}, vcc
    v_cndmask_b32 v{vK+2}, v{vK+2}, v{vW+3}, vcc
    v_cndmask_b32 v{vK2+1}, v{vK2+1}, v{vW+6}, vcc
    """)
    k=[(vK+i//2,i&1) for i in range(8)]
    for rho in range(4): wwin(wa,k,rho,0)
    v=[(vK2+i//2,i&1) for i in range(4)]
    k1=[v[0],v[0],v[1],v[2],v[2],v[2],v[3]]
    for rho in range(4): wwin(wa,k1,rho,64)
    A("s_mov_b64 exec, 1")
    z=(vW+7,0); kz=[z,z,z,k[0],k[1],k[2]]
    for rho in range(3):
        p=pr+2*(npair[0]%8); npair[0]+=1
        pairop(p,kz[rho+3],kz[rho+2]); pairop(p+1,kz[rho+1],kz[rho])
        A(f"ds_write_b64 v{wa}, v[{p}:{p+1}] offset:{rho*IMG+8*511}")
    A("s_mov_b64 exec, -1")
    A("s_branch ka_norm")
    A.label("ka_r1")
    A("s_waitcnt lgkmcnt(0)")
    v=[(vK+i//2,i&1) for i in range(3)]
    k=[v[i] for i in (0,0,0,1,1,1,2,2,2,2,2)]
    for rho in range(8): wwin(wa2,k,rho,128)
    A("s_branch ka_norm")
    A.label("ka_r23")
    A(f"""
    s_lshl_b32 s{sT}, s{sHALF}, 10
    v_subrev_u32 v{wa2}, s{sT}, v{wa2}
    v_and_b32 v{vW+6}, 1, v{vL}
    v_lshlrev_b32 v{vW+6}, 4, v{vW+6}
    s_waitcnt lgkmcnt(0)
    v_alignbit_b32 v{vK}, v{vK+1}, v{vK}, v{vW+6}
    v_lshrrev_b32 v{vK+1}, v{vW+6}, v{vK}
    """)
    k=[(vK,0)]*4+[(vK+1,0)]+[(vK,1)]*6
    for rho in range(8): wwin(wa2,k,rho,256)
    A.label("ka_norm")
    m=vW; s_=vW+1; u0=vW+24; u1=vW+28; pu=vW+32; a0=vW+2; a1=vW+3
    aK=vW+36; aU=vW+37; aY=vW+38
    A(f"""
    v_lshrrev_b32 v{vW+6}, 3, v0
    v_mul_u32_u24 v{vW+6}, 80, v{vW+6}
    v_and_b32 v{s_}, 7, v0
    v_lshl_add_u32 v{vW+6}, v{s_}, 3, v{vW+6}
    v_add_u32 v{vW+6}, {UB+32*80}, v{vW+6}
    v_and_b32 v{aK}, 3, v{vL}
    v_mul_u32_u24 v{aK}, {IMG}, v{aK}
    v_lshl_add_u32 v{aK}, v{hh}, 4, v{aK}
    v_lshrrev_b32 v{aU}, 2, v{q5}
    v_lshlrev_b32 v{aU}, 3, v{aU}
    v_sub_u32 v{aK}, v{aK}, v{aU}
    s_mul_i32 s{sT}, s{sCH}, {KIMG_CH}
    s_add_u32 s{sT}, s{sT}, {KIMG+4088-2*(480+1024)}
    s_lshl_b32 s{sT2}, s{sHALF}, 10
    s_sub_u32 s{sT}, s{sT}, s{sT2}
    v_add_u32 v{aK}, s{sT}, v{aK}
    v_mul_u32_u24 v{aU}, 80, v{q5}
    v_lshl_add_u32 v{aU}, v{hh}, 4, v{aU}
    s_mul_i32 s{sT}, s{sCH}, {U_CH}
    s_add_u32 s{sT}, s{sT}, {UB+80*(32-15)}
    s_mul_i32 s{sT2}, s{sHALF}, {80*16}
    s_sub_u32 s{sT}, s{sT}, s{sT2}
    v_add_u32 v{aU}, s{sT}, v{aU}
    s_mov_b32 s{sSP}, 0
    """)
    stamp(A,5)
    A.label("ka_chk")
    A("s_waitcnt vmcnt(0)")
    A.label("ka_chk2")
    A(f"""
    v_xor_b32 v{a0}, v{vXG+1}, v{vXG+3}
    v_xor_b32 v{a1}, v{vXG+5}, v{vXG+7}
    v_xor_b32 v{m}, s{sTAG}, v{vXG+1}
    v_or3_b32 v{a0}, v{a0}, v{a1}, v{m}
    v_xor_b32 v{a1}, s{sTAG}, v{vXG+5}
    v_xor_b32 v{m}, s{sTAG}, v{vSG+1}
    v_or3_b32 v{a0}, v{a0}, v{a1}, v{m}
    v_xor_b32 v{a1}, s{sTAG}, v{vSG+3}
    v_xor_b32 v{m}, s{sTAG}, v{vSG+5}
    v_or3_b32 v{a0}, v{a0}, v{a1}, v{m}
    v_xor_b32 v{a1}, s{sTAG}, v{vSG+7}
    v_or_b32 v{a0}, v{a0}, v{a1}
    v_cmp_ne_u32 vcc, 0, v{a0}
    s_cbranch_vccnz ka_retry
    """)
    A.label("ka_ok")
    stamp(A,6)
    for j in range(4):
        st=vSG+2*j; xc=vXG+2*j
        A(f"""
        v_and_b32 v{s_}, 0xffff0000, v{st}
        v_rcp_f32 v{s_}, v{s_}
        v_lshlrev_b32 v{vX+j}, 16, v{xc}
        v_and_b32 v{vX+4+j}, 0xffff0000, v{xc}
        v_lshlrev_b32 v{m}, 16, v{st}
        v_sub_f32 v{a0}, v{vX+j}, v{m}
        v_sub_f32 v{a1}, v{vX+4+j}, v{m}
        v_cvt_pk_bf16_f32 v{a0}, v{a0}, v{a1}
        v_and_b32 v{a1}, 0xffff0000, v{a0}
        v_lshlrev_b32 v{a0}, 16, v{a0}
        v_mul_f32 v{u0+j}, v{a0}, v{s_}
        v_mul_f32 v{u1+j}, v{a1}, v{s_}
        """)
    A(f"""
    v_cvt_pk_bf16_f32 v{pu}, v{u0}, v{u0+1}
    v_cvt_pk_bf16_f32 v{pu+1}, v{u0+2}, v{u0+3}
    v_cvt_pk_bf16_f32 v{pu+2}, v{u1}, v{u1+1}
    v_cvt_pk_bf16_f32 v{pu+3}, v{u1+2}, v{u1+3}
    ds_write_b64 v{vW+6}, v[{pu}:{pu+1}]
    ds_write_b64 v{vW+6}, v[{pu+2}:{pu+3}] offset:{U_CH}
    s_cmp_ge_u32 s{sW}, 4
    s_waitcnt lgkmcnt(0)
    s_barrier
    s_cbranch_scc1 ka_aux
    """)
    stamp(A,7)
    def calc_ud():
        out=[f"s_lshl_b32 s{sT}, s{sDS}, 16", f"s_and_b32 s{sT2}, s{sDS}, 0xffff0000"]
        for c in range(2):
            for pp in range(2):
                r=pu+2*c+pp; d=vUD+4*c+2*pp; sd=sT if c==0 else sT2
                out+=[f"v_lshlrev_b32 v{d}, 16, v{r}",f"v_and_b32 v{d+1}, 0xffff0000, v{r}",f"v_mul_f32 v{d}, s{sd}, v{d}",f"v_mul_f32 v{d+1}, s{sd}, v{d+1}",
                      f"v_cvt_pk_bf16_f32 v{d}, v{d}, v{d+1}",f"v_and_b32 v{d+1}, 0xffff0000, v{d}",f"v_lshlrev_b32 v{d}, 16, v{d}"]
        return out
    def epi_addr():
        return [f"v_lshrrev_b32 v{vW}, 3, v0",f"v_mul_u32_u24 v{vW}, 144, v{vW}",f"v_and_b32 v{vW+1}, 7, v0",f"v_lshl_add_u32 v{vW}, v{vW+1}, 4, v{vW}",f"v_add_u32 v{vW}, {YB}, v{vW}",
                f"s_lshl_b32 s{sT}, s{sG}, 9",f"s_add_u32 s{sT}, s{sT}, {WS_HT}",f"v_lshl_add_u32 v{vW+1}, v{q5}, 3, s{sT}",f"v_lshrrev_b32 v{vW+2}, 5, v0",
                f"v_lshl_add_u32 v{vW+1}, v{vW+2}, 17, v{vW+1}",
                f"s_lshl_b32 s{sT}, s{sW}, 10",f"s_lshl_b32 s{sT2}, s{sG}, 2",f"s_add_u32 s{sT}, s{sT}, s{sT2}",f"s_add_u32 s{sT}, s{sT}, {WS_FLH}",
                f"v_mov_b32 v{vW+2}, s{sT}",f"v_mov_b32 v{vW+3}, s{sTAG}"]
    acc0=vW+40; acc1=vW+56; NB=3; fr=vW+72
    def loads(i):
        b=fr+16*(i%NB); ko=2*16*(31-i); mu=i>>1; nu=i&1; uo=80*(15-mu)+32*(1-nu)
        return [f"ds_read_b64 v[{b}:{b+1}], v{aK} offset:{ko+2048}",
                f"ds_read_b64 v[{b+2}:{b+3}], v{aK} offset:{ko+2048+8}",
                f"ds_read_b128 v[{b+8}:{b+11}], v{aU} offset:{uo}",
                f"ds_read_b64 v[{b+4}:{b+5}], v{aK} offset:{ko}",
                f"ds_read_b128 v[{b+12}:{b+15}], v{aU} offset:{uo+32*80}",
                f"ds_read_b64 v[{b+6}:{b+7}], v{aK} offset:{ko+8}"]
    for l in loads(0)+loads(1): A(l)
    extra=calc_ud()+[f"v_mul_u32_u24 v{aY}, 144, v{q5}",f"v_lshl_add_u32 v{aY}, v{hh}, 4, v{aY}",f"s_lshl_b32 s{sT}, s{sCH}, 1",f"s_add_u32 s{sT}, s{sT}, s{sHALF}",
          f"s_mul_i32 s{sT}, s{sT}, {YP}",f"s_add_u32 s{sT}, s{sT}, {YB}",f"v_add_u32 v{aY}, s{sT}, v{aY}"]+epi_addr()
    for i in range(32):
        b=fr+16*(i%NB)
        L=loads(i+2) if i+2<32 else []
        A(f"s_waitcnt lgkmcnt({6 if i+1<32 else 0})")
        c0="0" if i==0 else f"v[{acc0}:{acc0+15}]"
        c1="0" if i==0 else f"v[{acc1}:{acc1+15}]"
        ms=[f"v_mfma_f32_32x32x16_bf16 v[{acc0}:{acc0+15}], v[{b}:{b+3}], v[{b+8}:{b+11}], {c0}",
            f"v_mfma_f32_32x32x16_bf16 v[{acc1}:{acc1+15}], v[{b}:{b+3}], v[{b+12}:{b+15}], {c1}",
            f"v_mfma_f32_32x32x16_bf16 v[{acc1}:{acc1+15}], v[{b+4}:{b+7}], v[{b+8}:{b+11}], v[{acc1}:{acc1+15}]"]
        for j in range(3):
            A(ms[j])
            for l in L[2*j:2*j+2]: A(l)
            if extra and i>=2: A(extra.pop(0))
    assert not extra
    stamp(A,8)
    for c,ac in ((0,acc0),(1,acc1)):
        for g in range(4):
            A(f"ds_write_b128 v{aY}, v[{ac+4*g}:{ac+4*g+3}] offset:{144*32*c+32*g}")
    A.label("ka_fin")
    y=vW+8
    A("s_waitcnt lgkmcnt(0)")
    A("s_barrier")
    stamp(A,9)
    for k_ in range(4): A(f"ds_read_b128 v[{y+4*k_}:{y+4*k_+3}], v{vW} offset:{YP*k_}")
    o=vW+4
    for c in range(2):
        A(f"s_waitcnt lgkmcnt({2-2*c})")
        for pp in range(2):
            a=y+8*c+2*pp
            A(f"""
            v_pk_add_f32 v[{a}:{a+1}], v[{a}:{a+1}], v[{a+4}:{a+5}]
            v_cvt_pk_bf16_f32 v{a}, v{a}, v{a+1}
            v_and_b32 v{a+1}, 0xffff0000, v{a}
            v_lshlrev_b32 v{a}, 16, v{a}
            v_pk_add_f32 v[{a}:{a+1}], v[{a}:{a+1}], v[{vUD+4*c+2*pp}:{vUD+4*c+2*pp+1}]
            v_cvt_pk_bf16_f32 v{a}, v{a}, v{a+1}
            v_and_b32 v{a+1}, 0xffff0000, v{a}
            v_lshlrev_b32 v{a}, 16, v{a}
            v_pk_add_f32 v[{a}:{a+1}], v[{a}:{a+1}], v[{vX+4*c+2*pp}:{vX+4*c+2*pp+1}]
            v_cvt_pk_bf16_f32 v{o+2*c+pp}, v{a}, v{a+1}
            """)
        A(f"global_store_dwordx2 v{vW+1}, v[{o+2*c}:{o+2*c+1}], s[30:31] offset:{256*c}{WT}")
    A(f"""
    s_waitcnt vmcnt(0)
    s_mov_b64 exec, 1
    global_store_dword v{vW+2}, v{vW+3}, s[30:31]{WT}
    s_barrier
    """)
    dump(A,1,10,sW)
    A("s_mov_b64 exec, -1")
    AA=A; A=tail
    A.label("ka_retry")
    A(f"""
    s_add_u32 s{sSP}, s{sSP}, 1
    s_cmp_ge_u32 s{sSP}, {SPIN}
    s_cbranch_scc1 ka_ok
    """)
    A("s_mov_b64 exec, vcc")
    gload(" sc0 sc1")
    A("s_mov_b64 exec, -1")
    A("s_branch ka_chk")
    A.label("ka_aux")
    stamp(A,7)
    ad=vW+40; S=vW+44; t=vW+52
    A(f"""
    s_sub_u32 s{sU}, s{sW}, 6
    s_lshl_b32 s{sU}, s{sU}, 8
    s_add_u32 s{sU}, s{sU}, s2
    s_cmp_ge_u32 s{sU}, 344
    s_cbranch_scc1 ka_nocs
    s_lshr_b32 s{sT}, s{sU}, 2
    s_cmp_ge_u32 s{sT}, 43
    s_cselect_b32 s62, s22, s20
    s_cselect_b32 s63, s23, s21
    s_cselect_b32 s{sT2}, 43, 0
    s_sub_u32 s{sT}, s{sT}, s{sT2}
    s_lshl_b32 s{sT}, s{sT}, 6
    s_and_b32 s{sT2}, s{sU}, 3
    s_mul_i32 s{sT2}, s{sT2}, {128*2752}
    s_add_u32 s{sT}, s{sT}, s{sT2}
    v_lshrrev_b32 v{vCA}, 2, v{vL}
    v_mul_u32_u24 v{vCA}, 2752, v{vCA}
    v_and_b32 v{vCA+1}, 3, v{vL}
    v_lshl_add_u32 v{vCA}, v{vCA+1}, 4, v{vCA}
    v_add_u32 v{vCA}, s{sT}, v{vCA}
    """)
    for i in range(8):
        A(f"global_load_dwordx4 v[{vCS+4*i}:{vCS+4*i+3}], v{vCA}, s[62:63]")
        if i<7: A(f"v_add_u32 v{vCA}, {16*2752}, v{vCA}")
    A.label("ka_nocs")
    c_=vW+56
    for v in range(3):
        A(f"""
        v_add_u32 v{c_}, {64*v}, v{vL}
        v_mul_u32_u24 v{c_+1}, 0xaaab, v{c_}
        v_lshrrev_b32 v{c_+1}, 19, v{c_+1}
        v_mul_u32_u24 v{c_+1}, {2752-192}, v{c_+1}
        v_lshl_add_u32 v{vWo+v}, v{vL}, 4, v{c_+1}
        """)
    A(f"""
    s_and_b32 s{sT}, s2, 1
    s_lshl_b32 s{sT}, s{sT}, 3
    s_lshr_b32 s{sT2}, s2, 5
    s_add_u32 s{sCBg}, s{sT}, s{sT2}
    s_mul_i32 s{sWO}, s{sCH}, {16*2752}
    s_mul_i32 s{sT2}, s{sCBg}, 192
    s_add_u32 s{sWO}, s{sWO}, s{sT2}
    s_mul_i32 s{sM0W}, s{sCH}, 3072
    s_mul_i32 s{sT}, s{sHALF}, {W_U}
    s_add_u32 s{sM0W}, s{sM0W}, s{sT}
    s_cmp_ge_u32 s{sW}, 6
    s_cselect_b32 s{sWt}, s22, s20
    s_cselect_b32 s{sWt+1}, s23, s21
    s_mov_b32 s{sWt+2}, {512*2752}
    s_mov_b32 s{sWt+3}, 0x20000
    """)
    def prefill():
        A(f"""
        s_mul_i32 s{sSP}, s{sCBg}, 3
        s_min_u32 s{sSP}, s{sSP}, 40
        s_and_b32 s{sT}, s2, 6
        s_lshl_b32 s{sT}, s{sT}, 1
        s_bfe_u32 s{sT2}, s2, 0x20003
        s_add_u32 s{sT}, s{sT}, s{sT2}
        s_lshl_b32 s{sT}, s{sT}, 2
        s_add_u32 s{sT}, s{sT}, s{sW}
        s_sub_u32 s{sT}, s{sT}, 4
        s_mul_i32 s{sT}, s{sT}, 86
        s_add_u32 s{sT}, s{sT}, s{sSP}
        s_lshl_b32 s{sT}, s{sT}, 10
        s_add_u32 s{sT}, s{sT}, {WS_HM}
        v_lshl_add_u32 v{c_}, v{vL}, 4, s{sT}
        v_add_u32 v{c_+1}, {43*1024}, v{c_}
        v_mov_b32 v{c_+4}, -1
        v_mov_b32 v{c_+5}, -1
        v_mov_b32 v{c_+6}, -1
        v_mov_b32 v{c_+7}, -1
        """)
        for o in (0,1024,2048):
            for r in (0,1): A(f"global_store_dwordx4 v{c_+r}, v[{c_+4}:{c_+7}], s[30:31] offset:{o}{WT}")
    A(f"""
    s_lshl_b32 s{sT}, s{sROW}, 10
    s_add_u32 s{sT}, s{sT}, {WS_WD2}
    v_lshl_add_u32 v{c_}, v{vL}, 4, s{sT}
    global_store_dwordx4 v{c_}, v[{RD}:{RD+3}], s[30:31]{WT}
    s_cmp_ge_u32 s{sROW}, {1376-1024}
    s_cbranch_scc1 ka_nod3
    v_add_u32 v{c_}, {1024*1024}, v{c_}
    global_store_dwordx4 v{c_}, v[{RD+4}:{RD+7}], s[30:31]{WT}
    """)
    A.label("ka_nod3")
    prefill()
    for st in range(NPL//2): issue_w(A,st)
    A(f"""
    s_cmp_lg_u32 s{sW}, 4
    s_cbranch_scc1 ka_a3
    s_cmp_lg_u32 s2, 0
    s_cbranch_scc1 ka_a3
    s_add_u32 s{sT}, s{sEP}, 1
    v_mov_b32 v{t}, {WS_EPOCH}
    v_mov_b32 v{t+1}, s{sT}
    s_mov_b64 exec, 1
    global_store_dword v{t}, v{t+1}, s[30:31]
    """)
    A.label("ka_a3")
    A("s_mov_b64 exec, -1")
    for l in calc_ud()+epi_addr(): A(l)
    if "dpf" in X:
        A(f"""
        s_cmp_ge_u32 s{sW}, 6
        s_cbranch_scc1 ka_nodpf
        s_lshr_b32 s{sT}, s2, 3
        s_lshl_b32 s{sT}, s{sT}, 1
        s_add_u32 s{sT}, s{sT}, s{sCH}
        s_mul_i32 s{sT}, s{sT}, {172*128}
        v_lshl_add_u32 v{c_}, v{vL}, 7, s{sT}
        global_load_dword v{vRA+3}, v{c_}, s[24:25]
        v_add_u32 v{c_}, 8192, v{c_}
        global_load_dword v{vRA+3}, v{c_}, s[24:25]
        v_add_u32 v{c_}, 8192, v{c_}
        s_mov_b32 exec_hi, 0xfff
        global_load_dword v{vRA+3}, v{c_}, s[24:25]
        s_mov_b32 exec_hi, -1
        """)
        A.label("ka_nodpf")
    A(f"""
    s_cmp_ge_u32 s{sU}, 344
    s_cbranch_scc1 ka_pfw
    s_waitcnt vmcnt({3*(NPL//2)+7})
    """)
    for i in range(8):
        for j in range(4):
            r=vCS+4*i+j
            if i==0:
                A(f"v_lshlrev_b32 v{S+2*j}, 16, v{r}")
                A(f"v_and_b32 v{S+2*j+1}, 0xffff0000, v{r}")
            else:
                A(f"v_lshlrev_b32 v{t}, 16, v{r}")
                A(f"v_and_b32 v{t+1}, 0xffff0000, v{r}")
                A(f"v_add_f32 v{S+2*j}, v{S+2*j}, v{t}")
                A(f"v_add_f32 v{S+2*j+1}, v{S+2*j+1}, v{t+1}")
    for j in range(4): A(f"v_permlane32_swap_b32 v{S+j}, v{S+j+4}")
    for j in range(4): A(f"v_add_f32 v{S+j}, v{S+j}, v{S+j+4}")
    for j in range(2): A(f"v_permlane16_swap_b32 v{S+j}, v{S+j+2}")
    for j in range(2): A(f"v_add_f32 v{S+j}, v{S+j}, v{S+j+2}")
    for ctl in ("row_ror:8","row_ror:4"):
        for j in range(2): A(f"v_add_f32_dpp v{S+j}, v{S+j}, v{S+j} {ctl} row_mask:0xf bank_mask:0xf")
    d=S+2
    A(f"""
    v_and_b32 v{t}, 4, v{vL}
    v_cmp_ne_u32 vcc, 0, v{t}
    v_cndmask_b32 v{S}, v{S}, v{S+1}, vcc
    v_cvt_pk_bf16_f32 v{S+1}, v{S}, v{S}
    v_and_b32 v{S+1}, 0xffff0000, v{S+1}
    v_sub_f32 v{S+1}, v{S}, v{S+1}
    v_cvt_pk_bf16_f32 v{d}, v{S}, v{S+1}
    v_mov_b32 v{d+1}, s{sTAG}
    v_lshlrev_b32 v{ad}, 8, v{vCA+1}
    v_lshl_add_u32 v{ad}, v{hh}, 7, v{ad}
    v_and_b32 v{t+1}, 16, v{vL}
    v_lshl_add_u32 v{ad}, v{t+1}, 2, v{ad}
    v_lshl_add_u32 v{ad}, v{t}, 3, v{ad}
    s_lshr_b32 s{sT}, s{sU}, 2
    s_lshl_b32 s{sT}, s{sT}, 10
    s_and_b32 s{sT2}, s{sU}, 3
    s_lshl_b32 s{sT2}, s{sT2}, 3
    s_add_u32 s{sT}, s{sT}, s{sT2}
    s_add_u32 s{sT}, s{sT}, {WS_CS}
    v_add_u32 v{ad}, s{sT}, v{ad}
    s_mov_b32 exec_lo, 0x00ff00ff
    s_mov_b32 exec_hi, 0x00ff00ff
    global_store_dwordx2 v{ad}, v[{d}:{d+1}], s[30:31]{WT}
    s_mov_b64 exec, -1
    """)
    A.label("ka_pfw")
    for st in range(NPL//2,NPL): issue_w(A,st)
    A(f"s_waitcnt vmcnt({3*NPL})")
    stamp(A,8)
    A("s_branch ka_fin")
```

```python
import sys, math, os, struct
from asmlib import *
NAME="sequential_preLN__ssm_conv_s4d__glu_gated_geglu__prompt"
WS_STATS=0x0000
WS_ST2  =0x4000
WS_ST3  =0x30000
WS_FLH  =0x34000
WS_FLAG =0x6000
WS_EPOCH=0x8000
WS_CS   =0x10000
WS_FL2  =0x80000
WS_KD   =0x40000
WS_HT   =0x100000
WS_HM   =0x400000
WS_XT   =0xA00000
WS_DBG  =0xC00000
WS_W1   =0x1000000
WS_WD   =0x1400000
WS_XG   =0x1600000
KD_CH=1536
LOG2E=1.4426950408889634
def split_hi_lo(x,bits=12):
    u=struct.unpack("<I",struct.pack("<f",x))[0] & (0xffffffff<<(23-bits+1)) & 0xffffffff
    hi=struct.unpack("<f",struct.pack("<I",u))[0]
    return hi, x-hi
L2E_HI,L2E_LO=split_hi_lo(LOG2E)
DBG=int(os.environ.get("DBG","0"))
X=os.environ.get("X","")
TIMER="s_memtime" if DBG==2 else "s_memrealtime"
SK_INVN=90
def kd(name,vgpr,sgpr,acc=None):
    ao=acc if acc is not None else (vgpr+3)//4*4
    return f""".p2align 6
.amdhsa_kernel {name}
  .amdhsa_next_free_vgpr {vgpr}
  .amdhsa_next_free_sgpr {sgpr}
  .amdhsa_accum_offset {ao}
  .amdhsa_group_segment_fixed_size 0
  .amdhsa_kernarg_size 112
  .amdhsa_user_sgpr_count 2
  .amdhsa_user_sgpr_kernarg_segment_ptr 1
  .amdhsa_system_sgpr_workgroup_id_x 1
  .amdhsa_float_denorm_mode_32 3
.end_amdhsa_kernel"""
def stamp(A,i):
    if DBG: A(f"{TIMER} s[{64+2*i}:{65+2*i}]")
def dump(A,kidx,n,sW,woff=0,ws=30):
    if not DBG: return
    A("s_mov_b64 exec, 1")
    A(f"{TIMER} s[{64+2*n}:{65+2*n}]")
    A(f"s_lshl_b32 s92, s2, 4")
    A(f"s_add_u32 s92, s92, s{sW}")
    A(f"s_add_u32 s92, s92, {woff}")
    A(f"s_lshl_b32 s92, s92, 6")
    A(f"s_add_u32 s92, s92, {WS_DBG+kidx*0x40000}")
    A("v_mov_b32 v2, s92")
    A("s_waitcnt lgkmcnt(0)")
    for i in range(n+1):
        A(f"v_mov_b32 v3, s{64+2*i}")
        A(f"global_store_dword v2, v3, s[{ws}:{ws+1}] offset:{4*i}")
def head(A,name):
    A.l += [f".globl {name}", ".p2align 8", f".type {name},@function"]
    A.label(name)
def bf16round(A,dst,src):
    A(f"v_cvt_pk_bf16_f32 v{dst}, v{src}, v{src}")
    A(f"v_and_b32 v{dst}, 0xffff0000, v{dst}")
def wave_sum_dpp(A,regs_):
    for ctl in ("row_shr:1","row_shr:2","row_shr:4","row_shr:8"):
        for r in regs_:
            A(f"v_add_f32_dpp v{r}, v{r}, v{r} {ctl} row_mask:0xf bank_mask:0xf bound_ctrl:0")
    for r in regs_: A(f"v_add_f32_dpp v{r}, v{r}, v{r} row_bcast:15 row_mask:0xa bank_mask:0xf")
    for r in regs_: A(f"v_add_f32_dpp v{r}, v{r}, v{r} row_bcast:31 row_mask:0xc bank_mask:0xf")
def ln_finish(A,S,Q,T,n):
    A(f"v_mul_f32 v{S}, {f32(1.0/n)}, v{S}")
    A(f"v_mul_f32 v{T}, v{S}, v{S}")
    A(f"v_fma_f32 v{Q}, v{Q}, s{SK_INVN}, -v{T}")
    A(f"v_max_f32 v{Q}, 0, v{Q}")
    bf16round(A,Q,Q)
    A(f"v_add_f32 v{Q}, {f32(1e-5)}, v{Q}")
    bf16round(A,Q,Q)
    A(f"v_sqrt_f32 v{Q}, v{Q}")
def srd(A,d,base,off,size):
    if off:
        A(f"s_add_u32 s{d}, s{base}, {off}")
        A(f"s_addc_u32 s{d+1}, s{base+1}, 0")
    else:
        A(f"s_mov_b32 s{d}, s{base}")
        A(f"s_mov_b32 s{d+1}, s{base+1}")
    A(f"s_mov_b32 s{d+2}, {size}")
    A(f"s_mov_b32 s{d+3}, 0x20000")
def build(kernels, launches, path):
    src=open(f"cdna_kernels/{NAME}.s.ref").read().split("\n")
    hdr=[l for l in src if l.startswith(";") and "@launch" not in l and "Override launch" not in l and "grid=ceil" not in l]
    out=hdr+[f"; @launch kernel={k} grid=({g},1,1) block=({b},1,1) lds={l}" for k,g,b,l in launches]
    out+=['.amdgcn_target "amdgcn-amd-amdhsa--gfx950"',".text"]
    kds=[]
    for g in kernels:
        l,k=g(); out+=pad_hazards(l); kds.append(k)
    out+=["code_end:", "    s_endpgm"]
    out+=['.section .rodata,"a"']+kds
    open(path,"w").write("\n".join(out)+"\n")
```

```python
from common import *
from k01 import cmul, exp_bf16, cexp, row_stats
EF_PITCH=544; EF_CH=64*EF_PITCH
YP=9216
WSLOT=12320; NWS=10; W_U=6176
YB=6*WSLOT
TB=YB
XS=TB+2*KD_CH
SC=XS+8*1280
PB=SC+64
KIMG=YB+4*YP+64; IMG=4160; KIMG_CH=4*IMG
UB=KIMG+2*KIMG_CH; U_CH=96*80
assert 2*EF_CH<=YB and UB+2*U_CH<=163824
X_CNT=163824
sTAG=34; sWt=8; sWO=12; sM0W=13; sCBg=14; sMBg=15; vWo=253
NPL=int(os.environ.get("NPL","6"))
def issue_w(A,st):
    A(f"""
    s_add_u32 m0, s{sM0W}, {(st%NWS)*WSLOT}
    s_nop 0
    buffer_load_dwordx4 v{vWo}, s[{sWt}:{sWt+3}], s{sWO} offen lds
    buffer_load_dwordx4 v{vWo+1}, s[{sWt}:{sWt+3}], s{sWO} offen offset:1024 lds
    buffer_load_dwordx4 v{vWo+2}, s[{sWt}:{sWt+3}], s{sWO} offen offset:2048 lds
    s_add_u32 s{sWO}, s{sWO}, {32*2752}
    """)
SPIN=1<<16
WT=" sc0 sc1"
def phaseA(A,tail):
    sW=36; sCH=37; sG=38; sT=39; sT2=40; sHALF=41; sONE=42; sDT=43; sROW=46; sDS=50; sROLE=51; sSEL=52; sU=56; sSP=57; sEP=58; sEX=60
    vL=1; vT=2; vXR=4; vXS=8; vP=12; vAD=17; q5=18; hh=19
    vXG=20; vSG=28
    vX=36; vUD=44; vGA=52; vSA=53
    vW=56
    vRA=200; vRD=204; vCS=216
    A(f"""
    s_cmp_ge_u32 s2, 256
    s_cbranch_scc1 m_end
    s_load_dwordx16 s[4:19], s[0:1], 0
    s_load_dwordx2 s[30:31], s[0:1], 104
    s_load_dwordx8 s[20:27], s[0:1], 64
    """)
    stamp(A,0)
    A("s_getpc_b64 s[44:45]")
    A.label("ka_pf")
    A(f"""
    v_lshlrev_b32 v{vW}, 7, v0
    v_lshrrev_b32 v{vT}, 6, v0
    v_and_b32 v{vL}, 63, v0
    v_readfirstlane_b32 s{sW}, v{vT}
    s_lshr_b32 s{sT2}, s2, 3
    s_cmp_lg_u32 s{sW}, 0
    s_cbranch_scc1 ka_nopf
    s_mov_b32 exec_hi, 0xff
    global_load_dword v{vRA+3}, v{vW}, s[44:45] offset:512
    s_mov_b32 exec_hi, -1
    """)
    A.label("ka_nopf")
    A(f"""
    s_and_b32 s{sT}, s2, 7
    s_lshl_b32 s{sG}, s{sT}, 5
    s_add_u32 s{sG}, s{sG}, s{sT2}
    s_and_b32 s{sCH}, s{sW}, 1
    s_lshr_b32 s{sROLE}, s{sW}, 1
    s_and_b32 s{sHALF}, s{sROLE}, 1
    v_and_b32 v{q5}, 31, v{vL}
    v_lshrrev_b32 v{hh}, 5, v{vL}
    s_lshl_b32 s{sT}, s{sT}, 7
    s_lshl_b32 s{sT2}, s{sT2}, 16
    s_add_u32 s{sT}, s{sT}, s{sT2}
    s_lshl_b32 s{sT2}, s{sROLE}, 14
    s_add_u32 s{sT}, s{sT}, s{sT2}
    s_lshl_b32 s{sT2}, s{sCH}, 6
    s_add_u32 s{sT}, s{sT}, s{sT2}
    v_lshrrev_b32 v{vW}, 2, v{vL}
    v_and_b32 v{vW+1}, 3, v{vL}
    v_lshlrev_b32 v{vW+2}, 10, v{vW}
    v_lshl_add_u32 v{vW+2}, v{vW+1}, 4, v{vW+2}
    v_add_u32 v{vW+2}, s{sT}, v{vW+2}
    s_lshl_b32 s{sT}, s{sG}, 13
    v_lshl_add_u32 v{vAD}, v0, 4, s{sT}
    s_lshl_b32 s{sT}, s{sG}, 9
    v_lshl_add_u32 v{vT}, v{vL}, 3, s{sT}
    s_lshl_b32 s{sT2}, s{sG}, 2
    s_cmp_eq_u32 s{sCH}, 0
    s_waitcnt lgkmcnt(0)
    s_cselect_b64 s[62:63], s[6:7], s[8:9]
    s_cselect_b64 s[60:61], s[10:11], s[12:13]
    s_cmp_eq_u32 s{sHALF}, 0
    s_cselect_b64 s[62:63], s[62:63], s[60:61]
    s_cmp_ge_u32 s{sW}, 4
    s_cbranch_scc1 ka_nop
    global_load_dwordx2 v[{vP}:{vP+1}], v{vT}, s[62:63]
    """)
    A.label("ka_nop")
    A(f"""
    s_load_dword s{sEP}, s[30:31], {WS_EPOCH}
    s_load_dword s{sDT}, s[14:15], s{sT2}
    s_load_dword s{sDS}, s[16:17], s{sT2}
    global_load_dwordx4 v[{vXS}:{vXS+3}], v{vW+2}, s[4:5]
    global_load_dwordx4 v[{vXR}:{vXR+3}], v{vAD}, s[4:5]
    s_mov_b32 s{sONE}, 0x3f803f80
    s_mov_b32 s{SK_INVN}, {f32(1/512)}
    v_mov_b32 v{vW+9}, 0x9000
    global_load_dword v{vRA+2}, v{vW+9}, s[30:31]
    """)
    A(f"""
    s_mul_i32 s{sT}, s{sW}, 1280
    s_add_u32 s{sT}, s{sT}, {XS}
    v_mul_u32_u24 v{vW+3}, 80, v{vW}
    v_lshl_add_u32 v{vW+3}, v{vW+1}, 4, v{vW+3}
    v_add_u32 v{vW+3}, s{sT}, v{vW+3}
    v_and_b32 v{vW}, 7, v{vL}
    v_lshrrev_b32 v{vW+1}, 3, v{vL}
    v_mul_u32_u24 v{vW+4}, 160, v{vW}
    v_lshl_add_u32 v{vW+4}, v{vW+1}, 2, v{vW+4}
    v_add_u32 v{vW+4}, s{sT}, v{vW+4}
    s_and_b32 s{sT}, s2, 7
    s_lshl_b32 s{sT}, s{sT}, 19
    s_lshl_b32 s{sT2}, s{sCH}, 18
    s_add_u32 s{sT}, s{sT}, s{sT2}
    s_lshr_b32 s{sT2}, s2, 3
    s_lshl_b32 s{sT2}, s{sT2}, 9
    s_add_u32 s{sT}, s{sT}, s{sT2}
    s_lshl_b32 s{sT2}, s{sROLE}, 7
    s_add_u32 s{sT}, s{sT}, s{sT2}
    s_add_u32 s{sT}, s{sT}, {WS_XG}
    v_lshlrev_b32 v{vW+5}, 14, v{vW+1}
    v_lshl_add_u32 v{vW+5}, v{vW}, 4, v{vW+5}
    v_add_u32 v{vW+5}, s{sT}, v{vW+5}
    v_add_u32 v{vW+6}, {8*16384}, v{vW+5}
    s_lshl_b32 s{sT}, s{sG}, 6
    v_lshl_add_u32 v{vW+7}, v{vL}, 3, s{sT}
    v_lshlrev_b32 v{vSA}, 5, v0
    s_lshl_b32 s{sT}, s{sG}, 14
    s_add_u32 s{sT}, s{sT}, {WS_XG}
    v_add_u32 v{vGA}, s{sT}, v{vSA}
    s_mul_i32 s{sT}, s{sCH}, {EF_CH}
    s_lshl_b32 s{sT2}, s{sHALF}, 8
    s_add_u32 s{sT}, s{sT}, s{sT2}
    v_lshl_add_u32 v{vAD}, v{vL}, 2, s{sT}
    """)
    A(f"""
    v_mov_b32 v{vW+8}, 0
    v_mov_b32 v{vW+9}, 0
    v_lshlrev_b32 v{vW+10}, 3, v0
    v_cmp_gt_u32 vcc, 320, v0
    s_and_saveexec_b64 s[{sEX}:{sEX+1}], vcc
    v_add_u32 v{vW+10}, {UB}, v{vW+10}
    ds_write_b64 v{vW+10}, v[{vW+8}:{vW+9}]
    ds_write_b64 v{vW+10}, v[{vW+8}:{vW+9}] offset:{U_CH}
    s_mov_b64 exec, 0x7f
    s_mul_i32 s{sT}, s{sW}, {IMG}
    s_add_u32 s{sT}, s{sT}, {KIMG+4096}
    v_lshl_add_u32 v{vW+10}, v{vL}, 3, s{sT}
    ds_write_b64 v{vW+10}, v[{vW+8}:{vW+9}]
    v_mov_b32 v{vW+10}, {X_CNT}
    ds_write_b64 v{vW+10}, v[{vW+8}:{vW+9}]
    ds_write_b64 v{vW+10}, v[{vW+8}:{vW+9}] offset:8
    s_mov_b64 exec, -1
    """)
    A(f"""
    s_lshl_b32 s{sT}, s{sW}, 9
    s_add_u32 s{sT}, s{sT}, {PB}
    v_lshl_add_u32 v{vW+11}, v{vL}, 3, s{sT}
    s_lshl_b32 s{sT}, s{sCH}, 8
    s_lshl_b32 s{sT2}, s{sHALF}, 7
    s_add_u32 s{sT}, s{sT}, s{sT2}
    s_add_u32 s{sT}, s{sT}, {PB}
    v_lshl_add_u32 v{vW+12}, v{vL}, 1, s{sT}
    s_waitcnt lgkmcnt(0)
    s_mul_i32 s{sTAG}, s{sEP}, 0x9e3779b1
    s_add_u32 s{sTAG}, s{sTAG}, 0x7f4a7c15
    s_lshl_b32 s{sT}, s{sDT}, 16
    s_and_b32 s{sT2}, s{sDT}, 0xffff0000
    s_cmp_eq_u32 s{sCH}, 0
    s_cselect_b32 s{sDT}, s{sT}, s{sT2}
    v_mov_b32 v{vP+4}, s{sDT}
    v_mov_b32 v{vXG+1}, s{sTAG}
    v_mov_b32 v{vXG+3}, s{sTAG}
    v_mov_b32 v{vXG+5}, s{sTAG}
    v_mov_b32 v{vXG+7}, s{sTAG}
    """)
    exp_bf16(A,vP+4,vW+8)
    A(f"""
    s_cmp_ge_u32 s{sW}, 4
    s_waitcnt vmcnt(2)
    ds_write_b128 v{vW+3}, v[{vXS}:{vXS+3}]
    ds_read_b32 v{vXG}, v{vW+4}
    ds_read_b32 v{vXG+2}, v{vW+4} offset:80
    ds_read_b32 v{vXG+4}, v{vW+4} offset:32
    ds_read_b32 v{vXG+6}, v{vW+4} offset:112
    s_cbranch_scc1 ka_nop2
    ds_write_b64 v{vW+11}, v[{vP}:{vP+1}]
    """)
    A.label("ka_nop2")
    A("s_waitcnt vmcnt(1)")
    stamp(A,1)
    B=Asm(); row_stats(B,vXR,vT,vT+1,vW+8,sONE); bl=[l.strip() for l in B.l]
    for l in bl[:10]: A(l)
    A(f"""
    s_waitcnt lgkmcnt(0)
    global_store_dwordx4 v{vW+5}, v[{vXG}:{vXG+3}], s[30:31]{WT}
    global_store_dwordx4 v{vW+6}, v[{vXG+4}:{vXG+7}], s[30:31]{WT}
    """)
    for l in bl[10:]: A(l)
    A(f"""
    s_lshl_b32 s{sT}, s{sW}, 2
    s_add_u32 s{sT}, s{sT}, {SC}
    v_mov_b32 v{vW+8}, s{sT}
    s_mov_b32 exec_lo, 0
    s_mov_b32 exec_hi, 0x80000000
    ds_write_b32 v{vW+8}, v{vT}
    s_mov_b64 exec, -1
    v_lshlrev_b32 v{vW+8}, 2, v{vL}
    v_add_u32 v{vW+8}, {SC}, v{vW+8}
    v_mov_b32 v{vT+1}, s{sTAG}
    s_cmp_lg_u32 s{sW}, 3
    s_waitcnt lgkmcnt(0)
    s_barrier
    s_cbranch_scc1 ka_nost
    s_mov_b64 exec, 0xff
    ds_read_b32 v{vT}, v{vW+8}
    s_waitcnt lgkmcnt(0)
    global_store_dwordx2 v{vW+7}, v[{vT}:{vT+1}], s[30:31] offset:{WS_STATS}{WT}
    s_mov_b64 exec, -1
    """)
    A.label("ka_nost")
    A(f"""
    s_cmp_lt_u32 s{sW}, 4
    s_cbranch_scc1 ka_nowu
    s_cmp_eq_u32 s{sCH}, 0
    s_cselect_b64 s[62:63], s[20:21], s[22:23]
    s_cselect_b64 s[60:61], s[24:25], s[44:45]
    s_cmp_eq_u32 s{sHALF}, 0
    s_cselect_b64 s[62:63], s[62:63], s[60:61]
    s_mul_i32 s{sT}, s2, {43*128}
    s_lshr_b32 s{sT2}, s2, 3
    s_lshl_b32 s{sT2}, s{sT2}, 10
    s_add_u32 s{sT2}, s{sT2}, 5632
    s_mov_b32 s{sU}, {1376*1024-4}
    s_cmp_eq_u32 s{sW}, 7
    s_cselect_b32 s{sT}, s{sT2}, s{sT}
    s_cselect_b32 s{sT2}, code_end-ka_pf, s{sU}
    s_cselect_b32 exec_lo, 0xff, -1
    s_cselect_b32 exec_hi, 0, 0x7ff
    v_lshl_add_u32 v{vW+8}, v{vL}, 7, s{sT}
    v_min_u32 v{vW+8}, s{sT2}, v{vW+8}
    global_load_dword v{vRA+3}, v{vW+8}, s[62:63]
    s_mov_b64 exec, -1
    """)
    A.label("ka_nowu")
    A(f"""
    ds_read_u16 v{vP}, v{vW+12}
    ds_read_u16 v{vP+1}, v{vW+12} offset:512
    ds_read_u16 v{vP+2}, v{vW+12} offset:1024
    ds_read_u16 v{vP+3}, v{vW+12} offset:1536
    s_waitcnt lgkmcnt(0)
    """)
    stamp(A,2)
    zr=vP; zi=vP+1
    pk=[vW+20,vW+21,vW+22,vW+23]; pkc=[0]
    def put(reg,row):
        p=pk[pkc[0]%4]; pkc[0]+=1
        A(f"v_cvt_pk_bf16_f32 v{p}, v{reg}, v{reg+1}")
        A(f"ds_write_b32 v{vAD}, v{p} offset:{row*EF_PITCH}")
    w1=vW; w2=vW+2; w4=vW+4; w8=vW+6; wB=vW+8; q=vW+10; e=vW+12; e2=vW+14; t=vW+16; t2=vW+18; t3=vW+24; e3=vW+26
    A(f"""
    v_lshlrev_b32 v{vP}, 16, v{vP}
    v_lshlrev_b32 v{vP+1}, 16, v{vP+1}
    """)
    exp_bf16(A,vP,vW+28)
    A(f"""
    v_mul_f32 v{zi}, v{zi}, v{vP+4}
    v_mul_f32 v{zr}, v{zr}, v{vP+4}
    v_mul_f32 v{zr}, {f32(-LOG2E)}, v{zr}
    s_cmp_ge_u32 s{sW}, 4
    s_cbranch_scc1 ka_frole
    v_mul_f32 v{zi}, {f32(-1/(2*math.pi))}, v{zi}
    """)
    def gload(sc):
        A(f"""
        global_load_dwordx4 v[{vXG}:{vXG+3}], v{vGA}, s[30:31]{sc}
        global_load_dwordx4 v[{vXG+4}:{vXG+7}], v{vGA}, s[30:31] offset:16{sc}
        global_load_dwordx4 v[{vSG}:{vSG+3}], v{vSA}, s[30:31] offset:{WS_STATS}{sc}
        global_load_dwordx4 v[{vSG+4}:{vSG+7}], v{vSA}, s[30:31] offset:{WS_STATS+16}{sc}
        """)
    cexp(A,w1,zr,zi,1,t); cexp(A,wB,zr,zi,256,t2)
    A(f"""
    v_lshlrev_b32 v{vP+2}, 16, v{vP+2}
    v_lshlrev_b32 v{vP+3}, 16, v{vP+3}
    v_mul_f32 v{e}, v{vP+2}, v{vP+4}
    v_mul_f32 v{e+1}, v{vP+3}, v{vP+4}
    v_add_f32 v{e}, v{e}, v{e}
    v_mul_f32 v{e+1}, -2.0, v{e+1}
    """)
    cmul(A,w2,w1,w1,t); cmul(A,q,e,wB,t2); put(e,0)
    cmul(A,w4,w2,w2,t3)
    seqB=[("put",q,8),("mul",e2,q,w2),("mul",q,q,wB),("put",e2,9),("mul",e2,e2,w2),("put",q,12),("mul",e3,q,w4),("put",e2,10),("mul",e2,e2,w2),
          ("mul",q,q,wB),("put",e3,13),("put",e2,11),("put",q,14),("mul",e3,q,w4),("mul",q,q,wB),("put",e3,15),("put",q,16),("mul",q,q,wB),("put",q,20),
          ("mul",q,q,wB),("put",q,24),("mul",q,q,wB),("put",q,28),("mul",q,q,wB),("put",q,17)]
    seqA=[]
    for a in range(1,8): seqA+=[("mul",e,e,w1),("put",e,a)]
    ia=0; tt=[t2,t3]; tc=0
    for i,s in enumerate(seqB):
        if s[0]=="put": put(s[1],s[2])
        else: cmul(A,s[1],s[2],s[3],tt[tc%2]); tc+=1
        if (i<10 and i%3==0) or i>=15:
            x=seqA[ia]; ia+=1
            if x[0]=="put": put(x[1],x[2])
            else: cmul(A,x[1],x[2],x[3],t)
    aA=vW; aB=vW+1; r16=vW+2; g4=vW+3; acc=vW+4; oA=vW+12; oB=vW+13; oC=vW+14; fr=vW+32
    A(f"""
    v_and_b32 v{r16}, 15, v{vL}
    v_lshrrev_b32 v{g4}, 4, v{vL}
    s_mul_i32 s{sT}, s{sCH}, {EF_CH}
    v_mul_u32_u24 v{aA}, {EF_PITCH}, v{r16}
    v_lshl_add_u32 v{aA}, v{g4}, 4, v{aA}
    v_add_u32 v{aA}, s{sT}, v{aA}
    s_mul_i32 s{sT2}, s{sHALF}, {16*EF_PITCH}
    v_add_u32 v{aB}, s{sT2}, v{aA}
    s_lshl_b32 s{sT}, s{sHALF}, 4
    v_add_u32 v{r16}, s{sT}, v{r16}
    v_lshlrev_b32 v{oA}, 4, v{r16}
    v_lshl_add_u32 v{oA}, v{g4}, 3, v{oA}
    v_lshlrev_b32 v{oB}, 3, v{r16}
    v_add_u32 v{oB}, 512, v{oB}
    v_cmp_eq_u32 vcc, 2, v{g4}
    v_cndmask_b32 v{oA}, v{oA}, v{oB}, vcc
    v_lshlrev_b32 v{oB}, 2, v{r16}
    v_add_u32 v{oB}, 768, v{oB}
    v_cmp_eq_u32 vcc, 3, v{g4}
    v_cndmask_b32 v{oA}, v{oA}, v{oB}, vcc
    v_mov_b32 v{oB}, 4
    v_mov_b32 v{oC}, 128
    v_cndmask_b32 v{oB}, v{oB}, v{oC}, vcc
    s_mul_i32 s{sT}, s{sCH}, {KD_CH}
    s_add_u32 s{sT}, s{sT}, {TB}
    v_add_u32 v{oA}, s{sT}, v{oA}
    v_add_u32 v{oB}, v{oA}, v{oB}
    v_lshlrev_b32 v{oC}, 1, v{r16}
    v_lshl_add_u32 v{oC}, v{g4}, 6, v{oC}
    v_add_u32 v{oC}, s{sT}, v{oC}
    s_waitcnt lgkmcnt(0)
    s_barrier
    """)
    stamp(A,3)
    def rd(s):
        b=fr+12*s
        A(f"ds_read_b128 v[{b}:{b+3}], v{aB} offset:{32*EF_PITCH+64*s}")
        A(f"ds_read_b128 v[{b+4}:{b+7}], v{aA} offset:{64*s}")
        A(f"ds_read_b128 v[{b+8}:{b+11}], v{aA} offset:{16*EF_PITCH+64*s}")
    for s in range(4): rd(s)
    for s in range(8):
        b=fr+12*s
        n = 9 if s<=4 else 3*(7-s)
        A(f"s_waitcnt lgkmcnt({n})")
        c0="0" if s==0 else f"v[{acc}:{acc+3}]"; c1="0" if s==0 else f"v[{acc+4}:{acc+7}]"
        A(f"v_mfma_f32_16x16x32_bf16 v[{acc}:{acc+3}], v[{b+4}:{b+7}], v[{b}:{b+3}], {c0}")
        A(f"v_mfma_f32_16x16x32_bf16 v[{acc+4}:{acc+7}], v[{b+8}:{b+11}], v[{b}:{b+3}], {c1}")
        if s+4<8: rd(s+4)
    A(f"""
    v_cvt_pk_bf16_f32 v{acc}, v{acc}, v{acc+1}
    v_cvt_pk_bf16_f32 v{acc+1}, v{acc+2}, v{acc+3}
    v_cvt_pk_bf16_f32 v{acc+4}, v{acc+4}, v{acc+5}
    ds_write_b32 v{oA}, v{acc}
    ds_write_b32 v{oB}, v{acc+1}
    ds_write_b16 v{oC}, v{acc+4} offset:1024
    ds_write_b16_d16_hi v{oC}, v{acc+4} offset:1280
    """)
    gload("")
    A(f"s_mov_b32 s{sU}, 1000")
    A("s_branch ka_tab")
    A.label("ka_frole")
    A(f"v_mul_f32 v{zi}, {f32(1/(2*math.pi))}, v{zi}")
    cexp(A,w8,zr,zi,8,t)
    A(f"v_mov_b32 v{pk[3]}, 0x3f80")
    A(f"ds_write_b32 v{vAD}, v{pk[3]} offset:{32*EF_PITCH}")
    cmul(A,w2,w8,w8,t); put(w8,33)
    so=w8; se=w2; pend=[(w2,2)]
    for c in range(3,32):
        if c&1: cmul(A,e,so,w2,t); so=e; new=(e,c)
        else:   cmul(A,e2,se,w2,t2); se=e2; new=(e2,c)
        r,cc=pend.pop(); put(r,32+cc); pend.append(new)
    r,cc=pend.pop(); put(r,32+cc)
    A("s_waitcnt lgkmcnt(0)")
    A("s_barrier")
    stamp(A,3)
    gload("")
    vCA=vRD
    A.label("ka_tab")
    vK=vW+32; vK2=vW+36; wa=vW+4; wa2=vW+5; pr=vW+8
    A(f"""
    s_cmp_eq_u32 s{sROLE}, 0
    s_cselect_b32 s{sSEL}, 4, 1
    s_cselect_b32 s{sSEL+1}, 3, 6
    s_cselect_b32 s{sSEL+2}, 0, 768
    s_cmp_eq_u32 s{sROLE}, 1
    s_cselect_b32 s{sSEL}, 2, s{sSEL}
    s_cselect_b32 s{sSEL+1}, 7, s{sSEL+1}
    s_cselect_b32 s{sSEL+3}, 0, 128
    s_mul_i32 s{sSEL+3}, s{sSEL+3}, s{sROLE}
    s_add_u32 s{sSEL+2}, s{sSEL+2}, s{sSEL+3}
    v_lshlrev_b32 v{vW+2}, s{sSEL}, v{q5}
    v_and_b32 v{vW+2}, -4, v{vW+2}
    v_lshlrev_b32 v{vW+3}, s{sSEL+1}, v{hh}
    v_add_u32 v{vW+2}, v{vW+2}, v{vW+3}
    s_mul_i32 s{sT}, s{sCH}, {KD_CH}
    s_add_u32 s{sT}, s{sT}, {TB}
    s_add_u32 s{sSEL+2}, s{sSEL+2}, s{sT}
    v_add_u32 v{vW+2}, s{sSEL+2}, v{vW+2}
    v_lshlrev_b32 v{vW+3}, 3, v{q5}
    v_lshl_add_u32 v{vW+3}, v{hh}, 2, v{vW+3}
    v_add_u32 v{vW+3}, s{sT}, v{vW+3}
    s_mul_i32 s{sT}, s{sCH}, {KIMG_CH}
    s_add_u32 s{sT}, s{sT}, {KIMG}
    v_lshlrev_b32 v{vW+7}, 4, v{q5}
    v_sub_u32 v{vW+7}, s{sT}, v{vW+7}
    v_lshlrev_b32 v{vW+6}, 3, v{hh}
    v_sub_u32 v{vW}, v{vW+7}, v{vW+6}
    v_lshlrev_b32 v{vW+6}, 9, v{hh}
    v_sub_u32 v{vW+1}, v{vW+7}, v{vW+6}
    s_mov_b32 s{sSEL}, 0x05040100
    s_mov_b32 s{sSEL+1}, 0x05040302
    s_mov_b32 s{sSEL+2}, 0x07060100
    s_mov_b32 s{sSEL+3}, 0x07060302
    s_waitcnt lgkmcnt(0)
    s_barrier
    ds_read2_b32 v[{vK}:{vK+1}], v{vW+2} offset0:0 offset1:1
    ds_read2_b32 v[{vK+2}:{vK+3}], v{vW+2} offset0:2 offset1:3
    ds_read2_b32 v[{vK2}:{vK2+1}], v{vW+3} offset0:128 offset1:129
    """)
    wa=vW; wa2=vW+1
    stamp(A,4)
    A(f"""
    s_cmp_ge_u32 s{sROLE}, 2
    s_cbranch_scc1 ka_r23
    s_cmp_eq_u32 s{sROLE}, 1
    s_cbranch_scc1 ka_r1
    """)
    npair=[0]
    def pairop(d,lo,hi): A(f"v_perm_b32 v{d}, v{hi[0]}, v{lo[0]}, s{sSEL+lo[1]+2*hi[1]}")
    def wwin(addr,k,rho,bbase):
        lam=rho+3; iota=lam&3; b=bbase+(lam>>2)
        p=pr+2*(npair[0]%8); npair[0]+=1
        pairop(p,k[rho+3],k[rho+2]); pairop(p+1,k[rho+1],k[rho])
        A(f"ds_write_b64 v{addr}, v[{p}:{p+1}] offset:{iota*IMG+8*(511-b)}")
    A(f"""
    v_cmp_eq_u32 vcc, 63, v{vL}
    v_mov_b32 v{vW+7}, 0
    s_waitcnt lgkmcnt(0)
    v_lshrrev_b32 v{vW+2}, 16, v{vK+2}
    v_perm_b32 v{vW+3}, v{vK+2}, v{vK+2}, s{sSEL}
    v_perm_b32 v{vW+6}, v{vK2+1}, v{vK2+1}, s{sSEL}
    v_cndmask_b32 v{vK+3}, v{vK+3}, v{vW+2}, vcc
    v_cndmask_b32 v{vK+2}, v{vK+2}, v{vW+3}, vcc
    v_cndmask_b32 v{vK2+1}, v{vK2+1}, v{vW+6}, vcc
    """)
    k=[(vK+i//2,i&1) for i in range(8)]
    for rho in range(4): wwin(wa,k,rho,0)
    v=[(vK2+i//2,i&1) for i in range(4)]
    k1=[v[0],v[0],v[1],v[2],v[2],v[2],v[3]]
    for rho in range(4): wwin(wa,k1,rho,64)
    A("s_mov_b64 exec, 1")
    z=(vW+7,0); kz=[z,z,z,k[0],k[1],k[2]]
    for rho in range(3):
        p=pr+2*(npair[0]%8); npair[0]+=1
        pairop(p,kz[rho+3],kz[rho+2]); pairop(p+1,kz[rho+1],kz[rho])
        A(f"ds_write_b64 v{wa}, v[{p}:{p+1}] offset:{rho*IMG+8*511}")
    A("s_mov_b64 exec, -1")
    A("s_branch ka_norm")
    A.label("ka_r1")
    A("s_waitcnt lgkmcnt(0)")
    v=[(vK+i//2,i&1) for i in range(3)]
    k=[v[i] for i in (0,0,0,1,1,1,2,2,2,2,2)]
    for rho in range(8): wwin(wa2,k,rho,128)
    A("s_branch ka_norm")
    A.label("ka_r23")
    A(f"""
    s_lshl_b32 s{sT}, s{sHALF}, 10
    v_subrev_u32 v{wa2}, s{sT}, v{wa2}
    v_and_b32 v{vW+6}, 1, v{vL}
    v_lshlrev_b32 v{vW+6}, 4, v{vW+6}
    s_waitcnt lgkmcnt(0)
    v_alignbit_b32 v{vK}, v{vK+1}, v{vK}, v{vW+6}
    v_lshrrev_b32 v{vK+1}, v{vW+6}, v{vK}
    """)
    k=[(vK,0)]*4+[(vK+1,0)]+[(vK,1)]*6
    for rho in range(8): wwin(wa2,k,rho,256)
    A.label("ka_norm")
    m=vW; s_=vW+1; u0=vW+24; u1=vW+28; pu=vW+32; a0=vW+2; a1=vW+3
    aK=vW+36; aU=vW+37; aY=vW+38
    A(f"""
    v_lshrrev_b32 v{vW+6}, 3, v0
    v_mul_u32_u24 v{vW+6}, 80, v{vW+6}
    v_and_b32 v{s_}, 7, v0
    v_lshl_add_u32 v{vW+6}, v{s_}, 3, v{vW+6}
    v_add_u32 v{vW+6}, {UB+32*80}, v{vW+6}
    v_and_b32 v{aK}, 3, v{vL}
    v_mul_u32_u24 v{aK}, {IMG}, v{aK}
    v_lshl_add_u32 v{aK}, v{hh}, 4, v{aK}
    v_lshrrev_b32 v{aU}, 2, v{q5}
    v_lshlrev_b32 v{aU}, 3, v{aU}
    v_sub_u32 v{aK}, v{aK}, v{aU}
    s_mul_i32 s{sT}, s{sCH}, {KIMG_CH}
    s_add_u32 s{sT}, s{sT}, {KIMG+4088-2*(480+1024)}
    s_lshl_b32 s{sT2}, s{sHALF}, 10
    s_sub_u32 s{sT}, s{sT}, s{sT2}
    v_add_u32 v{aK}, s{sT}, v{aK}
    v_mul_u32_u24 v{aU}, 80, v{q5}
    v_lshl_add_u32 v{aU}, v{hh}, 4, v{aU}
    s_mul_i32 s{sT}, s{sCH}, {U_CH}
    s_add_u32 s{sT}, s{sT}, {UB+80*(32-15)}
    s_mul_i32 s{sT2}, s{sHALF}, {80*16}
    s_sub_u32 s{sT}, s{sT}, s{sT2}
    v_add_u32 v{aU}, s{sT}, v{aU}
    s_mov_b32 s{sSP}, 0
    """)
    stamp(A,5)
    A.label("ka_chk")
    A("s_waitcnt vmcnt(0)")
    A.label("ka_chk2")
    A(f"""
    v_xor_b32 v{a0}, v{vXG+1}, v{vXG+3}
    v_xor_b32 v{a1}, v{vXG+5}, v{vXG+7}
    v_xor_b32 v{m}, s{sTAG}, v{vXG+1}
    v_or3_b32 v{a0}, v{a0}, v{a1}, v{m}
    v_xor_b32 v{a1}, s{sTAG}, v{vXG+5}
    v_xor_b32 v{m}, s{sTAG}, v{vSG+1}
    v_or3_b32 v{a0}, v{a0}, v{a1}, v{m}
    v_xor_b32 v{a1}, s{sTAG}, v{vSG+3}
    v_xor_b32 v{m}, s{sTAG}, v{vSG+5}
    v_or3_b32 v{a0}, v{a0}, v{a1}, v{m}
    v_xor_b32 v{a1}, s{sTAG}, v{vSG+7}
    v_or_b32 v{a0}, v{a0}, v{a1}
    v_cmp_ne_u32 vcc, 0, v{a0}
    s_cbranch_vccnz ka_retry
    """)
    A.label("ka_ok")
    stamp(A,6)
    for j in range(4):
        st=vSG+2*j; xc=vXG+2*j
        A(f"""
        v_and_b32 v{s_}, 0xffff0000, v{st}
        v_rcp_f32 v{s_}, v{s_}
        v_lshlrev_b32 v{vX+j}, 16, v{xc}
        v_and_b32 v{vX+4+j}, 0xffff0000, v{xc}
        v_lshlrev_b32 v{m}, 16, v{st}
        v_sub_f32 v{a0}, v{vX+j}, v{m}
        v_sub_f32 v{a1}, v{vX+4+j}, v{m}
        v_cvt_pk_bf16_f32 v{a0}, v{a0}, v{a1}
        v_and_b32 v{a1}, 0xffff0000, v{a0}
        v_lshlrev_b32 v{a0}, 16, v{a0}
        v_mul_f32 v{u0+j}, v{a0}, v{s_}
        v_mul_f32 v{u1+j}, v{a1}, v{s_}
        """)
    A(f"""
    v_cvt_pk_bf16_f32 v{pu}, v{u0}, v{u0+1}
    v_cvt_pk_bf16_f32 v{pu+1}, v{u0+2}, v{u0+3}
    v_cvt_pk_bf16_f32 v{pu+2}, v{u1}, v{u1+1}
    v_cvt_pk_bf16_f32 v{pu+3}, v{u1+2}, v{u1+3}
    ds_write_b64 v{vW+6}, v[{pu}:{pu+1}]
    ds_write_b64 v{vW+6}, v[{pu+2}:{pu+3}] offset:{U_CH}
    s_cmp_ge_u32 s{sW}, 4
    s_waitcnt lgkmcnt(0)
    s_barrier
    s_cbranch_scc1 ka_aux
    """)
    stamp(A,7)
    def calc_ud():
        out=[f"s_lshl_b32 s{sT}, s{sDS}, 16", f"s_and_b32 s{sT2}, s{sDS}, 0xffff0000"]
        for c in range(2):
            for pp in range(2):
                r=pu+2*c+pp; d=vUD+4*c+2*pp; sd=sT if c==0 else sT2
                out+=[f"v_lshlrev_b32 v{d}, 16, v{r}",f"v_and_b32 v{d+1}, 0xffff0000, v{r}",f"v_mul_f32 v{d}, s{sd}, v{d}",f"v_mul_f32 v{d+1}, s{sd}, v{d+1}",
                      f"v_cvt_pk_bf16_f32 v{d}, v{d}, v{d+1}",f"v_and_b32 v{d+1}, 0xffff0000, v{d}",f"v_lshlrev_b32 v{d}, 16, v{d}"]
        return out
    def epi_addr():
        return [f"v_lshrrev_b32 v{vW}, 3, v0",f"v_mul_u32_u24 v{vW}, 144, v{vW}",f"v_and_b32 v{vW+1}, 7, v0",f"v_lshl_add_u32 v{vW}, v{vW+1}, 4, v{vW}",f"v_add_u32 v{vW}, {YB}, v{vW}",
                f"s_lshl_b32 s{sT}, s{sG}, 9",f"s_add_u32 s{sT}, s{sT}, {WS_HT}",f"v_lshl_add_u32 v{vW+1}, v{q5}, 3, s{sT}",f"v_lshrrev_b32 v{vW+2}, 5, v0",
                f"v_lshl_add_u32 v{vW+1}, v{vW+2}, 17, v{vW+1}",
                f"s_lshl_b32 s{sT}, s{sW}, 10",f"s_lshl_b32 s{sT2}, s{sG}, 2",f"s_add_u32 s{sT}, s{sT}, s{sT2}",f"s_add_u32 s{sT}, s{sT}, {WS_FLH}",
                f"v_mov_b32 v{vW+2}, s{sT}",f"v_mov_b32 v{vW+3}, s{sTAG}"]
    acc0=vW+40; acc1=vW+56; NB=3; fr=vW+72
    def loads(i):
        b=fr+16*(i%NB); ko=2*16*(31-i); mu=i>>1; nu=i&1; uo=80*(15-mu)+32*(1-nu)
        return [f"ds_read_b64 v[{b}:{b+1}], v{aK} offset:{ko+2048}",
                f"ds_read_b64 v[{b+2}:{b+3}], v{aK} offset:{ko+2048+8}",
                f"ds_read_b128 v[{b+8}:{b+11}], v{aU} offset:{uo}",
                f"ds_read_b64 v[{b+4}:{b+5}], v{aK} offset:{ko}",
                f"ds_read_b128 v[{b+12}:{b+15}], v{aU} offset:{uo+32*80}",
                f"ds_read_b64 v[{b+6}:{b+7}], v{aK} offset:{ko+8}"]
    for l in loads(0)+loads(1): A(l)
    extra=calc_ud()+[f"v_mul_u32_u24 v{aY}, 144, v{q5}",f"v_lshl_add_u32 v{aY}, v{hh}, 4, v{aY}",f"s_lshl_b32 s{sT}, s{sCH}, 1",f"s_add_u32 s{sT}, s{sT}, s{sHALF}",
          f"s_mul_i32 s{sT}, s{sT}, {YP}",f"s_add_u32 s{sT}, s{sT}, {YB}",f"v_add_u32 v{aY}, s{sT}, v{aY}"]+epi_addr()
    for i in range(32):
        b=fr+16*(i%NB)
        L=loads(i+2) if i+2<32 else []
        A(f"s_waitcnt lgkmcnt({6 if i+1<32 else 0})")
        c0="0" if i==0 else f"v[{acc0}:{acc0+15}]"
        c1="0" if i==0 else f"v[{acc1}:{acc1+15}]"
        ms=[f"v_mfma_f32_32x32x16_bf16 v[{acc0}:{acc0+15}], v[{b}:{b+3}], v[{b+8}:{b+11}], {c0}",
            f"v_mfma_f32_32x32x16_bf16 v[{acc1}:{acc1+15}], v[{b}:{b+3}], v[{b+12}:{b+15}], {c1}",
            f"v_mfma_f32_32x32x16_bf16 v[{acc1}:{acc1+15}], v[{b+4}:{b+7}], v[{b+8}:{b+11}], v[{acc1}:{acc1+15}]"]
        for j in range(3):
            A(ms[j])
            for l in L[2*j:2*j+2]: A(l)
            if extra and i>=2: A(extra.pop(0))
    assert not extra
    stamp(A,8)
    for c,ac in ((0,acc0),(1,acc1)):
        for g in range(4):
            A(f"ds_write_b128 v{aY}, v[{ac+4*g}:{ac+4*g+3}] offset:{144*32*c+32*g}")
    A.label("ka_fin")
    y=vW+8
    A("s_waitcnt lgkmcnt(0)")
    A("s_barrier")
    stamp(A,9)
    for k_ in range(4): A(f"ds_read_b128 v[{y+4*k_}:{y+4*k_+3}], v{vW} offset:{YP*k_}")
    o=vW+4
    for c in range(2):
        A(f"s_waitcnt lgkmcnt({2-2*c})")
        for pp in range(2):
            a=y+8*c+2*pp
            A(f"""
            v_pk_add_f32 v[{a}:{a+1}], v[{a}:{a+1}], v[{a+4}:{a+5}]
            v_cvt_pk_bf16_f32 v{a}, v{a}, v{a+1}
            v_and_b32 v{a+1}, 0xffff0000, v{a}
            v_lshlrev_b32 v{a}, 16, v{a}
            v_pk_add_f32 v[{a}:{a+1}], v[{a}:{a+1}], v[{vUD+4*c+2*pp}:{vUD+4*c+2*pp+1}]
            v_cvt_pk_bf16_f32 v{a}, v{a}, v{a+1}
            v_and_b32 v{a+1}, 0xffff0000, v{a}
            v_lshlrev_b32 v{a}, 16, v{a}
            v_pk_add_f32 v[{a}:{a+1}], v[{a}:{a+1}], v[{vX+4*c+2*pp}:{vX+4*c+2*pp+1}]
            v_cvt_pk_bf16_f32 v{o+2*c+pp}, v{a}, v{a+1}
            """)
        A(f"global_store_dwordx2 v{vW+1}, v[{o+2*c}:{o+2*c+1}], s[30:31] offset:{256*c}{WT}")
    A(f"""
    s_waitcnt vmcnt(0)
    s_mov_b64 exec, 1
    global_store_dword v{vW+2}, v{vW+3}, s[30:31]{WT}
    s_barrier
    """)
    dump(A,1,10,sW)
    A("s_mov_b64 exec, -1")
    AA=A; A=tail
    A.label("ka_retry")
    A(f"""
    s_add_u32 s{sSP}, s{sSP}, 1
    s_cmp_ge_u32 s{sSP}, {SPIN}
    s_cbranch_scc1 ka_ok
    """)
    A("s_mov_b64 exec, vcc")
    gload(" sc0 sc1")
    A("s_mov_b64 exec, -1")
    A("s_branch ka_chk")
    A.label("ka_aux")
    stamp(A,7)
    ad=vW+40; S=vW+44; t=vW+52
    A(f"""
    s_sub_u32 s{sU}, s{sW}, 6
    s_lshl_b32 s{sU}, s{sU}, 8
    s_add_u32 s{sU}, s{sU}, s2
    s_cmp_ge_u32 s{sU}, 344
    s_cbranch_scc1 ka_nocs
    s_lshr_b32 s{sT}, s{sU}, 2
    s_cmp_ge_u32 s{sT}, 43
    s_cselect_b32 s62, s22, s20
    s_cselect_b32 s63, s23, s21
    s_cselect_b32 s{sT2}, 43, 0
    s_sub_u32 s{sT}, s{sT}, s{sT2}
    s_lshl_b32 s{sT}, s{sT}, 6
    s_and_b32 s{sT2}, s{sU}, 3
    s_mul_i32 s{sT2}, s{sT2}, {128*2752}
    s_add_u32 s{sT}, s{sT}, s{sT2}
    v_lshrrev_b32 v{vCA}, 2, v{vL}
    v_mul_u32_u24 v{vCA}, 2752, v{vCA}
    v_and_b32 v{vCA+1}, 3, v{vL}
    v_lshl_add_u32 v{vCA}, v{vCA+1}, 4, v{vCA}
    v_add_u32 v{vCA}, s{sT}, v{vCA}
    """)
    for i in range(8):
        A(f"global_load_dwordx4 v[{vCS+4*i}:{vCS+4*i+3}], v{vCA}, s[62:63]")
        if i<7: A(f"v_add_u32 v{vCA}, {16*2752}, v{vCA}")
    A.label("ka_nocs")
    c_=vW+56
    for v in range(3):
        A(f"""
        v_add_u32 v{c_}, {64*v}, v{vL}
        v_mul_u32_u24 v{c_+1}, 0xaaab, v{c_}
        v_lshrrev_b32 v{c_+1}, 19, v{c_+1}
        v_mul_u32_u24 v{c_+1}, {2752-192}, v{c_+1}
        v_lshl_add_u32 v{vWo+v}, v{vL}, 4, v{c_+1}
        """)
    A(f"""
    s_and_b32 s{sT}, s2, 1
    s_lshl_b32 s{sT}, s{sT}, 3
    s_lshr_b32 s{sT2}, s2, 5
    s_add_u32 s{sCBg}, s{sT}, s{sT2}
    s_mul_i32 s{sWO}, s{sCH}, {16*2752}
    s_mul_i32 s{sT2}, s{sCBg}, 192
    s_add_u32 s{sWO}, s{sWO}, s{sT2}
    s_mul_i32 s{sM0W}, s{sCH}, 3072
    s_mul_i32 s{sT}, s{sHALF}, {W_U}
    s_add_u32 s{sM0W}, s{sM0W}, s{sT}
    s_cmp_ge_u32 s{sW}, 6
    s_cselect_b32 s{sWt}, s22, s20
    s_cselect_b32 s{sWt+1}, s23, s21
    s_mov_b32 s{sWt+2}, {512*2752}
    s_mov_b32 s{sWt+3}, 0x20000
    """)
    def prefill():
        A(f"""
        s_mul_i32 s{sSP}, s{sCBg}, 3
        s_min_u32 s{sSP}, s{sSP}, 40
        s_and_b32 s{sT}, s2, 6
        s_lshl_b32 s{sT}, s{sT}, 1
        s_bfe_u32 s{sT2}, s2, 0x20003
        s_add_u32 s{sT}, s{sT}, s{sT2}
        s_lshl_b32 s{sT}, s{sT}, 2
        s_add_u32 s{sT}, s{sT}, s{sW}
        s_sub_u32 s{sT}, s{sT}, 4
        s_mul_i32 s{sT}, s{sT}, 86
        s_add_u32 s{sT}, s{sT}, s{sSP}
        s_lshl_b32 s{sT}, s{sT}, 10
        s_add_u32 s{sT}, s{sT}, {WS_HM}
        v_lshl_add_u32 v{c_}, v{vL}, 4, s{sT}
        v_add_u32 v{c_+1}, {43*1024}, v{c_}
        v_mov_b32 v{c_+4}, -1
        v_mov_b32 v{c_+5}, -1
        v_mov_b32 v{c_+6}, -1
        v_mov_b32 v{c_+7}, -1
        """)
        for o in (0,1024,2048):
            for r in (0,1): A(f"global_store_dwordx4 v{c_+r}, v[{c_+4}:{c_+7}], s[30:31] offset:{o}{WT}")
    prefill()
    for st in range(NPL//2): issue_w(A,st)
    A(f"""
    s_cmp_lg_u32 s{sW}, 4
    s_cbranch_scc1 ka_a3
    s_cmp_lg_u32 s2, 0
    s_cbranch_scc1 ka_a3
    s_add_u32 s{sT}, s{sEP}, 1
    v_mov_b32 v{t}, {WS_EPOCH}
    v_mov_b32 v{t+1}, s{sT}
    s_mov_b64 exec, 1
    global_store_dword v{t}, v{t+1}, s[30:31]
    """)
    A.label("ka_a3")
    A("s_mov_b64 exec, -1")
    for l in calc_ud()+epi_addr(): A(l)
    if "dpf" in X:
        A(f"""
        s_cmp_ge_u32 s{sW}, 6
        s_cbranch_scc1 ka_nodpf
        s_lshr_b32 s{sT}, s2, 3
        s_lshl_b32 s{sT}, s{sT}, 1
        s_add_u32 s{sT}, s{sT}, s{sCH}
        s_mul_i32 s{sT}, s{sT}, {172*128}
        v_lshl_add_u32 v{c_}, v{vL}, 7, s{sT}
        global_load_dword v{vRA+3}, v{c_}, s[24:25]
        v_add_u32 v{c_}, 8192, v{c_}
        global_load_dword v{vRA+3}, v{c_}, s[24:25]
        v_add_u32 v{c_}, 8192, v{c_}
        s_mov_b32 exec_hi, 0xfff
        global_load_dword v{vRA+3}, v{c_}, s[24:25]
        s_mov_b32 exec_hi, -1
        """)
        A.label("ka_nodpf")
    A(f"""
    s_cmp_ge_u32 s{sU}, 344
    s_cbranch_scc1 ka_pfw
    s_waitcnt vmcnt({3*(NPL//2)+6})
    """)
    for i in range(8):
        for j in range(4):
            r=vCS+4*i+j
            if i==0:
                A(f"v_lshlrev_b32 v{S+2*j}, 16, v{r}")
                A(f"v_and_b32 v{S+2*j+1}, 0xffff0000, v{r}")
            else:
                A(f"v_lshlrev_b32 v{t}, 16, v{r}")
                A(f"v_and_b32 v{t+1}, 0xffff0000, v{r}")
                A(f"v_add_f32 v{S+2*j}, v{S+2*j}, v{t}")
                A(f"v_add_f32 v{S+2*j+1}, v{S+2*j+1}, v{t+1}")
    for j in range(4): A(f"v_permlane32_swap_b32 v{S+j}, v{S+j+4}")
    for j in range(4): A(f"v_add_f32 v{S+j}, v{S+j}, v{S+j+4}")
    for j in range(2): A(f"v_permlane16_swap_b32 v{S+j}, v{S+j+2}")
    for j in range(2): A(f"v_add_f32 v{S+j}, v{S+j}, v{S+j+2}")
    for ctl in ("row_ror:8","row_ror:4"):
        for j in range(2): A(f"v_add_f32_dpp v{S+j}, v{S+j}, v{S+j} {ctl} row_mask:0xf bank_mask:0xf")
    d=S+2
    A(f"""
    v_and_b32 v{t}, 4, v{vL}
    v_cmp_ne_u32 vcc, 0, v{t}
    v_cndmask_b32 v{S}, v{S}, v{S+1}, vcc
    v_cvt_pk_bf16_f32 v{S+1}, v{S}, v{S}
    v_and_b32 v{S+1}, 0xffff0000, v{S+1}
    v_sub_f32 v{S+1}, v{S}, v{S+1}
    v_cvt_pk_bf16_f32 v{d}, v{S}, v{S+1}
    v_mov_b32 v{d+1}, s{sTAG}
    v_lshlrev_b32 v{ad}, 8, v{vCA+1}
    v_lshl_add_u32 v{ad}, v{hh}, 7, v{ad}
    v_and_b32 v{t+1}, 16, v{vL}
    v_lshl_add_u32 v{ad}, v{t+1}, 2, v{ad}
    v_lshl_add_u32 v{ad}, v{t}, 3, v{ad}
    s_lshr_b32 s{sT}, s{sU}, 2
    s_lshl_b32 s{sT}, s{sT}, 10
    s_and_b32 s{sT2}, s{sU}, 3
    s_lshl_b32 s{sT2}, s{sT2}, 3
    s_add_u32 s{sT}, s{sT}, s{sT2}
    s_add_u32 s{sT}, s{sT}, {WS_CS}
    v_add_u32 v{ad}, s{sT}, v{ad}
    s_mov_b32 exec_lo, 0x00ff00ff
    s_mov_b32 exec_hi, 0x00ff00ff
    global_store_dwordx2 v{ad}, v[{d}:{d+1}], s[30:31]{WT}
    s_mov_b64 exec, -1
    """)
    A.label("ka_pfw")
    for st in range(NPL//2,NPL): issue_w(A,st)
    A(f"s_waitcnt vmcnt({3*NPL})")
    stamp(A,8)
    A("s_branch ka_fin")
```

```python
from common import *
from mA import WSLOT,NWS,W_U,X_CNT,sTAG,sWt,sWO,sM0W,vWo,issue_w,NPL,WT
GC1=-2.0*math.sqrt(2.0/math.pi)*LOG2E; GC2=GC1*0.044715
HR=NWS*WSLOT; HRN=4; SPARE=HR+HRN*8192
FS=int(os.environ.get('FS','5'))
NREG=6; SPIN=1<<16; NA=int(os.environ.get('NA','22'))
WS_SIZE=0x1000000
NPRE=int(os.environ.get('NPRE','10')); WPI=int(os.environ.get("WPI","3"))
RL=4
def make_sched():
    free=[(SPARE,-1)]
    for st in range(6,16):
        for i in range(3): free.append(((st%NWS)*WSLOT+4096*i, st+1))
        if st>=12:
            for i in range(2): free.append((HR+(st%HRN)*8192+4096*i, st+1))
    loc={}; issue={j:[] for j in range(-1,17)}; read={j:[] for j in range(17)}
    nb=0; res=None
    for j in range(-1,17):
        lim = 99 if j==16 else (1 if j<0 else (WPI if j+HRN-1<16 else WPI+2))
        c=0
        if j==7:
            res=6*WSLOT; free=[f for f in free if f[0] not in (res,res+4096)]
            issue[j].append("r"); c+=2; read[j+RL].append("r"); free+= [(res,j+RL+1),(res+4096,j+RL+1)]
        while nb<43 and c<lim:
            av=sorted([f for f in free if f[1]<=j],key=lambda f:f[1])
            if not av: break
            f=av[0]; free.remove(f); loc[nb]=f[0]; issue[j].append(nb)
            if nb<NPRE:
                jr=max(j+RL,1) if j>=0 else 1; read[jr].append(nb); free.append((f[0],jr+1))
            nb+=1; c+=1
    assert nb==43 and len(free)>=4
    return loc,issue,read,res,[f[0] for f in free[:4]]
LOC,ISSUE,READ,X_RES,X_RED=make_sched()
def wd_loc(b): return LOC[b]
ORD=[b for b in range(43) if b%3!=2]+[b for b in range(43) if b%3==2]
CUE=int(os.environ.get('CUE','4'))
def bc(r): return f"v[{r}:{r+1}]"

def phaseB(A):
    sW=36; sMB=37; sCB=38; sT=39; sT2=40; sJ=42; sHO=43; sOO=44; sM0H=45; sHM=46; sDO=47
    sS=48; sC=56; sOUT=60; sD=4; sM0D=16; sSP=17
    vL=1; vT=10
    SR=f"s[{sS}:{sS+3}]"
    stamp(A,0)
    A(f"""
    s_and_b32 s{sT}, s2, 1
    s_lshl_b32 s{sT}, s{sT}, 3
    s_lshr_b32 s{sT2}, s2, 5
    s_add_u32 s{sCB}, s{sT}, s{sT2}
    s_and_b32 s{sT}, s2, 6
    s_lshl_b32 s{sT}, s{sT}, 1
    s_bfe_u32 s{sT2}, s2, 0x20003
    s_add_u32 s{sMB}, s{sT}, s{sT2}
    v_mov_b32 v8, {X_CNT}
    s_mov_b32 s{sS}, s30
    s_mov_b32 s{sS+1}, s31
    s_mov_b32 s{sS+2}, {WS_SIZE}
    s_mov_b32 s{sS+3}, 0x20000
    s_cmp_lt_u32 s{sW}, 4
    s_cbranch_scc1 k2_lo
    """)
    vH=2; vLin=3; vR=7
    def p2_setup():
        A(f"""
        s_and_b32 s{sT}, s{sCB}, 7
        s_lshl_b32 s{sM0D}, s{sW}, 10
        v_bfe_u32 v{vT}, v{vL}, 4, 2
        v_lshlrev_b32 v{vT}, 1, v{vT}
        v_and_b32 v{vT+1}, 7, v{vL}
        v_xor_b32 v{vT}, v{vT}, v{vT+1}
        v_lshlrev_b32 v{vT}, 4, v{vT}
        v_lshrrev_b32 v{vT+2}, 3, v{vL}
        v_lshl_add_u32 v{vR}, v{vT+2}, 8, v{vT}
        s_lshl_b32 s{sDO}, s{sT}, 7
        s_lshl_b32 s{sT2}, s{sW}, 13
        s_add_u32 s{sDO}, s{sDO}, s{sT2}
        v_bfe_u32 v{vT}, v{vL}, 4, 1
        s_and_b32 s{sT}, s{sW}, 1
        s_lshl_b32 s{sT}, s{sT}, 1
        v_or_b32 v{vT}, s{sT}, v{vT}
        v_lshlrev_b32 v{vT}, 1, v{vT}
        v_xor_b32 v{vT}, v{vT}, v{vT+1}
        v_lshlrev_b32 v{vT}, 4, v{vT}
        v_lshl_add_u32 v{vLin}, v{vT+2}, 10, v{vT}
        """)
        srd(A,sD,24,0,1376*1024)
    def issue_wd(b,loc=None):
        A(f"""
        s_add_u32 m0, s{sM0D}, {wd_loc(b) if loc is None else loc}
        s_add_u32 s{sT}, s{sDO}, {32768*ORD[b]}
        buffer_load_dwordx4 v{vLin}, s[{sD}:{sD+3}], s{sT} offen lds
        """)
    def issue_res():
        A(f"""
        s_and_b32 s{sT}, s{sCB}, 7
        s_lshl_b32 s{sT}, s{sT}, 14
        s_lshl_b32 s{sT2}, s{sW}, 12
        s_add_u32 s{sT}, s{sT}, s{sT2}
        s_lshl_b32 s{sT2}, s{sMB}, 17
        s_add_u32 s{sT}, s{sT}, s{sT2}
        s_lshr_b32 s{sT2}, s{sCB}, 3
        s_lshl_b32 s{sT2}, s{sT2}, 7
        s_add_u32 s{sT}, s{sT}, s{sT2}
        s_add_u32 s{sT}, s{sT}, {WS_HT}
        s_lshl_b32 s{sT2}, s{sW}, 11
        s_add_u32 m0, s{sT2}, {X_RES}
        s_add_u32 s{sT2}, s{sT}, 2048
        buffer_load_dwordx4 v{vR}, {SR}, s{sT} offen lds
        s_add_u32 m0, m0, 1024
        s_nop 0
        buffer_load_dwordx4 v{vR}, {SR}, s{sT2} offen lds
        """)
    def issue_h(st):
        A(f"""
        s_add_u32 m0, s{sM0H}, {HR+(st%HRN)*8192}
        s_nop 0
        buffer_load_dwordx4 v{vH}, {SR}, s{sHO} offen lds
        buffer_load_dwordx4 v{vH}, {SR}, s{sHO} offen offset:1024 lds
        s_add_u32 s{sHO}, s{sHO}, 8192
        """)
    def lbar(k):
        l=A.newlabel("k2_lb")
        A(f"""
        v_mov_b32 v9, 1
        s_mov_b64 exec, 1
        ds_add_u32 v8, v9
        s_mov_b64 exec, -1
        """)
        A.label(l)
        A(f"""
        ds_read_b32 v9, v8
        s_waitcnt lgkmcnt(0)
        v_cmp_gt_u32 vcc, {4*k}, v9
        s_cbranch_vccnz {l}
        """)
    aW=12; aRr=15; vF=16; vHo=17; vOo=18; vX=19
    NS=11
    ACC=20; RG=36; FW=RG+16*(NS-1); NH=7; FH=RG+16*NS; aWn=FH+4*NH
    def p2_addr(grpB):
        A(f"""
        v_bfe_u32 v{vT}, v{vL}, 2, 2
        v_lshrrev_b32 v{vT+1}, 4, v{vL}
        v_lshl_add_u32 v{aW}, v{vT+1}, 3, v{vT}
        v_lshlrev_b32 v{aW}, 7, v{aW}
        v_and_b32 v{aW+1}, 3, v{vL}
        v_lshl_add_u32 v{aW}, v{aW+1}, 3, v{aW}
        v_lshrrev_b32 v{aW+2}, 1, v{vT}
        v_and_b32 v{vF}, 1, v{vT+1}
        v_lshl_or_b32 v{aW+2}, v{vF}, 1, v{aW+2}
        """)
        for nt in range(4):
            A(f"v_xor_b32 v{vF}, {nt}, v{aW+2}")
            A(f"v_lshl_add_u32 v{aWn+nt}, v{vF}, 5, v{aW}")
            A(f"v_add_u32 v{aWn+4+nt}, 0xf000, v{aWn+nt}")
            A(f"v_add_u32 v{aWn+8+nt}, 0x1e000, v{aWn+nt}")
        if not grpB:
            A(f"""
            v_lshl_add_u32 v{aRr}, v{vT+1}, 2, v{vT}
            v_lshlrev_b32 v{aRr}, 7, v{aRr}
            v_lshl_add_u32 v{aRr}, v{aW+1}, 3, v{aRr}
            v_xor_b32 v{vF}, s{sW}, v{aW+2}
            v_lshl_add_u32 v{aRr}, v{vF}, 5, v{aRr}
            v_add_u32 v{aRr}, {X_RES}, v{aRr}
            """)
        A(f"""
        v_lshlrev_b32 v{vHo}, 4, v{vL}
        v_and_b32 v{vOo}, 15, v{vL}
        v_lshlrev_b32 v{vOo}, 10, v{vOo}
        v_lshl_add_u32 v{vOo}, v{vT+1}, 3, v{vOo}
        s_mov_b32 s{sT}, {X_RED[0]}
        s_cmp_eq_u32 s{sW}, 1
        s_cselect_b32 s{sT}, {X_RED[1]}, s{sT}
        s_cmp_eq_u32 s{sW}, 2
        s_cselect_b32 s{sT}, {X_RED[2]}, s{sT}
        s_cmp_eq_u32 s{sW}, 3
        s_cselect_b32 s{sT}, {X_RED[3]}, s{sT}
        v_add_u32 v{vX}, s{sT}, v{vHo}
        """)
        srd(A,sOUT,26,0,2048*1024)
        A(f"""
        s_lshl_b32 s{sT}, s{sMB}, 1
        s_lshr_b32 s{sT2}, s{sCB}, 3
        s_add_u32 s{sT}, s{sT}, s{sT2}
        s_lshl_b32 s{sT}, s{sT}, 2
        s_add_u32 s{sT}, s{sT}, s{sW}
        s_mul_i32 s{sHM}, s{sT}, {43*1024}
        s_add_u32 s{sHM}, s{sHM}, {WS_HM}
        s_lshl_b32 s{sOO}, s{sT}, 14
        s_and_b32 s{sT2}, s{sCB}, 7
        s_lshl_b32 s{sT2}, s{sT2}, 7
        s_add_u32 s{sOO}, s{sOO}, s{sT2}
        """)
    def rdw(dst,b,loc=None):
        loc=wd_loc(b) if loc is None else loc; win=loc//0xf000; off=loc-win*0xf000
        return [f"ds_read_b64_tr_b16 v[{dst+4*nt+2*e}:{dst+4*nt+2*e+1}], v{aWn+4*win+nt} offset:{off+512*e}" for nt in range(4) for e in range(2)]
    assert NPRE>=10
    stubs=[]
    def cnt_wait(off,val):
        l=A.newlabel("k2_cw")
        A.label(l)
        A(f"""
        ds_read_b32 v9, v8 offset:{off}
        s_waitcnt lgkmcnt(0)
        v_cmp_gt_u32 vcc, {val}, v9
        s_cbranch_vccnz {l}
        """)
    def cnt_add(off):
        A(f"""
        v_mov_b32 v9, 1
        s_mov_b64 exec, 1
        ds_add_u32 v8, v9 offset:{off}
        s_mov_b64 exec, -1
        """)
    def p2_loop(b0,n,grpB):
        def ldh(s,sc=""):
            d=FH+4*(s%NH)
            return [f"s_add_u32 s{sT}, s{sHM}, {1024*ORD[b0+s]}", f"buffer_load_dwordx4 v[{d}:{d+3}], v{vHo}, {SR}, s{sT} offen{sc}"]
        D=min(NH-1,int(os.environ.get("P2D","6"))); PD=NPRE
        A(f"s_mov_b32 s{sSP}, 0")
        for s in range(D):
            for l in ldh(s): A(l)
        for s in range(n):
            src=RG+16*(s%NS)
            nr=rdw(RG+16*((s+PD)%NS),b0+s+PD) if s+PD<n else []
            lg=""
            if s>=NPRE:
                out=8*(min(n,s+PD)-s-1)
                if out<=15: lg=f" lgkmcnt({out})"
            A(f"s_waitcnt vmcnt({min(n,s+D)-s-1})"+lg)
            h=FH+4*(s%NH)
            lc=f"k2_c{b0+s}"; lr=f"k2_r{b0+s}"; lo=f"k2_o{b0+s}"
            A.label(lc)
            A(f"""
            v_max3_u32 v{vT}, v{h}, v{h+1}, v{h+2}
            v_max_u32 v{vT}, v{vT}, v{h+3}
            v_cmp_eq_u32 vcc, -1, v{vT}
            s_cbranch_vccnz {lr}
            """)
            A.label(lo)
            stubs.append((lr,lc,lo,ldh(s," sc0 sc1")))
            if s+D<n:
                for l in ldh(s+D): A(l)
            for nt in range(4):
                c="0" if (grpB and s==0) else f"v[{ACC+4*nt}:{ACC+4*nt+3}]"
                A(f"v_mfma_f32_16x16x32_bf16 v[{ACC+4*nt}:{ACC+4*nt+3}], v[{src+4*nt}:{src+4*nt+3}], v[{h}:{h+3}], {c}")
                if nt==0 and nr: A("s_waitcnt lgkmcnt(7)")
                for r in nr[2*nt:2*nt+2]: A(r)
        if not(grpB and 'prof' in X): stamp(A,7)
        give=ACC if grpB else ACC+8; keep=ACC+8 if grpB else ACC
        wo=0 if grpB else 2048; ro=2048 if grpB else 0
        A(f"""
        ds_write_b128 v{vX}, v[{give}:{give+3}] offset:{wo}
        ds_write_b128 v{vX}, v[{give+4}:{give+7}] offset:{wo+1024}
        s_waitcnt lgkmcnt(0)
        s_barrier
        ds_read_b128 v[{RG}:{RG+3}], v{vX} offset:{ro}
        ds_read_b128 v[{RG+4}:{RG+7}], v{vX} offset:{ro+1024}
        """)
        for i in range(2):
            A(f"s_waitcnt lgkmcnt({1-i})")
            for q in range(2):
                r=4*i+2*q
                A(f"v_pk_add_f32 {bc(keep+r)}, {bc(keep+r)}, {bc(RG+r)}")
            for q in range(2):
                r=4*i+2*q
                A(f"v_cvt_pk_bf16_f32 v{RG+8+2*i+q}, v{keep+r}, v{keep+r+1}")
            A(f"buffer_store_dwordx2 {bc(RG+8+2*i)}, v{vOo}, s[{sOUT}:{sOUT+3}], s{sOO} offen offset:{32*(i+(2 if grpB else 0))}")
    A(f"""
    s_cmp_eq_u32 s{sCB}, 15
    s_cbranch_scc1 k2_stats
    """)
    for st in range(NPL,NWS): issue_w(A,st)
    A(f"""
    s_sub_u32 s{sW}, s{sW}, 4
    v_lshrrev_b32 v{vT}, 4, v{vL}
    v_lshlrev_b32 v{vT+1}, 2, v{vT}
    v_and_b32 v{vT+2}, 15, v{vL}
    v_xor_b32 v{vT+1}, v{vT+1}, v{vT+2}
    v_lshlrev_b32 v{vT+1}, 4, v{vT+1}
    v_lshl_add_u32 v{vH}, v{vT}, 8, v{vT+1}
    s_lshl_b32 s{sM0H}, s{sW}, 11
    s_lshl_b32 s{sT}, s{sMB}, 17
    s_add_u32 s{sHO}, s{sM0H}, s{sT}
    s_add_u32 s{sHO}, s{sHO}, {WS_HT}
    """)
    p2_setup()
    p2_addr(False)
    def rd_res():
        for q in range(4): A(f"ds_read_b64_tr_b16 v[{FW+2*q}:{FW+2*q+1}], v{aRr} offset:{2048*q}")
        A("s_waitcnt lgkmcnt(0)")
        for q in range(8):
            A(f"v_lshlrev_b32 v{ACC+2*q}, 16, v{FW+q}")
            A(f"v_and_b32 v{ACC+2*q+1}, 0xffff0000, v{FW+q}")
    for b in ISSUE[-1]: issue_wd(b)
    stamp(A,1)
    A("s_barrier")
    stamp(A,2)
    issued=[]
    for st in range(HRN-1): issue_h(st); issued.append((("h",st),2))
    def after(keys):
        idx=max(i for i,(t,_) in enumerate(issued) if t in keys)
        return sum(c for _,c in issued[idx+1:])
    for j in range(17):
        if j<16:
            A(f"s_waitcnt vmcnt({min(63,after({('h',j),('w',j),('d',j-RL)}))}) lgkmcnt(0)")
            A("s_barrier")
        else: cnt_wait(12,4)
        if j==0: stamp(A,3)
        if j+HRN-1<16: issue_h(j+HRN-1); issued.append((("h",j+HRN-1),2))
        if 1<=j and j+NWS-1<16: issue_w(A,j+NWS-1); issued.append((("w",j+NWS-1),3))
        c=0; rl=list(READ[j])
        for b in ISSUE[j]:
            if b=="r": issue_res(); c+=2
            else: issue_wd(b); c+=1
            if rl:
                x=rl.pop(0)
                if x=="r": rd_res()
                else:
                    for r in rdw(RG+16*x,x): A(r)
        for x in rl:
            if x=="r": rd_res()
            else:
                for r in rdw(RG+16*x,x): A(r)
        if c: issued.append((("d",j),c))
    stamp(A,4)
    A.label("k2_p2")
    A("s_waitcnt vmcnt(0)")
    cnt_add(0)
    cnt_wait(0,4)
    stamp(A,5)
    cnt_wait(4,4)
    stamp(A,6)
    p2_loop(0,NA,False)
    dump(A,2,8,sW,4)
    A("s_endpgm")
    A.label("k2_lo")
    PF=200
    A(f"""
    s_lshr_b32 s{sT}, s{sMB}, 1
    s_lshl_b32 s{sT}, s{sT}, 10
    s_add_u32 s{sT}, s{sT}, {WS_FLH}
    v_lshl_add_u32 v{PF+4}, v{vL}, 4, s{sT}
    """)
    def hpoll(lab):
        A(f"""
        s_cmp_lg_u32 s{sW}, 0
        s_cbranch_scc1 {lab}_d
        s_mov_b32 s{sSP}, 0
        """)
        A.label(lab)
        A(f"""
        global_load_dwordx4 v[{PF}:{PF+3}], v{PF+4}, s[30:31] sc0 sc1
        s_add_u32 s{sSP}, s{sSP}, 1
        s_cmp_ge_u32 s{sSP}, {SPIN}
        s_cbranch_scc1 {lab}_d
        s_waitcnt vmcnt(0)
        v_xor_b32 v{PF}, s{sTAG}, v{PF}
        v_xor_b32 v{PF+1}, s{sTAG}, v{PF+1}
        v_xor_b32 v{PF+2}, s{sTAG}, v{PF+2}
        v_xor_b32 v{PF+3}, s{sTAG}, v{PF+3}
        v_or3_b32 v{PF}, v{PF}, v{PF+1}, v{PF+2}
        v_or_b32 v{PF}, v{PF}, v{PF+3}
        v_cmp_ne_u32 vcc, 0, v{PF}
        s_cbranch_vccnz {lab}
        """)
        A.label(lab+"_d")
    A(f"""
    s_cmp_eq_u32 s{sCB}, 15
    s_cbranch_scc1 k2_stats_lo
    """)
    sWT=18; sWF=19
    aH=2; aWc=4; cT=11; CSF=18; FA=30; FB=50; CAC=70; vS=166; vSt=170
    A(f"""
    s_setprio 1
    s_and_b32 s{sWT}, s{sW}, 1
    s_lshr_b32 s{sWF}, s{sW}, 1
    v_bfe_u32 v{cT}, v{vL}, 2, 2
    v_lshrrev_b32 v{cT+1}, 5, v{vL}
    v_lshl_add_u32 v{cT+1}, v{cT+1}, 3, v{cT}
    v_and_b32 v{cT+2}, 3, v{vL}
    v_bfe_u32 v{cT+3}, v{vL}, 4, 1
    v_lshlrev_b32 v{cT+4}, 8, v{cT+1}
    v_lshl_add_u32 v{cT+4}, v{cT+3}, 5, v{cT+4}
    v_lshl_add_u32 v{cT+4}, v{cT+2}, 3, v{cT+4}
    v_add_u32 v{cT+4}, {HR}, v{cT+4}
    s_lshl_b32 s{sT}, s{sWT}, 1
    v_xor_b32 v{cT+5}, s{sT}, v{cT}
    v_lshl_add_u32 v{aH}, v{cT+5}, 6, v{cT+4}
    v_xor_b32 v{cT+5}, 1, v{cT+5}
    v_lshl_add_u32 v{aH+1}, v{cT+5}, 6, v{cT+4}
    v_mul_u32_u24 v{aWc}, 192, v{cT+1}
    v_mul_u32_u24 v{cT+4}, {W_U}, v{cT+3}
    v_add_u32 v{aWc}, v{aWc}, v{cT+4}
    v_and_b32 v{cT+4}, 1, v{vL}
    v_lshl_add_u32 v{aWc}, v{cT+4}, 4, v{aWc}
    v_bfe_u32 v{cT+4}, v{vL}, 1, 1
    v_lshl_add_u32 v{aWc}, v{cT+4}, 3, v{aWc}
    s_lshl_b32 s{sT}, s{sWF}, 5
    v_add_u32 v{aWc+2}, s{sT}, v{aWc}
    v_add_u32 v{aWc}, s{sT}, v{aWc+2}
    v_add_u32 v{aWc+1}, {5*WSLOT}, v{aWc}
    v_add_u32 v{aWc+3}, {5*WSLOT}, v{aWc+2}
    v_and_b32 v{cT+4}, 1, v{cT}
    v_lshl_add_u32 v{cT+4}, v{cT+4}, 3, v{cT+2}
    v_lshrrev_b32 v{cT+5}, 1, v{cT}
    v_lshl_add_u32 v{cT+4}, v{cT+5}, 2, v{cT+4}
    v_mul_u32_u24 v{cT+5}, 1376, v{cT+3}
    v_add_u32 v{cT+4}, v{cT+4}, v{cT+5}
    v_and_b32 v{cT+5}, 32, v{vL}
    v_lshrrev_b32 v{cT+1}, 1, v{cT+5}
    v_lshl_add_u32 v{cT+4}, v{cT+4}, 5, v{cT+1}
    """)
    A(f"""
    s_mul_i32 s54, s{sCB}, 6
    s_add_u32 s54, s54, s{sWF}
    s_add_u32 s52, s54, s{sWF}
    s_add_u32 s53, s52, 1
    s_add_u32 s54, s54, 4
    """)
    for rt in range(3):
        A(f"""
        s_min_u32 s{20+rt}, s{52+rt}, 85
        s_lshl_b32 s{20+rt}, s{20+rt}, 9
        s_add_u32 s{20+rt}, s{20+rt}, {WS_CS}
        """)
    A(f"""
    s_lshl_b32 s{sT}, s{sMB}, 10
    s_lshl_b32 s{sT2}, s{sWT}, 9
    s_add_u32 s{sT}, s{sT}, s{sT2}
    s_add_u32 s{sT}, s{sT}, {WS_ST3}
    v_and_b32 v{cT}, 31, v{vL}
    v_lshl_add_u32 v{vSt}, v{cT}, 3, s{sT}
    v_mul_u32_u24 v{cT+1}, {43*1024}, v{cT+3}
    v_lshl_add_u32 v{cT+1}, v{cT+5}, 3, v{cT+1}
    v_and_b32 v{cT}, 15, v{vL}
    v_lshl_add_u32 v{cT+1}, v{cT}, 4, v{cT+1}
    s_lshl_b32 s{sT}, s{sMB}, 1
    s_add_u32 s{sT}, s{sT}, s{sWT}
    s_mul_i32 s{sJ}, s{sT}, {4*43*1024}
    s_add_u32 s{sJ}, s{sJ}, {WS_HM}
    v_mov_b32 v{vS}, 0
    """)
    hpoll("k2_hp")
    def rd(F,st,ks):
        sl=st%NWS; g=sl//5; so=(sl%5)*WSLOT; ho=(st%HRN)*8192
        def w(rt,e): return f"ds_read_b64_tr_b16 v[{F+8+4*rt+2*e}:{F+8+4*rt+2*e+1}], v{aWc+g+(2 if rt==2 else 0)} offset:{so+(16*ks+4*e)*192+(128 if rt==2 else 32*rt)}"
        def h(ct,e): return f"ds_read_b64_tr_b16 v[{F+4*ct+2*e}:{F+4*ct+2*e+1}], v{aH+ct} offset:{ho+(16*ks+4*e)*256}"
        return [w(0,0),w(0,1),h(0,0),h(0,1),h(1,0),h(1,1),w(1,0),w(1,1),w(2,0),w(2,1)]
    first=[True]*6
    def mm(F):
        out=[]
        for rt in range(3):
            for ct in range(2):
                a=CAC+16*(2*rt+ct)
                c="0" if first[2*rt+ct] else f"v[{a}:{a+15}]"
                first[2*rt+ct]=False
                out.append(f"v_mfma_f32_32x32x16_bf16 v[{a}:{a+15}], v[{F+8+4*rt}:{F+8+4*rt+3}], v[{F+4*ct}:{F+4*ct+3}], {c}")
        return out
    need_before=[4,6,8,8,10,10]
    def phase(ms,rs,prev_pending):
        issued=0; per=[2,2,2,2,2,0]; lastw=None
        for i,m in enumerate(ms):
            if prev_pending:
                n=(10-need_before[i])+issued
                if lastw is None or need_before[i]>lastw:
                    A(f"s_waitcnt lgkmcnt({min(n,15)})"); lastw=need_before[i]
            A(m)
            for _ in range(per[i]):
                if issued<len(rs): A(rs[issued]); issued+=1
    def ldst():
        A(f"global_load_dwordx2 {bc(vS)}, v{vSt}, s[30:31] sc0 sc1")
        A(f"global_load_dwordx2 {bc(vS+2)}, v{vSt}, s[30:31] offset:256 sc0 sc1")
    def ldcs(sc):
        for rt in range(3):
            A(f"buffer_load_dwordx4 v[{CSF+4*rt}:{CSF+4*rt+3}], v{cT+4}, {SR}, s{20+rt} offen{sc}")
    BF=172; K1=180; K3=184; K2=188; XX=192
    def stat_fix():
        A(f"s_mov_b32 s{sSP}, 0")
        A.label("k2_stchk")
        A("s_waitcnt vmcnt(0)")
        tg=[vS+1,vS+3]+[CSF+4*rt+o for rt in range(3) for o in (1,3)]
        for i,r in enumerate(tg): A(f"v_xor_b32 v{XX+i}, s{sTAG}, v{r}")
        A(f"""
        v_or3_b32 v{XX}, v{XX}, v{XX+1}, v{XX+2}
        v_or3_b32 v{XX+3}, v{XX+3}, v{XX+4}, v{XX+5}
        v_or3_b32 v{XX}, v{XX}, v{XX+6}, v{XX+7}
        v_or_b32 v{XX}, v{XX}, v{XX+3}
        v_cmp_ne_u32 vcc, 0, v{XX}
        s_cbranch_vccnz k2_stretry
        """)
        A.label("k2_stok")
        for rt in range(3):
            A(f"v_mov_b32 v{CSF+4*rt+1}, 0"); A(f"v_mov_b32 v{CSF+4*rt+3}, 0")
        for ct in range(2):
            A(f"""
            v_and_b32 v{BF+4*ct+1}, 0xffff, v{vS+2*ct}
            v_xor_b32 v{BF+4*ct+1}, 0x8000, v{BF+4*ct+1}
            v_lshl_or_b32 v{BF+4*ct}, v{BF+4*ct+1}, 16, v{BF+4*ct+1}
            v_mov_b32 v{BF+4*ct+3}, 0
            v_mov_b32 v{BF+4*ct+2}, v{BF+4*ct}
            """)
        B=Asm()
        for ct in range(2):
            x=XX+4*ct
            B(f"""
            v_and_b32 v{x+1}, 0xffff0000, v{vS+2*ct}
            v_rcp_f32 v{x+2}, v{x+1}
            v_mul_f32 v{K2+2*ct}, v{x+1}, v{x+1}
            v_mul_f32 v{K1+2*ct}, {f32(GC1)}, v{x+2}
            v_mul_f32 v{x+3}, v{x+2}, v{x+2}
            v_mul_f32 v{x+3}, v{x+3}, v{x+2}
            v_mul_f32 v{K3+2*ct}, {f32(GC2)}, v{x+3}
            """)
        bl=[l.strip() for l in B.l]; i=0
        for rt in range(3):
            for ct in range(2):
                a=CAC+16*(2*rt+ct)
                A(f"v_mfma_f32_32x32x16_bf16 v[{a}:{a+15}], v[{CSF+4*rt}:{CSF+4*rt+3}], v[{BF+4*ct}:{BF+4*ct+3}], v[{a}:{a+15}]")
                for l in bl[i*3:(i+1)*3]: A(l)
                i+=1
    if 'prof' not in X: stamp(A,1)
    A("s_barrier")
    for j in range(16):
        A("s_barrier")
        if "prof" in X and j in (0,3,6,9,12,14): stamp(A,{0:1,3:3,6:4,9:5,12:6,14:7}[j])
        if j==0:
            for r in rd(FA,0,0): A(r)
        else:
            phase(mm(FB),rd(FA,j,0),False)
        if j==2: A(f"global_load_dword v{vS+1}, v{vS}, s[26:27]")
        if j==4: ldcs("")
        if j==12: ldst()
        phase(mm(FA),rd(FB,j,1),True)
        if j==14: stat_fix()
        A("s_waitcnt lgkmcnt(0)")
    stamp(A,2)
    ms=mm(FB)
    A(ms[0])
    cnt_add(12)
    for m in ms[1:]: A(m)
    if 'prof' not in X: stamp(A,3)
    T=FA
    for rt in range(3):
        A(f"""
        s_cmp_ge_u32 s{52+rt}, 86
        s_cbranch_scc1 {"k2_sig" if 2*rt>=CUE else "k2_sig0"}
        s_lshl_b32 s{sT}, s{52+rt}, 9
        s_add_u32 s{sT}, s{sT}, s{sJ}
        s_add_u32 s{sT2}, s{sT}, {2*43*1024}
        """)
        for ct in range(2):
            a=CAC+16*(2*rt+ct); t=T+8*ct
            k1=K1+2*ct; k2=K2+2*ct; k3=K3+2*ct
            for r in range(0,8,2): A(f"v_pk_mul_f32 {bc(t+r)}, {bc(a+r)}, {bc(a+r)}")
            for r in range(0,8,2): A(f"v_pk_fma_f32 {bc(t+r)}, {bc(t+r)}, {bc(k3)}, {bc(k1)} op_sel_hi:[1,0,0]")
            for r in range(0,8,2): A(f"v_pk_mul_f32 {bc(t+r)}, {bc(t+r)}, {bc(a+r)}")
            for r in range(0,8,2):
                A(f"v_exp_f32 v{t+r}, v{t+r}")
                A(f"v_pk_mul_f32 {bc(a+r)}, {bc(a+r)}, {bc(a+8+r)}")
                A(f"v_exp_f32 v{t+r+1}, v{t+r+1}")
            for r in range(0,8,2): A(f"v_pk_fma_f32 {bc(t+r)}, {bc(t+r)}, {bc(k2)}, {bc(k2)} op_sel_hi:[1,0,0]")
            for r in range(8): A(f"v_rcp_f32 v{t+r}, v{t+r}")
            for r in range(0,8,2): A(f"v_pk_mul_f32 {bc(a+r)}, {bc(a+r)}, {bc(t+r)}")
            for r in range(4): A(f"v_cvt_pk_bf16_f32 v{a+8+r}, v{a+2*r}, v{a+2*r+1}")
            for r in range(4): A(f"v_min_u32 v{a+8+r}, -2, v{a+8+r}")
            A(f"buffer_store_dwordx4 v[{a+8}:{a+11}], v{cT+1}, {SR}, s{sT if ct==0 else sT2} offen sc0 sc1")
            if 2*rt+ct+1==CUE:
                cnt_add(4)
                A(f"""
                s_lshl_b32 s45, s{sW}, 4
                s_add_u32 s45, s45, s{sCB}
                s_cmp_lg_u32 s45, 13
                s_cbranch_scc1 k2_nog
                s_lshl_b32 s45, s{sMB}, 7
                s_add_u32 s45, s45, {WS_FLAG+4096}
                v_mov_b32 v{vS}, s45
                v_mov_b32 v{vS+1}, s{sTAG}
                s_mov_b64 exec, 1
                global_store_dword v{vS}, v{vS+1}, s[30:31] sc0 sc1
                s_mov_b64 exec, -1
                """)
                A.label("k2_nog")
    A.label("k2_sig")
    if 'prof' not in X: stamp(A,4)
    A("s_setprio 0")
    p2_addr(True)
    A.label("k2_p2b")
    cnt_wait(0,4)
    if 'prof' not in X: stamp(A,5)
    for b in range(NPRE):
        for r in rdw(RG+16*b,NA+b): A(r)
    A("s_waitcnt lgkmcnt(0)")
    if 'prof' not in X: stamp(A,6)
    p2_loop(NA,43-NA,True)
    dump(A,2,8,sW)
    A("s_endpgm")
    A.label("k2_sig0")
    cnt_add(4)
    cnt_wait(4,4)
    A("s_branch k2_sig")
    for lr,lc,lo,ld in stubs:
        A.label(lr)
        A(f"""
        s_add_u32 s{sSP}, s{sSP}, 1
        s_cmp_ge_u32 s{sSP}, {SPIN}
        s_cbranch_scc1 {lo}
        """)
        for l in ld: A(l)
        A("s_waitcnt vmcnt(0)")
        A(f"s_branch {lc}")
    A.label("k2_stretry")
    A(f"""
    s_add_u32 s{sSP}, s{sSP}, 1
    s_cmp_ge_u32 s{sSP}, {SPIN}
    s_cbranch_scc1 k2_stok
    """)
    ldst(); ldcs(" sc0 sc1")
    A("s_branch k2_stchk")
    A.label("k2_stats_lo")
    hpoll("k2_hq")
    A.label("k2_stats")
    vD=16; S=80; Q=88; U=96
    A(f"""
    s_lshl_b32 s{sT}, s{sMB}, 17
    s_lshl_b32 s{sT2}, s{sW}, 14
    s_add_u32 s{sT}, s{sT}, s{sT2}
    s_add_u32 s{sT}, s{sT}, {WS_HT}
    v_lshlrev_b32 v{vLin}, 4, v{vL}
    s_barrier
    """)
    for i in range(16):
        A(f"buffer_load_dwordx4 v[{vD+4*i}:{vD+4*i+3}], v{vLin}, {SR}, s{sT} offen offset:{1024*(i%4)}")
        if i%4==3 and i<15: A(f"s_add_u32 s{sT}, s{sT}, 4096")
    for j in range(16): A(f"v_mov_b32 v{S+j}, 0")
    for i in range(16):
        A(f"s_waitcnt vmcnt({15-i})")
        for j in range(4):
            A(f"v_lshlrev_b32 v{U+2*j}, 16, v{vD+4*i+j}")
            A(f"v_and_b32 v{U+2*j+1}, 0xffff0000, v{vD+4*i+j}")
        for j in range(4):
            A(f"v_pk_add_f32 {bc(S+2*j)}, {bc(S+2*j)}, {bc(U+2*j)}")
            A(f"v_pk_fma_f32 {bc(Q+2*j)}, {bc(U+2*j)}, {bc(U+2*j)}, {bc(Q+2*j)}")
    for j in range(8): A(f"v_permlane32_swap_b32 v{S+j}, v{Q+j}")
    for j in range(8): A(f"v_add_f32 v{S+j}, v{S+j}, v{Q+j}")
    for j in range(4): A(f"v_permlane16_swap_b32 v{S+j}, v{S+j+4}")
    A(f"""
    v_and_b32 v{vT}, 15, v{vL}
    v_lshlrev_b32 v{vT}, 5, v{vT}
    v_and_b32 v{vT+1}, 16, v{vL}
    v_add_u32 v{vT}, v{vT}, v{vT+1}
    v_and_b32 v{vT+1}, 32, v{vL}
    v_lshl_add_u32 v{vT}, v{vT+1}, 4, v{vT}
    s_lshl_b32 s{sT}, s{sW}, 10
    v_add_u32 v{vT}, s{sT}, v{vT}
    """)
    for j in range(4): A(f"v_add_f32 v{S+j}, v{S+j}, v{S+j+4}")
    A(f"""
    ds_write_b128 v{vT}, v[{S}:{S+3}]
    s_waitcnt lgkmcnt(0)
    s_barrier
    s_cmp_ge_u32 s{sW}, 4
    s_cbranch_scc1 k2_st_p2
    s_cmp_ge_u32 s{sW}, 2
    s_cbranch_scc1 k2_st_exit
    v_lshlrev_b32 v{vT}, 2, v0
    """)
    for i in range(8):
        A(f"ds_read_b32 v{vD+i}, v{vT} offset:{1024*i}")
        A(f"ds_read_b32 v{vD+8+i}, v{vT} offset:{1024*i+512}")
    A("s_waitcnt lgkmcnt(0)")
    for st in (4,2,1):
        for i in range(st):
            A(f"v_add_f32 v{vD+i}, v{vD+i}, v{vD+i+st}")
            A(f"v_add_f32 v{vD+8+i}, v{vD+8+i}, v{vD+8+i+st}")
    ln_finish(A,vD,vD+8,vD+1,512)
    A(f"""
    v_cvt_pk_bf16_f32 v{vD}, v{vD}, v{vD+8}
    v_mov_b32 v{vD+1}, s{sTAG}
    s_lshl_b32 s{sT}, s{sMB}, 10
    s_add_u32 s{sT}, s{sT}, {WS_ST3}
    v_lshl_add_u32 v{vT}, v0, 3, s{sT}
    global_store_dwordx2 v{vT}, {bc(vD)}, s[30:31] sc0 sc1
    """)
    A.label("k2_st_exit")
    A("s_barrier")
    p2_addr(True)
    A(f"""
    s_cmp_lg_u32 s{sW}, 0
    s_cbranch_scc1 k2_gd
    s_lshl_b32 s45, s{sMB}, 7
    s_add_u32 s45, s45, {WS_FLAG+4096}
    v_mov_b32 v{vF}, s45
    s_mov_b32 s{sSP}, 0
    """)
    A.label("k2_g")
    A(f"""
    global_load_dword v{vT}, v{vF}, s[30:31] sc0 sc1
    s_add_u32 s{sSP}, s{sSP}, 1
    s_cmp_ge_u32 s{sSP}, {SPIN}
    s_cbranch_scc1 k2_gd
    s_waitcnt vmcnt(0)
    v_cmp_ne_u32 vcc, s{sTAG}, v{vT}
    s_cbranch_vccnz k2_g
    """)
    A.label("k2_gd")
    cnt_add(4)
    cnt_wait(4,4)
    for i in range(1,6): stamp(A,i)
    A("s_branch k2_p2b")
    A.label("k2_st_p2")
    A("s_barrier")
    A(f"s_sub_u32 s{sW}, s{sW}, 4")
    p2_setup()
    p2_addr(False)
    issue_res()
    for b in range(NPRE): issue_wd(b,4096*b)
    A("s_waitcnt vmcnt(0)")
    cnt_add(8)
    cnt_wait(8,4)
    rd_res()
    for b in range(NPRE):
        for r in rdw(RG+16*b,b,4096*b): A(r)
    A("s_waitcnt lgkmcnt(0)")
    cnt_add(8)
    cnt_wait(8,8)
    for b in range(NPRE,43): issue_wd(b)
    A("s_waitcnt vmcnt(0)")
    cnt_add(8)
    cnt_wait(8,12)
    for i in range(1,5): stamp(A,i)
    A("s_branch k2_p2")
```

```python
from common import *
from k01 import cmul, exp_bf16, cexp, row_stats
EF_PITCH=544; EF_CH=64*EF_PITCH
YP=9216
WSLOT=12320; NWS=10; W_U=6176
YB=6*WSLOT
TB=YB
XS=TB+2*KD_CH
SC=XS+8*1280
PB=SC+64
KIMG=YB+4*YP+64; IMG=4160; KIMG_CH=4*IMG
UB=KIMG+2*KIMG_CH; U_CH=96*80
assert 2*EF_CH<=YB and UB+2*U_CH<=163824
X_CNT=163824
sTAG=34; sWt=8; sWO=12; sM0W=13; sCBg=14; sMBg=15; vWo=253
GL=int(os.environ.get('GL','1'))
NPL=int(os.environ.get("NPL","6"))
def issue_w(A,st):
    A(f"""
    s_add_u32 m0, s{sM0W}, {(st%NWS)*WSLOT}
    s_nop 0
    buffer_load_dwordx4 v{vWo}, s[{sWt}:{sWt+3}], s{sWO} offen lds
    buffer_load_dwordx4 v{vWo+1}, s[{sWt}:{sWt+3}], s{sWO} offen offset:1024 lds
    buffer_load_dwordx4 v{vWo+2}, s[{sWt}:{sWt+3}], s{sWO} offen offset:2048 lds
    s_add_u32 s{sWO}, s{sWO}, {32*2752}
    """)
SPIN=1<<16
WT=" sc0 sc1"
def phaseA(A,tail):
    sW=36; sCH=37; sG=38; sT=39; sT2=40; sHALF=41; sONE=42; sDT=43; sROW=46; sDS=50; sROLE=51; sSEL=52; sU=56; sSP=57; sEP=58; sEX=60
    vL=1; vT=2; vXR=4; vXS=8; vP=12; vAD=17; q5=18; hh=19
    vXG=20; vSG=28
    vX=36; vUD=44; vGA=52; vSA=53
    vW=56
    vRA=200; vRD=204; vCS=216
    A(f"""
    s_cmp_ge_u32 s2, 256
    s_cbranch_scc1 m_end
    s_load_dwordx16 s[4:19], s[0:1], 0
    s_load_dwordx2 s[30:31], s[0:1], 104
    s_load_dwordx8 s[20:27], s[0:1], 64
    """)
    stamp(A,0)
    A("s_getpc_b64 s[44:45]")
    A.label("ka_pf")
    A(f"""
    v_lshlrev_b32 v{vW}, 7, v0
    v_lshrrev_b32 v{vT}, 6, v0
    v_and_b32 v{vL}, 63, v0
    v_readfirstlane_b32 s{sW}, v{vT}
    s_lshr_b32 s{sT2}, s2, 3
    s_cmp_lg_u32 s{sW}, 0
    s_cbranch_scc1 ka_nopf
    s_mov_b32 exec_hi, 0xff
    global_load_dword v{vRA+3}, v{vW}, s[44:45] offset:512
    s_mov_b32 exec_hi, -1
    """)
    A.label("ka_nopf")
    A(f"""
    s_and_b32 s{sT}, s2, 7
    s_lshl_b32 s{sG}, s{sT}, 5
    s_add_u32 s{sG}, s{sG}, s{sT2}
    s_and_b32 s{sCH}, s{sW}, 1
    s_lshr_b32 s{sROLE}, s{sW}, 1
    s_and_b32 s{sHALF}, s{sROLE}, 1
    v_and_b32 v{q5}, 31, v{vL}
    v_lshrrev_b32 v{hh}, 5, v{vL}
    s_lshl_b32 s{sT}, s{sT}, 7
    s_lshl_b32 s{sT2}, s{sT2}, 16
    s_add_u32 s{sT}, s{sT}, s{sT2}
    s_lshl_b32 s{sT2}, s{sROLE}, 14
    s_add_u32 s{sT}, s{sT}, s{sT2}
    s_lshl_b32 s{sT2}, s{sCH}, 6
    s_add_u32 s{sT}, s{sT}, s{sT2}
    v_lshrrev_b32 v{vW}, 2, v{vL}
    v_and_b32 v{vW+1}, 3, v{vL}
    v_lshlrev_b32 v{vW+2}, 10, v{vW}
    v_lshl_add_u32 v{vW+2}, v{vW+1}, 4, v{vW+2}
    v_add_u32 v{vW+2}, s{sT}, v{vW+2}
    s_lshl_b32 s{sT}, s{sG}, 13
    v_lshl_add_u32 v{vAD}, v0, 4, s{sT}
    s_lshl_b32 s{sT}, s{sG}, 9
    v_lshl_add_u32 v{vT}, v{vL}, 3, s{sT}
    s_lshl_b32 s{sT2}, s{sG}, 2
    s_cmp_eq_u32 s{sCH}, 0
    s_waitcnt lgkmcnt(0)
    s_cselect_b64 s[62:63], s[6:7], s[8:9]
    s_cselect_b64 s[60:61], s[10:11], s[12:13]
    s_cmp_eq_u32 s{sHALF}, 0
    s_cselect_b64 s[62:63], s[62:63], s[60:61]
    s_cmp_ge_u32 s{sW}, 4
    s_cbranch_scc1 ka_nop
    global_load_dwordx2 v[{vP}:{vP+1}], v{vT}, s[62:63]
    """)
    A.label("ka_nop")
    if "fp" in X: stamp(A,5)
    A(f"""
    s_load_dword s{sEP}, s[30:31], {WS_EPOCH}
    s_load_dword s{sDT}, s[14:15], s{sT2}
    s_load_dword s{sDS}, s[16:17], s{sT2}
    global_load_dwordx4 v[{vXS}:{vXS+3}], v{vW+2}, s[4:5]
    global_load_dwordx4 v[{vXR}:{vXR+3}], v{vAD}, s[4:5]
    s_mov_b32 s{sONE}, 0x3f803f80
    s_mov_b32 s{SK_INVN}, {f32(1/512)}
    v_mov_b32 v{vW+9}, 0x9000
    global_load_dword v{vRA+2}, v{vW+9}, s[30:31]
    """)
    PA=36
    A(f"""
    s_mul_i32 s{sT}, s{sW}, 1280
    s_add_u32 s{sT}, s{sT}, {XS}
    v_mul_u32_u24 v{PA+0}, 80, v{vW}
    v_lshl_add_u32 v{PA+0}, v{vW+1}, 4, v{PA+0}
    v_add_u32 v{PA+0}, s{sT}, v{PA+0}
    v_and_b32 v{vW}, 7, v{vL}
    v_lshrrev_b32 v{vW+1}, 3, v{vL}
    v_mul_u32_u24 v{PA+1}, 160, v{vW}
    v_lshl_add_u32 v{PA+1}, v{vW+1}, 2, v{PA+1}
    v_add_u32 v{PA+1}, s{sT}, v{PA+1}
    s_and_b32 s{sT}, s2, 7
    s_lshl_b32 s{sT}, s{sT}, 19
    s_lshl_b32 s{sT2}, s{sCH}, 18
    s_add_u32 s{sT}, s{sT}, s{sT2}
    s_lshr_b32 s{sT2}, s2, 3
    s_lshl_b32 s{sT2}, s{sT2}, 9
    s_add_u32 s{sT}, s{sT}, s{sT2}
    s_lshl_b32 s{sT2}, s{sROLE}, 7
    s_add_u32 s{sT}, s{sT}, s{sT2}
    s_add_u32 s{sT}, s{sT}, {WS_XG}
    v_lshlrev_b32 v{PA+2}, 14, v{vW+1}
    v_lshl_add_u32 v{PA+2}, v{vW}, 4, v{PA+2}
    v_add_u32 v{PA+2}, s{sT}, v{PA+2}
    v_add_u32 v{PA+3}, {8*16384}, v{PA+2}
    s_lshl_b32 s{sT}, s{sG}, 6
    v_lshl_add_u32 v{PA+4}, v{vL}, 3, s{sT}
    v_lshlrev_b32 v{vSA}, 5, v0
    s_lshl_b32 s{sT}, s{sG}, 14
    s_add_u32 s{sT}, s{sT}, {WS_XG}
    v_add_u32 v{vGA}, s{sT}, v{vSA}
    s_mul_i32 s{sT}, s{sCH}, {EF_CH}
    s_lshl_b32 s{sT2}, s{sHALF}, 8
    s_add_u32 s{sT}, s{sT}, s{sT2}
    v_lshl_add_u32 v{vAD}, v{vL}, 2, s{sT}
    """)
    A(f"""
    v_mov_b32 v{vW+8}, 0
    v_mov_b32 v{vW+9}, 0
    v_lshlrev_b32 v{vW+10}, 3, v0
    v_cmp_gt_u32 vcc, 320, v0
    s_and_saveexec_b64 s[{sEX}:{sEX+1}], vcc
    v_add_u32 v{vW+10}, {UB}, v{vW+10}
    ds_write_b64 v{vW+10}, v[{vW+8}:{vW+9}]
    ds_write_b64 v{vW+10}, v[{vW+8}:{vW+9}] offset:{U_CH}
    s_mov_b64 exec, 0x7f
    s_mul_i32 s{sT}, s{sW}, {IMG}
    s_add_u32 s{sT}, s{sT}, {KIMG+4096}
    v_lshl_add_u32 v{vW+10}, v{vL}, 3, s{sT}
    ds_write_b64 v{vW+10}, v[{vW+8}:{vW+9}]
    v_mov_b32 v{vW+10}, {X_CNT}
    ds_write_b64 v{vW+10}, v[{vW+8}:{vW+9}]
    ds_write_b64 v{vW+10}, v[{vW+8}:{vW+9}] offset:8
    v_mov_b32 v{vW+10}, {SC+32}
    ds_write_b32 v{vW+10}, v{vW+8}
    s_mov_b64 exec, -1
    """)
    A(f"""
    s_lshl_b32 s{sT}, s{sW}, 9
    s_add_u32 s{sT}, s{sT}, {PB}
    v_lshl_add_u32 v{vW+11}, v{vL}, 3, s{sT}
    s_lshl_b32 s{sT}, s{sCH}, 8
    s_lshl_b32 s{sT2}, s{sHALF}, 7
    s_add_u32 s{sT}, s{sT}, s{sT2}
    s_add_u32 s{sT}, s{sT}, {PB}
    v_lshl_add_u32 v{vW+12}, v{vL}, 1, s{sT}
    s_waitcnt lgkmcnt(0)
    s_mul_i32 s{sTAG}, s{sEP}, 0x9e3779b1
    s_add_u32 s{sTAG}, s{sTAG}, 0x7f4a7c15
    s_lshl_b32 s{sT}, s{sDT}, 16
    s_and_b32 s{sT2}, s{sDT}, 0xffff0000
    s_cmp_eq_u32 s{sCH}, 0
    s_cselect_b32 s{sDT}, s{sT}, s{sT2}
    v_mov_b32 v{vP+4}, s{sDT}
    v_mov_b32 v{vXG+1}, s{sTAG}
    v_mov_b32 v{vXG+3}, s{sTAG}
    v_mov_b32 v{vXG+5}, s{sTAG}
    v_mov_b32 v{vXG+7}, s{sTAG}
    """)
    if "fp" in X: stamp(A,6)
    exp_bf16(A,vP+4,vW+8)
    A(f"""
    s_cmp_ge_u32 s{sW}, 4
    s_cbranch_scc1 ka_nop2
    s_waitcnt vmcnt(3)
    ds_write_b64 v{vW+11}, v[{vP}:{vP+1}]
    """)
    A.label("ka_nop2")
    A("s_waitcnt lgkmcnt(0)")
    A("s_barrier")
    def publish(tagl):
        T=PA+5
        A(f"""
        s_waitcnt vmcnt(2)
        ds_write_b128 v{PA}, v[{vXS}:{vXS+3}]
        ds_read_b32 v{vXG}, v{PA+1}
        ds_read_b32 v{vXG+2}, v{PA+1} offset:80
        ds_read_b32 v{vXG+4}, v{PA+1} offset:32
        ds_read_b32 v{vXG+6}, v{PA+1} offset:112
        s_waitcnt vmcnt(1)
        """)
        stamp(A,1)
        B=Asm(); row_stats(B,vXR,vT,vT+1,T,sONE); bl=[l.strip() for l in B.l]
        for l in bl[:10]: A(l)
        A(f"""
        s_waitcnt lgkmcnt(0)
        global_store_dwordx4 v{PA+2}, v[{vXG}:{vXG+3}], s[30:31]{WT}
        global_store_dwordx4 v{PA+3}, v[{vXG+4}:{vXG+7}], s[30:31]{WT}
        """)
        for l in bl[10:]: A(l)
        A(f"""
        s_lshl_b32 s{sT}, s{sW}, 2
        s_add_u32 s{sT}, s{sT}, {SC}
        v_mov_b32 v{T}, s{sT}
        v_mov_b32 v{T+1}, {SC+32}
        v_mov_b32 v{T+2}, 1
        s_mov_b32 exec_lo, 0
        s_mov_b32 exec_hi, 0x80000000
        ds_write_b32 v{T}, v{vT}
        ds_add_rtn_u32 v{T+2}, v{T+1}, v{T+2}
        s_mov_b64 exec, -1
        v_lshlrev_b32 v{T}, 2, v{vL}
        v_add_u32 v{T}, {SC}, v{T}
        v_mov_b32 v{vT+1}, s{sTAG}
        s_waitcnt lgkmcnt(0)
        v_readlane_b32 s{sT}, v{T+2}, 63
        s_cmp_lg_u32 s{sT}, 7
        s_cbranch_scc1 {tagl}
        s_mov_b64 exec, 0xff
        ds_read_b32 v{vT}, v{T}
        s_waitcnt lgkmcnt(0)
        global_store_dwordx2 v{PA+4}, v[{vT}:{vT+1}], s[30:31] offset:{WS_STATS}{WT}
        s_mov_b64 exec, -1
        """)
        A.label(tagl)
        stamp(A,2)
    def warmups():
        A(f"""
        s_cmp_eq_u32 s{sCH}, 0
        s_cselect_b64 s[62:63], s[20:21], s[22:23]
        s_cselect_b64 s[60:61], s[24:25], s[44:45]
        s_cmp_eq_u32 s{sHALF}, 0
        s_cselect_b64 s[62:63], s[62:63], s[60:61]
        s_mul_i32 s{sT}, s2, {43*128}
        s_lshr_b32 s{sT2}, s2, 3
        s_lshl_b32 s{sT2}, s{sT2}, 10
        s_add_u32 s{sT2}, s{sT2}, 5632
        s_mov_b32 s{sU}, {1376*1024-4}
        s_cmp_eq_u32 s{sW}, 7
        s_cselect_b32 s{sT}, s{sT2}, s{sT}
        s_cselect_b32 s{sT2}, code_end-ka_pf, s{sU}
        s_cselect_b32 exec_lo, 0xff, -1
        s_cselect_b32 exec_hi, 0, 0x7ff
        v_lshl_add_u32 v{PA+5}, v{vL}, 7, s{sT}
        v_min_u32 v{PA+5}, s{sT2}, v{PA+5}
        global_load_dword v{vRA+3}, v{PA+5}, s[62:63]
        s_mov_b64 exec, -1
        """)
    A(f"""
    ds_read_u16 v{vP}, v{vW+12}
    ds_read_u16 v{vP+1}, v{vW+12} offset:512
    ds_read_u16 v{vP+2}, v{vW+12} offset:1024
    ds_read_u16 v{vP+3}, v{vW+12} offset:1536
    s_waitcnt lgkmcnt(0)
    """)
    zr=vP; zi=vP+1
    pk=[vW+20,vW+21,vW+22,vW+23]; pkc=[0]
    def put(reg,row):
        p=pk[pkc[0]%4]; pkc[0]+=1
        A(f"v_cvt_pk_bf16_f32 v{p}, v{reg}, v{reg+1}")
        A(f"ds_write_b32 v{vAD}, v{p} offset:{row*EF_PITCH}")
    w1=vW; w2=vW+2; w4=vW+4; w8=vW+6; wB=vW+8; q=vW+10; e=vW+12; e2=vW+14; t=vW+16; t2=vW+18; t3=vW+24; e3=vW+26
    A(f"""
    v_lshlrev_b32 v{vP}, 16, v{vP}
    v_lshlrev_b32 v{vP+1}, 16, v{vP+1}
    """)
    exp_bf16(A,vP,vW+28)
    A(f"""
    v_mul_f32 v{zi}, v{zi}, v{vP+4}
    v_mul_f32 v{zr}, v{zr}, v{vP+4}
    v_mul_f32 v{zr}, {f32(-LOG2E)}, v{zr}
    s_cmp_ge_u32 s{sW}, 4
    s_cbranch_scc1 ka_frole
    v_mul_f32 v{zi}, {f32(-1/(2*math.pi))}, v{zi}
    """)
    def gload(sc,part=3):
        if part&1: A(f"""
        global_load_dwordx4 v[{vXG}:{vXG+3}], v{vGA}, s[30:31]{sc}
        global_load_dwordx4 v[{vXG+4}:{vXG+7}], v{vGA}, s[30:31] offset:16{sc}
        """)
        if part&2: A(f"""
        global_load_dwordx4 v[{vSG}:{vSG+3}], v{vSA}, s[30:31] offset:{WS_STATS}{sc}
        global_load_dwordx4 v[{vSG+4}:{vSG+7}], v{vSA}, s[30:31] offset:{WS_STATS+16}{sc}
        """)
    cexp(A,w1,zr,zi,1,t); cexp(A,wB,zr,zi,256,t2)
    publish("ka_pe")
    A(f"""
    v_lshlrev_b32 v{vP+2}, 16, v{vP+2}
    v_lshlrev_b32 v{vP+3}, 16, v{vP+3}
    v_mul_f32 v{e}, v{vP+2}, v{vP+4}
    v_mul_f32 v{e+1}, v{vP+3}, v{vP+4}
    v_add_f32 v{e}, v{e}, v{e}
    v_mul_f32 v{e+1}, -2.0, v{e+1}
    """)
    cmul(A,w2,w1,w1,t); cmul(A,q,e,wB,t2); put(e,0)
    cmul(A,w4,w2,w2,t3)
    seqB=[("put",q,8),("mul",e2,q,w2),("mul",q,q,wB),("put",e2,9),("mul",e2,e2,w2),("put",q,12),("mul",e3,q,w4),("put",e2,10),("mul",e2,e2,w2),
          ("mul",q,q,wB),("put",e3,13),("put",e2,11),("put",q,14),("mul",e3,q,w4),("mul",q,q,wB),("put",e3,15),("put",q,16),("mul",q,q,wB),("put",q,20),
          ("mul",q,q,wB),("put",q,24),("mul",q,q,wB),("put",q,28),("mul",q,q,wB),("put",q,17)]
    seqA=[]
    for a in range(1,8): seqA+=[("mul",e,e,w1),("put",e,a)]
    ia=0; tt=[t2,t3]; tc=0
    for i,s in enumerate(seqB):
        if s[0]=="put": put(s[1],s[2])
        else: cmul(A,s[1],s[2],s[3],tt[tc%2]); tc+=1
        if (i<10 and i%3==0) or i>=15:
            x=seqA[ia]; ia+=1
            if x[0]=="put": put(x[1],x[2])
            else: cmul(A,x[1],x[2],x[3],t)
    aA=vW; aB=vW+1; r16=vW+2; g4=vW+3; acc=vW+4; oA=vW+12; oB=vW+13; oC=vW+14; fr=vW+32
    A(f"""
    v_and_b32 v{r16}, 15, v{vL}
    v_lshrrev_b32 v{g4}, 4, v{vL}
    s_mul_i32 s{sT}, s{sCH}, {EF_CH}
    v_mul_u32_u24 v{aA}, {EF_PITCH}, v{r16}
    v_lshl_add_u32 v{aA}, v{g4}, 4, v{aA}
    v_add_u32 v{aA}, s{sT}, v{aA}
    s_mul_i32 s{sT2}, s{sHALF}, {16*EF_PITCH}
    v_add_u32 v{aB}, s{sT2}, v{aA}
    s_lshl_b32 s{sT}, s{sHALF}, 4
    v_add_u32 v{r16}, s{sT}, v{r16}
    v_lshlrev_b32 v{oA}, 4, v{r16}
    v_lshl_add_u32 v{oA}, v{g4}, 3, v{oA}
    v_lshlrev_b32 v{oB}, 3, v{r16}
    v_add_u32 v{oB}, 512, v{oB}
    v_cmp_eq_u32 vcc, 2, v{g4}
    v_cndmask_b32 v{oA}, v{oA}, v{oB}, vcc
    v_lshlrev_b32 v{oB}, 2, v{r16}
    v_add_u32 v{oB}, 768, v{oB}
    v_cmp_eq_u32 vcc, 3, v{g4}
    v_cndmask_b32 v{oA}, v{oA}, v{oB}, vcc
    v_mov_b32 v{oB}, 4
    v_mov_b32 v{oC}, 128
    v_cndmask_b32 v{oB}, v{oB}, v{oC}, vcc
    s_mul_i32 s{sT}, s{sCH}, {KD_CH}
    s_add_u32 s{sT}, s{sT}, {TB}
    v_add_u32 v{oA}, s{sT}, v{oA}
    v_add_u32 v{oB}, v{oA}, v{oB}
    v_lshlrev_b32 v{oC}, 1, v{r16}
    v_lshl_add_u32 v{oC}, v{g4}, 6, v{oC}
    v_add_u32 v{oC}, s{sT}, v{oC}
    s_waitcnt lgkmcnt(0)
    s_barrier
    """)
    stamp(A,3)
    def rd(s):
        b=fr+12*s
        A(f"ds_read_b128 v[{b}:{b+3}], v{aB} offset:{32*EF_PITCH+64*s}")
        A(f"ds_read_b128 v[{b+4}:{b+7}], v{aA} offset:{64*s}")
        A(f"ds_read_b128 v[{b+8}:{b+11}], v{aA} offset:{16*EF_PITCH+64*s}")
    for s in range(4): rd(s)
    for s in range(8):
        b=fr+12*s
        n = 9 if s<=4 else 3*(7-s)
        A(f"s_waitcnt lgkmcnt({n})")
        c0="0" if s==0 else f"v[{acc}:{acc+3}]"; c1="0" if s==0 else f"v[{acc+4}:{acc+7}]"
        A(f"v_mfma_f32_16x16x32_bf16 v[{acc}:{acc+3}], v[{b+4}:{b+7}], v[{b}:{b+3}], {c0}")
        A(f"v_mfma_f32_16x16x32_bf16 v[{acc+4}:{acc+7}], v[{b+8}:{b+11}], v[{b}:{b+3}], {c1}")
        if s+4<8: rd(s+4)
    A(f"""
    v_cvt_pk_bf16_f32 v{acc}, v{acc}, v{acc+1}
    v_cvt_pk_bf16_f32 v{acc+1}, v{acc+2}, v{acc+3}
    v_cvt_pk_bf16_f32 v{acc+4}, v{acc+4}, v{acc+5}
    ds_write_b32 v{oA}, v{acc}
    ds_write_b32 v{oB}, v{acc+1}
    ds_write_b16 v{oC}, v{acc+4} offset:1024
    ds_write_b16_d16_hi v{oC}, v{acc+4} offset:1280
    """)
    if GL==0: gload("")
    if GL==2: gload("",1)
    A(f"s_mov_b32 s{sU}, 1000")
    A("s_branch ka_tab")
    A.label("ka_frole")
    A(f"v_mul_f32 v{zi}, {f32(1/(2*math.pi))}, v{zi}")
    cexp(A,w8,zr,zi,8,t)
    A(f"v_mov_b32 v{pk[3]}, 0x3f80")
    A(f"ds_write_b32 v{vAD}, v{pk[3]} offset:{32*EF_PITCH}")
    cmul(A,w2,w8,w8,t); put(w8,33)
    FPUB=int(os.environ.get("FPUB","3"))
    so=w8; se=w2; put(w2,34)
    eo=[e,e3]; ee=[e2,q]
    def pm(d,a_,b_): A(f"v_pk_mul_f32 v[{d}:{d+1}], v[{a_}:{a_+1}], v[{b_}:{b_+1}] op_sel:[0,0] op_sel_hi:[0,1]")
    def pf(d,a_,b_,t_): A(f"v_pk_fma_f32 v[{d}:{d+1}], v[{a_}:{a_+1}], v[{b_}:{b_+1}], v[{t_}:{t_+1}] op_sel:[1,1,0] op_sel_hi:[1,0,1] neg_lo:[1,0,0]")
    pend=[]
    for i,c in enumerate(range(3,32,2)):
        do=eo[i&1]; de=ee[i&1]
        pm(t,so,w2)
        if c+1<32: pm(t2,se,w2)
        if pend: put(*pend.pop(0))
        pf(do,so,w2,t)
        if c+1<32: pf(de,se,w2,t2)
        if pend: put(*pend.pop(0))
        pend=[(do,32+c)]+([(de,33+c)] if c+1<32 else [])
        so=do; se=de
        if c==FPUB:
            publish("ka_pf2"); warmups()
    for p_ in pend: put(*p_)
    A("s_waitcnt lgkmcnt(0)")
    A("s_barrier")
    stamp(A,3)
    if GL==0: gload("")
    if GL==2: gload("",1)
    vCA=vRD
    A.label("ka_tab")
    vK=vW+32; vK2=vW+36; wa=vW+4; wa2=vW+5; pr=vW+8
    A(f"""
    s_cmp_eq_u32 s{sROLE}, 0
    s_cselect_b32 s{sSEL}, 4, 1
    s_cselect_b32 s{sSEL+1}, 3, 6
    s_cselect_b32 s{sSEL+2}, 0, 768
    s_cmp_eq_u32 s{sROLE}, 1
    s_cselect_b32 s{sSEL}, 2, s{sSEL}
    s_cselect_b32 s{sSEL+1}, 7, s{sSEL+1}
    s_cselect_b32 s{sSEL+3}, 0, 128
    s_mul_i32 s{sSEL+3}, s{sSEL+3}, s{sROLE}
    s_add_u32 s{sSEL+2}, s{sSEL+2}, s{sSEL+3}
    v_lshlrev_b32 v{vW+2}, s{sSEL}, v{q5}
    v_and_b32 v{vW+2}, -4, v{vW+2}
    v_lshlrev_b32 v{vW+3}, s{sSEL+1}, v{hh}
    v_add_u32 v{vW+2}, v{vW+2}, v{vW+3}
    s_mul_i32 s{sT}, s{sCH}, {KD_CH}
    s_add_u32 s{sT}, s{sT}, {TB}
    s_add_u32 s{sSEL+2}, s{sSEL+2}, s{sT}
    v_add_u32 v{vW+2}, s{sSEL+2}, v{vW+2}
    v_lshlrev_b32 v{vW+3}, 3, v{q5}
    v_lshl_add_u32 v{vW+3}, v{hh}, 2, v{vW+3}
    v_add_u32 v{vW+3}, s{sT}, v{vW+3}
    s_mul_i32 s{sT}, s{sCH}, {KIMG_CH}
    s_add_u32 s{sT}, s{sT}, {KIMG}
    v_lshlrev_b32 v{vW+7}, 4, v{q5}
    v_sub_u32 v{vW+7}, s{sT}, v{vW+7}
    v_lshlrev_b32 v{vW+6}, 3, v{hh}
    v_sub_u32 v{vW}, v{vW+7}, v{vW+6}
    v_lshlrev_b32 v{vW+6}, 9, v{hh}
    v_sub_u32 v{vW+1}, v{vW+7}, v{vW+6}
    s_mov_b32 s{sSEL}, 0x05040100
    s_mov_b32 s{sSEL+1}, 0x05040302
    s_mov_b32 s{sSEL+2}, 0x07060100
    s_mov_b32 s{sSEL+3}, 0x07060302
    s_waitcnt lgkmcnt(0)
    s_barrier
    ds_read2_b32 v[{vK}:{vK+1}], v{vW+2} offset0:0 offset1:1
    ds_read2_b32 v[{vK+2}:{vK+3}], v{vW+2} offset0:2 offset1:3
    ds_read2_b32 v[{vK2}:{vK2+1}], v{vW+3} offset0:128 offset1:129
    """)
    wa=vW; wa2=vW+1
    if GL==1: gload("")
    if GL==2: gload("",2)
    stamp(A,4)
    A(f"""
    s_cmp_ge_u32 s{sROLE}, 2
    s_cbranch_scc1 ka_r23
    s_cmp_eq_u32 s{sROLE}, 1
    s_cbranch_scc1 ka_r1
    """)
    npair=[0]
    def pairop(d,lo,hi): A(f"v_perm_b32 v{d}, v{hi[0]}, v{lo[0]}, s{sSEL+lo[1]+2*hi[1]}")
    def wwin(addr,k,rho,bbase):
        lam=rho+3; iota=lam&3; b=bbase+(lam>>2)
        p=pr+2*(npair[0]%8); npair[0]+=1
        pairop(p,k[rho+3],k[rho+2]); pairop(p+1,k[rho+1],k[rho])
        A(f"ds_write_b64 v{addr}, v[{p}:{p+1}] offset:{iota*IMG+8*(511-b)}")
    A(f"""
    v_cmp_eq_u32 vcc, 63, v{vL}
    v_mov_b32 v{vW+7}, 0
    s_waitcnt lgkmcnt(0)
    v_lshrrev_b32 v{vW+2}, 16, v{vK+2}
    v_perm_b32 v{vW+3}, v{vK+2}, v{vK+2}, s{sSEL}
    v_perm_b32 v{vW+6}, v{vK2+1}, v{vK2+1}, s{sSEL}
    v_cndmask_b32 v{vK+3}, v{vK+3}, v{vW+2}, vcc
    v_cndmask_b32 v{vK+2}, v{vK+2}, v{vW+3}, vcc
    v_cndmask_b32 v{vK2+1}, v{vK2+1}, v{vW+6}, vcc
    """)
    k=[(vK+i//2,i&1) for i in range(8)]
    for rho in range(4): wwin(wa,k,rho,0)
    v=[(vK2+i//2,i&1) for i in range(4)]
    k1=[v[0],v[0],v[1],v[2],v[2],v[2],v[3]]
    for rho in range(4): wwin(wa,k1,rho,64)
    A("s_mov_b64 exec, 1")
    z=(vW+7,0); kz=[z,z,z,k[0],k[1],k[2]]
    for rho in range(3):
        p=pr+2*(npair[0]%8); npair[0]+=1
        pairop(p,kz[rho+3],kz[rho+2]); pairop(p+1,kz[rho+1],kz[rho])
        A(f"ds_write_b64 v{wa}, v[{p}:{p+1}] offset:{rho*IMG+8*511}")
    A("s_mov_b64 exec, -1")
    A("s_branch ka_norm")
    A.label("ka_r1")
    A("s_waitcnt lgkmcnt(0)")
    v=[(vK+i//2,i&1) for i in range(3)]
    k=[v[i] for i in (0,0,0,1,1,1,2,2,2,2,2)]
    for rho in range(8): wwin(wa2,k,rho,128)
    A("s_branch ka_norm")
    A.label("ka_r23")
    A(f"""
    s_lshl_b32 s{sT}, s{sHALF}, 10
    v_subrev_u32 v{wa2}, s{sT}, v{wa2}
    v_and_b32 v{vW+6}, 1, v{vL}
    v_lshlrev_b32 v{vW+6}, 4, v{vW+6}
    s_waitcnt lgkmcnt(0)
    v_alignbit_b32 v{vK}, v{vK+1}, v{vK}, v{vW+6}
    v_lshrrev_b32 v{vK+1}, v{vW+6}, v{vK}
    """)
    k=[(vK,0)]*4+[(vK+1,0)]+[(vK,1)]*6
    for rho in range(8): wwin(wa2,k,rho,256)
    A.label("ka_norm")
    m=vW; s_=vW+1; u0=vW+24; u1=vW+28; pu=vW+32; a0=vW+2; a1=vW+3
    aK=vW+36; aU=vW+37; aY=vW+38
    A(f"""
    v_lshrrev_b32 v{vW+6}, 3, v0
    v_mul_u32_u24 v{vW+6}, 80, v{vW+6}
    v_and_b32 v{s_}, 7, v0
    v_lshl_add_u32 v{vW+6}, v{s_}, 3, v{vW+6}
    v_add_u32 v{vW+6}, {UB+32*80}, v{vW+6}
    v_and_b32 v{aK}, 3, v{vL}
    v_mul_u32_u24 v{aK}, {IMG}, v{aK}
    v_lshl_add_u32 v{aK}, v{hh}, 4, v{aK}
    v_lshrrev_b32 v{aU}, 2, v{q5}
    v_lshlrev_b32 v{aU}, 3, v{aU}
    v_sub_u32 v{aK}, v{aK}, v{aU}
    s_mul_i32 s{sT}, s{sCH}, {KIMG_CH}
    s_add_u32 s{sT}, s{sT}, {KIMG+4088-2*(480+1024)}
    s_lshl_b32 s{sT2}, s{sHALF}, 10
    s_sub_u32 s{sT}, s{sT}, s{sT2}
    v_add_u32 v{aK}, s{sT}, v{aK}
    v_mul_u32_u24 v{aU}, 80, v{q5}
    v_lshl_add_u32 v{aU}, v{hh}, 4, v{aU}
    s_mul_i32 s{sT}, s{sCH}, {U_CH}
    s_add_u32 s{sT}, s{sT}, {UB+80*(32-15)}
    s_mul_i32 s{sT2}, s{sHALF}, {80*16}
    s_sub_u32 s{sT}, s{sT}, s{sT2}
    v_add_u32 v{aU}, s{sT}, v{aU}
    s_mov_b32 s{sSP}, 0
    """)
    if "fp" not in X: stamp(A,5)
    A.label("ka_chk")
    A("s_waitcnt vmcnt(0)")
    A.label("ka_chk2")
    A(f"""
    v_xor_b32 v{a0}, v{vXG+1}, v{vXG+3}
    v_xor_b32 v{a1}, v{vXG+5}, v{vXG+7}
    v_xor_b32 v{m}, s{sTAG}, v{vXG+1}
    v_or3_b32 v{a0}, v{a0}, v{a1}, v{m}
    v_xor_b32 v{a1}, s{sTAG}, v{vXG+5}
    v_xor_b32 v{m}, s{sTAG}, v{vSG+1}
    v_or3_b32 v{a0}, v{a0}, v{a1}, v{m}
    v_xor_b32 v{a1}, s{sTAG}, v{vSG+3}
    v_xor_b32 v{m}, s{sTAG}, v{vSG+5}
    v_or3_b32 v{a0}, v{a0}, v{a1}, v{m}
    v_xor_b32 v{a1}, s{sTAG}, v{vSG+7}
    v_or_b32 v{a0}, v{a0}, v{a1}
    v_cmp_ne_u32 vcc, 0, v{a0}
    s_cbranch_vccnz ka_retry
    """)
    A.label("ka_ok")
    if "fp" not in X: stamp(A,6)
    for j in range(4):
        st=vSG+2*j; xc=vXG+2*j
        A(f"""
        v_and_b32 v{s_}, 0xffff0000, v{st}
        v_rcp_f32 v{s_}, v{s_}
        v_lshlrev_b32 v{vX+j}, 16, v{xc}
        v_and_b32 v{vX+4+j}, 0xffff0000, v{xc}
        v_lshlrev_b32 v{m}, 16, v{st}
        v_sub_f32 v{a0}, v{vX+j}, v{m}
        v_sub_f32 v{a1}, v{vX+4+j}, v{m}
        v_cvt_pk_bf16_f32 v{a0}, v{a0}, v{a1}
        v_and_b32 v{a1}, 0xffff0000, v{a0}
        v_lshlrev_b32 v{a0}, 16, v{a0}
        v_mul_f32 v{u0+j}, v{a0}, v{s_}
        v_mul_f32 v{u1+j}, v{a1}, v{s_}
        """)
    A(f"""
    v_cvt_pk_bf16_f32 v{pu}, v{u0}, v{u0+1}
    v_cvt_pk_bf16_f32 v{pu+1}, v{u0+2}, v{u0+3}
    v_cvt_pk_bf16_f32 v{pu+2}, v{u1}, v{u1+1}
    v_cvt_pk_bf16_f32 v{pu+3}, v{u1+2}, v{u1+3}
    ds_write_b64 v{vW+6}, v[{pu}:{pu+1}]
    ds_write_b64 v{vW+6}, v[{pu+2}:{pu+3}] offset:{U_CH}
    s_cmp_ge_u32 s{sW}, 4
    s_waitcnt lgkmcnt(0)
    s_barrier
    s_cbranch_scc1 ka_aux
    """)
    stamp(A,7)
    def calc_ud():
        out=[f"s_lshl_b32 s{sT}, s{sDS}, 16", f"s_and_b32 s{sT2}, s{sDS}, 0xffff0000"]
        for c in range(2):
            for pp in range(2):
                r=pu+2*c+pp; d=vUD+4*c+2*pp; sd=sT if c==0 else sT2
                out+=[f"v_lshlrev_b32 v{d}, 16, v{r}",f"v_and_b32 v{d+1}, 0xffff0000, v{r}",f"v_mul_f32 v{d}, s{sd}, v{d}",f"v_mul_f32 v{d+1}, s{sd}, v{d+1}",
                      f"v_cvt_pk_bf16_f32 v{d}, v{d}, v{d+1}",f"v_and_b32 v{d+1}, 0xffff0000, v{d}",f"v_lshlrev_b32 v{d}, 16, v{d}"]
        return out
    def epi_addr():
        return [f"v_lshrrev_b32 v{vW}, 3, v0",f"v_mul_u32_u24 v{vW}, 144, v{vW}",f"v_and_b32 v{vW+1}, 7, v0",f"v_lshl_add_u32 v{vW}, v{vW+1}, 4, v{vW}",f"v_add_u32 v{vW}, {YB}, v{vW}",
                f"s_lshl_b32 s{sT}, s{sG}, 9",f"s_add_u32 s{sT}, s{sT}, {WS_HT}",f"v_lshl_add_u32 v{vW+1}, v{q5}, 3, s{sT}",f"v_lshrrev_b32 v{vW+2}, 5, v0",
                f"v_lshl_add_u32 v{vW+1}, v{vW+2}, 17, v{vW+1}",
                f"s_lshl_b32 s{sT}, s{sW}, 10",f"s_lshl_b32 s{sT2}, s{sG}, 2",f"s_add_u32 s{sT}, s{sT}, s{sT2}",f"s_add_u32 s{sT}, s{sT}, {WS_FLH}",
                f"v_mov_b32 v{vW+2}, s{sT}",f"v_mov_b32 v{vW+3}, s{sTAG}"]
    acc0=vW+40; acc1=vW+56; NB=3; fr=vW+72
    def loads(i):
        b=fr+16*(i%NB); ko=2*16*(31-i); mu=i>>1; nu=i&1; uo=80*(15-mu)+32*(1-nu)
        return [f"ds_read_b64 v[{b}:{b+1}], v{aK} offset:{ko+2048}",
                f"ds_read_b64 v[{b+2}:{b+3}], v{aK} offset:{ko+2048+8}",
                f"ds_read_b128 v[{b+8}:{b+11}], v{aU} offset:{uo}",
                f"ds_read_b64 v[{b+4}:{b+5}], v{aK} offset:{ko}",
                f"ds_read_b128 v[{b+12}:{b+15}], v{aU} offset:{uo+32*80}",
                f"ds_read_b64 v[{b+6}:{b+7}], v{aK} offset:{ko+8}"]
    for l in loads(0)+loads(1): A(l)
    extra=calc_ud()+[f"v_mul_u32_u24 v{aY}, 144, v{q5}",f"v_lshl_add_u32 v{aY}, v{hh}, 4, v{aY}",f"s_lshl_b32 s{sT}, s{sCH}, 1",f"s_add_u32 s{sT}, s{sT}, s{sHALF}",
          f"s_mul_i32 s{sT}, s{sT}, {YP}",f"s_add_u32 s{sT}, s{sT}, {YB}",f"v_add_u32 v{aY}, s{sT}, v{aY}"]+epi_addr()
    for i in range(32):
        b=fr+16*(i%NB)
        L=loads(i+2) if i+2<32 else []
        A(f"s_waitcnt lgkmcnt({6 if i+1<32 else 0})")
        c0="0" if i==0 else f"v[{acc0}:{acc0+15}]"
        c1="0" if i==0 else f"v[{acc1}:{acc1+15}]"
        ms=[f"v_mfma_f32_32x32x16_bf16 v[{acc0}:{acc0+15}], v[{b}:{b+3}], v[{b+8}:{b+11}], {c0}",
            f"v_mfma_f32_32x32x16_bf16 v[{acc1}:{acc1+15}], v[{b}:{b+3}], v[{b+12}:{b+15}], {c1}",
            f"v_mfma_f32_32x32x16_bf16 v[{acc1}:{acc1+15}], v[{b+4}:{b+7}], v[{b+8}:{b+11}], v[{acc1}:{acc1+15}]"]
        for j in range(3):
            A(ms[j])
            for l in L[2*j:2*j+2]: A(l)
            if extra and i>=2: A(extra.pop(0))
    assert not extra
    stamp(A,8)
    for c,ac in ((0,acc0),(1,acc1)):
        for g in range(4):
            A(f"ds_write_b128 v{aY}, v[{ac+4*g}:{ac+4*g+3}] offset:{144*32*c+32*g}")
    A.label("ka_fin")
    y=vW+8
    A("s_waitcnt lgkmcnt(0)")
    A("s_barrier")
    stamp(A,9)
    for k_ in range(4): A(f"ds_read_b128 v[{y+4*k_}:{y+4*k_+3}], v{vW} offset:{YP*k_}")
    o=vW+4
    for c in range(2):
        A(f"s_waitcnt lgkmcnt({2-2*c})")
        for pp in range(2):
            a=y+8*c+2*pp
            A(f"""
            v_pk_add_f32 v[{a}:{a+1}], v[{a}:{a+1}], v[{a+4}:{a+5}]
            v_cvt_pk_bf16_f32 v{a}, v{a}, v{a+1}
            v_and_b32 v{a+1}, 0xffff0000, v{a}
            v_lshlrev_b32 v{a}, 16, v{a}
            v_pk_add_f32 v[{a}:{a+1}], v[{a}:{a+1}], v[{vUD+4*c+2*pp}:{vUD+4*c+2*pp+1}]
            v_cvt_pk_bf16_f32 v{a}, v{a}, v{a+1}
            v_and_b32 v{a+1}, 0xffff0000, v{a}
            v_lshlrev_b32 v{a}, 16, v{a}
            v_pk_add_f32 v[{a}:{a+1}], v[{a}:{a+1}], v[{vX+4*c+2*pp}:{vX+4*c+2*pp+1}]
            v_cvt_pk_bf16_f32 v{o+2*c+pp}, v{a}, v{a+1}
            """)
        A(f"global_store_dwordx2 v{vW+1}, v[{o+2*c}:{o+2*c+1}], s[30:31] offset:{256*c}{WT}")
    A(f"""
    s_waitcnt vmcnt(0)
    s_mov_b64 exec, 1
    global_store_dword v{vW+2}, v{vW+3}, s[30:31]{WT}
    s_barrier
    """)
    dump(A,1,10,sW)
    A("s_mov_b64 exec, -1")
    AA=A; A=tail
    A.label("ka_retry")
    A(f"""
    s_add_u32 s{sSP}, s{sSP}, 1
    s_cmp_ge_u32 s{sSP}, {SPIN}
    s_cbranch_scc1 ka_ok
    """)
    A("s_mov_b64 exec, vcc")
    gload(" sc0 sc1")
    A("s_mov_b64 exec, -1")
    A("s_branch ka_chk")
    A.label("ka_aux")
    stamp(A,7)
    ad=vW+40; S=vW+44; t=vW+52
    RD=176
    if "norp" not in X:
        A(f"""
        s_sub_u32 s{sROW}, s{sW}, 4
        s_lshl_b32 s{sROW}, s{sROW}, 8
        s_add_u32 s{sROW}, s{sROW}, s2
        s_lshl_b32 s{sT}, s{sROW}, 10
        v_lshl_add_u32 v{RD+8}, v{vL}, 4, s{sT}
        global_load_dwordx4 v[{RD}:{RD+3}], v{RD+8}, s[24:25]
        s_cmp_ge_u32 s{sROW}, {1376-1024}
        s_cbranch_scc1 ka_nod2
        v_add_u32 v{RD+8}, {1024*1024}, v{RD+8}
        global_load_dwordx4 v[{RD+4}:{RD+7}], v{RD+8}, s[24:25]
        """)
        A.label("ka_nod2")
    A(f"""
    s_sub_u32 s{sU}, s{sW}, 6
    s_lshl_b32 s{sU}, s{sU}, 8
    s_add_u32 s{sU}, s{sU}, s2
    s_cmp_ge_u32 s{sU}, 344
    s_cbranch_scc1 ka_nocs
    s_lshr_b32 s{sT}, s{sU}, 2
    s_cmp_ge_u32 s{sT}, 43
    s_cselect_b32 s62, s22, s20
    s_cselect_b32 s63, s23, s21
    s_cselect_b32 s{sT2}, 43, 0
    s_sub_u32 s{sT}, s{sT}, s{sT2}
    s_lshl_b32 s{sT}, s{sT}, 6
    s_and_b32 s{sT2}, s{sU}, 3
    s_mul_i32 s{sT2}, s{sT2}, {128*2752}
    s_add_u32 s{sT}, s{sT}, s{sT2}
    v_lshrrev_b32 v{vCA}, 2, v{vL}
    v_mul_u32_u24 v{vCA}, 2752, v{vCA}
    v_and_b32 v{vCA+1}, 3, v{vL}
    v_lshl_add_u32 v{vCA}, v{vCA+1}, 4, v{vCA}
    v_add_u32 v{vCA}, s{sT}, v{vCA}
    """)
    for i in range(8):
        A(f"global_load_dwordx4 v[{vCS+4*i}:{vCS+4*i+3}], v{vCA}, s[62:63]")
        if i<7: A(f"v_add_u32 v{vCA}, {16*2752}, v{vCA}")
    A.label("ka_nocs")
    c_=vW+56
    for v in range(3):
        A(f"""
        v_add_u32 v{c_}, {64*v}, v{vL}
        v_mul_u32_u24 v{c_+1}, 0xaaab, v{c_}
        v_lshrrev_b32 v{c_+1}, 19, v{c_+1}
        v_mul_u32_u24 v{c_+1}, {2752-192}, v{c_+1}
        v_lshl_add_u32 v{vWo+v}, v{vL}, 4, v{c_+1}
        """)
    A(f"""
    s_and_b32 s{sT}, s2, 1
    s_lshl_b32 s{sT}, s{sT}, 3
    s_lshr_b32 s{sT2}, s2, 5
    s_add_u32 s{sCBg}, s{sT}, s{sT2}
    s_mul_i32 s{sWO}, s{sCH}, {16*2752}
    s_mul_i32 s{sT2}, s{sCBg}, 192
    s_add_u32 s{sWO}, s{sWO}, s{sT2}
    s_mul_i32 s{sM0W}, s{sCH}, 3072
    s_mul_i32 s{sT}, s{sHALF}, {W_U}
    s_add_u32 s{sM0W}, s{sM0W}, s{sT}
    s_cmp_ge_u32 s{sW}, 6
    s_cselect_b32 s{sWt}, s22, s20
    s_cselect_b32 s{sWt+1}, s23, s21
    s_mov_b32 s{sWt+2}, {512*2752}
    s_mov_b32 s{sWt+3}, 0x20000
    """)
    def prefill():
        A(f"""
        s_mul_i32 s{sSP}, s{sCBg}, 3
        s_min_u32 s{sSP}, s{sSP}, 40
        s_and_b32 s{sT}, s2, 6
        s_lshl_b32 s{sT}, s{sT}, 1
        s_bfe_u32 s{sT2}, s2, 0x20003
        s_add_u32 s{sT}, s{sT}, s{sT2}
        s_lshl_b32 s{sT}, s{sT}, 2
        s_add_u32 s{sT}, s{sT}, s{sW}
        s_sub_u32 s{sT}, s{sT}, 4
        s_mul_i32 s{sT}, s{sT}, 86
        s_add_u32 s{sT}, s{sT}, s{sSP}
        s_lshl_b32 s{sT}, s{sT}, 10
        s_add_u32 s{sT}, s{sT}, {WS_HM}
        v_lshl_add_u32 v{c_}, v{vL}, 4, s{sT}
        v_add_u32 v{c_+1}, {43*1024}, v{c_}
        v_mov_b32 v{c_+4}, -1
        v_mov_b32 v{c_+5}, -1
        v_mov_b32 v{c_+6}, -1
        v_mov_b32 v{c_+7}, -1
        """)
        for o in (0,1024,2048):
            for r in (0,1): A(f"global_store_dwordx4 v{c_+r}, v[{c_+4}:{c_+7}], s[30:31] offset:{o}{WT}")
    prefill()
    for st in range(NPL//2): issue_w(A,st)
    A(f"""
    s_cmp_lg_u32 s{sW}, 4
    s_cbranch_scc1 ka_a3
    s_cmp_lg_u32 s2, 0
    s_cbranch_scc1 ka_a3
    s_add_u32 s{sT}, s{sEP}, 1
    v_mov_b32 v{t}, {WS_EPOCH}
    v_mov_b32 v{t+1}, s{sT}
    s_mov_b64 exec, 1
    global_store_dword v{t}, v{t+1}, s[30:31]
    """)
    A.label("ka_a3")
    A("s_mov_b64 exec, -1")
    for l in calc_ud()+epi_addr(): A(l)
    if "norp" not in X:
        A(f"""
        s_bfe_u32 s{sT}, s{sROW}, 0x10001
        s_bfe_u32 s{sT2}, s{sROW}, 0x10003
        s_lshl_b32 s{sT2}, s{sT2}, 1
        s_or_b32 s{sT}, s{sT}, s{sT2}
        s_lshl_b32 s{sT}, s{sT}, 1
        v_and_b32 v{RD+8}, 7, v{vL}
        v_xor_b32 v{RD+8}, s{sT}, v{RD+8}
        v_lshrrev_b32 v{RD+9}, 3, v{vL}
        v_mul_u32_u24 v{RD+9}, {43*4096}, v{RD+9}
        v_lshl_add_u32 v{RD+8}, v{RD+8}, 4, v{RD+9}
        s_lshl_b32 s{sT}, s{sROW}, 7
        s_add_u32 s{sT}, s{sT}, {WS_WD2}
        v_add_u32 v{RD+8}, s{sT}, v{RD+8}
        s_waitcnt vmcnt({3*(NPL//2)+6})
        global_store_dwordx4 v{RD+8}, v[{RD}:{RD+3}], s[30:31]{WT}
        s_cmp_ge_u32 s{sROW}, {1376-1024}
        s_cbranch_scc1 ka_nod3
        v_add_u32 v{RD+8}, {1024*128}, v{RD+8}
        global_store_dwordx4 v{RD+8}, v[{RD+4}:{RD+7}], s[30:31]{WT}
        """)
        A.label("ka_nod3")
    if "dpf" in X:
        A(f"""
        s_cmp_ge_u32 s{sW}, 6
        s_cbranch_scc1 ka_nodpf
        s_lshr_b32 s{sT}, s2, 3
        s_lshl_b32 s{sT}, s{sT}, 1
        s_add_u32 s{sT}, s{sT}, s{sCH}
        s_mul_i32 s{sT}, s{sT}, {172*128}
        v_lshl_add_u32 v{c_}, v{vL}, 7, s{sT}
        global_load_dword v{vRA+3}, v{c_}, s[24:25]
        v_add_u32 v{c_}, 8192, v{c_}
        global_load_dword v{vRA+3}, v{c_}, s[24:25]
        v_add_u32 v{c_}, 8192, v{c_}
        s_mov_b32 exec_hi, 0xfff
        global_load_dword v{vRA+3}, v{c_}, s[24:25]
        s_mov_b32 exec_hi, -1
        """)
        A.label("ka_nodpf")
    A(f"""
    s_cmp_ge_u32 s{sU}, 344
    s_cbranch_scc1 ka_pfw
    s_waitcnt vmcnt({3*(NPL//2)+6+(1 if "norp" not in X else 0)})
    """)
    for i in range(8):
        for j in range(4):
            r=vCS+4*i+j
            if i==0:
                A(f"v_lshlrev_b32 v{S+2*j}, 16, v{r}")
                A(f"v_and_b32 v{S+2*j+1}, 0xffff0000, v{r}")
            else:
                A(f"v_lshlrev_b32 v{t}, 16, v{r}")
                A(f"v_and_b32 v{t+1}, 0xffff0000, v{r}")
                A(f"v_add_f32 v{S+2*j}, v{S+2*j}, v{t}")
                A(f"v_add_f32 v{S+2*j+1}, v{S+2*j+1}, v{t+1}")
    for j in range(4): A(f"v_permlane32_swap_b32 v{S+j}, v{S+j+4}")
    for j in range(4): A(f"v_add_f32 v{S+j}, v{S+j}, v{S+j+4}")
    for j in range(2): A(f"v_permlane16_swap_b32 v{S+j}, v{S+j+2}")
    for j in range(2): A(f"v_add_f32 v{S+j}, v{S+j}, v{S+j+2}")
    for ctl in ("row_ror:8","row_ror:4"):
        for j in range(2): A(f"v_add_f32_dpp v{S+j}, v{S+j}, v{S+j} {ctl} row_mask:0xf bank_mask:0xf")
    d=S+2
    A(f"""
    v_and_b32 v{t}, 4, v{vL}
    v_cmp_ne_u32 vcc, 0, v{t}
    v_cndmask_b32 v{S}, v{S}, v{S+1}, vcc
    v_cvt_pk_bf16_f32 v{S+1}, v{S}, v{S}
    v_and_b32 v{S+1}, 0xffff0000, v{S+1}
    v_sub_f32 v{S+1}, v{S}, v{S+1}
    v_cvt_pk_bf16_f32 v{d}, v{S}, v{S+1}
    v_mov_b32 v{d+1}, s{sTAG}
    v_lshlrev_b32 v{ad}, 8, v{vCA+1}
    v_lshl_add_u32 v{ad}, v{hh}, 7, v{ad}
    v_and_b32 v{t+1}, 16, v{vL}
    v_lshl_add_u32 v{ad}, v{t+1}, 2, v{ad}
    v_lshl_add_u32 v{ad}, v{t}, 3, v{ad}
    s_lshr_b32 s{sT}, s{sU}, 2
    s_lshl_b32 s{sT}, s{sT}, 10
    s_and_b32 s{sT2}, s{sU}, 3
    s_lshl_b32 s{sT2}, s{sT2}, 3
    s_add_u32 s{sT}, s{sT}, s{sT2}
    s_add_u32 s{sT}, s{sT}, {WS_CS}
    v_add_u32 v{ad}, s{sT}, v{ad}
    s_mov_b32 exec_lo, 0x00ff00ff
    s_mov_b32 exec_hi, 0x00ff00ff
    global_store_dwordx2 v{ad}, v[{d}:{d+1}], s[30:31]{WT}
    s_mov_b64 exec, -1
    """)
    A.label("ka_pfw")
    for st in range(NPL//2,NPL): issue_w(A,st)
    A(f"s_waitcnt vmcnt({3*NPL if 'norp' in X else 3*(NPL-NPL//2)})")
    stamp(A,8)
    A("s_branch ka_fin")
```

```python
from common import *
from mA import WSLOT,NWS,W_U,X_CNT,sTAG,sWt,sWO,sM0W,vWo,issue_w,NPL,WT
GC1=-2.0*math.sqrt(2.0/math.pi)*LOG2E; GC2=GC1*0.044715
HR=NWS*WSLOT; HRN=4; SPARE=HR+HRN*8192
FS=int(os.environ.get('FS','5'))
NREG=6; SPIN=1<<16; NA=int(os.environ.get('NA','21'))
WS_SIZE=0x1000000
NPRE=int(os.environ.get('NPRE','10')); WPI=int(os.environ.get("WPI","3"))
RL=4
def make_sched():
    free=[(SPARE,-1 if 'norp' in X else 0)]
    for st in range(6,16):
        for i in range(3): free.append(((st%NWS)*WSLOT+4096*i, st+1))
        if st>=12:
            for i in range(2): free.append((HR+(st%HRN)*8192+4096*i, st+1))
    loc={}; issue={j:[] for j in range(-1,17)}; read={j:[] for j in range(17)}
    nb=0; res=None
    for j in range(-1,17):
        lim = 99 if j==16 else (1 if j<0 else (WPI if j+HRN-1<16 else WPI+2))
        c=0
        if j==7:
            res=6*WSLOT; free=[f for f in free if f[0] not in (res,res+4096)]
            issue[j].append("r"); c+=2; read[j+RL].append("r"); free+= [(res,j+RL+1),(res+4096,j+RL+1)]
        while nb<43 and c<lim:
            av=sorted([f for f in free if f[1]<=j],key=lambda f:f[1])
            if not av: break
            f=av[0]; free.remove(f); loc[nb]=f[0]; issue[j].append(nb)
            if nb<NPRE:
                jr=max(j+RL,1) if j>=0 else 1; read[jr].append(nb); free.append((f[0],jr+1))
            nb+=1; c+=1
    assert nb==43 and len(free)>=4
    return loc,issue,read,res,[f[0] for f in free[:4]]
LOC,ISSUE,READ,X_RES,X_RED=make_sched()
def wd_loc(b): return LOC[b]
ORD=[b for b in range(43) if b%3!=2]+[b for b in range(43) if b%3==2]
CUE=int(os.environ.get('CUE','4'))
def bc(r): return f"v[{r}:{r+1}]"

def phaseB(A):
    sW=36; sMB=37; sCB=38; sT=39; sT2=40; sJ=42; sHO=43; sOO=44; sM0H=45; sHM=46; sDO=47
    sS=48; sC=56; sOUT=60; sD=4; sM0D=16; sSP=17
    vL=1; vT=10
    SR=f"s[{sS}:{sS+3}]"
    stamp(A,0)
    A(f"""
    s_and_b32 s{sT}, s2, 1
    s_lshl_b32 s{sT}, s{sT}, 3
    s_lshr_b32 s{sT2}, s2, 5
    s_add_u32 s{sCB}, s{sT}, s{sT2}
    s_and_b32 s{sT}, s2, 6
    s_lshl_b32 s{sT}, s{sT}, 1
    s_bfe_u32 s{sT2}, s2, 0x20003
    s_add_u32 s{sMB}, s{sT}, s{sT2}
    v_mov_b32 v8, {X_CNT}
    s_mov_b32 s{sS}, s30
    s_mov_b32 s{sS+1}, s31
    s_mov_b32 s{sS+2}, {WS_SIZE}
    s_mov_b32 s{sS+3}, 0x20000
    s_cmp_lt_u32 s{sW}, 4
    s_cbranch_scc1 k2_lo
    """)
    vH=2; vLin=3; vR=7
    def p2_setup():
        A(f"""
        s_and_b32 s{sT}, s{sCB}, 7
        s_lshl_b32 s{sM0D}, s{sW}, 10
        v_bfe_u32 v{vT}, v{vL}, 4, 2
        v_lshlrev_b32 v{vT}, 1, v{vT}
        v_and_b32 v{vT+1}, 7, v{vL}
        v_xor_b32 v{vT}, v{vT}, v{vT+1}
        v_lshlrev_b32 v{vT}, 4, v{vT}
        v_lshrrev_b32 v{vT+2}, 3, v{vL}
        v_lshl_add_u32 v{vR}, v{vT+2}, 8, v{vT}
        s_lshl_b32 s{sDO}, s{sT}, 7
        s_lshl_b32 s{sT2}, s{sW}, 13
        s_add_u32 s{sDO}, s{sDO}, s{sT2}
        v_bfe_u32 v{vT}, v{vL}, 4, 1
        s_and_b32 s{sT}, s{sW}, 1
        s_lshl_b32 s{sT}, s{sT}, 1
        v_or_b32 v{vT}, s{sT}, v{vT}
        v_lshlrev_b32 v{vT}, 1, v{vT}
        v_xor_b32 v{vT}, v{vT}, v{vT+1}
        v_lshlrev_b32 v{vT}, 4, v{vT}
        v_lshl_add_u32 v{vLin}, v{vT+2}, 10, v{vT}
        """)
        srd(A,sD,24,0,1376*1024)
        if "norp" not in X:
            A(f"""
            s_and_b32 s{sT}, s{sCB}, 7
            s_mul_i32 s{sDO}, s{sT}, {43*4096}
            s_add_u32 s{sDO}, s{sDO}, s{sM0D}
            s_add_u32 s{sDO}, s{sDO}, {WS_WD2}
            v_lshlrev_b32 v{vLin}, 4, v{vL}
            """)
    def issue_wd(b,loc=None):
        if "norp" not in X:
            A(f"""
            s_add_u32 m0, s{sM0D}, {wd_loc(b) if loc is None else loc}
            s_add_u32 s{sT}, s{sDO}, {4096*ORD[b]}
            buffer_load_dwordx4 v{vLin}, {SR}, s{sT} offen lds
            """)
            return
        A(f"""
        s_add_u32 m0, s{sM0D}, {wd_loc(b) if loc is None else loc}
        s_add_u32 s{sT}, s{sDO}, {32768*ORD[b]}
        buffer_load_dwordx4 v{vLin}, s[{sD}:{sD+3}], s{sT} offen lds
        """)
    def issue_res():
        A(f"""
        s_and_b32 s{sT}, s{sCB}, 7
        s_lshl_b32 s{sT}, s{sT}, 14
        s_lshl_b32 s{sT2}, s{sW}, 12
        s_add_u32 s{sT}, s{sT}, s{sT2}
        s_lshl_b32 s{sT2}, s{sMB}, 17
        s_add_u32 s{sT}, s{sT}, s{sT2}
        s_lshr_b32 s{sT2}, s{sCB}, 3
        s_lshl_b32 s{sT2}, s{sT2}, 7
        s_add_u32 s{sT}, s{sT}, s{sT2}
        s_add_u32 s{sT}, s{sT}, {WS_HT}
        s_lshl_b32 s{sT2}, s{sW}, 11
        s_add_u32 m0, s{sT2}, {X_RES}
        s_add_u32 s{sT2}, s{sT}, 2048
        buffer_load_dwordx4 v{vR}, {SR}, s{sT} offen lds
        s_add_u32 m0, m0, 1024
        s_nop 0
        buffer_load_dwordx4 v{vR}, {SR}, s{sT2} offen lds
        """)
    def issue_h(st):
        A(f"""
        s_add_u32 m0, s{sM0H}, {HR+(st%HRN)*8192}
        s_nop 0
        buffer_load_dwordx4 v{vH}, {SR}, s{sHO} offen lds
        buffer_load_dwordx4 v{vH}, {SR}, s{sHO} offen offset:1024 lds
        s_add_u32 s{sHO}, s{sHO}, 8192
        """)
    def lbar(k):
        l=A.newlabel("k2_lb")
        A(f"""
        v_mov_b32 v9, 1
        s_mov_b64 exec, 1
        ds_add_u32 v8, v9
        s_mov_b64 exec, -1
        """)
        A.label(l)
        A(f"""
        ds_read_b32 v9, v8
        s_waitcnt lgkmcnt(0)
        v_cmp_gt_u32 vcc, {4*k}, v9
        s_cbranch_vccnz {l}
        """)
    aW=12; aRr=15; vF=16; vHo=17; vOo=18; vX=19
    NS=11
    ACC=20; RG=36; FW=RG+16*(NS-1); NH=7; FH=RG+16*NS; aWn=FH+4*NH
    def p2_addr(grpB):
        A(f"""
        v_bfe_u32 v{vT}, v{vL}, 2, 2
        v_lshrrev_b32 v{vT+1}, 4, v{vL}
        v_lshl_add_u32 v{aW}, v{vT+1}, 3, v{vT}
        v_lshlrev_b32 v{aW}, 7, v{aW}
        v_and_b32 v{aW+1}, 3, v{vL}
        v_lshl_add_u32 v{aW}, v{aW+1}, 3, v{aW}
        v_lshrrev_b32 v{aW+2}, 1, v{vT}
        v_and_b32 v{vF}, 1, v{vT+1}
        v_lshl_or_b32 v{aW+2}, v{vF}, 1, v{aW+2}
        """)
        for nt in range(4):
            A(f"v_xor_b32 v{vF}, {nt}, v{aW+2}")
            A(f"v_lshl_add_u32 v{aWn+nt}, v{vF}, 5, v{aW}")
            A(f"v_add_u32 v{aWn+4+nt}, 0xf000, v{aWn+nt}")
            A(f"v_add_u32 v{aWn+8+nt}, 0x1e000, v{aWn+nt}")
        if not grpB:
            A(f"""
            v_lshl_add_u32 v{aRr}, v{vT+1}, 2, v{vT}
            v_lshlrev_b32 v{aRr}, 7, v{aRr}
            v_lshl_add_u32 v{aRr}, v{aW+1}, 3, v{aRr}
            v_xor_b32 v{vF}, s{sW}, v{aW+2}
            v_lshl_add_u32 v{aRr}, v{vF}, 5, v{aRr}
            v_add_u32 v{aRr}, {X_RES}, v{aRr}
            """)
        A(f"""
        v_lshlrev_b32 v{vHo}, 4, v{vL}
        v_and_b32 v{vOo}, 15, v{vL}
        v_lshlrev_b32 v{vOo}, 10, v{vOo}
        v_lshl_add_u32 v{vOo}, v{vT+1}, 3, v{vOo}
        s_mov_b32 s{sT}, {X_RED[0]}
        s_cmp_eq_u32 s{sW}, 1
        s_cselect_b32 s{sT}, {X_RED[1]}, s{sT}
        s_cmp_eq_u32 s{sW}, 2
        s_cselect_b32 s{sT}, {X_RED[2]}, s{sT}
        s_cmp_eq_u32 s{sW}, 3
        s_cselect_b32 s{sT}, {X_RED[3]}, s{sT}
        v_add_u32 v{vX}, s{sT}, v{vHo}
        """)
        srd(A,sOUT,26,0,2048*1024)
        A(f"""
        s_lshl_b32 s{sT}, s{sMB}, 1
        s_lshr_b32 s{sT2}, s{sCB}, 3
        s_add_u32 s{sT}, s{sT}, s{sT2}
        s_lshl_b32 s{sT}, s{sT}, 2
        s_add_u32 s{sT}, s{sT}, s{sW}
        s_mul_i32 s{sHM}, s{sT}, {43*1024}
        s_add_u32 s{sHM}, s{sHM}, {WS_HM}
        s_lshl_b32 s{sOO}, s{sT}, 14
        s_and_b32 s{sT2}, s{sCB}, 7
        s_lshl_b32 s{sT2}, s{sT2}, 7
        s_add_u32 s{sOO}, s{sOO}, s{sT2}
        """)
    def rdw(dst,b,loc=None):
        loc=wd_loc(b) if loc is None else loc; win=loc//0xf000; off=loc-win*0xf000
        return [f"ds_read_b64_tr_b16 v[{dst+4*nt+2*e}:{dst+4*nt+2*e+1}], v{aWn+4*win+nt} offset:{off+512*e}" for nt in range(4) for e in range(2)]
    assert NPRE>=10
    stubs=[]
    def cnt_wait(off,val):
        l=A.newlabel("k2_cw")
        A.label(l)
        A(f"""
        ds_read_b32 v9, v8 offset:{off}
        s_waitcnt lgkmcnt(0)
        v_cmp_gt_u32 vcc, {val}, v9
        s_cbranch_vccnz {l}
        """)
    def cnt_add(off):
        A(f"""
        v_mov_b32 v9, 1
        s_mov_b64 exec, 1
        ds_add_u32 v8, v9 offset:{off}
        s_mov_b64 exec, -1
        """)
    def p2_loop(b0,n,grpB):
        def ldh(s,sc=""):
            d=FH+4*(s%NH)
            return [f"s_add_u32 s{sT}, s{sHM}, {1024*ORD[b0+s]}", f"buffer_load_dwordx4 v[{d}:{d+3}], v{vHo}, {SR}, s{sT} offen{sc}"]
        D=min(NH-1,int(os.environ.get("P2D","6"))); PD=NPRE
        A(f"s_mov_b32 s{sSP}, 0")
        for s in range(D):
            for l in ldh(s): A(l)
        for s in range(n):
            src=RG+16*(s%NS)
            nr=rdw(RG+16*((s+PD)%NS),b0+s+PD) if s+PD<n else []
            lg=""
            if s>=NPRE:
                out=8*(min(n,s+PD)-s-1)
                if out<=15: lg=f" lgkmcnt({out})"
            A(f"s_waitcnt vmcnt({min(n,s+D)-s-1})"+lg)
            h=FH+4*(s%NH)
            lc=f"k2_c{b0+s}"; lr=f"k2_r{b0+s}"; lo=f"k2_o{b0+s}"
            A.label(lc)
            A(f"""
            v_max3_u32 v{vT}, v{h}, v{h+1}, v{h+2}
            v_max_u32 v{vT}, v{vT}, v{h+3}
            v_cmp_eq_u32 vcc, -1, v{vT}
            s_cbranch_vccnz {lr}
            """)
            A.label(lo)
            stubs.append((lr,lc,lo,ldh(s," sc0 sc1")))
            if s+D<n:
                for l in ldh(s+D): A(l)
            for nt in range(4):
                c="0" if (grpB and s==0) else f"v[{ACC+4*nt}:{ACC+4*nt+3}]"
                A(f"v_mfma_f32_16x16x32_bf16 v[{ACC+4*nt}:{ACC+4*nt+3}], v[{src+4*nt}:{src+4*nt+3}], v[{h}:{h+3}], {c}")
                if nt==0 and nr: A("s_waitcnt lgkmcnt(7)")
                for r in nr[2*nt:2*nt+2]: A(r)
        if not(grpB and 'prof' in X): stamp(A,7)
        give=ACC if grpB else ACC+8; keep=ACC+8 if grpB else ACC
        wo=0 if grpB else 2048; ro=2048 if grpB else 0
        A(f"""
        ds_write_b128 v{vX}, v[{give}:{give+3}] offset:{wo}
        ds_write_b128 v{vX}, v[{give+4}:{give+7}] offset:{wo+1024}
        s_waitcnt lgkmcnt(0)
        s_barrier
        ds_read_b128 v[{RG}:{RG+3}], v{vX} offset:{ro}
        ds_read_b128 v[{RG+4}:{RG+7}], v{vX} offset:{ro+1024}
        """)
        for i in range(2):
            A(f"s_waitcnt lgkmcnt({1-i})")
            for q in range(2):
                r=4*i+2*q
                A(f"v_pk_add_f32 {bc(keep+r)}, {bc(keep+r)}, {bc(RG+r)}")
            for q in range(2):
                r=4*i+2*q
                A(f"v_cvt_pk_bf16_f32 v{RG+8+2*i+q}, v{keep+r}, v{keep+r+1}")
            A(f"buffer_store_dwordx2 {bc(RG+8+2*i)}, v{vOo}, s[{sOUT}:{sOUT+3}], s{sOO} offen offset:{32*(i+(2 if grpB else 0))}")
    A(f"""
    s_cmp_eq_u32 s{sCB}, 15
    s_cbranch_scc1 k2_stats
    """)
    for st in range(NPL,NWS): issue_w(A,st)
    A(f"""
    s_sub_u32 s{sW}, s{sW}, 4
    v_lshrrev_b32 v{vT}, 4, v{vL}
    v_lshlrev_b32 v{vT+1}, 2, v{vT}
    v_and_b32 v{vT+2}, 15, v{vL}
    v_xor_b32 v{vT+1}, v{vT+1}, v{vT+2}
    v_lshlrev_b32 v{vT+1}, 4, v{vT+1}
    v_lshl_add_u32 v{vH}, v{vT}, 8, v{vT+1}
    s_lshl_b32 s{sM0H}, s{sW}, 11
    s_lshl_b32 s{sT}, s{sMB}, 17
    s_add_u32 s{sHO}, s{sM0H}, s{sT}
    s_add_u32 s{sHO}, s{sHO}, {WS_HT}
    """)
    p2_setup()
    p2_addr(False)
    def rd_res():
        for q in range(4): A(f"ds_read_b64_tr_b16 v[{FW+2*q}:{FW+2*q+1}], v{aRr} offset:{2048*q}")
        A("s_waitcnt lgkmcnt(0)")
        for q in range(8):
            A(f"v_lshlrev_b32 v{ACC+2*q}, 16, v{FW+q}")
            A(f"v_and_b32 v{ACC+2*q+1}, 0xffff0000, v{FW+q}")
    for b in ISSUE[-1]: issue_wd(b)
    stamp(A,1)
    A("s_barrier")
    stamp(A,2)
    issued=[]
    for st in range(HRN-1): issue_h(st); issued.append((("h",st),2))
    def after(keys):
        idx=max(i for i,(t,_) in enumerate(issued) if t in keys)
        return sum(c for _,c in issued[idx+1:])
    for j in range(17):
        if j<16:
            A(f"s_waitcnt vmcnt({min(63,after({('h',j),('w',j),('d',j-RL)}))}) lgkmcnt(0)")
            A("s_barrier")
        else: cnt_wait(12,4)
        if j==0: stamp(A,3)
        if j+HRN-1<16: issue_h(j+HRN-1); issued.append((("h",j+HRN-1),2))
        if 1<=j and j+NWS-1<16: issue_w(A,j+NWS-1); issued.append((("w",j+NWS-1),3))
        c=0; rl=list(READ[j])
        for b in ISSUE[j]:
            if b=="r": issue_res(); c+=2
            else: issue_wd(b); c+=1
            if rl:
                x=rl.pop(0)
                if x=="r": rd_res()
                else:
                    for r in rdw(RG+16*x,x): A(r)
        for x in rl:
            if x=="r": rd_res()
            else:
                for r in rdw(RG+16*x,x): A(r)
        if c: issued.append((("d",j),c))
    stamp(A,4)
    A.label("k2_p2")
    A("s_waitcnt vmcnt(0)")
    cnt_add(0)
    cnt_wait(0,4)
    stamp(A,5)
    cnt_wait(4,4)
    stamp(A,6)
    p2_loop(0,NA,False)
    dump(A,2,8,sW,4)
    A("s_endpgm")
    A.label("k2_lo")
    PF=200
    A(f"""
    s_lshr_b32 s{sT}, s{sMB}, 1
    s_lshl_b32 s{sT}, s{sT}, 10
    s_add_u32 s{sT}, s{sT}, {WS_FLH}
    v_lshl_add_u32 v{PF+4}, v{vL}, 4, s{sT}
    """)
    def hpoll(lab):
        A(f"""
        s_cmp_lg_u32 s{sW}, 0
        s_cbranch_scc1 {lab}_d
        s_mov_b32 s{sSP}, 0
        """)
        A.label(lab)
        A(f"""
        global_load_dwordx4 v[{PF}:{PF+3}], v{PF+4}, s[30:31] sc0 sc1
        s_add_u32 s{sSP}, s{sSP}, 1
        s_cmp_ge_u32 s{sSP}, {SPIN}
        s_cbranch_scc1 {lab}_d
        s_waitcnt vmcnt(0)
        v_xor_b32 v{PF}, s{sTAG}, v{PF}
        v_xor_b32 v{PF+1}, s{sTAG}, v{PF+1}
        v_xor_b32 v{PF+2}, s{sTAG}, v{PF+2}
        v_xor_b32 v{PF+3}, s{sTAG}, v{PF+3}
        v_or3_b32 v{PF}, v{PF}, v{PF+1}, v{PF+2}
        v_or_b32 v{PF}, v{PF}, v{PF+3}
        v_cmp_ne_u32 vcc, 0, v{PF}
        s_cbranch_vccnz {lab}
        """)
        A.label(lab+"_d")
    A(f"""
    s_cmp_eq_u32 s{sCB}, 15
    s_cbranch_scc1 k2_stats_lo
    """)
    p2_addr(True)
    sWT=18; sWF=19
    aH=2; aWc=4; cT=11; CSF=208; FA=30; FB=50; CAC=70; vS=166; vSt=170
    A(f"""
    s_setprio 1
    s_and_b32 s{sWT}, s{sW}, 1
    s_lshr_b32 s{sWF}, s{sW}, 1
    v_bfe_u32 v{cT}, v{vL}, 2, 2
    v_lshrrev_b32 v{cT+1}, 5, v{vL}
    v_lshl_add_u32 v{cT+1}, v{cT+1}, 3, v{cT}
    v_and_b32 v{cT+2}, 3, v{vL}
    v_bfe_u32 v{cT+3}, v{vL}, 4, 1
    v_lshlrev_b32 v{cT+4}, 8, v{cT+1}
    v_lshl_add_u32 v{cT+4}, v{cT+3}, 5, v{cT+4}
    v_lshl_add_u32 v{cT+4}, v{cT+2}, 3, v{cT+4}
    v_add_u32 v{cT+4}, {HR}, v{cT+4}
    s_lshl_b32 s{sT}, s{sWT}, 1
    v_xor_b32 v{cT+5}, s{sT}, v{cT}
    v_lshl_add_u32 v{aH}, v{cT+5}, 6, v{cT+4}
    v_xor_b32 v{cT+5}, 1, v{cT+5}
    v_lshl_add_u32 v{aH+1}, v{cT+5}, 6, v{cT+4}
    v_mul_u32_u24 v{aWc}, 192, v{cT+1}
    v_mul_u32_u24 v{cT+4}, {W_U}, v{cT+3}
    v_add_u32 v{aWc}, v{aWc}, v{cT+4}
    v_and_b32 v{cT+4}, 1, v{vL}
    v_lshl_add_u32 v{aWc}, v{cT+4}, 4, v{aWc}
    v_bfe_u32 v{cT+4}, v{vL}, 1, 1
    v_lshl_add_u32 v{aWc}, v{cT+4}, 3, v{aWc}
    s_lshl_b32 s{sT}, s{sWF}, 5
    v_add_u32 v{aWc+2}, s{sT}, v{aWc}
    v_add_u32 v{aWc}, s{sT}, v{aWc+2}
    v_add_u32 v{aWc+1}, {5*WSLOT}, v{aWc}
    v_add_u32 v{aWc+3}, {5*WSLOT}, v{aWc+2}
    v_and_b32 v{cT+4}, 1, v{cT}
    v_lshl_add_u32 v{cT+4}, v{cT+4}, 3, v{cT+2}
    v_lshrrev_b32 v{cT+5}, 1, v{cT}
    v_lshl_add_u32 v{cT+4}, v{cT+5}, 2, v{cT+4}
    v_mul_u32_u24 v{cT+5}, 1376, v{cT+3}
    v_add_u32 v{cT+4}, v{cT+4}, v{cT+5}
    v_and_b32 v{cT+5}, 32, v{vL}
    v_lshrrev_b32 v{cT+1}, 1, v{cT+5}
    v_lshl_add_u32 v{cT+4}, v{cT+4}, 5, v{cT+1}
    """)
    A(f"""
    s_mul_i32 s54, s{sCB}, 6
    s_add_u32 s54, s54, s{sWF}
    s_add_u32 s52, s54, s{sWF}
    s_add_u32 s53, s52, 1
    s_add_u32 s54, s54, 4
    """)
    for rt in range(3):
        A(f"""
        s_min_u32 s{20+rt}, s{52+rt}, 85
        s_lshl_b32 s{20+rt}, s{20+rt}, 9
        s_add_u32 s{20+rt}, s{20+rt}, {WS_CS}
        """)
    A(f"""
    s_lshl_b32 s{sT}, s{sMB}, 10
    s_lshl_b32 s{sT2}, s{sWT}, 9
    s_add_u32 s{sT}, s{sT}, s{sT2}
    s_add_u32 s{sT}, s{sT}, {WS_ST3}
    v_and_b32 v{cT}, 31, v{vL}
    v_lshl_add_u32 v{vSt}, v{cT}, 3, s{sT}
    v_mul_u32_u24 v{cT+1}, {43*1024}, v{cT+3}
    v_lshl_add_u32 v{cT+1}, v{cT+5}, 3, v{cT+1}
    v_and_b32 v{cT}, 15, v{vL}
    v_lshl_add_u32 v{cT+1}, v{cT}, 4, v{cT+1}
    s_lshl_b32 s{sT}, s{sMB}, 1
    s_add_u32 s{sT}, s{sT}, s{sWT}
    s_mul_i32 s{sJ}, s{sT}, {4*43*1024}
    s_add_u32 s{sJ}, s{sJ}, {WS_HM}
    v_mov_b32 v{vS}, 0
    """)
    hpoll("k2_hp")
    def rd(F,st,ks):
        sl=st%NWS; g=sl//5; so=(sl%5)*WSLOT; ho=(st%HRN)*8192
        def w(rt,e): return f"ds_read_b64_tr_b16 v[{F+8+4*rt+2*e}:{F+8+4*rt+2*e+1}], v{aWc+g+(2 if rt==2 else 0)} offset:{so+(16*ks+4*e)*192+(128 if rt==2 else 32*rt)}"
        def h(ct,e): return f"ds_read_b64_tr_b16 v[{F+4*ct+2*e}:{F+4*ct+2*e+1}], v{aH+ct} offset:{ho+(16*ks+4*e)*256}"
        return [w(0,0),w(0,1),h(0,0),h(0,1),h(1,0),h(1,1),w(1,0),w(1,1),w(2,0),w(2,1)]
    first=[True]*6
    def mm(F):
        out=[]
        for rt in range(3):
            for ct in range(2):
                a=CAC+16*(2*rt+ct)
                c="0" if first[2*rt+ct] else f"v[{a}:{a+15}]"
                first[2*rt+ct]=False
                out.append(f"v_mfma_f32_32x32x16_bf16 v[{a}:{a+15}], v[{F+8+4*rt}:{F+8+4*rt+3}], v[{F+4*ct}:{F+4*ct+3}], {c}")
        return out
    need_before=[4,6,8,8,10,10]
    def phase(ms,rs,prev_pending):
        issued=0; per=[2,2,2,2,2,0]; lastw=None
        for i,m in enumerate(ms):
            if prev_pending:
                n=(10-need_before[i])+issued
                if lastw is None or need_before[i]>lastw:
                    A(f"s_waitcnt lgkmcnt({min(n,15)})"); lastw=need_before[i]
            A(m)
            for _ in range(per[i]):
                if issued<len(rs): A(rs[issued]); issued+=1
    def ldst():
        A(f"global_load_dwordx2 {bc(vS)}, v{vSt}, s[30:31] sc0 sc1")
        A(f"global_load_dwordx2 {bc(vS+2)}, v{vSt}, s[30:31] offset:256 sc0 sc1")
    def ldcs(sc):
        for rt in range(3):
            A(f"buffer_load_dwordx4 v[{CSF+4*rt}:{CSF+4*rt+3}], v{cT+4}, {SR}, s{20+rt} offen{sc}")
    BF=172; K1=180; K3=184; K2=188; XX=192
    def stat_fix():
        A(f"s_mov_b32 s{sSP}, 0")
        A.label("k2_stchk")
        A("s_waitcnt vmcnt(0)")
        tg=[vS+1,vS+3]+[CSF+4*rt+o for rt in range(3) for o in (1,3)]
        for i,r in enumerate(tg): A(f"v_xor_b32 v{XX+i}, s{sTAG}, v{r}")
        A(f"""
        v_or3_b32 v{XX}, v{XX}, v{XX+1}, v{XX+2}
        v_or3_b32 v{XX+3}, v{XX+3}, v{XX+4}, v{XX+5}
        v_or3_b32 v{XX}, v{XX}, v{XX+6}, v{XX+7}
        v_or_b32 v{XX}, v{XX}, v{XX+3}
        v_cmp_ne_u32 vcc, 0, v{XX}
        s_cbranch_vccnz k2_stretry
        """)
        A.label("k2_stok")
        for rt in range(3):
            A(f"v_mov_b32 v{CSF+4*rt+1}, 0"); A(f"v_mov_b32 v{CSF+4*rt+3}, 0")
        for ct in range(2):
            A(f"""
            v_and_b32 v{BF+4*ct+1}, 0xffff, v{vS+2*ct}
            v_xor_b32 v{BF+4*ct+1}, 0x8000, v{BF+4*ct+1}
            v_lshl_or_b32 v{BF+4*ct}, v{BF+4*ct+1}, 16, v{BF+4*ct+1}
            v_mov_b32 v{BF+4*ct+3}, 0
            v_mov_b32 v{BF+4*ct+2}, v{BF+4*ct}
            """)
        B=Asm()
        for ct in range(2):
            x=XX+4*ct
            B(f"""
            v_and_b32 v{x+1}, 0xffff0000, v{vS+2*ct}
            v_rcp_f32 v{x+2}, v{x+1}
            v_mul_f32 v{K2+2*ct}, v{x+1}, v{x+1}
            v_mul_f32 v{K1+2*ct}, {f32(GC1)}, v{x+2}
            v_mul_f32 v{x+3}, v{x+2}, v{x+2}
            v_mul_f32 v{x+3}, v{x+3}, v{x+2}
            v_mul_f32 v{K3+2*ct}, {f32(GC2)}, v{x+3}
            """)
        bl=[l.strip() for l in B.l]; i=0
        for rt in range(3):
            for ct in range(2):
                a=CAC+16*(2*rt+ct)
                A(f"v_mfma_f32_32x32x16_bf16 v[{a}:{a+15}], v[{CSF+4*rt}:{CSF+4*rt+3}], v[{BF+4*ct}:{BF+4*ct+3}], v[{a}:{a+15}]")
                for l in bl[i*3:(i+1)*3]: A(l)
                i+=1
    if 'prof' not in X: stamp(A,1)
    A("s_barrier")
    ldcs("")
    A(f"""
    s_cmp_lg_u32 s{sW}, 3
    s_cbranch_scc1 k2_now
    global_load_dword v{vS+1}, v{vS}, s[26:27]
    """)
    A.label("k2_now")
    for j in range(16):
        A("s_barrier")
        if "prof" in X and j in (0,3,6,9,12,14): stamp(A,{0:1,3:3,6:4,9:5,12:6,14:7}[j])
        if j==0:
            for r in rd(FA,0,0): A(r)
        else:
            phase(mm(FB),rd(FA,j,0),False)
        if j==12: ldst()
        phase(mm(FA),rd(FB,j,1),True)
        if j==14: stat_fix()
        A("s_waitcnt lgkmcnt(0)")
    stamp(A,2)
    ms=mm(FB)
    A(ms[0])
    cnt_add(12)
    for m in ms[1:]: A(m)
    if 'prof' not in X: stamp(A,3)
    T=FA
    for rt in range(3):
        A(f"""
        s_cmp_ge_u32 s{52+rt}, 86
        s_cbranch_scc1 {"k2_sig" if 2*rt>=CUE else "k2_sig0"}
        s_lshl_b32 s{sT}, s{52+rt}, 9
        s_add_u32 s{sT}, s{sT}, s{sJ}
        s_add_u32 s{sT2}, s{sT}, {2*43*1024}
        """)
        a0=CAC+32*rt; a1=a0+16; t0=T; t1=T+8
        def st1(a,t,ct):
            return [f"v_pk_mul_f32 {bc(t+r)}, {bc(a+r)}, {bc(a+r)}" for r in (0,2,4,6)]+\
                   [f"v_pk_fma_f32 {bc(t+r)}, {bc(t+r)}, {bc(K3+2*ct)}, {bc(K1+2*ct)} op_sel_hi:[1,0,0]" for r in (0,2,4,6)]+\
                   [f"v_pk_mul_f32 {bc(t+r)}, {bc(t+r)}, {bc(a+r)}" for r in (0,2,4,6)]
        def ex(t): return [f"v_exp_f32 v{t+r}, v{t+r}" for r in range(8)]
        def gu(a): return [f"v_pk_mul_f32 {bc(a+r)}, {bc(a+r)}, {bc(a+8+r)}" for r in (0,2,4,6)]
        def dn(t,ct): return [f"v_pk_fma_f32 {bc(t+r)}, {bc(t+r)}, {bc(K2+2*ct)}, {bc(K2+2*ct)} op_sel_hi:[1,0,0]" for r in (0,2,4,6)]
        def rc(t): return [f"v_rcp_f32 v{t+r}, v{t+r}" for r in range(8)]
        def fin(a,t): return [f"v_pk_mul_f32 {bc(a+r)}, {bc(a+r)}, {bc(t+r)}" for r in (0,2,4,6)]+[f"v_cvt_pk_bf16_f32 v{a+8+r}, v{a+2*r}, v{a+2*r+1}" for r in range(4)]
        def mix(tr,ot):
            for i in range(max(len(tr),len(ot))):
                if i<len(tr): A(tr[i])
                if i<len(ot): A(ot[i])
        for l in st1(a0,t0,0): A(l)
        s1=st1(a1,t1,1)
        mix(ex(t0),s1[:8])
        for l in s1[8:]: A(l)
        mix(ex(t1),dn(t0,0)+gu(a0))
        mix(rc(t0),dn(t1,1)+gu(a1))
        mix(rc(t1),fin(a0,t0))
        for ct in range(2):
            a=CAC+16*(2*rt+ct)
            if ct==1:
                for l in fin(a1,t1): A(l)
            A(f"buffer_store_dwordx4 v[{a+8}:{a+11}], v{cT+1}, {SR}, s{sT if ct==0 else sT2} offen sc0 sc1")
            if 2*rt+ct+1==CUE:
                cnt_add(4)
                A(f"""
                s_lshl_b32 s45, s{sW}, 4
                s_add_u32 s45, s45, s{sCB}
                s_cmp_lg_u32 s45, 13
                s_cbranch_scc1 k2_nog
                s_lshl_b32 s45, s{sMB}, 7
                s_add_u32 s45, s45, {WS_FLAG+4096}
                v_mov_b32 v{vS}, s45
                v_mov_b32 v{vS+1}, s{sTAG}
                s_mov_b64 exec, 1
                global_store_dword v{vS}, v{vS+1}, s[30:31] sc0 sc1
                s_mov_b64 exec, -1
                """)
                A.label("k2_nog")
    A.label("k2_sig")
    if 'prof' not in X: stamp(A,4)
    A("s_setprio 0")
    A.label("k2_p2b")
    cnt_wait(0,4)
    if 'prof' not in X: stamp(A,5)
    for b in range(NPRE):
        for r in rdw(RG+16*b,NA+b): A(r)
    A("s_waitcnt lgkmcnt(0)")
    if 'prof' not in X: stamp(A,6)
    p2_loop(NA,43-NA,True)
    dump(A,2,8,sW)
    A("s_endpgm")
    A.label("k2_sig0")
    cnt_add(4)
    cnt_wait(4,4)
    A("s_branch k2_sig")
    for lr,lc,lo,ld in stubs:
        A.label(lr)
        A(f"""
        s_add_u32 s{sSP}, s{sSP}, 1
        s_cmp_ge_u32 s{sSP}, {SPIN}
        s_cbranch_scc1 {lo}
        """)
        for l in ld: A(l)
        A("s_waitcnt vmcnt(0)")
        A(f"s_branch {lc}")
    A.label("k2_stretry")
    A(f"""
    s_add_u32 s{sSP}, s{sSP}, 1
    s_cmp_ge_u32 s{sSP}, {SPIN}
    s_cbranch_scc1 k2_stok
    """)
    ldst(); ldcs(" sc0 sc1")
    A("s_branch k2_stchk")
    A.label("k2_stats_lo")
    hpoll("k2_hq")
    A.label("k2_stats")
    vD=16; S=80; Q=88; U=96
    A(f"""
    s_lshl_b32 s{sT}, s{sMB}, 17
    s_lshl_b32 s{sT2}, s{sW}, 14
    s_add_u32 s{sT}, s{sT}, s{sT2}
    s_add_u32 s{sT}, s{sT}, {WS_HT}
    v_lshlrev_b32 v{vLin}, 4, v{vL}
    s_barrier
    """)
    for i in range(16):
        A(f"buffer_load_dwordx4 v[{vD+4*i}:{vD+4*i+3}], v{vLin}, {SR}, s{sT} offen offset:{1024*(i%4)}")
        if i%4==3 and i<15: A(f"s_add_u32 s{sT}, s{sT}, 4096")
    for j in range(16): A(f"v_mov_b32 v{S+j}, 0")
    for i in range(16):
        A(f"s_waitcnt vmcnt({15-i})")
        for j in range(4):
            A(f"v_lshlrev_b32 v{U+2*j}, 16, v{vD+4*i+j}")
            A(f"v_and_b32 v{U+2*j+1}, 0xffff0000, v{vD+4*i+j}")
        for j in range(4):
            A(f"v_pk_add_f32 {bc(S+2*j)}, {bc(S+2*j)}, {bc(U+2*j)}")
            A(f"v_pk_fma_f32 {bc(Q+2*j)}, {bc(U+2*j)}, {bc(U+2*j)}, {bc(Q+2*j)}")
    for j in range(8): A(f"v_permlane32_swap_b32 v{S+j}, v{Q+j}")
    for j in range(8): A(f"v_add_f32 v{S+j}, v{S+j}, v{Q+j}")
    for j in range(4): A(f"v_permlane16_swap_b32 v{S+j}, v{S+j+4}")
    A(f"""
    v_and_b32 v{vT}, 15, v{vL}
    v_lshlrev_b32 v{vT}, 5, v{vT}
    v_and_b32 v{vT+1}, 16, v{vL}
    v_add_u32 v{vT}, v{vT}, v{vT+1}
    v_and_b32 v{vT+1}, 32, v{vL}
    v_lshl_add_u32 v{vT}, v{vT+1}, 4, v{vT}
    s_lshl_b32 s{sT}, s{sW}, 10
    v_add_u32 v{vT}, s{sT}, v{vT}
    """)
    for j in range(4): A(f"v_add_f32 v{S+j}, v{S+j}, v{S+j+4}")
    A(f"""
    ds_write_b128 v{vT}, v[{S}:{S+3}]
    s_waitcnt lgkmcnt(0)
    s_barrier
    s_cmp_ge_u32 s{sW}, 4
    s_cbranch_scc1 k2_st_p2
    s_cmp_ge_u32 s{sW}, 2
    s_cbranch_scc1 k2_st_exit
    v_lshlrev_b32 v{vT}, 2, v0
    """)
    for i in range(8):
        A(f"ds_read_b32 v{vD+i}, v{vT} offset:{1024*i}")
        A(f"ds_read_b32 v{vD+8+i}, v{vT} offset:{1024*i+512}")
    A("s_waitcnt lgkmcnt(0)")
    for st in (4,2,1):
        for i in range(st):
            A(f"v_add_f32 v{vD+i}, v{vD+i}, v{vD+i+st}")
            A(f"v_add_f32 v{vD+8+i}, v{vD+8+i}, v{vD+8+i+st}")
    ln_finish(A,vD,vD+8,vD+1,512)
    A(f"""
    v_cvt_pk_bf16_f32 v{vD}, v{vD}, v{vD+8}
    v_mov_b32 v{vD+1}, s{sTAG}
    s_lshl_b32 s{sT}, s{sMB}, 10
    s_add_u32 s{sT}, s{sT}, {WS_ST3}
    v_lshl_add_u32 v{vT}, v0, 3, s{sT}
    global_store_dwordx2 v{vT}, {bc(vD)}, s[30:31] sc0 sc1
    """)
    A.label("k2_st_exit")
    A("s_barrier")
    p2_addr(True)
    A(f"""
    s_cmp_lg_u32 s{sW}, 0
    s_cbranch_scc1 k2_gd
    s_lshl_b32 s45, s{sMB}, 7
    s_add_u32 s45, s45, {WS_FLAG+4096}
    v_mov_b32 v{vF}, s45
    s_mov_b32 s{sSP}, 0
    """)
    A.label("k2_g")
    A(f"""
    global_load_dword v{vT}, v{vF}, s[30:31] sc0 sc1
    s_add_u32 s{sSP}, s{sSP}, 1
    s_cmp_ge_u32 s{sSP}, {SPIN}
    s_cbranch_scc1 k2_gd
    s_waitcnt vmcnt(0)
    v_cmp_ne_u32 vcc, s{sTAG}, v{vT}
    s_cbranch_vccnz k2_g
    """)
    A.label("k2_gd")
    cnt_add(4)
    cnt_wait(4,4)
    for i in range(1,6): stamp(A,i)
    A("s_branch k2_p2b")
    A.label("k2_st_p2")
    A("s_barrier")
    A(f"s_sub_u32 s{sW}, s{sW}, 4")
    p2_setup()
    p2_addr(False)
    issue_res()
    for b in range(NPRE): issue_wd(b,4096*b)
    A("s_waitcnt vmcnt(0)")
    cnt_add(8)
    cnt_wait(8,4)
    rd_res()
    for b in range(NPRE):
        for r in rdw(RG+16*b,b,4096*b): A(r)
    A("s_waitcnt lgkmcnt(0)")
    cnt_add(8)
    cnt_wait(8,8)
    for b in range(NPRE,43): issue_wd(b)
    A("s_waitcnt vmcnt(0)")
    cnt_add(8)
    cnt_wait(8,12)
    for i in range(1,5): stamp(A,i)
    A("s_branch k2_p2")
```

```python
from common import *
from k01 import cmul, exp_bf16, cexp, row_stats
EF_PITCH=544; EF_CH=64*EF_PITCH
YP=9216
WSLOT=12320; NWS=10; W_U=6176
YB=6*WSLOT
TB=YB
XS=TB+2*KD_CH
SC=XS+8*1280
PB=SC+64
KIMG=YB+4*YP+64; IMG=4160; KIMG_CH=4*IMG
UB=KIMG+2*KIMG_CH; U_CH=96*80
assert 2*EF_CH<=YB and UB+2*U_CH<=163824
X_CNT=163824
sTAG=34; sWt=8; sWO=12; sM0W=13; sCBg=14; sMBg=15; vWo=250
NPL=int(os.environ.get("NPL","6"))
def issue_w(A,st):
    A(f"""
    s_add_u32 m0, s{sM0W}, {(st%NWS)*WSLOT}
    s_nop 0
    buffer_load_dwordx4 v{vWo}, s[{sWt}:{sWt+3}], s{sWO} offen lds
    buffer_load_dwordx4 v{vWo+1}, s[{sWt}:{sWt+3}], s{sWO} offen offset:1024 lds
    buffer_load_dwordx4 v{vWo+2}, s[{sWt}:{sWt+3}], s{sWO} offen offset:2048 lds
    s_add_u32 s{sWO}, s{sWO}, {32*2752}
    """)
SPIN=1<<16
WT=" sc0 sc1"
def phaseA(A,tail):
    sW=36; sCH=37; sG=38; sT=39; sT2=40; sHALF=41; sONE=42; sDT=43; sROW=46; sDS=50; sROLE=51; sSEL=52; sU=56; sSP=57; sEP=58; sEX=60
    vL=1; vT=2; vXR=4; vXS=8; vP=12; vAD=17; q5=18; hh=19
    vXG=20; vSG=28
    vX=36; vUD=44; vGA=52; vSA=53
    vW=56
    vRA=200; vRD=204; vCS=216
    A(f"""
    s_cmp_ge_u32 s2, 256
    s_cbranch_scc1 m_end
    s_load_dwordx16 s[4:19], s[0:1], 0
    s_load_dwordx2 s[30:31], s[0:1], 104
    s_load_dwordx8 s[20:27], s[0:1], 64
    """)
    stamp(A,0)
    A("s_getpc_b64 s[44:45]")
    A.label("ka_pf")
    A(f"""
    v_lshlrev_b32 v{vW}, 7, v0
    v_lshrrev_b32 v{vT}, 6, v0
    v_and_b32 v{vL}, 63, v0
    v_readfirstlane_b32 s{sW}, v{vT}
    s_lshr_b32 s{sT2}, s2, 3
    s_cmp_lg_u32 s{sW}, 0
    s_cbranch_scc1 ka_nopf
    s_mov_b32 exec_hi, 0xff
    global_load_dword v{vRA+3}, v{vW}, s[44:45] offset:512
    s_mov_b32 exec_hi, -1
    """)
    A.label("ka_nopf")
    A(f"""
    s_and_b32 s{sT}, s2, 7
    s_lshl_b32 s{sG}, s{sT}, 5
    s_add_u32 s{sG}, s{sG}, s{sT2}
    s_and_b32 s{sCH}, s{sW}, 1
    s_lshr_b32 s{sROLE}, s{sW}, 1
    s_and_b32 s{sHALF}, s{sROLE}, 1
    v_and_b32 v{q5}, 31, v{vL}
    v_lshrrev_b32 v{hh}, 5, v{vL}
    s_lshl_b32 s{sT}, s{sT}, 7
    s_lshl_b32 s{sT2}, s{sT2}, 16
    s_add_u32 s{sT}, s{sT}, s{sT2}
    s_lshl_b32 s{sT2}, s{sROLE}, 14
    s_add_u32 s{sT}, s{sT}, s{sT2}
    s_lshl_b32 s{sT2}, s{sCH}, 6
    s_add_u32 s{sT}, s{sT}, s{sT2}
    v_lshrrev_b32 v{vW}, 2, v{vL}
    v_and_b32 v{vW+1}, 3, v{vL}
    v_lshlrev_b32 v{vW+2}, 10, v{vW}
    v_lshl_add_u32 v{vW+2}, v{vW+1}, 4, v{vW+2}
    v_add_u32 v{vW+2}, s{sT}, v{vW+2}
    s_lshl_b32 s{sT}, s{sG}, 13
    v_lshl_add_u32 v{vAD}, v0, 4, s{sT}
    s_lshl_b32 s{sT}, s{sG}, 9
    v_lshl_add_u32 v{vT}, v{vL}, 3, s{sT}
    s_lshl_b32 s{sT2}, s{sG}, 2
    s_cmp_eq_u32 s{sCH}, 0
    s_waitcnt lgkmcnt(0)
    s_cselect_b64 s[62:63], s[6:7], s[8:9]
    s_cselect_b64 s[60:61], s[10:11], s[12:13]
    s_cmp_eq_u32 s{sHALF}, 0
    s_cselect_b64 s[62:63], s[62:63], s[60:61]
    s_cmp_ge_u32 s{sW}, 4
    s_cbranch_scc1 ka_nop
    global_load_dwordx2 v[{vP}:{vP+1}], v{vT}, s[62:63]
    """)
    A.label("ka_nop")
    A(f"""
    s_load_dword s{sEP}, s[30:31], {WS_EPOCH}
    s_load_dword s{sDT}, s[14:15], s{sT2}
    s_load_dword s{sDS}, s[16:17], s{sT2}
    s_cmp_lg_u32 s{sW}, 7
    s_cbranch_scc1 ka_nw
    v_mov_b32 v{vW+9}, 0x9000
    global_load_dword v{vRA+2}, v{vW+9}, s[30:31]
    """)
    A.label("ka_nw")
    A(f"""
    global_load_dwordx4 v[{vXS}:{vXS+3}], v{vW+2}, s[4:5]
    global_load_dwordx4 v[{vXR}:{vXR+3}], v{vAD}, s[4:5]
    s_mov_b32 s{sONE}, 0x3f803f80
    s_mov_b32 s{SK_INVN}, {f32(1/512)}
    """)
    A(f"""
    s_mul_i32 s{sT}, s{sW}, 1280
    s_add_u32 s{sT}, s{sT}, {XS}
    v_mul_u32_u24 v{vW+3}, 80, v{vW}
    v_lshl_add_u32 v{vW+3}, v{vW+1}, 4, v{vW+3}
    v_add_u32 v{vW+3}, s{sT}, v{vW+3}
    v_and_b32 v{vW}, 7, v{vL}
    v_lshrrev_b32 v{vW+1}, 3, v{vL}
    v_mul_u32_u24 v{vW+4}, 160, v{vW}
    v_lshl_add_u32 v{vW+4}, v{vW+1}, 2, v{vW+4}
    v_add_u32 v{vW+4}, s{sT}, v{vW+4}
    s_and_b32 s{sT}, s2, 7
    s_lshl_b32 s{sT}, s{sT}, 19
    s_lshl_b32 s{sT2}, s{sCH}, 18
    s_add_u32 s{sT}, s{sT}, s{sT2}
    s_lshr_b32 s{sT2}, s2, 3
    s_lshl_b32 s{sT2}, s{sT2}, 9
    s_add_u32 s{sT}, s{sT}, s{sT2}
    s_lshl_b32 s{sT2}, s{sROLE}, 7
    s_add_u32 s{sT}, s{sT}, s{sT2}
    s_add_u32 s{sT}, s{sT}, {WS_XG}
    v_lshlrev_b32 v{vW+5}, 14, v{vW+1}
    v_lshl_add_u32 v{vW+5}, v{vW}, 4, v{vW+5}
    v_add_u32 v{vW+5}, s{sT}, v{vW+5}
    v_add_u32 v{vW+6}, {8*16384}, v{vW+5}
    s_lshl_b32 s{sT}, s{sG}, 6
    v_lshl_add_u32 v{vW+7}, v{vL}, 3, s{sT}
    v_lshlrev_b32 v{vSA}, 5, v0
    s_lshl_b32 s{sT}, s{sG}, 14
    s_add_u32 s{sT}, s{sT}, {WS_XG}
    v_add_u32 v{vGA}, s{sT}, v{vSA}
    s_mul_i32 s{sT}, s{sCH}, {EF_CH}
    s_lshl_b32 s{sT2}, s{sHALF}, 8
    s_add_u32 s{sT}, s{sT}, s{sT2}
    v_lshl_add_u32 v{vAD}, v{vL}, 2, s{sT}
    """)
    A(f"""
    v_mov_b32 v{vW+8}, 0
    v_mov_b32 v{vW+9}, 0
    v_lshlrev_b32 v{vW+10}, 3, v0
    v_cmp_gt_u32 vcc, 320, v0
    s_and_saveexec_b64 s[{sEX}:{sEX+1}], vcc
    v_add_u32 v{vW+10}, {UB}, v{vW+10}
    ds_write_b64 v{vW+10}, v[{vW+8}:{vW+9}]
    ds_write_b64 v{vW+10}, v[{vW+8}:{vW+9}] offset:{U_CH}
    s_mov_b64 exec, 0x7f
    s_mul_i32 s{sT}, s{sW}, {IMG}
    s_add_u32 s{sT}, s{sT}, {KIMG+4096}
    v_lshl_add_u32 v{vW+10}, v{vL}, 3, s{sT}
    ds_write_b64 v{vW+10}, v[{vW+8}:{vW+9}]
    v_mov_b32 v{vW+10}, {X_CNT}
    ds_write_b32 v{vW+10}, v{vW+8}
    s_mov_b64 exec, -1
    """)
    A(f"""
    s_lshl_b32 s{sT}, s{sW}, 9
    s_add_u32 s{sT}, s{sT}, {PB}
    v_lshl_add_u32 v{vW+11}, v{vL}, 3, s{sT}
    s_lshl_b32 s{sT}, s{sCH}, 8
    s_lshl_b32 s{sT2}, s{sHALF}, 7
    s_add_u32 s{sT}, s{sT}, s{sT2}
    s_add_u32 s{sT}, s{sT}, {PB}
    v_lshl_add_u32 v{vW+12}, v{vL}, 1, s{sT}
    s_waitcnt lgkmcnt(0)
    s_mul_i32 s{sTAG}, s{sEP}, 0x9e3779b1
    s_add_u32 s{sTAG}, s{sTAG}, 0x7f4a7c15
    s_lshl_b32 s{sT}, s{sDT}, 16
    s_and_b32 s{sT2}, s{sDT}, 0xffff0000
    s_cmp_eq_u32 s{sCH}, 0
    s_cselect_b32 s{sDT}, s{sT}, s{sT2}
    v_mov_b32 v{vP+4}, s{sDT}
    v_mov_b32 v{vXG+1}, s{sTAG}
    v_mov_b32 v{vXG+3}, s{sTAG}
    v_mov_b32 v{vXG+5}, s{sTAG}
    v_mov_b32 v{vXG+7}, s{sTAG}
    """)
    exp_bf16(A,vP+4,vW+8)
    A(f"""
    s_cmp_ge_u32 s{sW}, 4
    s_waitcnt vmcnt(1)
    ds_write_b128 v{vW+3}, v[{vXS}:{vXS+3}]
    ds_read_b32 v{vXG}, v{vW+4}
    ds_read_b32 v{vXG+2}, v{vW+4} offset:80
    ds_read_b32 v{vXG+4}, v{vW+4} offset:32
    ds_read_b32 v{vXG+6}, v{vW+4} offset:112
    s_cbranch_scc1 ka_nop2
    ds_write_b64 v{vW+11}, v[{vP}:{vP+1}]
    """)
    A.label("ka_nop2")
    A("s_waitcnt vmcnt(0)")
    stamp(A,1)
    B=Asm(); row_stats(B,vXR,vT,vT+1,vW+8,sONE); bl=[l.strip() for l in B.l]
    for l in bl[:10]: A(l)
    A(f"""
    s_waitcnt lgkmcnt(0)
    global_store_dwordx4 v{vW+5}, v[{vXG}:{vXG+3}], s[30:31]{WT}
    global_store_dwordx4 v{vW+6}, v[{vXG+4}:{vXG+7}], s[30:31]{WT}
    """)
    for l in bl[10:]: A(l)
    A(f"""
    s_lshl_b32 s{sT}, s{sW}, 2
    s_add_u32 s{sT}, s{sT}, {SC}
    v_mov_b32 v{vW+8}, s{sT}
    s_mov_b32 exec_lo, 0
    s_mov_b32 exec_hi, 0x80000000
    ds_write_b32 v{vW+8}, v{vT}
    s_mov_b64 exec, -1
    v_lshlrev_b32 v{vW+8}, 2, v{vL}
    v_add_u32 v{vW+8}, {SC}, v{vW+8}
    v_mov_b32 v{vT+1}, s{sTAG}
    s_cmp_lg_u32 s{sW}, 3
    s_waitcnt lgkmcnt(0)
    s_barrier
    s_cbranch_scc1 ka_nost
    s_mov_b64 exec, 0xff
    ds_read_b32 v{vT}, v{vW+8}
    s_waitcnt lgkmcnt(0)
    global_store_dwordx2 v{vW+7}, v[{vT}:{vT+1}], s[30:31] offset:{WS_STATS}{WT}
    s_mov_b64 exec, -1
    """)
    A.label("ka_nost")
    A(f"""
    s_cmp_lt_u32 s{sW}, 4
    s_cbranch_scc1 ka_nowu
    s_cmp_eq_u32 s{sCH}, 0
    s_cselect_b64 s[62:63], s[20:21], s[22:23]
    s_cselect_b64 s[60:61], s[24:25], s[44:45]
    s_cmp_eq_u32 s{sHALF}, 0
    s_cselect_b64 s[62:63], s[62:63], s[60:61]
    s_mul_i32 s{sT}, s2, {43*128}
    s_lshr_b32 s{sT2}, s2, 3
    s_lshl_b32 s{sT2}, s{sT2}, 10
    s_add_u32 s{sT2}, s{sT2}, 5632
    s_mov_b32 s{sU}, {1376*1024-4}
    s_cmp_eq_u32 s{sW}, 7
    s_cselect_b32 s{sT}, s{sT2}, s{sT}
    s_cselect_b32 s{sT2}, code_end-ka_pf, s{sU}
    s_cselect_b32 exec_lo, 0xff, -1
    s_cselect_b32 exec_hi, 0, 0x7ff
    v_lshl_add_u32 v{vW+8}, v{vL}, 7, s{sT}
    v_min_u32 v{vW+8}, s{sT2}, v{vW+8}
    global_load_dword v{vRA+3}, v{vW+8}, s[62:63]
    s_mov_b64 exec, -1
    """)
    A.label("ka_nowu")
    A(f"""
    ds_read_u16 v{vP}, v{vW+12}
    ds_read_u16 v{vP+1}, v{vW+12} offset:512
    ds_read_u16 v{vP+2}, v{vW+12} offset:1024
    ds_read_u16 v{vP+3}, v{vW+12} offset:1536
    s_waitcnt lgkmcnt(0)
    """)
    stamp(A,2)
    zr=vP; zi=vP+1
    pk=[vW+20,vW+21,vW+22,vW+23]; pkc=[0]
    def put(reg,row):
        p=pk[pkc[0]%4]; pkc[0]+=1
        A(f"v_cvt_pk_bf16_f32 v{p}, v{reg}, v{reg+1}")
        A(f"ds_write_b32 v{vAD}, v{p} offset:{row*EF_PITCH}")
    w1=vW; w2=vW+2; w4=vW+4; w8=vW+6; wB=vW+8; q=vW+10; e=vW+12; e2=vW+14; t=vW+16; t2=vW+18; t3=vW+24; e3=vW+26
    A(f"""
    v_lshlrev_b32 v{vP}, 16, v{vP}
    v_lshlrev_b32 v{vP+1}, 16, v{vP+1}
    """)
    exp_bf16(A,vP,vW+28)
    A(f"""
    v_mul_f32 v{zi}, v{zi}, v{vP+4}
    v_mul_f32 v{zr}, v{zr}, v{vP+4}
    v_mul_f32 v{zr}, {f32(-LOG2E)}, v{zr}
    s_cmp_ge_u32 s{sW}, 4
    s_cbranch_scc1 ka_frole
    v_mul_f32 v{zi}, {f32(-1/(2*math.pi))}, v{zi}
    """)
    def gload(sc):
        A(f"""
        global_load_dwordx4 v[{vXG}:{vXG+3}], v{vGA}, s[30:31]{sc}
        global_load_dwordx4 v[{vXG+4}:{vXG+7}], v{vGA}, s[30:31] offset:16{sc}
        global_load_dwordx4 v[{vSG}:{vSG+3}], v{vSA}, s[30:31] offset:{WS_STATS}{sc}
        global_load_dwordx4 v[{vSG+4}:{vSG+7}], v{vSA}, s[30:31] offset:{WS_STATS+16}{sc}
        """)
    cexp(A,w1,zr,zi,1,t); cexp(A,wB,zr,zi,256,t2)
    A(f"""
    v_lshlrev_b32 v{vP+2}, 16, v{vP+2}
    v_lshlrev_b32 v{vP+3}, 16, v{vP+3}
    v_mul_f32 v{e}, v{vP+2}, v{vP+4}
    v_mul_f32 v{e+1}, v{vP+3}, v{vP+4}
    v_add_f32 v{e}, v{e}, v{e}
    v_mul_f32 v{e+1}, -2.0, v{e+1}
    """)
    cmul(A,w2,w1,w1,t); cmul(A,q,e,wB,t2); put(e,0)
    cmul(A,w4,w2,w2,t3)
    seqB=[("put",q,8),("mul",e2,q,w2),("mul",q,q,wB),("put",e2,9),("mul",e2,e2,w2),("put",q,12),("mul",e3,q,w4),("put",e2,10),("mul",e2,e2,w2),
          ("mul",q,q,wB),("put",e3,13),("put",e2,11),("put",q,14),("mul",e3,q,w4),("mul",q,q,wB),("put",e3,15),("put",q,16),("mul",q,q,wB),("put",q,20),
          ("mul",q,q,wB),("put",q,24),("mul",q,q,wB),("put",q,28),("mul",q,q,wB),("put",q,17)]
    seqA=[]
    for a in range(1,8): seqA+=[("mul",e,e,w1),("put",e,a)]
    ia=0; tt=[t2,t3]; tc=0
    for i,s in enumerate(seqB):
        if s[0]=="put": put(s[1],s[2])
        else: cmul(A,s[1],s[2],s[3],tt[tc%2]); tc+=1
        if (i<10 and i%3==0) or i>=15:
            x=seqA[ia]; ia+=1
            if x[0]=="put": put(x[1],x[2])
            else: cmul(A,x[1],x[2],x[3],t)
    aA=vW; aB=vW+1; r16=vW+2; g4=vW+3; acc=vW+4; oA=vW+12; oB=vW+13; oC=vW+14; fr=vW+32
    A(f"""
    v_and_b32 v{r16}, 15, v{vL}
    v_lshrrev_b32 v{g4}, 4, v{vL}
    s_mul_i32 s{sT}, s{sCH}, {EF_CH}
    v_mul_u32_u24 v{aA}, {EF_PITCH}, v{r16}
    v_lshl_add_u32 v{aA}, v{g4}, 4, v{aA}
    v_add_u32 v{aA}, s{sT}, v{aA}
    s_mul_i32 s{sT2}, s{sHALF}, {16*EF_PITCH}
    v_add_u32 v{aB}, s{sT2}, v{aA}
    s_lshl_b32 s{sT}, s{sHALF}, 4
    v_add_u32 v{r16}, s{sT}, v{r16}
    v_lshlrev_b32 v{oA}, 4, v{r16}
    v_lshl_add_u32 v{oA}, v{g4}, 3, v{oA}
    v_lshlrev_b32 v{oB}, 3, v{r16}
    v_add_u32 v{oB}, 512, v{oB}
    v_cmp_eq_u32 vcc, 2, v{g4}
    v_cndmask_b32 v{oA}, v{oA}, v{oB}, vcc
    v_lshlrev_b32 v{oB}, 2, v{r16}
    v_add_u32 v{oB}, 768, v{oB}
    v_cmp_eq_u32 vcc, 3, v{g4}
    v_cndmask_b32 v{oA}, v{oA}, v{oB}, vcc
    v_mov_b32 v{oB}, 4
    v_mov_b32 v{oC}, 128
    v_cndmask_b32 v{oB}, v{oB}, v{oC}, vcc
    s_mul_i32 s{sT}, s{sCH}, {KD_CH}
    s_add_u32 s{sT}, s{sT}, {TB}
    v_add_u32 v{oA}, s{sT}, v{oA}
    v_add_u32 v{oB}, v{oA}, v{oB}
    v_lshlrev_b32 v{oC}, 1, v{r16}
    v_lshl_add_u32 v{oC}, v{g4}, 6, v{oC}
    v_add_u32 v{oC}, s{sT}, v{oC}
    s_waitcnt lgkmcnt(0)
    s_barrier
    """)
    stamp(A,3)
    def rd(s):
        b=fr+12*s
        A(f"ds_read_b128 v[{b}:{b+3}], v{aB} offset:{32*EF_PITCH+64*s}")
        A(f"ds_read_b128 v[{b+4}:{b+7}], v{aA} offset:{64*s}")
        A(f"ds_read_b128 v[{b+8}:{b+11}], v{aA} offset:{16*EF_PITCH+64*s}")
    for s in range(4): rd(s)
    for s in range(8):
        b=fr+12*s
        n = 9 if s<=4 else 3*(7-s)
        A(f"s_waitcnt lgkmcnt({n})")
        c0="0" if s==0 else f"v[{acc}:{acc+3}]"; c1="0" if s==0 else f"v[{acc+4}:{acc+7}]"
        A(f"v_mfma_f32_16x16x32_bf16 v[{acc}:{acc+3}], v[{b+4}:{b+7}], v[{b}:{b+3}], {c0}")
        A(f"v_mfma_f32_16x16x32_bf16 v[{acc+4}:{acc+7}], v[{b+8}:{b+11}], v[{b}:{b+3}], {c1}")
        if s+4<8: rd(s+4)
    A(f"""
    v_cvt_pk_bf16_f32 v{acc}, v{acc}, v{acc+1}
    v_cvt_pk_bf16_f32 v{acc+1}, v{acc+2}, v{acc+3}
    v_cvt_pk_bf16_f32 v{acc+4}, v{acc+4}, v{acc+5}
    ds_write_b32 v{oA}, v{acc}
    ds_write_b32 v{oB}, v{acc+1}
    ds_write_b16 v{oC}, v{acc+4} offset:1024
    ds_write_b16_d16_hi v{oC}, v{acc+4} offset:1280
    """)
    gload("")
    A(f"s_mov_b32 s{sU}, 1000")
    A("s_branch ka_tab")
    A.label("ka_frole")
    A(f"v_mul_f32 v{zi}, {f32(1/(2*math.pi))}, v{zi}")
    cexp(A,w8,zr,zi,8,t)
    A(f"v_mov_b32 v{pk[3]}, 0x3f80")
    A(f"ds_write_b32 v{vAD}, v{pk[3]} offset:{32*EF_PITCH}")
    cmul(A,w2,w8,w8,t); put(w8,33)
    so=w8; se=w2; pend=[(w2,2)]
    for c in range(3,32):
        if c&1: cmul(A,e,so,w2,t); so=e; new=(e,c)
        else:   cmul(A,e2,se,w2,t2); se=e2; new=(e2,c)
        r,cc=pend.pop(); put(r,32+cc); pend.append(new)
    r,cc=pend.pop(); put(r,32+cc)
    A("s_waitcnt lgkmcnt(0)")
    A("s_barrier")
    stamp(A,3)
    gload("")
    vCA=vRD
    A.label("ka_tab")
    vK=vW+32; vK2=vW+36; wa=vW+4; wa2=vW+5; pr=vW+8
    A(f"""
    s_cmp_eq_u32 s{sROLE}, 0
    s_cselect_b32 s{sSEL}, 4, 1
    s_cselect_b32 s{sSEL+1}, 3, 6
    s_cselect_b32 s{sSEL+2}, 0, 768
    s_cmp_eq_u32 s{sROLE}, 1
    s_cselect_b32 s{sSEL}, 2, s{sSEL}
    s_cselect_b32 s{sSEL+1}, 7, s{sSEL+1}
    s_cselect_b32 s{sSEL+3}, 0, 128
    s_mul_i32 s{sSEL+3}, s{sSEL+3}, s{sROLE}
    s_add_u32 s{sSEL+2}, s{sSEL+2}, s{sSEL+3}
    v_lshlrev_b32 v{vW+2}, s{sSEL}, v{q5}
    v_and_b32 v{vW+2}, -4, v{vW+2}
    v_lshlrev_b32 v{vW+3}, s{sSEL+1}, v{hh}
    v_add_u32 v{vW+2}, v{vW+2}, v{vW+3}
    s_mul_i32 s{sT}, s{sCH}, {KD_CH}
    s_add_u32 s{sT}, s{sT}, {TB}
    s_add_u32 s{sSEL+2}, s{sSEL+2}, s{sT}
    v_add_u32 v{vW+2}, s{sSEL+2}, v{vW+2}
    v_lshlrev_b32 v{vW+3}, 3, v{q5}
    v_lshl_add_u32 v{vW+3}, v{hh}, 2, v{vW+3}
    v_add_u32 v{vW+3}, s{sT}, v{vW+3}
    s_mul_i32 s{sT}, s{sCH}, {KIMG_CH}
    s_add_u32 s{sT}, s{sT}, {KIMG}
    v_lshlrev_b32 v{vW+7}, 4, v{q5}
    v_sub_u32 v{vW+7}, s{sT}, v{vW+7}
    v_lshlrev_b32 v{vW+6}, 3, v{hh}
    v_sub_u32 v{vW}, v{vW+7}, v{vW+6}
    v_lshlrev_b32 v{vW+6}, 9, v{hh}
    v_sub_u32 v{vW+1}, v{vW+7}, v{vW+6}
    s_mov_b32 s{sSEL}, 0x05040100
    s_mov_b32 s{sSEL+1}, 0x05040302
    s_mov_b32 s{sSEL+2}, 0x07060100
    s_mov_b32 s{sSEL+3}, 0x07060302
    s_waitcnt lgkmcnt(0)
    s_barrier
    ds_read2_b32 v[{vK}:{vK+1}], v{vW+2} offset0:0 offset1:1
    ds_read2_b32 v[{vK+2}:{vK+3}], v{vW+2} offset0:2 offset1:3
    ds_read2_b32 v[{vK2}:{vK2+1}], v{vW+3} offset0:128 offset1:129
    """)
    wa=vW; wa2=vW+1
    stamp(A,4)
    A(f"""
    s_cmp_ge_u32 s{sROLE}, 2
    s_cbranch_scc1 ka_r23
    s_cmp_eq_u32 s{sROLE}, 1
    s_cbranch_scc1 ka_r1
    """)
    npair=[0]
    def pairop(d,lo,hi): A(f"v_perm_b32 v{d}, v{hi[0]}, v{lo[0]}, s{sSEL+lo[1]+2*hi[1]}")
    def wwin(addr,k,rho,bbase):
        lam=rho+3; iota=lam&3; b=bbase+(lam>>2)
        p=pr+2*(npair[0]%8); npair[0]+=1
        pairop(p,k[rho+3],k[rho+2]); pairop(p+1,k[rho+1],k[rho])
        A(f"ds_write_b64 v{addr}, v[{p}:{p+1}] offset:{iota*IMG+8*(511-b)}")
    A(f"""
    v_cmp_eq_u32 vcc, 63, v{vL}
    v_mov_b32 v{vW+7}, 0
    s_waitcnt lgkmcnt(0)
    v_lshrrev_b32 v{vW+2}, 16, v{vK+2}
    v_perm_b32 v{vW+3}, v{vK+2}, v{vK+2}, s{sSEL}
    v_perm_b32 v{vW+6}, v{vK2+1}, v{vK2+1}, s{sSEL}
    v_cndmask_b32 v{vK+3}, v{vK+3}, v{vW+2}, vcc
    v_cndmask_b32 v{vK+2}, v{vK+2}, v{vW+3}, vcc
    v_cndmask_b32 v{vK2+1}, v{vK2+1}, v{vW+6}, vcc
    """)
    k=[(vK+i//2,i&1) for i in range(8)]
    for rho in range(4): wwin(wa,k,rho,0)
    v=[(vK2+i//2,i&1) for i in range(4)]
    k1=[v[0],v[0],v[1],v[2],v[2],v[2],v[3]]
    for rho in range(4): wwin(wa,k1,rho,64)
    A("s_mov_b64 exec, 1")
    z=(vW+7,0); kz=[z,z,z,k[0],k[1],k[2]]
    for rho in range(3):
        p=pr+2*(npair[0]%8); npair[0]+=1
        pairop(p,kz[rho+3],kz[rho+2]); pairop(p+1,kz[rho+1],kz[rho])
        A(f"ds_write_b64 v{wa}, v[{p}:{p+1}] offset:{rho*IMG+8*511}")
    A("s_mov_b64 exec, -1")
    A("s_branch ka_norm")
    A.label("ka_r1")
    A("s_waitcnt lgkmcnt(0)")
    v=[(vK+i//2,i&1) for i in range(3)]
    k=[v[i] for i in (0,0,0,1,1,1,2,2,2,2,2)]
    for rho in range(8): wwin(wa2,k,rho,128)
    A("s_branch ka_norm")
    A.label("ka_r23")
    A(f"""
    s_lshl_b32 s{sT}, s{sHALF}, 10
    v_subrev_u32 v{wa2}, s{sT}, v{wa2}
    v_and_b32 v{vW+6}, 1, v{vL}
    v_lshlrev_b32 v{vW+6}, 4, v{vW+6}
    s_waitcnt lgkmcnt(0)
    v_alignbit_b32 v{vK}, v{vK+1}, v{vK}, v{vW+6}
    v_lshrrev_b32 v{vK+1}, v{vW+6}, v{vK}
    """)
    k=[(vK,0)]*4+[(vK+1,0)]+[(vK,1)]*6
    for rho in range(8): wwin(wa2,k,rho,256)
    A.label("ka_norm")
    m=vW; s_=vW+1; u0=vW+24; u1=vW+28; pu=vW+32; a0=vW+2; a1=vW+3
    aK=vW+36; aU=vW+37; aY=vW+38
    A(f"""
    v_lshrrev_b32 v{vW+6}, 3, v0
    v_mul_u32_u24 v{vW+6}, 80, v{vW+6}
    v_and_b32 v{s_}, 7, v0
    v_lshl_add_u32 v{vW+6}, v{s_}, 3, v{vW+6}
    v_add_u32 v{vW+6}, {UB+32*80}, v{vW+6}
    v_and_b32 v{aK}, 3, v{vL}
    v_mul_u32_u24 v{aK}, {IMG}, v{aK}
    v_lshl_add_u32 v{aK}, v{hh}, 4, v{aK}
    v_lshrrev_b32 v{aU}, 2, v{q5}
    v_lshlrev_b32 v{aU}, 3, v{aU}
    v_sub_u32 v{aK}, v{aK}, v{aU}
    s_mul_i32 s{sT}, s{sCH}, {KIMG_CH}
    s_add_u32 s{sT}, s{sT}, {KIMG+4088-2*(480+1024)}
    s_lshl_b32 s{sT2}, s{sHALF}, 10
    s_sub_u32 s{sT}, s{sT}, s{sT2}
    v_add_u32 v{aK}, s{sT}, v{aK}
    v_mul_u32_u24 v{aU}, 80, v{q5}
    v_lshl_add_u32 v{aU}, v{hh}, 4, v{aU}
    s_mul_i32 s{sT}, s{sCH}, {U_CH}
    s_add_u32 s{sT}, s{sT}, {UB+80*(32-15)}
    s_mul_i32 s{sT2}, s{sHALF}, {80*16}
    s_sub_u32 s{sT}, s{sT}, s{sT2}
    v_add_u32 v{aU}, s{sT}, v{aU}
    s_mov_b32 s{sSP}, 0
    """)
    stamp(A,5)
    A.label("ka_chk")
    A("s_waitcnt vmcnt(0)")
    A.label("ka_chk2")
    A(f"""
    v_xor_b32 v{a0}, v{vXG+1}, v{vXG+3}
    v_xor_b32 v{a1}, v{vXG+5}, v{vXG+7}
    v_xor_b32 v{m}, s{sTAG}, v{vXG+1}
    v_or3_b32 v{a0}, v{a0}, v{a1}, v{m}
    v_xor_b32 v{a1}, s{sTAG}, v{vXG+5}
    v_xor_b32 v{m}, s{sTAG}, v{vSG+1}
    v_or3_b32 v{a0}, v{a0}, v{a1}, v{m}
    v_xor_b32 v{a1}, s{sTAG}, v{vSG+3}
    v_xor_b32 v{m}, s{sTAG}, v{vSG+5}
    v_or3_b32 v{a0}, v{a0}, v{a1}, v{m}
    v_xor_b32 v{a1}, s{sTAG}, v{vSG+7}
    v_or_b32 v{a0}, v{a0}, v{a1}
    v_cmp_ne_u32 vcc, 0, v{a0}
    s_cbranch_vccnz ka_retry
    """)
    A.label("ka_ok")
    stamp(A,6)
    for j in range(4):
        st=vSG+2*j; xc=vXG+2*j
        A(f"""
        v_and_b32 v{s_}, 0xffff0000, v{st}
        v_rcp_f32 v{s_}, v{s_}
        v_lshlrev_b32 v{vX+j}, 16, v{xc}
        v_and_b32 v{vX+4+j}, 0xffff0000, v{xc}
        v_lshlrev_b32 v{m}, 16, v{st}
        v_sub_f32 v{a0}, v{vX+j}, v{m}
        v_sub_f32 v{a1}, v{vX+4+j}, v{m}
        v_cvt_pk_bf16_f32 v{a0}, v{a0}, v{a1}
        v_and_b32 v{a1}, 0xffff0000, v{a0}
        v_lshlrev_b32 v{a0}, 16, v{a0}
        v_mul_f32 v{u0+j}, v{a0}, v{s_}
        v_mul_f32 v{u1+j}, v{a1}, v{s_}
        """)
    A(f"""
    v_cvt_pk_bf16_f32 v{pu}, v{u0}, v{u0+1}
    v_cvt_pk_bf16_f32 v{pu+1}, v{u0+2}, v{u0+3}
    v_cvt_pk_bf16_f32 v{pu+2}, v{u1}, v{u1+1}
    v_cvt_pk_bf16_f32 v{pu+3}, v{u1+2}, v{u1+3}
    ds_write_b64 v{vW+6}, v[{pu}:{pu+1}]
    ds_write_b64 v{vW+6}, v[{pu+2}:{pu+3}] offset:{U_CH}
    s_cmp_ge_u32 s{sW}, 4
    s_waitcnt lgkmcnt(0)
    s_barrier
    s_cbranch_scc1 ka_aux
    """)
    stamp(A,7)
    def calc_ud():
        out=[f"s_lshl_b32 s{sT}, s{sDS}, 16", f"s_and_b32 s{sT2}, s{sDS}, 0xffff0000"]
        for c in range(2):
            for pp in range(2):
                r=pu+2*c+pp; d=vUD+4*c+2*pp; sd=sT if c==0 else sT2
                out+=[f"v_lshlrev_b32 v{d}, 16, v{r}",f"v_and_b32 v{d+1}, 0xffff0000, v{r}",f"v_mul_f32 v{d}, s{sd}, v{d}",f"v_mul_f32 v{d+1}, s{sd}, v{d+1}",
                      f"v_cvt_pk_bf16_f32 v{d}, v{d}, v{d+1}",f"v_and_b32 v{d+1}, 0xffff0000, v{d}",f"v_lshlrev_b32 v{d}, 16, v{d}"]
        return out
    def epi_addr():
        return [f"v_lshrrev_b32 v{vW}, 3, v0",f"v_mul_u32_u24 v{vW}, 144, v{vW}",f"v_and_b32 v{vW+1}, 7, v0",f"v_lshl_add_u32 v{vW}, v{vW+1}, 4, v{vW}",f"v_add_u32 v{vW}, {YB}, v{vW}",
                f"s_lshl_b32 s{sT}, s{sG}, 9",f"s_add_u32 s{sT}, s{sT}, {WS_HT}",f"v_lshl_add_u32 v{vW+1}, v{q5}, 3, s{sT}",f"v_lshrrev_b32 v{vW+2}, 5, v0",
                f"v_lshl_add_u32 v{vW+1}, v{vW+2}, 17, v{vW+1}",
                f"s_lshl_b32 s{sT}, s{sW}, 10",f"s_lshl_b32 s{sT2}, s{sG}, 2",f"s_add_u32 s{sT}, s{sT}, s{sT2}",f"s_add_u32 s{sT}, s{sT}, {WS_FLH}",
                f"v_mov_b32 v{vW+2}, s{sT}",f"v_mov_b32 v{vW+3}, s{sTAG}"]
    acc0=vW+40; acc1=vW+56; NB=3; fr=vW+72
    def loads(i):
        b=fr+16*(i%NB); ko=2*16*(31-i); mu=i>>1; nu=i&1; uo=80*(15-mu)+32*(1-nu)
        return [f"ds_read_b64 v[{b}:{b+1}], v{aK} offset:{ko+2048}",
                f"ds_read_b64 v[{b+2}:{b+3}], v{aK} offset:{ko+2048+8}",
                f"ds_read_b128 v[{b+8}:{b+11}], v{aU} offset:{uo}",
                f"ds_read_b64 v[{b+4}:{b+5}], v{aK} offset:{ko}",
                f"ds_read_b128 v[{b+12}:{b+15}], v{aU} offset:{uo+32*80}",
                f"ds_read_b64 v[{b+6}:{b+7}], v{aK} offset:{ko+8}"]
    for l in loads(0)+loads(1): A(l)
    extra=calc_ud()+[f"v_mul_u32_u24 v{aY}, 144, v{q5}",f"v_lshl_add_u32 v{aY}, v{hh}, 4, v{aY}",f"s_lshl_b32 s{sT}, s{sCH}, 1",f"s_add_u32 s{sT}, s{sT}, s{sHALF}",
          f"s_mul_i32 s{sT}, s{sT}, {YP}",f"s_add_u32 s{sT}, s{sT}, {YB}",f"v_add_u32 v{aY}, s{sT}, v{aY}"]+epi_addr()
    for i in range(32):
        b=fr+16*(i%NB)
        L=loads(i+2) if i+2<32 else []
        A(f"s_waitcnt lgkmcnt({6 if i+1<32 else 0})")
        c0="0" if i==0 else f"v[{acc0}:{acc0+15}]"
        c1="0" if i==0 else f"v[{acc1}:{acc1+15}]"
        ms=[f"v_mfma_f32_32x32x16_bf16 v[{acc0}:{acc0+15}], v[{b}:{b+3}], v[{b+8}:{b+11}], {c0}",
            f"v_mfma_f32_32x32x16_bf16 v[{acc1}:{acc1+15}], v[{b}:{b+3}], v[{b+12}:{b+15}], {c1}",
            f"v_mfma_f32_32x32x16_bf16 v[{acc1}:{acc1+15}], v[{b+4}:{b+7}], v[{b+8}:{b+11}], v[{acc1}:{acc1+15}]"]
        for j in range(3):
            A(ms[j])
            for l in L[2*j:2*j+2]: A(l)
            if extra and i>=2: A(extra.pop(0))
    assert not extra
    stamp(A,8)
    for c,ac in ((0,acc0),(1,acc1)):
        for g in range(4):
            A(f"ds_write_b128 v{aY}, v[{ac+4*g}:{ac+4*g+3}] offset:{144*32*c+32*g}")
    A.label("ka_fin")
    y=vW+8
    A("s_waitcnt lgkmcnt(0)")
    A("s_barrier")
    stamp(A,9)
    for k_ in range(4): A(f"ds_read_b128 v[{y+4*k_}:{y+4*k_+3}], v{vW} offset:{YP*k_}")
    o=vW+4
    for c in range(2):
        A(f"s_waitcnt lgkmcnt({2-2*c})")
        for pp in range(2):
            a=y+8*c+2*pp
            A(f"""
            v_pk_add_f32 v[{a}:{a+1}], v[{a}:{a+1}], v[{a+4}:{a+5}]
            v_cvt_pk_bf16_f32 v{a}, v{a}, v{a+1}
            v_and_b32 v{a+1}, 0xffff0000, v{a}
            v_lshlrev_b32 v{a}, 16, v{a}
            v_pk_add_f32 v[{a}:{a+1}], v[{a}:{a+1}], v[{vUD+4*c+2*pp}:{vUD+4*c+2*pp+1}]
            v_cvt_pk_bf16_f32 v{a}, v{a}, v{a+1}
            v_and_b32 v{a+1}, 0xffff0000, v{a}
            v_lshlrev_b32 v{a}, 16, v{a}
            v_pk_add_f32 v[{a}:{a+1}], v[{a}:{a+1}], v[{vX+4*c+2*pp}:{vX+4*c+2*pp+1}]
            v_cvt_pk_bf16_f32 v{o+2*c+pp}, v{a}, v{a+1}
            """)
        A(f"global_store_dwordx2 v{vW+1}, v[{o+2*c}:{o+2*c+1}], s[30:31] offset:{256*c}{WT}")
    A(f"""
    s_waitcnt vmcnt(0)
    s_mov_b64 exec, 1
    global_store_dword v{vW+2}, v{vW+3}, s[30:31]{WT}
    s_barrier
    """)
    dump(A,1,10,sW)
    A("s_mov_b64 exec, -1")
    AA=A; A=tail
    A.label("ka_retry")
    A(f"""
    s_add_u32 s{sSP}, s{sSP}, 1
    s_cmp_ge_u32 s{sSP}, {SPIN}
    s_cbranch_scc1 ka_ok
    """)
    A("s_mov_b64 exec, vcc")
    gload(" sc0 sc1")
    A("s_mov_b64 exec, -1")
    A("s_branch ka_chk")
    A.label("ka_aux")
    stamp(A,7)
    ad=vW+40; S=vW+44; t=vW+52
    A(f"""
    s_sub_u32 s{sU}, s{sW}, 6
    s_lshl_b32 s{sU}, s{sU}, 8
    s_add_u32 s{sU}, s{sU}, s2
    s_cmp_ge_u32 s{sU}, 344
    s_cbranch_scc1 ka_nocs
    s_lshr_b32 s{sT}, s{sU}, 2
    s_cmp_ge_u32 s{sT}, 43
    s_cselect_b32 s62, s22, s20
    s_cselect_b32 s63, s23, s21
    s_cselect_b32 s{sT2}, 43, 0
    s_sub_u32 s{sT}, s{sT}, s{sT2}
    s_lshl_b32 s{sT}, s{sT}, 6
    s_and_b32 s{sT2}, s{sU}, 3
    s_mul_i32 s{sT2}, s{sT2}, {128*2752}
    s_add_u32 s{sT}, s{sT}, s{sT2}
    v_lshrrev_b32 v{vCA}, 2, v{vL}
    v_mul_u32_u24 v{vCA}, 2752, v{vCA}
    v_and_b32 v{vCA+1}, 3, v{vL}
    v_lshl_add_u32 v{vCA}, v{vCA+1}, 4, v{vCA}
    v_add_u32 v{vCA}, s{sT}, v{vCA}
    """)
    for i in range(8):
        A(f"global_load_dwordx4 v[{vCS+4*i}:{vCS+4*i+3}], v{vCA}, s[62:63]")
        if i<7: A(f"v_add_u32 v{vCA}, {16*2752}, v{vCA}")
    A.label("ka_nocs")
    c_=vW+56
    for v in range(3):
        A(f"""
        v_add_u32 v{c_}, {64*v}, v{vL}
        v_mul_u32_u24 v{c_+1}, 0xaaab, v{c_}
        v_lshrrev_b32 v{c_+1}, 19, v{c_+1}
        v_mul_u32_u24 v{c_+1}, {2752-192}, v{c_+1}
        v_lshl_add_u32 v{vWo+v}, v{vL}, 4, v{c_+1}
        """)
    A(f"""
    s_and_b32 s{sT}, s2, 1
    s_lshl_b32 s{sT}, s{sT}, 3
    s_lshr_b32 s{sT2}, s2, 5
    s_add_u32 s{sCBg}, s{sT}, s{sT2}
    s_mul_i32 s{sWO}, s{sCH}, {16*2752}
    s_mul_i32 s{sT2}, s{sCBg}, 192
    s_add_u32 s{sWO}, s{sWO}, s{sT2}
    s_mul_i32 s{sM0W}, s{sCH}, 3072
    s_mul_i32 s{sT}, s{sHALF}, {W_U}
    s_add_u32 s{sM0W}, s{sM0W}, s{sT}
    s_cmp_ge_u32 s{sW}, 6
    s_cselect_b32 s{sWt}, s22, s20
    s_cselect_b32 s{sWt+1}, s23, s21
    s_mov_b32 s{sWt+2}, {512*2752}
    s_mov_b32 s{sWt+3}, 0x20000
    """)
    for st in range(NPL//2): issue_w(A,st)
    A(f"""
    s_cmp_lg_u32 s{sW}, 4
    s_cbranch_scc1 ka_a3
    s_cmp_lg_u32 s2, 0
    s_cbranch_scc1 ka_a3
    s_add_u32 s{sT}, s{sEP}, 1
    v_mov_b32 v{t}, {WS_EPOCH}
    v_mov_b32 v{t+1}, s{sT}
    s_mov_b64 exec, 1
    global_store_dword v{t}, v{t+1}, s[30:31]
    """)
    A.label("ka_a3")
    A("s_mov_b64 exec, -1")
    for l in calc_ud()+epi_addr(): A(l)
    if "dpf" in X:
        A(f"""
        s_cmp_ge_u32 s{sW}, 6
        s_cbranch_scc1 ka_nodpf
        s_lshr_b32 s{sT}, s2, 3
        s_lshl_b32 s{sT}, s{sT}, 1
        s_add_u32 s{sT}, s{sT}, s{sCH}
        s_mul_i32 s{sT}, s{sT}, {172*128}
        v_lshl_add_u32 v{c_}, v{vL}, 7, s{sT}
        global_load_dword v{vRA+3}, v{c_}, s[24:25]
        v_add_u32 v{c_}, 8192, v{c_}
        global_load_dword v{vRA+3}, v{c_}, s[24:25]
        v_add_u32 v{c_}, 8192, v{c_}
        s_mov_b32 exec_hi, 0xfff
        global_load_dword v{vRA+3}, v{c_}, s[24:25]
        s_mov_b32 exec_hi, -1
        """)
        A.label("ka_nodpf")
    A(f"""
    s_cmp_ge_u32 s{sU}, 344
    s_cbranch_scc1 ka_pfw
    s_waitcnt vmcnt({3*(NPL//2)})
    """)
    for i in range(8):
        for j in range(4):
            r=vCS+4*i+j
            if i==0:
                A(f"v_lshlrev_b32 v{S+2*j}, 16, v{r}")
                A(f"v_and_b32 v{S+2*j+1}, 0xffff0000, v{r}")
            else:
                A(f"v_lshlrev_b32 v{t}, 16, v{r}")
                A(f"v_and_b32 v{t+1}, 0xffff0000, v{r}")
                A(f"v_add_f32 v{S+2*j}, v{S+2*j}, v{t}")
                A(f"v_add_f32 v{S+2*j+1}, v{S+2*j+1}, v{t+1}")
    for j in range(4): A(f"v_permlane32_swap_b32 v{S+j}, v{S+j+4}")
    for j in range(4): A(f"v_add_f32 v{S+j}, v{S+j}, v{S+j+4}")
    for j in range(2): A(f"v_permlane16_swap_b32 v{S+j}, v{S+j+2}")
    for j in range(2): A(f"v_add_f32 v{S+j}, v{S+j}, v{S+j+2}")
    for ctl in ("row_ror:8","row_ror:4"):
        for j in range(2): A(f"v_add_f32_dpp v{S+j}, v{S+j}, v{S+j} {ctl} row_mask:0xf bank_mask:0xf")
    d=S+2
    A(f"""
    v_and_b32 v{t}, 4, v{vL}
    v_cmp_ne_u32 vcc, 0, v{t}
    v_cndmask_b32 v{S}, v{S}, v{S+1}, vcc
    v_cvt_pk_bf16_f32 v{S+1}, v{S}, v{S}
    v_and_b32 v{S+1}, 0xffff0000, v{S+1}
    v_sub_f32 v{S+1}, v{S}, v{S+1}
    v_cvt_pk_bf16_f32 v{d}, v{S}, v{S+1}
    v_mov_b32 v{d+1}, s{sTAG}
    v_lshlrev_b32 v{ad}, 8, v{vCA+1}
    v_lshl_add_u32 v{ad}, v{hh}, 7, v{ad}
    v_and_b32 v{t+1}, 16, v{vL}
    v_lshl_add_u32 v{ad}, v{t+1}, 2, v{ad}
    v_lshl_add_u32 v{ad}, v{t}, 3, v{ad}
    s_lshr_b32 s{sT}, s{sU}, 2
    s_lshl_b32 s{sT}, s{sT}, 10
    s_and_b32 s{sT2}, s{sU}, 3
    s_lshl_b32 s{sT2}, s{sT2}, 3
    s_add_u32 s{sT}, s{sT}, s{sT2}
    s_add_u32 s{sT}, s{sT}, {WS_CS}
    v_add_u32 v{ad}, s{sT}, v{ad}
    s_mov_b32 exec_lo, 0x00ff00ff
    s_mov_b32 exec_hi, 0x00ff00ff
    global_store_dwordx2 v{ad}, v[{d}:{d+1}], s[30:31]{WT}
    s_mov_b64 exec, -1
    """)
    A.label("ka_pfw")
    for st in range(NPL//2,NPL): issue_w(A,st)
    stamp(A,8)
    A("s_branch ka_fin")
```

```python
from common import *
from k01 import cmul, exp_bf16, cexp, row_stats
EF_PITCH=544; EF_CH=64*EF_PITCH
YP=9216
WSLOT=12320; NWS=10; W_U=6176
TB=2*EF_CH
XS=TB+2*KD_CH
SC=XS+8*1280
PB=SC+64
X_CNT=163824
UP=1152; UB=X_CNT-48-20*UP
IMG=4160; KIMG_CH=4*IMG; KIMG=UB-2*KIMG_CH
assert PB+2048+64<=KIMG and UB%16==0 and KIMG%16==0
sTAG=34; sWt=8; sWO=12; sM0W=13; sCBg=14; sMBg=15; vWo=253
GL=int(os.environ.get('GL','1'))
NPL=int(os.environ.get("NPL","5"))
def issue_w(A,st):
    A(f"""
    s_add_u32 m0, s{sM0W}, {(st%NWS)*WSLOT}
    s_nop 0
    buffer_load_dwordx4 v{vWo}, s[{sWt}:{sWt+3}], s{sWO} offen lds
    buffer_load_dwordx4 v{vWo+1}, s[{sWt}:{sWt+3}], s{sWO} offen offset:1024 lds
    buffer_load_dwordx4 v{vWo+2}, s[{sWt}:{sWt+3}], s{sWO} offen offset:2048 lds
    s_add_u32 s{sWO}, s{sWO}, {32*2752}
    """)
SPIN=1<<16
WT=" sc0 sc1"
def phaseA(A,tail):
    sW=36; sCH=37; sG=38; sT=39; sT2=40; sHALF=41; sONE=42; sDT=43; sROW=46; sDS=50; sROLE=51; sSEL=52; sU=56; sSP=57; sEP=58; sEX=60
    vL=1; vT=2; vXR=4; vXS=8; vP=12; vAD=17; q5=18; hh=19
    vXG=20; vSG=28
    vX=36; vUD=44; vGA=52; vSA=53
    vW=56
    vRA=200; vRD=204; vCS=216
    A(f"""
    s_cmp_ge_u32 s2, 256
    s_cbranch_scc1 m_end
    s_load_dwordx16 s[4:19], s[0:1], 0
    s_load_dwordx2 s[30:31], s[0:1], 104
    s_load_dwordx8 s[20:27], s[0:1], 64
    """)
    stamp(A,0)
    A("s_getpc_b64 s[44:45]")
    A.label("ka_pf")
    A(f"""
    v_lshlrev_b32 v{vW}, 7, v0
    v_lshrrev_b32 v{vT}, 6, v0
    v_and_b32 v{vL}, 63, v0
    v_readfirstlane_b32 s{sW}, v{vT}
    s_lshr_b32 s{sT2}, s2, 3
    s_cmp_lg_u32 s{sW}, 0
    s_cbranch_scc1 ka_nopf
    s_mov_b32 exec_hi, 0xff
    global_load_dword v{vRA+3}, v{vW}, s[44:45] offset:512
    s_mov_b32 exec_hi, -1
    """)
    A.label("ka_nopf")
    A(f"""
    s_and_b32 s{sT}, s2, 7
    s_lshl_b32 s{sG}, s{sT}, 5
    s_add_u32 s{sG}, s{sG}, s{sT2}
    s_and_b32 s{sCH}, s{sW}, 1
    s_lshr_b32 s{sROLE}, s{sW}, 1
    s_and_b32 s{sHALF}, s{sROLE}, 1
    v_and_b32 v{q5}, 31, v{vL}
    v_lshrrev_b32 v{hh}, 5, v{vL}
    s_lshl_b32 s{sT}, s{sT}, 7
    s_lshl_b32 s{sT2}, s{sT2}, 16
    s_add_u32 s{sT}, s{sT}, s{sT2}
    s_lshl_b32 s{sT2}, s{sROLE}, 14
    s_add_u32 s{sT}, s{sT}, s{sT2}
    s_lshl_b32 s{sT2}, s{sCH}, 6
    s_add_u32 s{sT}, s{sT}, s{sT2}
    v_lshrrev_b32 v{vW}, 2, v{vL}
    v_and_b32 v{vW+1}, 3, v{vL}
    v_lshlrev_b32 v{vW+2}, 10, v{vW}
    v_lshl_add_u32 v{vW+2}, v{vW+1}, 4, v{vW+2}
    v_add_u32 v{vW+2}, s{sT}, v{vW+2}
    s_lshl_b32 s{sT}, s{sG}, 13
    v_lshl_add_u32 v{vAD}, v0, 4, s{sT}
    s_lshl_b32 s{sT}, s{sG}, 9
    v_lshl_add_u32 v{vT}, v{vL}, 3, s{sT}
    s_lshl_b32 s{sT2}, s{sG}, 2
    s_cmp_eq_u32 s{sCH}, 0
    s_waitcnt lgkmcnt(0)
    s_cselect_b64 s[62:63], s[6:7], s[8:9]
    s_cselect_b64 s[60:61], s[10:11], s[12:13]
    s_cmp_eq_u32 s{sHALF}, 0
    s_cselect_b64 s[62:63], s[62:63], s[60:61]
    s_cmp_ge_u32 s{sW}, 4
    s_cbranch_scc1 ka_nop
    global_load_dwordx2 v[{vP}:{vP+1}], v{vT}, s[62:63]
    """)
    A.label("ka_nop")
    if "fp" in X: stamp(A,5)
    A(f"""
    s_load_dword s{sEP}, s[30:31], {WS_EPOCH}
    s_load_dword s{sDT}, s[14:15], s{sT2}
    s_load_dword s{sDS}, s[16:17], s{sT2}
    global_load_dwordx4 v[{vXS}:{vXS+3}], v{vW+2}, s[4:5]
    global_load_dwordx4 v[{vXR}:{vXR+3}], v{vAD}, s[4:5]
    s_mov_b32 s{sONE}, 0x3f803f80
    s_mov_b32 s{SK_INVN}, {f32(1/512)}
    v_mov_b32 v{vW+9}, 0x9000
    global_load_dword v{vRA+2}, v{vW+9}, s[30:31]
    """)
    PA=36
    A(f"""
    s_mul_i32 s{sT}, s{sW}, 1280
    s_add_u32 s{sT}, s{sT}, {XS}
    v_mul_u32_u24 v{PA+0}, 80, v{vW}
    v_lshl_add_u32 v{PA+0}, v{vW+1}, 4, v{PA+0}
    v_add_u32 v{PA+0}, s{sT}, v{PA+0}
    v_and_b32 v{vW}, 7, v{vL}
    v_lshrrev_b32 v{vW+1}, 3, v{vL}
    v_mul_u32_u24 v{PA+1}, 160, v{vW}
    v_lshl_add_u32 v{PA+1}, v{vW+1}, 2, v{PA+1}
    v_add_u32 v{PA+1}, s{sT}, v{PA+1}
    s_and_b32 s{sT}, s2, 7
    s_lshl_b32 s{sT}, s{sT}, 19
    s_lshl_b32 s{sT2}, s{sCH}, 18
    s_add_u32 s{sT}, s{sT}, s{sT2}
    s_lshr_b32 s{sT2}, s2, 3
    s_lshl_b32 s{sT2}, s{sT2}, 9
    s_add_u32 s{sT}, s{sT}, s{sT2}
    s_lshl_b32 s{sT2}, s{sROLE}, 7
    s_add_u32 s{sT}, s{sT}, s{sT2}
    s_add_u32 s{sT}, s{sT}, {WS_XG}
    v_lshlrev_b32 v{PA+2}, 14, v{vW+1}
    v_lshl_add_u32 v{PA+2}, v{vW}, 4, v{PA+2}
    v_add_u32 v{PA+2}, s{sT}, v{PA+2}
    v_add_u32 v{PA+3}, {8*16384}, v{PA+2}
    s_lshl_b32 s{sT}, s{sG}, 6
    v_lshl_add_u32 v{PA+4}, v{vL}, 3, s{sT}
    v_lshlrev_b32 v{vSA}, 5, v0
    s_lshl_b32 s{sT}, s{sG}, 14
    s_add_u32 s{sT}, s{sT}, {WS_XG}
    v_add_u32 v{vGA}, s{sT}, v{vSA}
    s_mul_i32 s{sT}, s{sCH}, {EF_CH}
    s_lshl_b32 s{sT2}, s{sHALF}, 8
    s_add_u32 s{sT}, s{sT}, s{sT2}
    v_lshl_add_u32 v{vAD}, v{vL}, 2, s{sT}
    """)
    A(f"""
    v_mov_b32 v{vW+8}, 0
    v_mov_b32 v{vW+9}, 0
    s_and_b32 s{sT}, s{sW}, 3
    s_mul_i32 s{sT}, s{sT}, {UP}
    s_add_u32 s{sT}, s{sT}, {UB}
    v_lshl_add_u32 v{vW+10}, v{vL}, 3, s{sT}
    ds_write_b64 v{vW+10}, v[{vW+8}:{vW+9}]
    s_mov_b64 exec, 0x7f
    s_mul_i32 s{sT}, s{sW}, {IMG}
    s_add_u32 s{sT}, s{sT}, {KIMG+4096}
    v_lshl_add_u32 v{vW+10}, v{vL}, 3, s{sT}
    ds_write_b64 v{vW+10}, v[{vW+8}:{vW+9}]
    v_mov_b32 v{vW+10}, {X_CNT}
    ds_write_b64 v{vW+10}, v[{vW+8}:{vW+9}]
    ds_write_b64 v{vW+10}, v[{vW+8}:{vW+9}] offset:8
    v_mov_b32 v{vW+10}, {SC+32}
    ds_write_b32 v{vW+10}, v{vW+8}
    s_mov_b64 exec, -1
    """)
    A(f"""
    s_lshl_b32 s{sT}, s{sW}, 9
    s_add_u32 s{sT}, s{sT}, {PB}
    v_lshl_add_u32 v{vW+11}, v{vL}, 3, s{sT}
    s_lshl_b32 s{sT}, s{sCH}, 8
    s_lshl_b32 s{sT2}, s{sHALF}, 7
    s_add_u32 s{sT}, s{sT}, s{sT2}
    s_add_u32 s{sT}, s{sT}, {PB}
    v_lshl_add_u32 v{vW+12}, v{vL}, 1, s{sT}
    s_waitcnt lgkmcnt(0)
    s_mul_i32 s{sTAG}, s{sEP}, 0x9e3779b1
    s_add_u32 s{sTAG}, s{sTAG}, 0x7f4a7c15
    s_lshl_b32 s{sT}, s{sDT}, 16
    s_and_b32 s{sT2}, s{sDT}, 0xffff0000
    s_cmp_eq_u32 s{sCH}, 0
    s_cselect_b32 s{sDT}, s{sT}, s{sT2}
    v_mov_b32 v{vP+4}, s{sDT}
    v_mov_b32 v{vXG+1}, s{sTAG}
    v_mov_b32 v{vXG+3}, s{sTAG}
    v_mov_b32 v{vXG+5}, s{sTAG}
    v_mov_b32 v{vXG+7}, s{sTAG}
    """)
    if "fp" in X: stamp(A,6)
    exp_bf16(A,vP+4,vW+8)
    A(f"""
    s_cmp_ge_u32 s{sW}, 4
    s_cbranch_scc1 ka_nop2
    s_waitcnt vmcnt(3)
    ds_write_b64 v{vW+11}, v[{vP}:{vP+1}]
    """)
    A.label("ka_nop2")
    A("s_waitcnt lgkmcnt(0)")
    A("s_barrier")
    def publish(tagl):
        T=PA+5
        A(f"""
        s_waitcnt vmcnt(2)
        ds_write_b128 v{PA}, v[{vXS}:{vXS+3}]
        ds_read_b32 v{vXG}, v{PA+1}
        ds_read_b32 v{vXG+2}, v{PA+1} offset:80
        ds_read_b32 v{vXG+4}, v{PA+1} offset:32
        ds_read_b32 v{vXG+6}, v{PA+1} offset:112
        s_waitcnt vmcnt(1)
        """)
        stamp(A,1)
        B=Asm(); row_stats(B,vXR,vT,vT+1,T,sONE); bl=[l.strip() for l in B.l]
        for l in bl[:10]: A(l)
        A(f"""
        s_waitcnt lgkmcnt(0)
        global_store_dwordx4 v{PA+2}, v[{vXG}:{vXG+3}], s[30:31]{WT}
        global_store_dwordx4 v{PA+3}, v[{vXG+4}:{vXG+7}], s[30:31]{WT}
        """)
        for l in bl[10:]: A(l)
        A(f"""
        s_lshl_b32 s{sT}, s{sW}, 2
        s_add_u32 s{sT}, s{sT}, {SC}
        v_mov_b32 v{T}, s{sT}
        v_mov_b32 v{T+1}, {SC+32}
        v_mov_b32 v{T+2}, 1
        s_mov_b32 exec_lo, 0
        s_mov_b32 exec_hi, 0x80000000
        ds_write_b32 v{T}, v{vT}
        ds_add_rtn_u32 v{T+2}, v{T+1}, v{T+2}
        s_mov_b64 exec, -1
        v_lshlrev_b32 v{T}, 2, v{vL}
        v_add_u32 v{T}, {SC}, v{T}
        v_mov_b32 v{vT+1}, s{sTAG}
        s_waitcnt lgkmcnt(0)
        v_readlane_b32 s{sT}, v{T+2}, 63
        s_cmp_lg_u32 s{sT}, 7
        s_cbranch_scc1 {tagl}
        s_mov_b64 exec, 0xff
        ds_read_b32 v{vT}, v{T}
        s_waitcnt lgkmcnt(0)
        global_store_dwordx2 v{PA+4}, v[{vT}:{vT+1}], s[30:31] offset:{WS_STATS}{WT}
        s_mov_b64 exec, -1
        """)
        A.label(tagl)
        stamp(A,2)
    def warmups():
        A(f"""
        s_cmp_eq_u32 s{sCH}, 0
        s_cselect_b64 s[62:63], s[20:21], s[22:23]
        s_cselect_b64 s[60:61], s[24:25], s[44:45]
        s_cmp_eq_u32 s{sHALF}, 0
        s_cselect_b64 s[62:63], s[62:63], s[60:61]
        s_mul_i32 s{sT}, s2, {43*128}
        s_lshr_b32 s{sT2}, s2, 3
        s_lshl_b32 s{sT2}, s{sT2}, 10
        s_add_u32 s{sT2}, s{sT2}, 5632
        s_mov_b32 s{sU}, {1376*1024-4}
        s_cmp_eq_u32 s{sW}, 7
        s_cselect_b32 s{sT}, s{sT2}, s{sT}
        s_cselect_b32 s{sT2}, code_end-ka_pf, s{sU}
        s_cselect_b32 exec_lo, 0xff, -1
        s_cselect_b32 exec_hi, 0, 0x7ff
        v_lshl_add_u32 v{PA+5}, v{vL}, 7, s{sT}
        v_min_u32 v{PA+5}, s{sT2}, v{PA+5}
        global_load_dword v{vRA+3}, v{PA+5}, s[62:63]
        s_mov_b64 exec, -1
        """)
    A(f"""
    ds_read_u16 v{vP}, v{vW+12}
    ds_read_u16 v{vP+1}, v{vW+12} offset:512
    ds_read_u16 v{vP+2}, v{vW+12} offset:1024
    ds_read_u16 v{vP+3}, v{vW+12} offset:1536
    s_waitcnt lgkmcnt(0)
    """)
    zr=vP; zi=vP+1
    pk=[vW+20,vW+21,vW+22,vW+23]; pkc=[0]
    def put(reg,row):
        p=pk[pkc[0]%4]; pkc[0]+=1
        A(f"v_cvt_pk_bf16_f32 v{p}, v{reg}, v{reg+1}")
        A(f"ds_write_b32 v{vAD}, v{p} offset:{row*EF_PITCH}")
    w1=vW; w2=vW+2; w4=vW+4; w8=vW+6; wB=vW+8; q=vW+10; e=vW+12; e2=vW+14; t=vW+16; t2=vW+18; t3=vW+24; e3=vW+26
    A(f"""
    v_lshlrev_b32 v{vP}, 16, v{vP}
    v_lshlrev_b32 v{vP+1}, 16, v{vP+1}
    """)
    exp_bf16(A,vP,vW+28)
    A(f"""
    v_mul_f32 v{zi}, v{zi}, v{vP+4}
    v_mul_f32 v{zr}, v{zr}, v{vP+4}
    v_mul_f32 v{zr}, {f32(-LOG2E)}, v{zr}
    s_cmp_ge_u32 s{sW}, 4
    s_cbranch_scc1 ka_frole
    v_mul_f32 v{zi}, {f32(-1/(2*math.pi))}, v{zi}
    """)
    def gload(sc,part=3):
        if part&1: A(f"""
        global_load_dwordx4 v[{vXG}:{vXG+3}], v{vGA}, s[30:31]{sc}
        global_load_dwordx4 v[{vXG+4}:{vXG+7}], v{vGA}, s[30:31] offset:16{sc}
        """)
        if part&2: A(f"""
        global_load_dwordx4 v[{vSG}:{vSG+3}], v{vSA}, s[30:31] offset:{WS_STATS}{sc}
        global_load_dwordx4 v[{vSG+4}:{vSG+7}], v{vSA}, s[30:31] offset:{WS_STATS+16}{sc}
        """)
    cexp(A,w1,zr,zi,1,t); cexp(A,wB,zr,zi,256,t2)
    publish("ka_pe")
    A(f"""
    v_lshlrev_b32 v{vP+2}, 16, v{vP+2}
    v_lshlrev_b32 v{vP+3}, 16, v{vP+3}
    v_mul_f32 v{e}, v{vP+2}, v{vP+4}
    v_mul_f32 v{e+1}, v{vP+3}, v{vP+4}
    v_add_f32 v{e}, v{e}, v{e}
    v_mul_f32 v{e+1}, -2.0, v{e+1}
    """)
    cmul(A,w2,w1,w1,t); cmul(A,q,e,wB,t2); put(e,0)
    cmul(A,w4,w2,w2,t3)
    seqB=[("put",q,8),("mul",e2,q,w2),("mul",q,q,wB),("put",e2,9),("mul",e2,e2,w2),("put",q,12),("mul",e3,q,w4),("put",e2,10),("mul",e2,e2,w2),
          ("mul",q,q,wB),("put",e3,13),("put",e2,11),("put",q,14),("mul",e3,q,w4),("mul",q,q,wB),("put",e3,15),("put",q,16),("mul",q,q,wB),("put",q,20),
          ("mul",q,q,wB),("put",q,24),("mul",q,q,wB),("put",q,28),("mul",q,q,wB),("put",q,17)]
    seqA=[]
    for a in range(1,8): seqA+=[("mul",e,e,w1),("put",e,a)]
    ia=0; tt=[t2,t3]; tc=0
    for i,s in enumerate(seqB):
        if s[0]=="put": put(s[1],s[2])
        else: cmul(A,s[1],s[2],s[3],tt[tc%2]); tc+=1
        if (i<10 and i%3==0) or i>=15:
            x=seqA[ia]; ia+=1
            if x[0]=="put": put(x[1],x[2])
            else: cmul(A,x[1],x[2],x[3],t)
    aA=vW; aB=vW+1; r16=vW+2; g4=vW+3; acc=vW+4; oA=vW+12; oB=vW+13; oC=vW+14; fr=vW+32
    A(f"""
    v_and_b32 v{r16}, 15, v{vL}
    v_lshrrev_b32 v{g4}, 4, v{vL}
    s_mul_i32 s{sT}, s{sCH}, {EF_CH}
    v_mul_u32_u24 v{aA}, {EF_PITCH}, v{r16}
    v_lshl_add_u32 v{aA}, v{g4}, 4, v{aA}
    v_add_u32 v{aA}, s{sT}, v{aA}
    s_mul_i32 s{sT2}, s{sHALF}, {16*EF_PITCH}
    v_add_u32 v{aB}, s{sT2}, v{aA}
    s_lshl_b32 s{sT}, s{sHALF}, 4
    v_add_u32 v{r16}, s{sT}, v{r16}
    v_lshlrev_b32 v{oA}, 4, v{r16}
    v_lshl_add_u32 v{oA}, v{g4}, 3, v{oA}
    v_lshlrev_b32 v{oB}, 3, v{r16}
    v_add_u32 v{oB}, 512, v{oB}
    v_cmp_eq_u32 vcc, 2, v{g4}
    v_cndmask_b32 v{oA}, v{oA}, v{oB}, vcc
    v_lshlrev_b32 v{oB}, 2, v{r16}
    v_add_u32 v{oB}, 768, v{oB}
    v_cmp_eq_u32 vcc, 3, v{g4}
    v_cndmask_b32 v{oA}, v{oA}, v{oB}, vcc
    v_mov_b32 v{oB}, 4
    v_mov_b32 v{oC}, 128
    v_cndmask_b32 v{oB}, v{oB}, v{oC}, vcc
    s_mul_i32 s{sT}, s{sCH}, {KD_CH}
    s_add_u32 s{sT}, s{sT}, {TB}
    v_add_u32 v{oA}, s{sT}, v{oA}
    v_add_u32 v{oB}, v{oA}, v{oB}
    v_lshlrev_b32 v{oC}, 1, v{r16}
    v_lshl_add_u32 v{oC}, v{g4}, 6, v{oC}
    v_add_u32 v{oC}, s{sT}, v{oC}
    s_waitcnt lgkmcnt(0)
    s_barrier
    """)
    stamp(A,3)
    def rd(s):
        b=fr+12*s
        A(f"ds_read_b128 v[{b}:{b+3}], v{aB} offset:{32*EF_PITCH+64*s}")
        A(f"ds_read_b128 v[{b+4}:{b+7}], v{aA} offset:{64*s}")
        A(f"ds_read_b128 v[{b+8}:{b+11}], v{aA} offset:{16*EF_PITCH+64*s}")
    for s in range(4): rd(s)
    for s in range(8):
        b=fr+12*s
        n = 9 if s<=4 else 3*(7-s)
        A(f"s_waitcnt lgkmcnt({n})")
        c0="0" if s==0 else f"v[{acc}:{acc+3}]"; c1="0" if s==0 else f"v[{acc+4}:{acc+7}]"
        A(f"v_mfma_f32_16x16x32_bf16 v[{acc}:{acc+3}], v[{b+4}:{b+7}], v[{b}:{b+3}], {c0}")
        A(f"v_mfma_f32_16x16x32_bf16 v[{acc+4}:{acc+7}], v[{b+8}:{b+11}], v[{b}:{b+3}], {c1}")
        if s+4<8: rd(s+4)
    A(f"""
    v_cvt_pk_bf16_f32 v{acc}, v{acc}, v{acc+1}
    v_cvt_pk_bf16_f32 v{acc+1}, v{acc+2}, v{acc+3}
    v_cvt_pk_bf16_f32 v{acc+4}, v{acc+4}, v{acc+5}
    ds_write_b32 v{oA}, v{acc}
    ds_write_b32 v{oB}, v{acc+1}
    ds_write_b16 v{oC}, v{acc+4} offset:1024
    ds_write_b16_d16_hi v{oC}, v{acc+4} offset:1280
    """)
    if GL==0: gload("")
    if GL==2: gload("",1)
    A(f"s_mov_b32 s{sU}, 1000")
    A("s_branch ka_tab")
    A.label("ka_frole")
    A(f"v_mul_f32 v{zi}, {f32(1/(2*math.pi))}, v{zi}")
    cexp(A,w8,zr,zi,8,t)
    A(f"v_mov_b32 v{pk[3]}, 0x3f80")
    A(f"ds_write_b32 v{vAD}, v{pk[3]} offset:{32*EF_PITCH}")
    cmul(A,w2,w8,w8,t); put(w8,33)
    FPUB=int(os.environ.get("FPUB","3"))
    so=w8; se=w2; put(w2,34)
    eo=[e,e3]; ee=[e2,q]
    def pm(d,a_,b_): A(f"v_pk_mul_f32 v[{d}:{d+1}], v[{a_}:{a_+1}], v[{b_}:{b_+1}] op_sel:[0,0] op_sel_hi:[0,1]")
    def pf(d,a_,b_,t_): A(f"v_pk_fma_f32 v[{d}:{d+1}], v[{a_}:{a_+1}], v[{b_}:{b_+1}], v[{t_}:{t_+1}] op_sel:[1,1,0] op_sel_hi:[1,0,1] neg_lo:[1,0,0]")
    pend=[]
    for i,c in enumerate(range(3,32,2)):
        do=eo[i&1]; de=ee[i&1]
        pm(t,so,w2)
        if c+1<32: pm(t2,se,w2)
        if pend: put(*pend.pop(0))
        pf(do,so,w2,t)
        if c+1<32: pf(de,se,w2,t2)
        if pend: put(*pend.pop(0))
        pend=[(do,32+c)]+([(de,33+c)] if c+1<32 else [])
        so=do; se=de
        if c==FPUB:
            publish("ka_pf2"); warmups()
    for p_ in pend: put(*p_)
    A("s_waitcnt lgkmcnt(0)")
    A("s_barrier")
    stamp(A,3)
    if GL==0: gload("")
    if GL==2: gload("",1)
    vCA=vRD
    A.label("ka_tab")
    vK=vW+32; vK2=vW+36; wa=vW+4; wa2=vW+5; pr=vW+8
    A(f"""
    s_cmp_eq_u32 s{sROLE}, 0
    s_cselect_b32 s{sSEL}, 4, 1
    s_cselect_b32 s{sSEL+1}, 3, 6
    s_cselect_b32 s{sSEL+2}, 0, 768
    s_cmp_eq_u32 s{sROLE}, 1
    s_cselect_b32 s{sSEL}, 2, s{sSEL}
    s_cselect_b32 s{sSEL+1}, 7, s{sSEL+1}
    s_cselect_b32 s{sSEL+3}, 0, 128
    s_mul_i32 s{sSEL+3}, s{sSEL+3}, s{sROLE}
    s_add_u32 s{sSEL+2}, s{sSEL+2}, s{sSEL+3}
    v_lshlrev_b32 v{vW+2}, s{sSEL}, v{q5}
    v_and_b32 v{vW+2}, -4, v{vW+2}
    v_lshlrev_b32 v{vW+3}, s{sSEL+1}, v{hh}
    v_add_u32 v{vW+2}, v{vW+2}, v{vW+3}
    s_mul_i32 s{sT}, s{sCH}, {KD_CH}
    s_add_u32 s{sT}, s{sT}, {TB}
    s_add_u32 s{sSEL+2}, s{sSEL+2}, s{sT}
    v_add_u32 v{vW+2}, s{sSEL+2}, v{vW+2}
    v_lshlrev_b32 v{vW+3}, 3, v{q5}
    v_lshl_add_u32 v{vW+3}, v{hh}, 2, v{vW+3}
    v_add_u32 v{vW+3}, s{sT}, v{vW+3}
    s_mul_i32 s{sT}, s{sCH}, {KIMG_CH}
    s_add_u32 s{sT}, s{sT}, {KIMG}
    v_lshlrev_b32 v{vW+7}, 4, v{q5}
    v_sub_u32 v{vW+7}, s{sT}, v{vW+7}
    v_lshlrev_b32 v{vW+6}, 3, v{hh}
    v_sub_u32 v{vW}, v{vW+7}, v{vW+6}
    v_lshlrev_b32 v{vW+6}, 9, v{hh}
    v_sub_u32 v{vW+1}, v{vW+7}, v{vW+6}
    s_mov_b32 s{sSEL}, 0x05040100
    s_mov_b32 s{sSEL+1}, 0x05040302
    s_mov_b32 s{sSEL+2}, 0x07060100
    s_mov_b32 s{sSEL+3}, 0x07060302
    s_waitcnt lgkmcnt(0)
    s_barrier
    ds_read2_b32 v[{vK}:{vK+1}], v{vW+2} offset0:0 offset1:1
    ds_read2_b32 v[{vK+2}:{vK+3}], v{vW+2} offset0:2 offset1:3
    ds_read2_b32 v[{vK2}:{vK2+1}], v{vW+3} offset0:128 offset1:129
    """)
    wa=vW; wa2=vW+1
    if GL==1: gload("")
    if GL==2: gload("",2)
    stamp(A,4)
    A(f"""
    s_cmp_ge_u32 s{sROLE}, 2
    s_cbranch_scc1 ka_r23
    s_cmp_eq_u32 s{sROLE}, 1
    s_cbranch_scc1 ka_r1
    """)
    npair=[0]
    def pairop(d,lo,hi): A(f"v_perm_b32 v{d}, v{hi[0]}, v{lo[0]}, s{sSEL+lo[1]+2*hi[1]}")
    def wwin(addr,k,rho,bbase):
        lam=rho+3; iota=lam&3; b=bbase+(lam>>2)
        p=pr+2*(npair[0]%8); npair[0]+=1
        pairop(p,k[rho+3],k[rho+2]); pairop(p+1,k[rho+1],k[rho])
        A(f"ds_write_b64 v{addr}, v[{p}:{p+1}] offset:{iota*IMG+8*(511-b)}")
    A(f"""
    v_cmp_eq_u32 vcc, 63, v{vL}
    v_mov_b32 v{vW+7}, 0
    s_waitcnt lgkmcnt(0)
    v_lshrrev_b32 v{vW+2}, 16, v{vK+2}
    v_perm_b32 v{vW+3}, v{vK+2}, v{vK+2}, s{sSEL}
    v_perm_b32 v{vW+6}, v{vK2+1}, v{vK2+1}, s{sSEL}
    v_cndmask_b32 v{vK+3}, v{vK+3}, v{vW+2}, vcc
    v_cndmask_b32 v{vK+2}, v{vK+2}, v{vW+3}, vcc
    v_cndmask_b32 v{vK2+1}, v{vK2+1}, v{vW+6}, vcc
    """)
    k=[(vK+i//2,i&1) for i in range(8)]
    for rho in range(4): wwin(wa,k,rho,0)
    v=[(vK2+i//2,i&1) for i in range(4)]
    k1=[v[0],v[0],v[1],v[2],v[2],v[2],v[3]]
    for rho in range(4): wwin(wa,k1,rho,64)
    A("s_mov_b64 exec, 1")
    z=(vW+7,0); kz=[z,z,z,k[0],k[1],k[2]]
    for rho in range(3):
        p=pr+2*(npair[0]%8); npair[0]+=1
        pairop(p,kz[rho+3],kz[rho+2]); pairop(p+1,kz[rho+1],kz[rho])
        A(f"ds_write_b64 v{wa}, v[{p}:{p+1}] offset:{rho*IMG+8*511}")
    A("s_mov_b64 exec, -1")
    A("s_branch ka_norm")
    A.label("ka_r1")
    A("s_waitcnt lgkmcnt(0)")
    v=[(vK+i//2,i&1) for i in range(3)]
    k=[v[i] for i in (0,0,0,1,1,1,2,2,2,2,2)]
    for rho in range(8): wwin(wa2,k,rho,128)
    A("s_branch ka_norm")
    A.label("ka_r23")
    A(f"""
    s_lshl_b32 s{sT}, s{sHALF}, 10
    v_subrev_u32 v{wa2}, s{sT}, v{wa2}
    v_and_b32 v{vW+6}, 1, v{vL}
    v_lshlrev_b32 v{vW+6}, 4, v{vW+6}
    s_waitcnt lgkmcnt(0)
    v_alignbit_b32 v{vK}, v{vK+1}, v{vK}, v{vW+6}
    v_lshrrev_b32 v{vK+1}, v{vW+6}, v{vK}
    """)
    k=[(vK,0)]*4+[(vK+1,0)]+[(vK,1)]*6
    for rho in range(8): wwin(wa2,k,rho,256)
    A.label("ka_norm")
    m=vW; s_=vW+1; u0=vW+24; u1=vW+28; pu=vW+32; a0=vW+2; a1=vW+3
    aK=vW+36; aU=vW+40; aE=vW+37; aH=vW+44; p16=vW+38; g4=vW+39
    A(f"""
    v_lshrrev_b32 v{vW+6}, 5, v0
    v_mul_u32_u24 v{vW+6}, {UP}, v{vW+6}
    v_lshl_add_u32 v{vW+6}, v{q5}, 3, v{vW+6}
    v_add_u32 v{vW+6}, {UB+4*UP}, v{vW+6}
    v_and_b32 v{p16}, 15, v{vL}
    v_lshrrev_b32 v{g4}, 4, v{vL}
    v_and_b32 v{aK}, 3, v{vL}
    v_mul_u32_u24 v{aE}, {IMG}, v{aK}
    v_lshl_add_u32 v{aE}, v{g4}, 4, v{aE}
    v_lshrrev_b32 v{s_}, 2, v{p16}
    v_lshlrev_b32 v{m}, 3, v{s_}
    v_sub_u32 v{aE}, v{aE}, v{m}
    v_lshl_add_u32 v{m}, v{aK}, 1, v{g4}
    s_mul_i32 s{sT}, s{sCH}, {KIMG_CH}
    s_add_u32 s{sT}, s{sT}, {KIMG+4088-2*(16+480+1536)}
    v_add_u32 v{aK}, s{sT}, v{aE}
    s_lshl_b32 s{sT}, s{sHALF}, 3
    s_add_u32 s{sT}, s{sT}, 14
    v_lshl_add_u32 v{m}, v{s_}, 4, v{m}
    v_add_u32 v{m}, s{sT}, v{m}
    s_lshl_b32 s{sT}, s{sCH}, 8
    s_add_u32 s{sT}, s{sT}, {UB}
    """)
    for ph in range(4):
        A(f"""
        v_subrev_u32 v{a0}, {4*ph}, v{m}
        v_lshrrev_b32 v{a1}, 4, v{a0}
        v_mul_u32_u24 v{a1}, {UP-256}, v{a1}
        v_lshl_add_u32 v{a1}, v{a0}, 4, v{a1}
        v_add_u32 v{aU+ph}, s{sT}, v{a1}
        """)
    A(f"s_mov_b32 s{sSP}, 0")
    if "fp" not in X: stamp(A,5)
    A.label("ka_chk")
    A("s_waitcnt vmcnt(0)")
    A.label("ka_chk2")
    A(f"""
    v_xor_b32 v{a0}, v{vXG+1}, v{vXG+3}
    v_xor_b32 v{a1}, v{vXG+5}, v{vXG+7}
    v_xor_b32 v{m}, s{sTAG}, v{vXG+1}
    v_or3_b32 v{a0}, v{a0}, v{a1}, v{m}
    v_xor_b32 v{a1}, s{sTAG}, v{vXG+5}
    v_xor_b32 v{m}, s{sTAG}, v{vSG+1}
    v_or3_b32 v{a0}, v{a0}, v{a1}, v{m}
    v_xor_b32 v{a1}, s{sTAG}, v{vSG+3}
    v_xor_b32 v{m}, s{sTAG}, v{vSG+5}
    v_or3_b32 v{a0}, v{a0}, v{a1}, v{m}
    v_xor_b32 v{a1}, s{sTAG}, v{vSG+7}
    v_or_b32 v{a0}, v{a0}, v{a1}
    v_cmp_ne_u32 vcc, 0, v{a0}
    s_cbranch_vccnz ka_retry
    """)
    A.label("ka_ok")
    if "fp" not in X: stamp(A,6)
    xt=vX
    for j in range(4):
        st=vSG+2*j; xc=vXG+2*j
        A(f"""
        v_and_b32 v{s_}, 0xffff0000, v{st}
        v_rcp_f32 v{s_}, v{s_}
        v_lshlrev_b32 v{a0}, 16, v{xc}
        v_and_b32 v{a1}, 0xffff0000, v{xc}
        v_lshlrev_b32 v{m}, 16, v{st}
        v_sub_f32 v{a0}, v{a0}, v{m}
        v_sub_f32 v{a1}, v{a1}, v{m}
        v_cvt_pk_bf16_f32 v{a0}, v{a0}, v{a1}
        v_and_b32 v{a1}, 0xffff0000, v{a0}
        v_lshlrev_b32 v{a0}, 16, v{a0}
        v_mul_f32 v{u0+j}, v{a0}, v{s_}
        v_mul_f32 v{u1+j}, v{a1}, v{s_}
        """)
    A(f"""
    v_cvt_pk_bf16_f32 v{pu}, v{u0}, v{u0+1}
    v_cvt_pk_bf16_f32 v{pu+1}, v{u0+2}, v{u0+3}
    v_cvt_pk_bf16_f32 v{pu+2}, v{u1}, v{u1+1}
    v_cvt_pk_bf16_f32 v{pu+3}, v{u1+2}, v{u1+3}
    ds_write_b64 v{vW+6}, v[{pu}:{pu+1}]
    ds_write_b64 v{vW+6}, v[{pu+2}:{pu+3}] offset:256
    v_perm_b32 v{xt}, v{vXG+2}, v{vXG}, s{sSEL}
    v_perm_b32 v{xt+1}, v{vXG+6}, v{vXG+4}, s{sSEL}
    v_perm_b32 v{xt+2}, v{vXG+2}, v{vXG}, s{sSEL+3}
    v_perm_b32 v{xt+3}, v{vXG+6}, v{vXG+4}, s{sSEL+3}
    ds_write_b64 v{vW+6}, v[{xt}:{xt+1}] offset:512
    ds_write_b64 v{vW+6}, v[{xt+2}:{xt+3}] offset:768
    s_cmp_ge_u32 s{sW}, 4
    s_waitcnt lgkmcnt(0)
    s_barrier
    s_cbranch_scc1 ka_aux
    """)
    stamp(A,7)
    acc=vW+48; fr=vW+64; EU=vW+128; EX=vW+136; UD=vW+144; XF=vW+160
    def loads(s):
        b=fr+32*(s%2)
        def Ak(k): ko=2*(480+1536-32*s-512*k); return [f"ds_read_b64 v[{b+4*k}:{b+4*k+1}], v{aK} offset:{ko}",f"ds_read_b64 v[{b+4*k+2}:{b+4*k+3}], v{aK} offset:{ko+8}"]
        def Bj(j): return [f"ds_read_b128 v[{b+16+4*j}:{b+19+4*j}], v{aU+(s&3)} offset:{UP*(3-(s>>2)+4*j)}"]
        return Ak(0)+Bj(0)+Bj(1)+Ak(1)+Bj(2)+Ak(2)+Bj(3)+Ak(3)
    order=[(0,0,3),(1,0,4),(1,1,6),(2,0,7),(2,1,7),(2,2,9),(3,0,10),(3,1,10),(3,2,10),(3,3,12)]
    for l in loads(0): A(l)
    ex0=[f"v_lshrrev_b32 v{m}, 2, v{p16}",f"v_mul_u32_u24 v{aE}, {UP}, v{m}",f"v_and_b32 v{s_}, 3, v{vL}",f"v_lshlrev_b32 v{s_}, 5, v{s_}",
         f"v_lshl_add_u32 v{s_}, v{g4}, 3, v{s_}",f"s_lshl_b32 s{sT}, s{sHALF}, 7",f"s_lshl_b32 s{sT2}, s{sCH}, 8",f"s_add_u32 s{sT}, s{sT}, s{sT2}",
         f"v_add_u32 v{s_}, s{sT}, v{s_}",f"v_add3_u32 v{aE}, v{aE}, v{s_}, s{sONE}"]
    A(f"s_mov_b32 s{sONE}, {UB+4*UP}")
    for l in ex0: A(l)
    rdx={1:[f"ds_read_b64 v[{EU+2*c}:{EU+2*c+1}], v{aE} offset:{4*UP*c}" for c in range(4)],
         2:[f"ds_read_b64 v[{EX+2*c}:{EX+2*c+1}], v{aE} offset:{4*UP*c+512}" for c in range(4)]}
    ex=[f"v_lshl_add_u32 v{aH}, v{m}, 17, v{s_}",f"s_lshl_b32 s{sT}, s{sG}, 9",f"s_add_u32 s{sT}, s{sT}, {WS_HT}",f"v_add_u32 v{aH}, s{sT}, v{aH}"]
    ex+=[f"v_add_u32 v{aH+c}, {c*524288}, v{aH}" for c in (1,2,3)]
    ex+=[f"s_lshl_b32 s{sT}, s{sDS}, 16", f"s_and_b32 s{sT2}, s{sDS}, 0xffff0000", f"s_cmp_eq_u32 s{sCH}, 0", f"s_cselect_b32 s{sDS}, s{sT}, s{sT2}"]
    for i in range(8):
        d=UD+2*i
        ex+=[f"v_lshlrev_b32 v{d}, 16, v{EU+i}",f"v_and_b32 v{d+1}, 0xffff0000, v{EU+i}",f"v_mul_f32 v{d}, s{sDS}, v{d}",f"v_mul_f32 v{d+1}, s{sDS}, v{d+1}",
             f"v_cvt_pk_bf16_f32 v{d}, v{d}, v{d+1}",f"v_and_b32 v{d+1}, 0xffff0000, v{d}",f"v_lshlrev_b32 v{d}, 16, v{d}"]
    for i in range(8):
        ex+=[f"v_lshlrev_b32 v{XF+2*i}, 16, v{EX+i}",f"v_and_b32 v{XF+2*i+1}, 0xffff0000, v{EX+i}"]
    prevx=0
    for s in range(16):
        b=fr+32*(s%2)
        L=(loads(s+1) if s<15 else [])+rdx.get(s,[])
        iss=0; lastw=-1
        for i,(c,k,need) in enumerate(order):
            if need>lastw:
                A(f"s_waitcnt lgkmcnt({min(15,12-need+prevx+iss)})"); lastw=need
            cc="0" if (s==0 and k==0) else f"v[{acc+4*c}:{acc+4*c+3}]"
            A(f"v_mfma_f32_16x16x32_bf16 v[{acc+4*c}:{acc+4*c+3}], v[{b+4*k}:{b+4*k+3}], v[{b+16+4*(c-k)}:{b+19+4*(c-k)}], {cc}")
            n=(len(L)*(i+1))//10-(len(L)*i)//10
            for _ in range(n): A(L[iss]); iss+=1
            if s>=4 and ex and n<2: A(ex.pop(0))
        prevx=len(rdx.get(s,[]))
    for l in ex: A(l)
    stamp(A,8)
    for c in range(4):
        a=acc+4*c
        for src in (UD+4*c,XF+4*c):
            A(f"""
            v_cvt_pk_bf16_f32 v{a}, v{a}, v{a+1}
            v_cvt_pk_bf16_f32 v{a+2}, v{a+2}, v{a+3}
            v_and_b32 v{a+1}, 0xffff0000, v{a}
            v_and_b32 v{a+3}, 0xffff0000, v{a+2}
            v_lshlrev_b32 v{a}, 16, v{a}
            v_lshlrev_b32 v{a+2}, 16, v{a+2}
            v_pk_add_f32 v[{a}:{a+1}], v[{a}:{a+1}], v[{src}:{src+1}]
            v_pk_add_f32 v[{a+2}:{a+3}], v[{a+2}:{a+3}], v[{src+2}:{src+3}]
            """)
        A(f"""
        v_cvt_pk_bf16_f32 v{a}, v{a}, v{a+1}
        v_cvt_pk_bf16_f32 v{a+1}, v{a+2}, v{a+3}
        global_store_dwordx2 v{aH+c}, v[{a}:{a+1}], s[30:31]{WT}
        """)
    A(f"""
    s_lshl_b32 s{sT}, s{sG}, 2
    s_add_u32 s{sT}, s{sT}, {WS_FLH}
    v_lshl_add_u32 v{vW+2}, v{vL}, 10, s{sT}
    v_mov_b32 v{vW+3}, s{sTAG}
    s_waitcnt vmcnt(0)
    """)
    A.label("ka_fin")
    A("s_barrier")
    stamp(A,9)
    A(f"""
    s_cmp_lg_u32 s{sW}, 0
    s_cbranch_scc1 ka_nofl
    s_mov_b64 exec, 0xff
    global_store_dword v{vW+2}, v{vW+3}, s[30:31]{WT}
    """)
    A.label("ka_nofl")
    dump(A,1,10,sW)
    A("s_mov_b64 exec, -1")
    AA=A; A=tail
    A.label("ka_retry")
    A(f"""
    s_add_u32 s{sSP}, s{sSP}, 1
    s_cmp_ge_u32 s{sSP}, {SPIN}
    s_cbranch_scc1 ka_ok
    """)
    A("s_mov_b64 exec, vcc")
    gload(" sc0 sc1")
    A("s_mov_b64 exec, -1")
    A("s_branch ka_chk")
    A.label("ka_aux")
    stamp(A,7)
    ad=vW+40; S=vW+44; t=vW+52
    RD=176
    if "rp" in X.split("_"):
        A(f"""
        s_sub_u32 s{sROW}, s{sW}, 4
        s_lshl_b32 s{sROW}, s{sROW}, 8
        s_add_u32 s{sROW}, s{sROW}, s2
        s_lshl_b32 s{sT}, s{sROW}, 10
        v_lshl_add_u32 v{RD+8}, v{vL}, 4, s{sT}
        global_load_dwordx4 v[{RD}:{RD+3}], v{RD+8}, s[24:25]
        s_cmp_ge_u32 s{sROW}, {1376-1024}
        s_cbranch_scc1 ka_nod2
        v_add_u32 v{RD+8}, {1024*1024}, v{RD+8}
        global_load_dwordx4 v[{RD+4}:{RD+7}], v{RD+8}, s[24:25]
        """)
        A.label("ka_nod2")
    A(f"""
    s_sub_u32 s{sU}, s{sW}, 6
    s_lshl_b32 s{sU}, s{sU}, 8
    s_add_u32 s{sU}, s{sU}, s2
    s_cmp_ge_u32 s{sU}, 344
    s_cbranch_scc1 ka_nocs
    s_lshr_b32 s{sT}, s{sU}, 2
    s_cmp_ge_u32 s{sT}, 43
    s_cselect_b32 s62, s22, s20
    s_cselect_b32 s63, s23, s21
    s_cselect_b32 s{sT2}, 43, 0
    s_sub_u32 s{sT}, s{sT}, s{sT2}
    s_lshl_b32 s{sT}, s{sT}, 6
    s_and_b32 s{sT2}, s{sU}, 3
    s_mul_i32 s{sT2}, s{sT2}, {128*2752}
    s_add_u32 s{sT}, s{sT}, s{sT2}
    v_lshrrev_b32 v{vCA}, 2, v{vL}
    v_mul_u32_u24 v{vCA}, 2752, v{vCA}
    v_and_b32 v{vCA+1}, 3, v{vL}
    v_lshl_add_u32 v{vCA}, v{vCA+1}, 4, v{vCA}
    v_add_u32 v{vCA}, s{sT}, v{vCA}
    """)
    for i in range(8):
        A(f"global_load_dwordx4 v[{vCS+4*i}:{vCS+4*i+3}], v{vCA}, s[62:63]")
        if i<7: A(f"v_add_u32 v{vCA}, {16*2752}, v{vCA}")
    A.label("ka_nocs")
    c_=vW+56
    A(f"v_mov_b32 v{c_+5}, 0x40000000")
    for v in range(3):
        A(f"""
        v_add_u32 v{c_}, {64*v}, v{vL}
        v_mul_u32_u24 v{c_+1}, 0xaaab, v{c_}
        v_lshrrev_b32 v{c_+1}, 19, v{c_+1}
        v_mul_u32_u24 v{c_+2+v}, 12, v{c_+1}
        v_sub_u32 v{c_+2+v}, v{c_}, v{c_+2+v}
        v_mul_u32_u24 v{c_+1}, {2752-192}, v{c_+1}
        v_lshl_add_u32 v{vWo+v}, v{vL}, 4, v{c_+1}
        """)
    A(f"""
    s_and_b32 s{sT}, s2, 1
    s_lshr_b32 s{sT2}, s2, 5
    s_mul_i32 s{sCBg}, s{sT}, 7
    s_add_u32 s{sCBg}, s{sCBg}, s{sT2}
    s_add_u32 s{sT}, s{sT}, 14
    s_cmp_eq_u32 s{sT2}, 7
    s_cselect_b32 s{sCBg}, s{sT}, s{sCBg}
    s_cmp_eq_u32 s{sCBg}, 14
    s_cselect_b32 s{sT}, 4, 12
    s_cmp_eq_u32 s{sCBg}, 15
    s_cselect_b32 s{sT}, 0, s{sT}
    """)
    for v in range(3):
        A(f"""
        v_cmp_le_u32 vcc, s{sT}, v{c_+2+v}
        v_cndmask_b32 v{vWo+v}, v{vWo+v}, v{c_+5}, vcc
        """)
    A(f"""
    s_mul_i32 s{sWO}, s{sCH}, {16*2752}
    s_mul_i32 s{sT2}, s{sCBg}, 192
    s_add_u32 s{sWO}, s{sWO}, s{sT2}
    s_mul_i32 s{sM0W}, s{sCH}, 3072
    s_mul_i32 s{sT}, s{sHALF}, {W_U}
    s_add_u32 s{sM0W}, s{sM0W}, s{sT}
    s_cmp_ge_u32 s{sW}, 6
    s_cselect_b32 s{sWt}, s22, s20
    s_cselect_b32 s{sWt+1}, s23, s21
    s_mov_b32 s{sWt+2}, {512*2752}
    s_mov_b32 s{sWt+3}, 0x20000
    """)
    def prefill():
        A(f"""
        s_mul_i32 s{sSP}, s{sCBg}, 3
        s_min_u32 s{sSP}, s{sSP}, 40
        s_and_b32 s{sT}, s2, 6
        s_lshl_b32 s{sT}, s{sT}, 1
        s_bfe_u32 s{sT2}, s2, 0x20003
        s_add_u32 s{sT}, s{sT}, s{sT2}
        s_lshl_b32 s{sT}, s{sT}, 2
        s_add_u32 s{sT}, s{sT}, s{sW}
        s_sub_u32 s{sT}, s{sT}, 4
        s_mul_i32 s{sT}, s{sT}, 86
        s_add_u32 s{sT}, s{sT}, s{sSP}
        s_lshl_b32 s{sT}, s{sT}, 10
        s_add_u32 s{sT}, s{sT}, {WS_HM}
        v_lshl_add_u32 v{c_}, v{vL}, 4, s{sT}
        v_add_u32 v{c_+1}, {43*1024}, v{c_}
        v_mov_b32 v{c_+4}, -1
        v_mov_b32 v{c_+5}, -1
        v_mov_b32 v{c_+6}, -1
        v_mov_b32 v{c_+7}, -1
        """)
        for o in (0,1024,2048):
            for r in (0,1): A(f"global_store_dwordx4 v{c_+r}, v[{c_+4}:{c_+7}], s[30:31] offset:{o}{WT}")
    prefill()
    for st in range(NPL//2): issue_w(A,st)
    A(f"""
    s_cmp_lg_u32 s{sW}, 4
    s_cbranch_scc1 ka_a3
    s_cmp_lg_u32 s2, 0
    s_cbranch_scc1 ka_a3
    s_add_u32 s{sT}, s{sEP}, 1
    v_mov_b32 v{t}, {WS_EPOCH}
    v_mov_b32 v{t+1}, s{sT}
    s_mov_b64 exec, 1
    global_store_dword v{t}, v{t+1}, s[30:31]
    """)
    A.label("ka_a3")
    A("s_mov_b64 exec, -1")
    if "rp" in X.split("_"):
        A(f"""
        s_bfe_u32 s{sT}, s{sROW}, 0x10001
        s_bfe_u32 s{sT2}, s{sROW}, 0x10003
        s_lshl_b32 s{sT2}, s{sT2}, 1
        s_or_b32 s{sT}, s{sT}, s{sT2}
        s_lshl_b32 s{sT}, s{sT}, 1
        v_and_b32 v{RD+8}, 7, v{vL}
        v_xor_b32 v{RD+8}, s{sT}, v{RD+8}
        v_lshrrev_b32 v{RD+9}, 3, v{vL}
        v_mul_u32_u24 v{RD+9}, {43*4096}, v{RD+9}
        v_lshl_add_u32 v{RD+8}, v{RD+8}, 4, v{RD+9}
        s_lshl_b32 s{sT}, s{sROW}, 7
        s_add_u32 s{sT}, s{sT}, {WS_WD2}
        v_add_u32 v{RD+8}, s{sT}, v{RD+8}
        s_waitcnt vmcnt({3*(NPL//2)+6})
        global_store_dwordx4 v{RD+8}, v[{RD}:{RD+3}], s[30:31]{WT}
        s_cmp_ge_u32 s{sROW}, {1376-1024}
        s_cbranch_scc1 ka_nod3
        v_add_u32 v{RD+8}, {1024*128}, v{RD+8}
        global_store_dwordx4 v{RD+8}, v[{RD+4}:{RD+7}], s[30:31]{WT}
        """)
        A.label("ka_nod3")
    if "dpf" in X:
        A(f"""
        s_cmp_ge_u32 s{sW}, 6
        s_cbranch_scc1 ka_nodpf
        s_lshr_b32 s{sT}, s2, 3
        s_lshl_b32 s{sT}, s{sT}, 1
        s_add_u32 s{sT}, s{sT}, s{sCH}
        s_mul_i32 s{sT}, s{sT}, {172*128}
        v_lshl_add_u32 v{c_}, v{vL}, 7, s{sT}
        global_load_dword v{vRA+3}, v{c_}, s[24:25]
        v_add_u32 v{c_}, 8192, v{c_}
        global_load_dword v{vRA+3}, v{c_}, s[24:25]
        v_add_u32 v{c_}, 8192, v{c_}
        s_mov_b32 exec_hi, 0xfff
        global_load_dword v{vRA+3}, v{c_}, s[24:25]
        s_mov_b32 exec_hi, -1
        """)
        A.label("ka_nodpf")
    A(f"""
    s_cmp_ge_u32 s{sU}, 344
    s_cbranch_scc1 ka_pfw
    s_waitcnt vmcnt({3*(NPL//2)+6+(1 if "rp" in X.split("_") else 0)})
    """)
    for i in range(8):
        for j in range(4):
            r=vCS+4*i+j
            if i==0:
                A(f"v_lshlrev_b32 v{S+2*j}, 16, v{r}")
                A(f"v_and_b32 v{S+2*j+1}, 0xffff0000, v{r}")
            else:
                A(f"v_lshlrev_b32 v{t}, 16, v{r}")
                A(f"v_and_b32 v{t+1}, 0xffff0000, v{r}")
                A(f"v_add_f32 v{S+2*j}, v{S+2*j}, v{t}")
                A(f"v_add_f32 v{S+2*j+1}, v{S+2*j+1}, v{t+1}")
    for j in range(4): A(f"v_permlane32_swap_b32 v{S+j}, v{S+j+4}")
    for j in range(4): A(f"v_add_f32 v{S+j}, v{S+j}, v{S+j+4}")
    for j in range(2): A(f"v_permlane16_swap_b32 v{S+j}, v{S+j+2}")
    for j in range(2): A(f"v_add_f32 v{S+j}, v{S+j}, v{S+j+2}")
    for ctl in ("row_ror:8","row_ror:4"):
        for j in range(2): A(f"v_add_f32_dpp v{S+j}, v{S+j}, v{S+j} {ctl} row_mask:0xf bank_mask:0xf")
    d=S+2
    A(f"""
    v_and_b32 v{t}, 4, v{vL}
    v_cmp_ne_u32 vcc, 0, v{t}
    v_cndmask_b32 v{S}, v{S}, v{S+1}, vcc
    v_cvt_pk_bf16_f32 v{S+1}, v{S}, v{S}
    v_and_b32 v{S+1}, 0xffff0000, v{S+1}
    v_sub_f32 v{S+1}, v{S}, v{S+1}
    v_cvt_pk_bf16_f32 v{d}, v{S}, v{S+1}
    v_mov_b32 v{d+1}, s{sTAG}
    v_lshlrev_b32 v{ad}, 8, v{vCA+1}
    v_lshl_add_u32 v{ad}, v{hh}, 7, v{ad}
    v_and_b32 v{t+1}, 16, v{vL}
    v_lshl_add_u32 v{ad}, v{t+1}, 2, v{ad}
    v_lshl_add_u32 v{ad}, v{t}, 3, v{ad}
    s_lshr_b32 s{sT}, s{sU}, 2
    s_lshl_b32 s{sT}, s{sT}, 10
    s_and_b32 s{sT2}, s{sU}, 3
    s_lshl_b32 s{sT2}, s{sT2}, 3
    s_add_u32 s{sT}, s{sT}, s{sT2}
    s_add_u32 s{sT}, s{sT}, {WS_CS}
    v_add_u32 v{ad}, s{sT}, v{ad}
    s_mov_b32 exec_lo, 0x00ff00ff
    s_mov_b32 exec_hi, 0x00ff00ff
    global_store_dwordx2 v{ad}, v[{d}:{d+1}], s[30:31]{WT}
    s_mov_b64 exec, -1
    """)
    A.label("ka_pfw")
    for st in range(NPL//2,NPL): issue_w(A,st)
    A(f"s_waitcnt vmcnt({3*NPL if 'rp' not in X.split('_') else 3*(NPL-NPL//2)})")
    stamp(A,8)
    A("s_branch ka_fin")
```

```python
from common import *
from mA import WSLOT,NWS,W_U,X_CNT,sTAG,sWt,sWO,sM0W,vWo,issue_w,NPL,WT
GC1=-2.0*math.sqrt(2.0/math.pi)*LOG2E; GC2=GC1*0.044715
HR=NWS*WSLOT; HRN=4; SPARE=HR+HRN*8192
FS=int(os.environ.get('FS','5'))
NREG=6; SPIN=1<<16; NA=int(os.environ.get('NA','21'))
WS_SIZE=0x1000000
NPRE=int(os.environ.get('NPRE','10')); WPI=int(os.environ.get("WPI","3"))
RL=4
def make_sched():
    free=[(SPARE,-1 if 'rp' not in X.split('_') else 0)]
    for st in range(6,16):
        for i in range(3): free.append(((st%NWS)*WSLOT+4096*i, st+1))
        if st>=12:
            for i in range(2): free.append((HR+(st%HRN)*8192+4096*i, st+1))
    loc={}; issue={j:[] for j in range(-1,17)}; read={j:[] for j in range(17)}
    nb=0; res=None
    for j in range(-1,17):
        lim = 99 if j==16 else (1 if j<0 else (WPI if j+HRN-1<16 else WPI+2))
        c=0
        if j==7:
            res=6*WSLOT; free=[f for f in free if f[0] not in (res,res+4096)]
            issue[j].append("r"); c+=2; read[j+RL].append("r"); free+= [(res,j+RL+1),(res+4096,j+RL+1)]
        while nb<43 and c<lim:
            av=sorted([f for f in free if f[1]<=j],key=lambda f:f[1])
            if not av: break
            f=av[0]; free.remove(f); loc[nb]=f[0]; issue[j].append(nb)
            if nb<NPRE:
                jr=max(j+RL,1) if j>=0 else 1; read[jr].append(nb); free.append((f[0],jr+1))
            nb+=1; c+=1
    assert nb==43 and len(free)>=4
    return loc,issue,read,res,[f[0] for f in free[:4]]
LOC,ISSUE,READ,X_RES,X_RED=make_sched()
def wd_loc(b): return LOC[b]
ORD=[b for b in range(43) if b%3!=2]+[b for b in range(43) if b%3==2]
CUE=int(os.environ.get('CUE','4'))
def bc(r): return f"v[{r}:{r+1}]"

def phaseB(A):
    sW=36; sMB=37; sCB=38; sT=39; sT2=40; sJ=42; sHO=43; sOO=44; sM0H=45; sHM=46; sDO=47
    sNB=55; sHF=41; sRO=23; sS=48; sC=56; sOUT=60; sD=4; sM0D=16; sSP=17
    vL=1; vT=10
    SR=f"s[{sS}:{sS+3}]"
    stamp(A,0)
    A(f"""
    s_and_b32 s{sT}, s2, 1
    s_lshr_b32 s{sT2}, s2, 5
    s_mul_i32 s{sCB}, s{sT}, 7
    s_add_u32 s{sCB}, s{sCB}, s{sT2}
    s_add_u32 s{sT}, s{sT}, 14
    s_cmp_eq_u32 s{sT2}, 7
    s_cselect_b32 s{sCB}, s{sT}, s{sCB}
    s_and_b32 s{sT}, s{sT2}, 3
    s_cmp_eq_u32 s{sT}, 3
    s_cselect_b32 s{sT}, 4, 0
    s_xor_b32 s{sNB}, s{sT2}, s{sT}
    s_and_b32 s{sHF}, s2, 1
    s_and_b32 s{sRO}, s2, 7
    s_mul_i32 s{sRO}, s{sRO}, {0 if "norot" in X else 7}
    s_lshr_b32 s{sRO}, s{sRO}, 2
    s_mul_i32 s{sRO}, s{sRO}, 3072
    s_and_b32 s{sT}, s2, 6
    s_lshl_b32 s{sT}, s{sT}, 1
    s_bfe_u32 s{sT2}, s2, 0x20003
    s_add_u32 s{sMB}, s{sT}, s{sT2}
    v_mov_b32 v8, {X_CNT}
    s_mov_b32 s{sS}, s30
    s_mov_b32 s{sS+1}, s31
    s_mov_b32 s{sS+2}, {WS_SIZE}
    s_mov_b32 s{sS+3}, 0x20000
    s_cmp_lt_u32 s{sW}, 4
    s_cbranch_scc1 k2_lo
    """)
    vH=2; vLin=3; vR=7
    def p2_setup():
        A(f"""
        s_mov_b32 s{sT}, s{sNB}
        s_lshl_b32 s{sM0D}, s{sW}, 10
        v_bfe_u32 v{vT}, v{vL}, 4, 2
        v_lshlrev_b32 v{vT}, 1, v{vT}
        v_and_b32 v{vT+1}, 7, v{vL}
        v_xor_b32 v{vT}, v{vT}, v{vT+1}
        v_lshlrev_b32 v{vT}, 4, v{vT}
        v_lshrrev_b32 v{vT+2}, 3, v{vL}
        v_lshl_add_u32 v{vR}, v{vT+2}, 8, v{vT}
        s_lshl_b32 s{sDO}, s{sT}, 7
        s_lshl_b32 s{sT2}, s{sW}, 13
        s_add_u32 s{sDO}, s{sDO}, s{sT2}
        v_bfe_u32 v{vT}, v{vL}, 4, 1
        s_and_b32 s{sT}, s{sW}, 1
        s_lshl_b32 s{sT}, s{sT}, 1
        v_or_b32 v{vT}, s{sT}, v{vT}
        v_lshlrev_b32 v{vT}, 1, v{vT}
        v_xor_b32 v{vT}, v{vT}, v{vT+1}
        v_lshlrev_b32 v{vT}, 4, v{vT}
        v_lshl_add_u32 v{vLin}, v{vT+2}, 10, v{vT}
        """)
        srd(A,sD,24,0,1376*1024)
        if "rp" in X.split("_"):
            A(f"""
            s_mov_b32 s{sT}, s{sNB}
            s_mul_i32 s{sDO}, s{sT}, {43*4096}
            s_add_u32 s{sDO}, s{sDO}, s{sM0D}
            s_add_u32 s{sDO}, s{sDO}, {WS_WD2}
            v_lshlrev_b32 v{vLin}, 4, v{vL}
            """)
    def blk(b):
        o=ORD[b]
        if o==42: return [f"s_mov_b32 s{sT2}, {42*1024}"]
        return [f"s_add_u32 s{sT2}, s{sRO}, {o*1024}", f"s_sub_u32 s{sT}, s{sT2}, {42*1024}", f"s_cselect_b32 s{sT2}, s{sT2}, s{sT}"]
    def issue_wd(b,loc=None):
        if "rp" in X.split("_"):
            A(f"""
            s_add_u32 m0, s{sM0D}, {wd_loc(b) if loc is None else loc}
            s_add_u32 s{sT}, s{sDO}, {4096*ORD[b]}
            buffer_load_dwordx4 v{vLin}, {SR}, s{sT} offen lds
            """)
            return
        A(f"""
        {chr(10).join(blk(b))}
        s_lshl_b32 s{sT2}, s{sT2}, 5
        s_add_u32 m0, s{sM0D}, {wd_loc(b) if loc is None else loc}
        s_add_u32 s{sT}, s{sDO}, s{sT2}
        buffer_load_dwordx4 v{vLin}, s[{sD}:{sD+3}], s{sT} offen lds
        """)
    def issue_res():
        A(f"""
        s_mov_b32 s{sT}, s{sNB}
        s_lshl_b32 s{sT}, s{sT}, 14
        s_lshl_b32 s{sT2}, s{sW}, 12
        s_add_u32 s{sT}, s{sT}, s{sT2}
        s_lshl_b32 s{sT2}, s{sMB}, 17
        s_add_u32 s{sT}, s{sT}, s{sT2}
        s_mov_b32 s{sT2}, s{sHF}
        s_lshl_b32 s{sT2}, s{sT2}, 7
        s_add_u32 s{sT}, s{sT}, s{sT2}
        s_add_u32 s{sT}, s{sT}, {WS_HT}
        s_lshl_b32 s{sT2}, s{sW}, 11
        s_add_u32 m0, s{sT2}, {X_RES}
        s_add_u32 s{sT2}, s{sT}, 2048
        buffer_load_dwordx4 v{vR}, {SR}, s{sT} offen lds
        s_add_u32 m0, m0, 1024
        s_nop 0
        buffer_load_dwordx4 v{vR}, {SR}, s{sT2} offen lds
        """)
    def issue_h(st):
        A(f"""
        s_add_u32 m0, s{sM0H}, {HR+(st%HRN)*8192}
        s_nop 0
        buffer_load_dwordx4 v{vH}, {SR}, s{sHO} offen lds
        buffer_load_dwordx4 v{vH}, {SR}, s{sHO} offen offset:1024 lds
        s_add_u32 s{sHO}, s{sHO}, 8192
        """)
    def lbar(k):
        l=A.newlabel("k2_lb")
        A(f"""
        v_mov_b32 v9, 1
        s_mov_b64 exec, 1
        ds_add_u32 v8, v9
        s_mov_b64 exec, -1
        """)
        A.label(l)
        A(f"""
        ds_read_b32 v9, v8
        s_waitcnt lgkmcnt(0)
        v_cmp_gt_u32 vcc, {4*k}, v9
        s_cbranch_vccnz {l}
        """)
    aW=12; aRr=15; vF=16; vHo=17; vOo=18; vX=19
    NS=11
    ACC=20; RG=36; FW=RG+16*(NS-1); NH=7; FH=RG+16*NS; aWn=FH+4*NH
    def p2_addr(grpB):
        A(f"""
        v_bfe_u32 v{vT}, v{vL}, 2, 2
        v_lshrrev_b32 v{vT+1}, 4, v{vL}
        v_lshl_add_u32 v{aW}, v{vT+1}, 3, v{vT}
        v_lshlrev_b32 v{aW}, 7, v{aW}
        v_and_b32 v{aW+1}, 3, v{vL}
        v_lshl_add_u32 v{aW}, v{aW+1}, 3, v{aW}
        v_lshrrev_b32 v{aW+2}, 1, v{vT}
        v_and_b32 v{vF}, 1, v{vT+1}
        v_lshl_or_b32 v{aW+2}, v{vF}, 1, v{aW+2}
        """)
        for nt in range(4):
            A(f"v_xor_b32 v{vF}, {nt}, v{aW+2}")
            A(f"v_lshl_add_u32 v{aWn+nt}, v{vF}, 5, v{aW}")
            A(f"v_add_u32 v{aWn+4+nt}, 0xf000, v{aWn+nt}")
            A(f"v_add_u32 v{aWn+8+nt}, 0x1e000, v{aWn+nt}")
        if not grpB:
            A(f"""
            v_lshl_add_u32 v{aRr}, v{vT+1}, 2, v{vT}
            v_lshlrev_b32 v{aRr}, 7, v{aRr}
            v_lshl_add_u32 v{aRr}, v{aW+1}, 3, v{aRr}
            v_xor_b32 v{vF}, s{sW}, v{aW+2}
            v_lshl_add_u32 v{aRr}, v{vF}, 5, v{aRr}
            v_add_u32 v{aRr}, {X_RES}, v{aRr}
            """)
        A(f"""
        v_lshlrev_b32 v{vHo}, 4, v{vL}
        v_and_b32 v{vOo}, 15, v{vL}
        v_lshlrev_b32 v{vOo}, 10, v{vOo}
        v_lshl_add_u32 v{vOo}, v{vT+1}, 3, v{vOo}
        s_mov_b32 s{sT}, {X_RED[0]}
        s_cmp_eq_u32 s{sW}, 1
        s_cselect_b32 s{sT}, {X_RED[1]}, s{sT}
        s_cmp_eq_u32 s{sW}, 2
        s_cselect_b32 s{sT}, {X_RED[2]}, s{sT}
        s_cmp_eq_u32 s{sW}, 3
        s_cselect_b32 s{sT}, {X_RED[3]}, s{sT}
        v_add_u32 v{vX}, s{sT}, v{vHo}
        """)
        srd(A,sOUT,26,0,2048*1024)
        A(f"""
        s_lshl_b32 s{sT}, s{sMB}, 1
        s_mov_b32 s{sT2}, s{sHF}
        s_add_u32 s{sT}, s{sT}, s{sT2}
        s_lshl_b32 s{sT}, s{sT}, 2
        s_add_u32 s{sT}, s{sT}, s{sW}
        s_mul_i32 s{sHM}, s{sT}, {43*1024}
        s_add_u32 s{sHM}, s{sHM}, {WS_HM}
        s_lshl_b32 s{sOO}, s{sT}, 14
        s_mov_b32 s{sT2}, s{sNB}
        s_lshl_b32 s{sT2}, s{sT2}, 7
        s_add_u32 s{sOO}, s{sOO}, s{sT2}
        """)
    def rdw(dst,b,loc=None):
        loc=wd_loc(b) if loc is None else loc; win=loc//0xf000; off=loc-win*0xf000
        return [f"ds_read_b64_tr_b16 v[{dst+4*nt+2*e}:{dst+4*nt+2*e+1}], v{aWn+4*win+nt} offset:{off+512*e}" for nt in range(4) for e in range(2)]
    assert NPRE>=10
    stubs=[]
    def cnt_wait(off,val):
        l=A.newlabel("k2_cw")
        A.label(l)
        A(f"""
        ds_read_b32 v9, v8 offset:{off}
        s_waitcnt lgkmcnt(0)
        v_cmp_gt_u32 vcc, {val}, v9
        s_cbranch_vccnz {l}
        """)
    def cnt_add(off):
        A(f"""
        v_mov_b32 v9, 1
        s_mov_b64 exec, 1
        ds_add_u32 v8, v9 offset:{off}
        s_mov_b64 exec, -1
        """)
    def p2_loop(b0,n,grpB):
        def ldh(s,sc=""):
            d=FH+4*(s%NH)
            return blk(b0+s)+[f"s_add_u32 s{sT}, s{sHM}, s{sT2}", f"buffer_load_dwordx4 v[{d}:{d+3}], v{vHo}, {SR}, s{sT} offen{sc}"]
        D=min(NH-1,int(os.environ.get("P2D","6"))); PD=NPRE
        A(f"s_mov_b32 s{sSP}, 0")
        for s in range(D):
            for l in ldh(s): A(l)
        for s in range(n):
            src=RG+16*(s%NS)
            nr=rdw(RG+16*((s+PD)%NS),b0+s+PD) if s+PD<n else []
            lg=""
            if s>=NPRE:
                out=8*(min(n,s+PD)-s-1)
                if out<=15: lg=f" lgkmcnt({out})"
            A(f"s_waitcnt vmcnt({min(n,s+D)-s-1})"+lg)
            h=FH+4*(s%NH)
            lc=f"k2_c{b0+s}"; lr=f"k2_r{b0+s}"; lo=f"k2_o{b0+s}"
            A.label(lc)
            A(f"""
            v_max3_u32 v{vT}, v{h}, v{h+1}, v{h+2}
            v_max_u32 v{vT}, v{vT}, v{h+3}
            v_cmp_eq_u32 vcc, -1, v{vT}
            s_cbranch_vccnz {lr}
            """)
            A.label(lo)
            stubs.append((lr,lc,lo,ldh(s," sc0 sc1")))
            if s+D<n:
                for l in ldh(s+D): A(l)
            for nt in range(4):
                c="0" if (grpB and s==0) else f"v[{ACC+4*nt}:{ACC+4*nt+3}]"
                A(f"v_mfma_f32_16x16x32_bf16 v[{ACC+4*nt}:{ACC+4*nt+3}], v[{src+4*nt}:{src+4*nt+3}], v[{h}:{h+3}], {c}")
                if nt==0 and nr: A("s_waitcnt lgkmcnt(7)")
                for r in nr[2*nt:2*nt+2]: A(r)
        if not(grpB and 'prof' in X): stamp(A,7)
        give=ACC if grpB else ACC+8; keep=ACC+8 if grpB else ACC
        wo=0 if grpB else 2048; ro=2048 if grpB else 0
        A(f"""
        ds_write_b128 v{vX}, v[{give}:{give+3}] offset:{wo}
        ds_write_b128 v{vX}, v[{give+4}:{give+7}] offset:{wo+1024}
        s_waitcnt lgkmcnt(0)
        s_barrier
        ds_read_b128 v[{RG}:{RG+3}], v{vX} offset:{ro}
        ds_read_b128 v[{RG+4}:{RG+7}], v{vX} offset:{ro+1024}
        """)
        for i in range(2):
            A(f"s_waitcnt lgkmcnt({1-i})")
            for q in range(2):
                r=4*i+2*q
                A(f"v_pk_add_f32 {bc(keep+r)}, {bc(keep+r)}, {bc(RG+r)}")
            for q in range(2):
                r=4*i+2*q
                A(f"v_cvt_pk_bf16_f32 v{RG+8+2*i+q}, v{keep+r}, v{keep+r+1}")
            A(f"buffer_store_dwordx2 {bc(RG+8+2*i)}, v{vOo}, s[{sOUT}:{sOUT+3}], s{sOO} offen offset:{32*(i+(2 if grpB else 0))}")
    A(f"""
    s_cmp_eq_u32 s{sCB}, 15
    s_cbranch_scc1 k2_stats
    """)
    WPRE=int(os.environ.get('WPRE','10'))
    for st in range(NPL,WPRE): issue_w(A,st)
    nw=[WPRE]
    A(f"""
    s_sub_u32 s{sW}, s{sW}, 4
    v_lshrrev_b32 v{vT}, 4, v{vL}
    v_lshlrev_b32 v{vT+1}, 2, v{vT}
    v_and_b32 v{vT+2}, 15, v{vL}
    v_xor_b32 v{vT+1}, v{vT+1}, v{vT+2}
    v_lshlrev_b32 v{vT+1}, 4, v{vT+1}
    v_lshl_add_u32 v{vH}, v{vT}, 8, v{vT+1}
    s_lshl_b32 s{sM0H}, s{sW}, 11
    s_lshl_b32 s{sT}, s{sMB}, 17
    s_add_u32 s{sHO}, s{sM0H}, s{sT}
    s_add_u32 s{sHO}, s{sHO}, {WS_HT}
    """)
    p2_setup()
    p2_addr(False)
    def rd_res():
        for q in range(4): A(f"ds_read_b64_tr_b16 v[{FW+2*q}:{FW+2*q+1}], v{aRr} offset:{2048*q}")
        A("s_waitcnt lgkmcnt(0)")
        for q in range(8):
            A(f"v_lshlrev_b32 v{ACC+2*q}, 16, v{FW+q}")
            A(f"v_and_b32 v{ACC+2*q+1}, 0xffff0000, v{FW+q}")
    for b in ISSUE[-1]: issue_wd(b)
    stamp(A,1)
    A("s_barrier")
    stamp(A,2)
    issued=[]
    for st in range(HRN-1): issue_h(st); issued.append((("h",st),2))
    def after(keys):
        idx=max(i for i,(t,_) in enumerate(issued) if t in keys)
        return sum(c for _,c in issued[idx+1:])
    for j in range(17):
        if j<16:
            A(f"s_waitcnt vmcnt({min(63,after({('h',j),('w',j),('d',j-RL)}))}) lgkmcnt(0)")
            A("s_barrier")
        else: cnt_wait(12,4)
        if j==0: stamp(A,3)
        if j+HRN-1<16: issue_h(j+HRN-1); issued.append((("h",j+HRN-1),2))
        if nw[0]<16 and nw[0]-NWS+1<=j:
            assert nw[0]>=j+2
            issue_w(A,nw[0]); issued.append((("w",nw[0]),3)); nw[0]+=1
        c=0; rl=list(READ[j])
        for b in ISSUE[j]:
            if b=="r": issue_res(); c+=2
            else: issue_wd(b); c+=1
            if rl:
                x=rl.pop(0)
                if x=="r": rd_res()
                else:
                    for r in rdw(RG+16*x,x): A(r)
        for x in rl:
            if x=="r": rd_res()
            else:
                for r in rdw(RG+16*x,x): A(r)
        if c: issued.append((("d",j),c))
    stamp(A,4)
    A.label("k2_p2")
    A("s_waitcnt vmcnt(0)")
    cnt_add(0)
    cnt_wait(0,4)
    stamp(A,5)
    cnt_wait(4,4)
    stamp(A,6)
    p2_loop(0,NA,False)
    dump(A,2,8,sW,4)
    A("s_endpgm")
    A.label("k2_lo")
    PF=200
    A(f"""
    s_lshr_b32 s{sT}, s{sMB}, 1
    s_lshl_b32 s{sT}, s{sT}, 10
    s_add_u32 s{sT}, s{sT}, {WS_FLH}
    v_lshl_add_u32 v{PF+4}, v{vL}, 4, s{sT}
    """)
    def hpoll(lab):
        A(f"""
        s_cmp_lg_u32 s{sW}, 0
        s_cbranch_scc1 {lab}_d
        s_mov_b32 s{sSP}, 0
        """)
        A.label(lab)
        A(f"""
        global_load_dwordx4 v[{PF}:{PF+3}], v{PF+4}, s[30:31] sc0 sc1
        s_add_u32 s{sSP}, s{sSP}, 1
        s_cmp_ge_u32 s{sSP}, {SPIN}
        s_cbranch_scc1 {lab}_d
        s_waitcnt vmcnt(0)
        v_xor_b32 v{PF}, s{sTAG}, v{PF}
        v_xor_b32 v{PF+1}, s{sTAG}, v{PF+1}
        v_xor_b32 v{PF+2}, s{sTAG}, v{PF+2}
        v_xor_b32 v{PF+3}, s{sTAG}, v{PF+3}
        v_or3_b32 v{PF}, v{PF}, v{PF+1}, v{PF+2}
        v_or_b32 v{PF}, v{PF}, v{PF+3}
        v_cmp_ne_u32 vcc, 0, v{PF}
        s_cbranch_vccnz {lab}
        """)
        A.label(lab+"_d")
    A(f"""
    s_cmp_eq_u32 s{sCB}, 15
    s_cbranch_scc1 k2_stats_lo
    """)
    p2_addr(True)
    sWT=18; sWF=19
    aH=2; aWc=4; cT=11; CSF=208; FA=30; FB=50; CAC=70; vS=166; vSt=170
    A(f"""
    s_setprio 1
    s_and_b32 s{sWT}, s{sW}, 1
    s_lshr_b32 s{sWF}, s{sW}, 1
    v_bfe_u32 v{cT}, v{vL}, 2, 2
    v_lshrrev_b32 v{cT+1}, 5, v{vL}
    v_lshl_add_u32 v{cT+1}, v{cT+1}, 3, v{cT}
    v_and_b32 v{cT+2}, 3, v{vL}
    v_bfe_u32 v{cT+3}, v{vL}, 4, 1
    v_lshlrev_b32 v{cT+4}, 8, v{cT+1}
    v_lshl_add_u32 v{cT+4}, v{cT+3}, 5, v{cT+4}
    v_lshl_add_u32 v{cT+4}, v{cT+2}, 3, v{cT+4}
    v_add_u32 v{cT+4}, {HR}, v{cT+4}
    s_lshl_b32 s{sT}, s{sWT}, 1
    v_xor_b32 v{cT+5}, s{sT}, v{cT}
    v_lshl_add_u32 v{aH}, v{cT+5}, 6, v{cT+4}
    v_xor_b32 v{cT+5}, 1, v{cT+5}
    v_lshl_add_u32 v{aH+1}, v{cT+5}, 6, v{cT+4}
    v_mul_u32_u24 v{aWc}, 192, v{cT+1}
    v_mul_u32_u24 v{cT+4}, {W_U}, v{cT+3}
    v_add_u32 v{aWc}, v{aWc}, v{cT+4}
    v_and_b32 v{cT+4}, 1, v{vL}
    v_lshl_add_u32 v{aWc}, v{cT+4}, 4, v{aWc}
    v_bfe_u32 v{cT+4}, v{vL}, 1, 1
    v_lshl_add_u32 v{aWc}, v{cT+4}, 3, v{aWc}
    s_lshl_b32 s{sT}, s{sWF}, 5
    v_add_u32 v{aWc+2}, s{sT}, v{aWc}
    v_add_u32 v{aWc}, s{sT}, v{aWc+2}
    v_add_u32 v{aWc+1}, {5*WSLOT}, v{aWc}
    v_add_u32 v{aWc+3}, {5*WSLOT}, v{aWc+2}
    v_and_b32 v{cT+4}, 1, v{cT}
    v_lshl_add_u32 v{cT+4}, v{cT+4}, 3, v{cT+2}
    v_lshrrev_b32 v{cT+5}, 1, v{cT}
    v_lshl_add_u32 v{cT+4}, v{cT+5}, 2, v{cT+4}
    v_mul_u32_u24 v{cT+5}, 1376, v{cT+3}
    v_add_u32 v{cT+4}, v{cT+4}, v{cT+5}
    v_and_b32 v{cT+5}, 32, v{vL}
    v_lshrrev_b32 v{cT+1}, 1, v{cT+5}
    v_lshl_add_u32 v{cT+4}, v{cT+4}, 5, v{cT+1}
    """)
    A(f"""
    s_mul_i32 s54, s{sCB}, 6
    s_add_u32 s54, s54, s{sWF}
    s_add_u32 s52, s54, s{sWF}
    s_add_u32 s53, s52, 1
    s_add_u32 s54, s54, 4
    """)
    for rt in range(3):
        A(f"""
        s_min_u32 s{20+rt}, s{52+rt}, 85
        s_lshl_b32 s{20+rt}, s{20+rt}, 9
        s_add_u32 s{20+rt}, s{20+rt}, {WS_CS}
        """)
    A(f"""
    s_lshl_b32 s{sT}, s{sMB}, 10
    s_lshl_b32 s{sT2}, s{sWT}, 9
    s_add_u32 s{sT}, s{sT}, s{sT2}
    s_add_u32 s{sT}, s{sT}, {WS_ST3}
    v_and_b32 v{cT}, 31, v{vL}
    v_lshl_add_u32 v{vSt}, v{cT}, 3, s{sT}
    v_mul_u32_u24 v{cT+1}, {43*1024}, v{cT+3}
    v_lshl_add_u32 v{cT+1}, v{cT+5}, 3, v{cT+1}
    v_and_b32 v{cT}, 15, v{vL}
    v_lshl_add_u32 v{cT+1}, v{cT}, 4, v{cT+1}
    s_lshl_b32 s{sT}, s{sMB}, 1
    s_add_u32 s{sT}, s{sT}, s{sWT}
    s_mul_i32 s{sJ}, s{sT}, {4*43*1024}
    s_add_u32 s{sJ}, s{sJ}, {WS_HM}
    v_mov_b32 v{vS}, 0
    """)
    for rt in range(3):
        A(f"buffer_load_dwordx4 v[{CSF+4*rt}:{CSF+4*rt+3}], v{cT+4}, {SR}, s{20+rt} offen")
    A(f"""
    s_cmp_lg_u32 s{sW}, 3
    s_cbranch_scc1 k2_now
    global_load_dword v{vS+1}, v{vS}, s[26:27]
    """)
    A.label("k2_now")
    hpoll("k2_hp")
    def rd(F,st,ks):
        sl=st%NWS; g=sl//5; so=(sl%5)*WSLOT; ho=(st%HRN)*8192
        def w(rt,e): return f"ds_read_b64_tr_b16 v[{F+8+4*rt+2*e}:{F+8+4*rt+2*e+1}], v{aWc+g+(2 if rt==2 else 0)} offset:{so+(16*ks+4*e)*192+(128 if rt==2 else 32*rt)}"
        def h(ct,e): return f"ds_read_b64_tr_b16 v[{F+4*ct+2*e}:{F+4*ct+2*e+1}], v{aH+ct} offset:{ho+(16*ks+4*e)*256}"
        return [w(0,0),w(0,1),h(0,0),h(0,1),h(1,0),h(1,1),w(1,0),w(1,1),w(2,0),w(2,1)]
    first=[True]*6
    def mm(F):
        out=[]
        for rt in range(3):
            for ct in range(2):
                a=CAC+16*(2*rt+ct)
                c="0" if first[2*rt+ct] else f"v[{a}:{a+15}]"
                first[2*rt+ct]=False
                out.append(f"v_mfma_f32_32x32x16_bf16 v[{a}:{a+15}], v[{F+8+4*rt}:{F+8+4*rt+3}], v[{F+4*ct}:{F+4*ct+3}], {c}")
        return out
    need_before=[4,6,8,8,10,10]
    def phase(ms,rs,prev_pending):
        issued=0; per=[2,2,2,2,2,0]; lastw=None
        for i,m in enumerate(ms):
            if prev_pending:
                n=(10-need_before[i])+issued
                if lastw is None or need_before[i]>lastw:
                    A(f"s_waitcnt lgkmcnt({min(n,15)})"); lastw=need_before[i]
            A(m)
            for _ in range(per[i]):
                if issued<len(rs): A(rs[issued]); issued+=1
    def ldst():
        A(f"global_load_dwordx2 {bc(vS)}, v{vSt}, s[30:31] sc0 sc1")
        A(f"global_load_dwordx2 {bc(vS+2)}, v{vSt}, s[30:31] offset:256 sc0 sc1")
    def ldcs(sc):
        for rt in range(3):
            A(f"buffer_load_dwordx4 v[{CSF+4*rt}:{CSF+4*rt+3}], v{cT+4}, {SR}, s{20+rt} offen{sc}")
    BF=172; K1=180; K3=184; K2=188; XX=192
    def stat_fix():
        A(f"s_mov_b32 s{sSP}, 0")
        A.label("k2_stchk")
        A("s_waitcnt vmcnt(0)")
        tg=[vS+1,vS+3]+[CSF+4*rt+o for rt in range(3) for o in (1,3)]
        for i,r in enumerate(tg): A(f"v_xor_b32 v{XX+i}, s{sTAG}, v{r}")
        A(f"""
        v_or3_b32 v{XX}, v{XX}, v{XX+1}, v{XX+2}
        v_or3_b32 v{XX+3}, v{XX+3}, v{XX+4}, v{XX+5}
        v_or3_b32 v{XX}, v{XX}, v{XX+6}, v{XX+7}
        v_or_b32 v{XX}, v{XX}, v{XX+3}
        v_cmp_ne_u32 vcc, 0, v{XX}
        s_cbranch_vccnz k2_stretry
        """)
        A.label("k2_stok")
        for rt in range(3):
            A(f"v_mov_b32 v{CSF+4*rt+1}, 0"); A(f"v_mov_b32 v{CSF+4*rt+3}, 0")
        for ct in range(2):
            A(f"""
            v_and_b32 v{BF+4*ct+1}, 0xffff, v{vS+2*ct}
            v_xor_b32 v{BF+4*ct+1}, 0x8000, v{BF+4*ct+1}
            v_lshl_or_b32 v{BF+4*ct}, v{BF+4*ct+1}, 16, v{BF+4*ct+1}
            v_mov_b32 v{BF+4*ct+3}, 0
            v_mov_b32 v{BF+4*ct+2}, v{BF+4*ct}
            """)
        B=Asm()
        for ct in range(2):
            x=XX+4*ct
            B(f"""
            v_and_b32 v{x+1}, 0xffff0000, v{vS+2*ct}
            v_rcp_f32 v{x+2}, v{x+1}
            v_mul_f32 v{K2+2*ct}, v{x+1}, v{x+1}
            v_mul_f32 v{K1+2*ct}, {f32(GC1)}, v{x+2}
            v_mul_f32 v{x+3}, v{x+2}, v{x+2}
            v_mul_f32 v{x+3}, v{x+3}, v{x+2}
            v_mul_f32 v{K3+2*ct}, {f32(GC2)}, v{x+3}
            """)
        bl=[l.strip() for l in B.l]; i=0
        for rt in range(3):
            for ct in range(2):
                a=CAC+16*(2*rt+ct)
                A(f"v_mfma_f32_32x32x16_bf16 v[{a}:{a+15}], v[{CSF+4*rt}:{CSF+4*rt+3}], v[{BF+4*ct}:{BF+4*ct+3}], v[{a}:{a+15}]")
                for l in bl[i*3:(i+1)*3]: A(l)
                i+=1
    if 'prof' not in X: stamp(A,1)
    A("s_barrier")
    for j in range(16):
        A("s_barrier")
        if "prof" in X and j in (0,3,6,9,12,14): stamp(A,{0:1,3:3,6:4,9:5,12:6,14:7}[j])
        if j==0:
            for r in rd(FA,0,0): A(r)
        else:
            phase(mm(FB),rd(FA,j,0),False)
        if j==12: ldst()
        phase(mm(FA),rd(FB,j,1),True)
        if j==14: stat_fix()
        A("s_waitcnt lgkmcnt(0)")
    stamp(A,2)
    ms=mm(FB)
    A(ms[0])
    cnt_add(12)
    for m in ms[1:]: A(m)
    if 'prof' not in X: stamp(A,3)
    T=FA
    for rt in range(3):
        A(f"""
        s_cmp_ge_u32 s{52+rt}, 86
        s_cbranch_scc1 {"k2_sig" if 2*rt>=CUE else "k2_sig0"}
        s_lshl_b32 s{sT}, s{52+rt}, 9
        s_add_u32 s{sT}, s{sT}, s{sJ}
        s_add_u32 s{sT2}, s{sT}, {2*43*1024}
        """)
        a0=CAC+32*rt; a1=a0+16; t0=T; t1=T+8
        def st1(a,t,ct):
            return [f"v_pk_mul_f32 {bc(t+r)}, {bc(a+r)}, {bc(a+r)}" for r in (0,2,4,6)]+\
                   [f"v_pk_fma_f32 {bc(t+r)}, {bc(t+r)}, {bc(K3+2*ct)}, {bc(K1+2*ct)} op_sel_hi:[1,0,0]" for r in (0,2,4,6)]+\
                   [f"v_pk_mul_f32 {bc(t+r)}, {bc(t+r)}, {bc(a+r)}" for r in (0,2,4,6)]
        def ex(t): return [f"v_exp_f32 v{t+r}, v{t+r}" for r in range(8)]
        def gu(a): return [f"v_pk_mul_f32 {bc(a+r)}, {bc(a+r)}, {bc(a+8+r)}" for r in (0,2,4,6)]
        def dn(t,ct): return [f"v_pk_fma_f32 {bc(t+r)}, {bc(t+r)}, {bc(K2+2*ct)}, {bc(K2+2*ct)} op_sel_hi:[1,0,0]" for r in (0,2,4,6)]
        def rc(t): return [f"v_rcp_f32 v{t+r}, v{t+r}" for r in range(8)]
        def fin(a,t): return [f"v_pk_mul_f32 {bc(a+r)}, {bc(a+r)}, {bc(t+r)}" for r in (0,2,4,6)]+[f"v_cvt_pk_bf16_f32 v{a+8+r}, v{a+2*r}, v{a+2*r+1}" for r in range(4)]
        def mix(tr,ot):
            for i in range(max(len(tr),len(ot))):
                if i<len(tr): A(tr[i])
                if i<len(ot): A(ot[i])
        for l in st1(a0,t0,0): A(l)
        s1=st1(a1,t1,1)
        mix(ex(t0),s1[:8])
        for l in s1[8:]: A(l)
        mix(ex(t1),dn(t0,0)+gu(a0))
        mix(rc(t0),dn(t1,1)+gu(a1))
        mix(rc(t1),fin(a0,t0))
        for ct in range(2):
            a=CAC+16*(2*rt+ct)
            if ct==1:
                for l in fin(a1,t1): A(l)
            A(f"buffer_store_dwordx4 v[{a+8}:{a+11}], v{cT+1}, {SR}, s{sT if ct==0 else sT2} offen sc0 sc1")
            if 2*rt+ct+1==CUE:
                cnt_add(4)
                A(f"""
                s_lshl_b32 s45, s{sW}, 4
                s_add_u32 s45, s45, s{sCB}
                s_cmp_lg_u32 s45, 13
                s_cbranch_scc1 k2_nog
                s_lshl_b32 s45, s{sMB}, 7
                s_add_u32 s45, s45, {WS_FLAG+4096}
                v_mov_b32 v{vS}, s45
                v_mov_b32 v{vS+1}, s{sTAG}
                s_mov_b64 exec, 1
                global_store_dword v{vS}, v{vS+1}, s[30:31] sc0 sc1
                s_mov_b64 exec, -1
                """)
                A.label("k2_nog")
    A.label("k2_sig")
    if 'prof' not in X: stamp(A,4)
    A("s_setprio 0")
    A.label("k2_p2b")
    cnt_wait(0,4)
    if 'prof' not in X: stamp(A,5)
    for b in range(NPRE):
        for r in rdw(RG+16*b,NA+b): A(r)
    A("s_waitcnt lgkmcnt(0)")
    if 'prof' not in X: stamp(A,6)
    p2_loop(NA,43-NA,True)
    dump(A,2,8,sW)
    A("s_endpgm")
    A.label("k2_sig0")
    cnt_add(4)
    cnt_wait(4,4)
    A("s_branch k2_sig")
    for lr,lc,lo,ld in stubs:
        A.label(lr)
        A(f"""
        s_add_u32 s{sSP}, s{sSP}, 1
        s_cmp_ge_u32 s{sSP}, {SPIN}
        s_cbranch_scc1 {lo}
        """)
        for l in ld: A(l)
        A("s_waitcnt vmcnt(0)")
        A(f"s_branch {lc}")
    A.label("k2_stretry")
    A(f"""
    s_add_u32 s{sSP}, s{sSP}, 1
    s_cmp_ge_u32 s{sSP}, {SPIN}
    s_cbranch_scc1 k2_stok
    """)
    ldst(); ldcs(" sc0 sc1")
    A("s_branch k2_stchk")
    A.label("k2_stats")
    A(f"s_sub_u32 s{sW}, s{sW}, 4")
    p2_setup()
    p2_addr(False)
    for b in range(NPRE): issue_wd(b,8*WSLOT+4096*b)
    A("s_waitcnt vmcnt(0)")
    cnt_add(8)
    cnt_wait(8,4)
    for b in range(NPRE):
        for r in rdw(RG+16*b,b,8*WSLOT+4096*b): A(r)
    A("s_waitcnt lgkmcnt(0)")
    A(f"s_add_u32 s{sW}, s{sW}, 4")
    A("s_branch k2_stats2")
    A.label("k2_stats_lo")
    hpoll("k2_hq")
    A.label("k2_stats2")
    vD=196; S=228; Q=236; U=244; vA=2
    A(f"""
    s_lshl_b32 s{sT}, s{sMB}, 17
    s_lshl_b32 s{sT2}, s{sW}, 14
    s_add_u32 s{sT}, s{sT}, s{sT2}
    s_add_u32 s{sT}, s{sT}, {WS_HT}
    v_lshlrev_b32 v{vA}, 4, v{vL}
    s_barrier
    """)
    def sld(i):
        A(f"buffer_load_dwordx4 v[{vD+4*(i%8)}:{vD+4*(i%8)+3}], v{vA}, {SR}, s{sT} offen offset:{1024*(i%4)}")
        if i%4==3 and i<15: A(f"s_add_u32 s{sT}, s{sT}, 4096")
    for i in range(8): sld(i)
    for j in range(16): A(f"v_mov_b32 v{S+j}, 0")
    for i in range(16):
        A(f"s_waitcnt vmcnt({min(7,15-i)})")
        for j in range(4):
            A(f"v_lshlrev_b32 v{U+2*j}, 16, v{vD+4*(i%8)+j}")
            A(f"v_and_b32 v{U+2*j+1}, 0xffff0000, v{vD+4*(i%8)+j}")
        if i+8<16: sld(i+8)
        for j in range(4):
            A(f"v_pk_add_f32 {bc(S+2*j)}, {bc(S+2*j)}, {bc(U+2*j)}")
            A(f"v_pk_fma_f32 {bc(Q+2*j)}, {bc(U+2*j)}, {bc(U+2*j)}, {bc(Q+2*j)}")
    for j in range(8): A(f"v_permlane32_swap_b32 v{S+j}, v{Q+j}")
    for j in range(8): A(f"v_add_f32 v{S+j}, v{S+j}, v{Q+j}")
    for j in range(4): A(f"v_permlane16_swap_b32 v{S+j}, v{S+j+4}")
    A(f"""
    v_and_b32 v{vT}, 15, v{vL}
    v_lshlrev_b32 v{vT}, 5, v{vT}
    v_and_b32 v{vT+1}, 16, v{vL}
    v_add_u32 v{vT}, v{vT}, v{vT+1}
    v_and_b32 v{vT+1}, 32, v{vL}
    v_lshl_add_u32 v{vT}, v{vT+1}, 4, v{vT}
    s_lshl_b32 s{sT}, s{sW}, 10
    v_add_u32 v{vT}, s{sT}, v{vT}
    """)
    for j in range(4): A(f"v_add_f32 v{S+j}, v{S+j}, v{S+j+4}")
    A(f"""
    ds_write_b128 v{vT}, v[{S}:{S+3}]
    s_waitcnt lgkmcnt(0)
    s_barrier
    s_cmp_ge_u32 s{sW}, 4
    s_cbranch_scc1 k2_st_p2
    s_cmp_ge_u32 s{sW}, 2
    s_cbranch_scc1 k2_st_exit
    v_lshlrev_b32 v{vT}, 2, v0
    """)
    for i in range(8):
        A(f"ds_read_b32 v{vD+i}, v{vT} offset:{1024*i}")
        A(f"ds_read_b32 v{vD+8+i}, v{vT} offset:{1024*i+512}")
    A("s_waitcnt lgkmcnt(0)")
    for st in (4,2,1):
        for i in range(st):
            A(f"v_add_f32 v{vD+i}, v{vD+i}, v{vD+i+st}")
            A(f"v_add_f32 v{vD+8+i}, v{vD+8+i}, v{vD+8+i+st}")
    ln_finish(A,vD,vD+8,vD+1,512)
    A(f"""
    v_cvt_pk_bf16_f32 v{vD}, v{vD}, v{vD+8}
    v_mov_b32 v{vD+1}, s{sTAG}
    s_lshl_b32 s{sT}, s{sMB}, 10
    s_add_u32 s{sT}, s{sT}, {WS_ST3}
    v_lshl_add_u32 v{vT}, v0, 3, s{sT}
    global_store_dwordx2 v{vT}, {bc(vD)}, s[30:31] sc0 sc1
    """)
    A.label("k2_st_exit")
    A("s_barrier")
    p2_addr(True)
    A(f"""
    s_cmp_lg_u32 s{sW}, 0
    s_cbranch_scc1 k2_gd
    s_lshl_b32 s45, s{sMB}, 7
    s_add_u32 s45, s45, {WS_FLAG+4096}
    v_mov_b32 v{vF}, s45
    s_mov_b32 s{sSP}, 0
    """)
    A.label("k2_g")
    A(f"""
    global_load_dword v{vT}, v{vF}, s[30:31] sc0 sc1
    s_add_u32 s{sSP}, s{sSP}, 1
    s_cmp_ge_u32 s{sSP}, {SPIN}
    s_cbranch_scc1 k2_gd
    s_waitcnt vmcnt(0)
    v_cmp_ne_u32 vcc, s{sTAG}, v{vT}
    s_cbranch_vccnz k2_g
    """)
    A.label("k2_gd")
    cnt_add(4)
    cnt_wait(4,4)
    for i in range(1,6): stamp(A,i)
    A("s_branch k2_p2b")
    A.label("k2_st_p2")
    A("s_barrier")
    A(f"s_sub_u32 s{sW}, s{sW}, 4")
    issue_res()
    first=[b for b in range(NPRE,43) if wd_loc(b) not in (X_RES,X_RES+4096)]
    for b in first: issue_wd(b)
    p2_addr(False)
    A(f"s_waitcnt vmcnt({len(first)})")
    cnt_add(8)
    cnt_wait(8,8)
    rd_res()
    cnt_add(8)
    cnt_wait(8,12)
    for b in range(NPRE,43):
        if b not in first: issue_wd(b)
    for i in range(1,5): stamp(A,i)
    A("s_branch k2_p2")
```

```python
import sys, math, os, struct
from asmlib import *
NAME="sequential_preLN__ssm_conv_s4d__glu_gated_geglu__prompt"
WS_STATS=0x0000
WS_ST2  =0x4000
WS_ST3  =0x30000
WS_FLH  =0x34000
WS_FLAG =0x6000
WS_EPOCH=0x8000
WS_CS   =0x10000
WS_FL2  =0x80000
WS_KD   =0x40000
WS_HT   =0x100000
WS_HM   =0x400000
WS_XT   =0xA00000
WS_DBG  =0xC00000
WS_WD2  =0xA00000
WS_W1   =0x1000000
WS_WD   =0x1400000
WS_XG   =0x1600000
KD_CH=1536
LOG2E=1.4426950408889634
def split_hi_lo(x,bits=12):
    u=struct.unpack("<I",struct.pack("<f",x))[0] & (0xffffffff<<(23-bits+1)) & 0xffffffff
    hi=struct.unpack("<f",struct.pack("<I",u))[0]
    return hi, x-hi
L2E_HI,L2E_LO=split_hi_lo(LOG2E)
DBG=int(os.environ.get("DBG","0"))
X=os.environ.get("X","")
TIMER="s_memtime" if DBG==2 else "s_memrealtime"
SK_INVN=90
def kd(name,vgpr,sgpr,acc=None):
    ao=acc if acc is not None else (vgpr+3)//4*4
    return f""".p2align 6
.amdhsa_kernel {name}
  .amdhsa_next_free_vgpr {vgpr}
  .amdhsa_next_free_sgpr {sgpr}
  .amdhsa_accum_offset {ao}
  .amdhsa_group_segment_fixed_size 0
  .amdhsa_kernarg_size 112
  .amdhsa_user_sgpr_count 2
  .amdhsa_user_sgpr_kernarg_segment_ptr 1
  .amdhsa_system_sgpr_workgroup_id_x 1
  .amdhsa_float_denorm_mode_32 3
.end_amdhsa_kernel"""
_first=[True]
def stamp(A,i):
    if DBG==3:
        if _first[0]: A("s_memrealtime s[64:65]")
        _first[0]=False
        return
    if DBG: A(f"{TIMER} s[{64+2*i}:{65+2*i}]")
def dump(A,kidx,n,sW,woff=0,ws=30):
    if not DBG: return
    if DBG==3:
        if kidx==1: return
        n=1
    A("s_mov_b64 exec, 1")
    A(f"{TIMER} s[{64+2*n}:{65+2*n}]")
    A(f"s_lshl_b32 s92, s2, 4")
    A(f"s_add_u32 s92, s92, s{sW}")
    A(f"s_add_u32 s92, s92, {woff}")
    A(f"s_lshl_b32 s92, s92, 6")
    A(f"s_add_u32 s92, s92, {WS_DBG+kidx*0x40000}")
    A("v_mov_b32 v2, s92")
    A("s_waitcnt lgkmcnt(0)")
    for i in range(n+1):
        A(f"v_mov_b32 v3, s{64+2*i}")
        A(f"global_store_dword v2, v3, s[{ws}:{ws+1}] offset:{4*i}")
    if kidx==2:
        A("v_mov_b32 v3, s17")
        A(f"global_store_dword v2, v3, s[{ws}:{ws+1}] offset:60")
def head(A,name):
    A.l += [f".globl {name}", ".p2align 8", f".type {name},@function"]
    A.label(name)
def bf16round(A,dst,src):
    A(f"v_cvt_pk_bf16_f32 v{dst}, v{src}, v{src}")
    A(f"v_and_b32 v{dst}, 0xffff0000, v{dst}")
def wave_sum_dpp(A,regs_):
    for ctl in ("row_shr:1","row_shr:2","row_shr:4","row_shr:8"):
        for r in regs_:
            A(f"v_add_f32_dpp v{r}, v{r}, v{r} {ctl} row_mask:0xf bank_mask:0xf bound_ctrl:0")
    for r in regs_: A(f"v_add_f32_dpp v{r}, v{r}, v{r} row_bcast:15 row_mask:0xa bank_mask:0xf")
    for r in regs_: A(f"v_add_f32_dpp v{r}, v{r}, v{r} row_bcast:31 row_mask:0xc bank_mask:0xf")
def ln_finish(A,S,Q,T,n):
    A(f"v_mul_f32 v{S}, {f32(1.0/n)}, v{S}")
    A(f"v_mul_f32 v{T}, v{S}, v{S}")
    A(f"v_fma_f32 v{Q}, v{Q}, s{SK_INVN}, -v{T}")
    A(f"v_max_f32 v{Q}, 0, v{Q}")
    bf16round(A,Q,Q)
    A(f"v_add_f32 v{Q}, {f32(1e-5)}, v{Q}")
    bf16round(A,Q,Q)
    A(f"v_sqrt_f32 v{Q}, v{Q}")
def srd(A,d,base,off,size):
    if off:
        A(f"s_add_u32 s{d}, s{base}, {off}")
        A(f"s_addc_u32 s{d+1}, s{base+1}, 0")
    else:
        A(f"s_mov_b32 s{d}, s{base}")
        A(f"s_mov_b32 s{d+1}, s{base+1}")
    A(f"s_mov_b32 s{d+2}, {size}")
    A(f"s_mov_b32 s{d+3}, 0x20000")
def build(kernels, launches, path):
    src=open(f"cdna_kernels/{NAME}.s.ref").read().split("\n")
    hdr=[l for l in src if l.startswith(";") and "@launch" not in l and "Override launch" not in l and "grid=ceil" not in l]
    out=hdr+[f"; @launch kernel={k} grid=({g},1,1) block=({b},1,1) lds={l}" for k,g,b,l in launches]
    out+=['.amdgcn_target "amdgcn-amd-amdhsa--gfx950"',".text"]
    kds=[]
    for g in kernels:
        l,k=g(); out+=pad_hazards(l); kds.append(k)
    out+=["code_end:", "    s_endpgm"]
    out+=['.section .rodata,"a"']+kds
    open(path,"w").write("\n".join(out)+"\n")
```

```python
from common import *
from k01 import cmul, exp_bf16, cexp, row_stats
EF_PITCH=544; EF_CH=64*EF_PITCH
YP=9216
WSLOT=12320; NWS=10; W_U=6176
TB=2*EF_CH
XS=TB+2*KD_CH
SC=XS+8*1280
PB=SC+64
X_CNT=163824
UP=1152; UB=X_CNT-48-20*UP
IMG=4160; KIMG_CH=4*IMG; KIMG=UB-2*KIMG_CH
assert PB+2048+64<=KIMG and UB%16==0 and KIMG%16==0
sTAG=34; sWt=8; sWO=12; sM0W=13; sCBg=14; sMBg=15; vWo=253
ROTW='norw' not in X
GL=int(os.environ.get('GL','1'))
NPL=int(os.environ.get("NPL","5"))
def issue_w(A,st):
    A(f"""
    s_add_u32 m0, s{sM0W}, {(st%NWS)*WSLOT}
    s_nop 0
    buffer_load_dwordx4 v{vWo}, s[{sWt}:{sWt+3}], s{sWO} offen lds
    buffer_load_dwordx4 v{vWo+1}, s[{sWt}:{sWt+3}], s{sWO} offen offset:1024 lds
    buffer_load_dwordx4 v{vWo+2}, s[{sWt}:{sWt+3}], s{sWO} offen offset:2048 lds
    s_add_u32 s{sWO}, s{sWO}, {32*2752}
    """)
    if st in (3,7,11) and ROTW:
        A(f"""
        s_cmp_eq_u32 s35, {15-st}
        s_cselect_b32 s3, {512*2752}, 0
        s_sub_u32 s{sWO}, s{sWO}, s3
        """)
SPIN=1<<16
WT=" sc0 sc1"
def phaseA(A,tail):
    sW=36; sCH=37; sG=38; sT=39; sT2=40; sHALF=41; sONE=42; sDT=43; sROW=46; sDS=50; sROLE=51; sSEL=52; sU=56; sSP=57; sEP=58; sEX=60
    vL=1; vT=2; vXR=4; vXS=8; vP=12; vAD=17; q5=18; hh=19
    vXG=20; vSG=28
    vX=36; vUD=44; vGA=52; vSA=53
    vW=56
    vRA=200; vRD=204; vCS=216
    A(f"""
    s_cmp_ge_u32 s2, 256
    s_cbranch_scc1 m_end
    s_load_dwordx16 s[4:19], s[0:1], 0
    s_load_dwordx2 s[30:31], s[0:1], 104
    s_load_dwordx8 s[20:27], s[0:1], 64
    """)
    stamp(A,0)
    A("s_getpc_b64 s[44:45]")
    A.label("ka_pf")
    A(f"""
    v_lshlrev_b32 v{vW}, 7, v0
    v_lshrrev_b32 v{vT}, 6, v0
    v_and_b32 v{vL}, 63, v0
    v_readfirstlane_b32 s{sW}, v{vT}
    s_lshr_b32 s{sT2}, s2, 3
    s_cmp_lg_u32 s{sW}, 0
    s_cbranch_scc1 ka_nopf
    s_mov_b32 exec_hi, 0xff
    global_load_dword v{vRA+3}, v{vW}, s[44:45] offset:512
    s_mov_b32 exec_hi, -1
    """)
    A.label("ka_nopf")
    A(f"""
    s_and_b32 s{sT}, s2, 7
    s_lshl_b32 s{sG}, s{sT}, 5
    s_add_u32 s{sG}, s{sG}, s{sT2}
    s_and_b32 s{sCH}, s{sW}, 1
    s_lshr_b32 s{sROLE}, s{sW}, 1
    s_and_b32 s{sHALF}, s{sROLE}, 1
    v_and_b32 v{q5}, 31, v{vL}
    v_lshrrev_b32 v{hh}, 5, v{vL}
    s_lshl_b32 s{sT}, s{sT}, 7
    s_lshl_b32 s{sT2}, s{sT2}, 16
    s_add_u32 s{sT}, s{sT}, s{sT2}
    s_lshl_b32 s{sT2}, s{sROLE}, 14
    s_add_u32 s{sT}, s{sT}, s{sT2}
    s_lshl_b32 s{sT2}, s{sCH}, 6
    s_add_u32 s{sT}, s{sT}, s{sT2}
    v_lshrrev_b32 v{vW}, 2, v{vL}
    v_and_b32 v{vW+1}, 3, v{vL}
    v_lshlrev_b32 v{vW+2}, 10, v{vW}
    v_lshl_add_u32 v{vW+2}, v{vW+1}, 4, v{vW+2}
    v_add_u32 v{vW+2}, s{sT}, v{vW+2}
    s_lshl_b32 s{sT}, s{sG}, 13
    v_lshl_add_u32 v{vAD}, v0, 4, s{sT}
    s_lshl_b32 s{sT}, s{sG}, 9
    v_lshl_add_u32 v{vT}, v{vL}, 3, s{sT}
    s_lshl_b32 s{sT2}, s{sG}, 2
    s_cmp_eq_u32 s{sCH}, 0
    s_waitcnt lgkmcnt(0)
    s_cselect_b64 s[62:63], s[6:7], s[8:9]
    s_cselect_b64 s[60:61], s[10:11], s[12:13]
    s_cmp_eq_u32 s{sHALF}, 0
    s_cselect_b64 s[62:63], s[62:63], s[60:61]
    s_cmp_ge_u32 s{sW}, 4
    s_cbranch_scc1 ka_nop
    global_load_dwordx2 v[{vP}:{vP+1}], v{vT}, s[62:63]
    """)
    A.label("ka_nop")
    if "fp" in X: stamp(A,5)
    A(f"""
    s_load_dword s{sEP}, s[30:31], {WS_EPOCH}
    s_load_dword s{sDT}, s[14:15], s{sT2}
    s_load_dword s{sDS}, s[16:17], s{sT2}
    global_load_dwordx4 v[{vXS}:{vXS+3}], v{vW+2}, s[4:5]
    global_load_dwordx4 v[{vXR}:{vXR+3}], v{vAD}, s[4:5]
    s_mov_b32 s{sONE}, 0x3f803f80
    s_mov_b32 s{SK_INVN}, {f32(1/512)}
    v_mov_b32 v{vW+9}, 0x9000
    global_load_dword v{vRA+2}, v{vW+9}, s[30:31]
    """)
    PA=36
    A(f"""
    s_mul_i32 s{sT}, s{sW}, 1280
    s_add_u32 s{sT}, s{sT}, {XS}
    v_mul_u32_u24 v{PA+0}, 80, v{vW}
    v_lshl_add_u32 v{PA+0}, v{vW+1}, 4, v{PA+0}
    v_add_u32 v{PA+0}, s{sT}, v{PA+0}
    v_and_b32 v{vW}, 7, v{vL}
    v_lshrrev_b32 v{vW+1}, 3, v{vL}
    v_mul_u32_u24 v{PA+1}, 160, v{vW}
    v_lshl_add_u32 v{PA+1}, v{vW+1}, 2, v{PA+1}
    v_add_u32 v{PA+1}, s{sT}, v{PA+1}
    s_and_b32 s{sT}, s2, 7
    s_lshl_b32 s{sT}, s{sT}, 19
    s_lshl_b32 s{sT2}, s{sCH}, 18
    s_add_u32 s{sT}, s{sT}, s{sT2}
    s_lshr_b32 s{sT2}, s2, 3
    s_lshl_b32 s{sT2}, s{sT2}, 9
    s_add_u32 s{sT}, s{sT}, s{sT2}
    s_lshl_b32 s{sT2}, s{sROLE}, 7
    s_add_u32 s{sT}, s{sT}, s{sT2}
    s_add_u32 s{sT}, s{sT}, {WS_XG}
    v_lshlrev_b32 v{PA+2}, 14, v{vW+1}
    v_lshl_add_u32 v{PA+2}, v{vW}, 4, v{PA+2}
    v_add_u32 v{PA+2}, s{sT}, v{PA+2}
    v_add_u32 v{PA+3}, {8*16384}, v{PA+2}
    s_lshl_b32 s{sT}, s{sG}, 6
    v_lshl_add_u32 v{PA+4}, v{vL}, 3, s{sT}
    v_lshlrev_b32 v{vSA}, 5, v0
    s_lshl_b32 s{sT}, s{sG}, 14
    s_add_u32 s{sT}, s{sT}, {WS_XG}
    v_add_u32 v{vGA}, s{sT}, v{vSA}
    s_mul_i32 s{sT}, s{sCH}, {EF_CH}
    s_lshl_b32 s{sT2}, s{sHALF}, 8
    s_add_u32 s{sT}, s{sT}, s{sT2}
    v_lshl_add_u32 v{vAD}, v{vL}, 2, s{sT}
    """)
    A(f"""
    v_mov_b32 v{vW+8}, 0
    v_mov_b32 v{vW+9}, 0
    s_and_b32 s{sT}, s{sW}, 3
    s_mul_i32 s{sT}, s{sT}, {UP}
    s_add_u32 s{sT}, s{sT}, {UB}
    v_lshl_add_u32 v{vW+10}, v{vL}, 3, s{sT}
    ds_write_b64 v{vW+10}, v[{vW+8}:{vW+9}]
    s_mov_b64 exec, 0x7f
    s_mul_i32 s{sT}, s{sW}, {IMG}
    s_add_u32 s{sT}, s{sT}, {KIMG+4096}
    v_lshl_add_u32 v{vW+10}, v{vL}, 3, s{sT}
    ds_write_b64 v{vW+10}, v[{vW+8}:{vW+9}]
    v_mov_b32 v{vW+10}, {X_CNT}
    ds_write_b64 v{vW+10}, v[{vW+8}:{vW+9}]
    ds_write_b64 v{vW+10}, v[{vW+8}:{vW+9}] offset:8
    v_mov_b32 v{vW+10}, {SC+32}
    ds_write_b32 v{vW+10}, v{vW+8}
    s_mov_b64 exec, -1
    """)
    A(f"""
    s_lshl_b32 s{sT}, s{sW}, 9
    s_add_u32 s{sT}, s{sT}, {PB}
    v_lshl_add_u32 v{vW+11}, v{vL}, 3, s{sT}
    s_lshl_b32 s{sT}, s{sCH}, 8
    s_lshl_b32 s{sT2}, s{sHALF}, 7
    s_add_u32 s{sT}, s{sT}, s{sT2}
    s_add_u32 s{sT}, s{sT}, {PB}
    v_lshl_add_u32 v{vW+12}, v{vL}, 1, s{sT}
    s_waitcnt lgkmcnt(0)
    s_mul_i32 s{sTAG}, s{sEP}, 0x9e3779b1
    s_add_u32 s{sTAG}, s{sTAG}, 0x7f4a7c15
    s_lshl_b32 s{sT}, s{sDT}, 16
    s_and_b32 s{sT2}, s{sDT}, 0xffff0000
    s_cmp_eq_u32 s{sCH}, 0
    s_cselect_b32 s{sDT}, s{sT}, s{sT2}
    v_mov_b32 v{vP+4}, s{sDT}
    v_mov_b32 v{vXG+1}, s{sTAG}
    v_mov_b32 v{vXG+3}, s{sTAG}
    v_mov_b32 v{vXG+5}, s{sTAG}
    v_mov_b32 v{vXG+7}, s{sTAG}
    """)
    if "fp" in X: stamp(A,6)
    exp_bf16(A,vP+4,vW+8)
    A(f"""
    s_cmp_ge_u32 s{sW}, 4
    s_cbranch_scc1 ka_nop2
    s_waitcnt vmcnt(3)
    ds_write_b64 v{vW+11}, v[{vP}:{vP+1}]
    """)
    A.label("ka_nop2")
    A("s_waitcnt lgkmcnt(0)")
    A("s_barrier")
    def publish(tagl):
        T=PA+5
        A(f"""
        s_waitcnt vmcnt(2)
        ds_write_b128 v{PA}, v[{vXS}:{vXS+3}]
        ds_read_b32 v{vXG}, v{PA+1}
        ds_read_b32 v{vXG+2}, v{PA+1} offset:80
        ds_read_b32 v{vXG+4}, v{PA+1} offset:32
        ds_read_b32 v{vXG+6}, v{PA+1} offset:112
        s_waitcnt vmcnt(1)
        """)
        stamp(A,1)
        B=Asm(); row_stats(B,vXR,vT,vT+1,T,sONE); bl=[l.strip() for l in B.l]
        for l in bl[:10]: A(l)
        A(f"""
        s_waitcnt lgkmcnt(0)
        global_store_dwordx4 v{PA+2}, v[{vXG}:{vXG+3}], s[30:31]{WT}
        global_store_dwordx4 v{PA+3}, v[{vXG+4}:{vXG+7}], s[30:31]{WT}
        """)
        for l in bl[10:]: A(l)
        A(f"""
        s_lshl_b32 s{sT}, s{sW}, 2
        s_add_u32 s{sT}, s{sT}, {SC}
        v_mov_b32 v{T}, s{sT}
        v_mov_b32 v{T+1}, {SC+32}
        v_mov_b32 v{T+2}, 1
        s_mov_b32 exec_lo, 0
        s_mov_b32 exec_hi, 0x80000000
        ds_write_b32 v{T}, v{vT}
        ds_add_rtn_u32 v{T+2}, v{T+1}, v{T+2}
        s_mov_b64 exec, -1
        v_lshlrev_b32 v{T}, 2, v{vL}
        v_add_u32 v{T}, {SC}, v{T}
        v_mov_b32 v{vT+1}, s{sTAG}
        s_waitcnt lgkmcnt(0)
        v_readlane_b32 s{sT}, v{T+2}, 63
        s_cmp_lg_u32 s{sT}, 7
        s_cbranch_scc1 {tagl}
        s_mov_b64 exec, 0xff
        ds_read_b32 v{vT}, v{T}
        s_waitcnt lgkmcnt(0)
        global_store_dwordx2 v{PA+4}, v[{vT}:{vT+1}], s[30:31] offset:{WS_STATS}{WT}
        s_mov_b64 exec, -1
        """)
        A.label(tagl)
        stamp(A,2)
    def warmups():
        A(f"""
        s_cmp_eq_u32 s{sCH}, 0
        s_cselect_b64 s[62:63], s[20:21], s[22:23]
        s_cselect_b64 s[60:61], s[24:25], s[44:45]
        s_cmp_eq_u32 s{sHALF}, 0
        s_cselect_b64 s[62:63], s[62:63], s[60:61]
        s_mul_i32 s{sT}, s2, {43*128}
        s_lshr_b32 s{sT2}, s2, 3
        s_lshl_b32 s{sT2}, s{sT2}, 10
        s_add_u32 s{sT2}, s{sT2}, 5632
        s_mov_b32 s{sU}, {1376*1024-4}
        s_cmp_eq_u32 s{sW}, 7
        s_cselect_b32 s{sT}, s{sT2}, s{sT}
        s_cselect_b32 s{sT2}, code_end-ka_pf, s{sU}
        s_cselect_b32 exec_lo, 0xff, -1
        s_cselect_b32 exec_hi, 0, 0x7ff
        v_lshl_add_u32 v{PA+5}, v{vL}, 7, s{sT}
        v_min_u32 v{PA+5}, s{sT2}, v{PA+5}
        global_load_dword v{vRA+3}, v{PA+5}, s[62:63]
        s_mov_b64 exec, -1
        """)
    A(f"""
    ds_read_u16 v{vP}, v{vW+12}
    ds_read_u16 v{vP+1}, v{vW+12} offset:512
    ds_read_u16 v{vP+2}, v{vW+12} offset:1024
    ds_read_u16 v{vP+3}, v{vW+12} offset:1536
    s_waitcnt lgkmcnt(0)
    """)
    zr=vP; zi=vP+1
    pk=[vW+20,vW+21,vW+22,vW+23]; pkc=[0]
    def put(reg,row):
        p=pk[pkc[0]%4]; pkc[0]+=1
        A(f"v_cvt_pk_bf16_f32 v{p}, v{reg}, v{reg+1}")
        A(f"ds_write_b32 v{vAD}, v{p} offset:{row*EF_PITCH}")
    w1=vW; w2=vW+2; w4=vW+4; w8=vW+6; wB=vW+8; q=vW+10; e=vW+12; e2=vW+14; t=vW+16; t2=vW+18; t3=vW+24; e3=vW+26
    A(f"""
    v_lshlrev_b32 v{vP}, 16, v{vP}
    v_lshlrev_b32 v{vP+1}, 16, v{vP+1}
    """)
    exp_bf16(A,vP,vW+28)
    A(f"""
    v_mul_f32 v{zi}, v{zi}, v{vP+4}
    v_mul_f32 v{zr}, v{zr}, v{vP+4}
    v_mul_f32 v{zr}, {f32(-LOG2E)}, v{zr}
    s_cmp_ge_u32 s{sW}, 4
    s_cbranch_scc1 ka_frole
    v_mul_f32 v{zi}, {f32(-1/(2*math.pi))}, v{zi}
    """)
    def gload(sc,part=3):
        if part&1: A(f"""
        global_load_dwordx4 v[{vXG}:{vXG+3}], v{vGA}, s[30:31]{sc}
        global_load_dwordx4 v[{vXG+4}:{vXG+7}], v{vGA}, s[30:31] offset:16{sc}
        """)
        if part&2: A(f"""
        global_load_dwordx4 v[{vSG}:{vSG+3}], v{vSA}, s[30:31] offset:{WS_STATS}{sc}
        global_load_dwordx4 v[{vSG+4}:{vSG+7}], v{vSA}, s[30:31] offset:{WS_STATS+16}{sc}
        """)
    cexp(A,w1,zr,zi,1,t); cexp(A,wB,zr,zi,256,t2)
    publish("ka_pe")
    A(f"""
    v_lshlrev_b32 v{vP+2}, 16, v{vP+2}
    v_lshlrev_b32 v{vP+3}, 16, v{vP+3}
    v_mul_f32 v{e}, v{vP+2}, v{vP+4}
    v_mul_f32 v{e+1}, v{vP+3}, v{vP+4}
    v_add_f32 v{e}, v{e}, v{e}
    v_mul_f32 v{e+1}, -2.0, v{e+1}
    """)
    cmul(A,w2,w1,w1,t); cmul(A,q,e,wB,t2); put(e,0)
    cmul(A,w4,w2,w2,t3)
    seqB=[("put",q,8),("mul",e2,q,w2),("mul",q,q,wB),("put",e2,9),("mul",e2,e2,w2),("put",q,12),("mul",e3,q,w4),("put",e2,10),("mul",e2,e2,w2),
          ("mul",q,q,wB),("put",e3,13),("put",e2,11),("put",q,14),("mul",e3,q,w4),("mul",q,q,wB),("put",e3,15),("put",q,16),("mul",q,q,wB),("put",q,20),
          ("mul",q,q,wB),("put",q,24),("mul",q,q,wB),("put",q,28),("mul",q,q,wB),("put",q,17)]
    seqA=[]
    for a in range(1,8): seqA+=[("mul",e,e,w1),("put",e,a)]
    ia=0; tt=[t2,t3]; tc=0
    for i,s in enumerate(seqB):
        if s[0]=="put": put(s[1],s[2])
        else: cmul(A,s[1],s[2],s[3],tt[tc%2]); tc+=1
        if (i<10 and i%3==0) or i>=15:
            x=seqA[ia]; ia+=1
            if x[0]=="put": put(x[1],x[2])
            else: cmul(A,x[1],x[2],x[3],t)
    aA=vW; aB=vW+1; r16=vW+2; g4=vW+3; acc=vW+4; oA=vW+12; oB=vW+13; oC=vW+14; fr=vW+32
    A(f"""
    v_and_b32 v{r16}, 15, v{vL}
    v_lshrrev_b32 v{g4}, 4, v{vL}
    s_mul_i32 s{sT}, s{sCH}, {EF_CH}
    v_mul_u32_u24 v{aA}, {EF_PITCH}, v{r16}
    v_lshl_add_u32 v{aA}, v{g4}, 4, v{aA}
    v_add_u32 v{aA}, s{sT}, v{aA}
    s_mul_i32 s{sT2}, s{sHALF}, {16*EF_PITCH}
    v_add_u32 v{aB}, s{sT2}, v{aA}
    s_lshl_b32 s{sT}, s{sHALF}, 4
    v_add_u32 v{r16}, s{sT}, v{r16}
    v_lshlrev_b32 v{oA}, 4, v{r16}
    v_lshl_add_u32 v{oA}, v{g4}, 3, v{oA}
    v_lshlrev_b32 v{oB}, 3, v{r16}
    v_add_u32 v{oB}, 512, v{oB}
    v_cmp_eq_u32 vcc, 2, v{g4}
    v_cndmask_b32 v{oA}, v{oA}, v{oB}, vcc
    v_lshlrev_b32 v{oB}, 2, v{r16}
    v_add_u32 v{oB}, 768, v{oB}
    v_cmp_eq_u32 vcc, 3, v{g4}
    v_cndmask_b32 v{oA}, v{oA}, v{oB}, vcc
    v_mov_b32 v{oB}, 4
    v_mov_b32 v{oC}, 128
    v_cndmask_b32 v{oB}, v{oB}, v{oC}, vcc
    s_mul_i32 s{sT}, s{sCH}, {KD_CH}
    s_add_u32 s{sT}, s{sT}, {TB}
    v_add_u32 v{oA}, s{sT}, v{oA}
    v_add_u32 v{oB}, v{oA}, v{oB}
    v_lshlrev_b32 v{oC}, 1, v{r16}
    v_lshl_add_u32 v{oC}, v{g4}, 6, v{oC}
    v_add_u32 v{oC}, s{sT}, v{oC}
    s_waitcnt lgkmcnt(0)
    s_barrier
    """)
    stamp(A,3)
    def rd(s):
        b=fr+12*s
        A(f"ds_read_b128 v[{b}:{b+3}], v{aB} offset:{32*EF_PITCH+64*s}")
        A(f"ds_read_b128 v[{b+4}:{b+7}], v{aA} offset:{64*s}")
        A(f"ds_read_b128 v[{b+8}:{b+11}], v{aA} offset:{16*EF_PITCH+64*s}")
    for s in range(4): rd(s)
    for s in range(8):
        b=fr+12*s
        n = 9 if s<=4 else 3*(7-s)
        A(f"s_waitcnt lgkmcnt({n})")
        c0="0" if s==0 else f"v[{acc}:{acc+3}]"; c1="0" if s==0 else f"v[{acc+4}:{acc+7}]"
        A(f"v_mfma_f32_16x16x32_bf16 v[{acc}:{acc+3}], v[{b+4}:{b+7}], v[{b}:{b+3}], {c0}")
        A(f"v_mfma_f32_16x16x32_bf16 v[{acc+4}:{acc+7}], v[{b+8}:{b+11}], v[{b}:{b+3}], {c1}")
        if s+4<8: rd(s+4)
    A(f"""
    v_cvt_pk_bf16_f32 v{acc}, v{acc}, v{acc+1}
    v_cvt_pk_bf16_f32 v{acc+1}, v{acc+2}, v{acc+3}
    v_cvt_pk_bf16_f32 v{acc+4}, v{acc+4}, v{acc+5}
    ds_write_b32 v{oA}, v{acc}
    ds_write_b32 v{oB}, v{acc+1}
    ds_write_b16 v{oC}, v{acc+4} offset:1024
    ds_write_b16_d16_hi v{oC}, v{acc+4} offset:1280
    """)
    if GL==0: gload("")
    if GL==2: gload("",1)
    A(f"s_mov_b32 s{sU}, 1000")
    A("s_branch ka_tab")
    A.label("ka_frole")
    A(f"v_mul_f32 v{zi}, {f32(1/(2*math.pi))}, v{zi}")
    cexp(A,w8,zr,zi,8,t)
    A(f"v_mov_b32 v{pk[3]}, 0x3f80")
    A(f"ds_write_b32 v{vAD}, v{pk[3]} offset:{32*EF_PITCH}")
    cmul(A,w2,w8,w8,t); put(w8,33)
    FPUB=int(os.environ.get("FPUB","3"))
    so=w8; se=w2; put(w2,34)
    eo=[e,e3]; ee=[e2,q]
    def pm(d,a_,b_): A(f"v_pk_mul_f32 v[{d}:{d+1}], v[{a_}:{a_+1}], v[{b_}:{b_+1}] op_sel:[0,0] op_sel_hi:[0,1]")
    def pf(d,a_,b_,t_): A(f"v_pk_fma_f32 v[{d}:{d+1}], v[{a_}:{a_+1}], v[{b_}:{b_+1}], v[{t_}:{t_+1}] op_sel:[1,1,0] op_sel_hi:[1,0,1] neg_lo:[1,0,0]")
    pend=[]
    for i,c in enumerate(range(3,32,2)):
        do=eo[i&1]; de=ee[i&1]
        pm(t,so,w2)
        if c+1<32: pm(t2,se,w2)
        if pend: put(*pend.pop(0))
        pf(do,so,w2,t)
        if c+1<32: pf(de,se,w2,t2)
        if pend: put(*pend.pop(0))
        pend=[(do,32+c)]+([(de,33+c)] if c+1<32 else [])
        so=do; se=de
        if c==FPUB:
            publish("ka_pf2"); warmups()
    for p_ in pend: put(*p_)
    A("s_waitcnt lgkmcnt(0)")
    A("s_barrier")
    stamp(A,3)
    if GL==0: gload("")
    if GL==2: gload("",1)
    vCA=vRD
    A.label("ka_tab")
    vK=vW+32; vK2=vW+36; wa=vW+4; wa2=vW+5; pr=vW+8
    A(f"""
    s_cmp_eq_u32 s{sROLE}, 0
    s_cselect_b32 s{sSEL}, 4, 1
    s_cselect_b32 s{sSEL+1}, 3, 6
    s_cselect_b32 s{sSEL+2}, 0, 768
    s_cmp_eq_u32 s{sROLE}, 1
    s_cselect_b32 s{sSEL}, 2, s{sSEL}
    s_cselect_b32 s{sSEL+1}, 7, s{sSEL+1}
    s_cselect_b32 s{sSEL+3}, 0, 128
    s_mul_i32 s{sSEL+3}, s{sSEL+3}, s{sROLE}
    s_add_u32 s{sSEL+2}, s{sSEL+2}, s{sSEL+3}
    v_lshlrev_b32 v{vW+2}, s{sSEL}, v{q5}
    v_and_b32 v{vW+2}, -4, v{vW+2}
    v_lshlrev_b32 v{vW+3}, s{sSEL+1}, v{hh}
    v_add_u32 v{vW+2}, v{vW+2}, v{vW+3}
    s_mul_i32 s{sT}, s{sCH}, {KD_CH}
    s_add_u32 s{sT}, s{sT}, {TB}
    s_add_u32 s{sSEL+2}, s{sSEL+2}, s{sT}
    v_add_u32 v{vW+2}, s{sSEL+2}, v{vW+2}
    v_lshlrev_b32 v{vW+3}, 3, v{q5}
    v_lshl_add_u32 v{vW+3}, v{hh}, 2, v{vW+3}
    v_add_u32 v{vW+3}, s{sT}, v{vW+3}
    s_mul_i32 s{sT}, s{sCH}, {KIMG_CH}
    s_add_u32 s{sT}, s{sT}, {KIMG}
    v_lshlrev_b32 v{vW+7}, 4, v{q5}
    v_sub_u32 v{vW+7}, s{sT}, v{vW+7}
    v_lshlrev_b32 v{vW+6}, 3, v{hh}
    v_sub_u32 v{vW}, v{vW+7}, v{vW+6}
    v_lshlrev_b32 v{vW+6}, 9, v{hh}
    v_sub_u32 v{vW+1}, v{vW+7}, v{vW+6}
    s_mov_b32 s{sSEL}, 0x05040100
    s_mov_b32 s{sSEL+1}, 0x05040302
    s_mov_b32 s{sSEL+2}, 0x07060100
    s_mov_b32 s{sSEL+3}, 0x07060302
    s_waitcnt lgkmcnt(0)
    s_barrier
    ds_read2_b32 v[{vK}:{vK+1}], v{vW+2} offset0:0 offset1:1
    ds_read2_b32 v[{vK+2}:{vK+3}], v{vW+2} offset0:2 offset1:3
    ds_read2_b32 v[{vK2}:{vK2+1}], v{vW+3} offset0:128 offset1:129
    """)
    wa=vW; wa2=vW+1
    if GL==1: gload("")
    if GL==2: gload("",2)
    stamp(A,4)
    A(f"""
    s_cmp_ge_u32 s{sROLE}, 2
    s_cbranch_scc1 ka_r23
    s_cmp_eq_u32 s{sROLE}, 1
    s_cbranch_scc1 ka_r1
    """)
    npair=[0]
    def pairop(d,lo,hi): A(f"v_perm_b32 v{d}, v{hi[0]}, v{lo[0]}, s{sSEL+lo[1]+2*hi[1]}")
    def wwin(addr,k,rho,bbase):
        lam=rho+3; iota=lam&3; b=bbase+(lam>>2)
        p=pr+2*(npair[0]%8); npair[0]+=1
        pairop(p,k[rho+3],k[rho+2]); pairop(p+1,k[rho+1],k[rho])
        A(f"ds_write_b64 v{addr}, v[{p}:{p+1}] offset:{iota*IMG+8*(511-b)}")
    A(f"""
    v_cmp_eq_u32 vcc, 63, v{vL}
    v_mov_b32 v{vW+7}, 0
    s_waitcnt lgkmcnt(0)
    v_lshrrev_b32 v{vW+2}, 16, v{vK+2}
    v_perm_b32 v{vW+3}, v{vK+2}, v{vK+2}, s{sSEL}
    v_perm_b32 v{vW+6}, v{vK2+1}, v{vK2+1}, s{sSEL}
    v_cndmask_b32 v{vK+3}, v{vK+3}, v{vW+2}, vcc
    v_cndmask_b32 v{vK+2}, v{vK+2}, v{vW+3}, vcc
    v_cndmask_b32 v{vK2+1}, v{vK2+1}, v{vW+6}, vcc
    """)
    k=[(vK+i//2,i&1) for i in range(8)]
    for rho in range(4): wwin(wa,k,rho,0)
    v=[(vK2+i//2,i&1) for i in range(4)]
    k1=[v[0],v[0],v[1],v[2],v[2],v[2],v[3]]
    for rho in range(4): wwin(wa,k1,rho,64)
    A("s_mov_b64 exec, 1")
    z=(vW+7,0); kz=[z,z,z,k[0],k[1],k[2]]
    for rho in range(3):
        p=pr+2*(npair[0]%8); npair[0]+=1
        pairop(p,kz[rho+3],kz[rho+2]); pairop(p+1,kz[rho+1],kz[rho])
        A(f"ds_write_b64 v{wa}, v[{p}:{p+1}] offset:{rho*IMG+8*511}")
    A("s_mov_b64 exec, -1")
    A("s_branch ka_norm")
    A.label("ka_r1")
    A("s_waitcnt lgkmcnt(0)")
    v=[(vK+i//2,i&1) for i in range(3)]
    k=[v[i] for i in (0,0,0,1,1,1,2,2,2,2,2)]
    for rho in range(8): wwin(wa2,k,rho,128)
    A("s_branch ka_norm")
    A.label("ka_r23")
    A(f"""
    s_lshl_b32 s{sT}, s{sHALF}, 10
    v_subrev_u32 v{wa2}, s{sT}, v{wa2}
    v_and_b32 v{vW+6}, 1, v{vL}
    v_lshlrev_b32 v{vW+6}, 4, v{vW+6}
    s_waitcnt lgkmcnt(0)
    v_alignbit_b32 v{vK}, v{vK+1}, v{vK}, v{vW+6}
    v_lshrrev_b32 v{vK+1}, v{vW+6}, v{vK}
    """)
    k=[(vK,0)]*4+[(vK+1,0)]+[(vK,1)]*6
    for rho in range(8): wwin(wa2,k,rho,256)
    A.label("ka_norm")
    m=vW; s_=vW+1; u0=vW+24; u1=vW+28; pu=vW+32; a0=vW+2; a1=vW+3
    aK=vW+36; aU=vW+40; aE=vW+37; aH=vW+44; p16=vW+38; g4=vW+39
    A(f"""
    v_lshrrev_b32 v{vW+6}, 5, v0
    v_mul_u32_u24 v{vW+6}, {UP}, v{vW+6}
    v_lshl_add_u32 v{vW+6}, v{q5}, 3, v{vW+6}
    v_add_u32 v{vW+6}, {UB+4*UP}, v{vW+6}
    v_and_b32 v{p16}, 15, v{vL}
    v_lshrrev_b32 v{g4}, 4, v{vL}
    v_and_b32 v{aK}, 3, v{vL}
    v_mul_u32_u24 v{aE}, {IMG}, v{aK}
    v_lshl_add_u32 v{aE}, v{g4}, 4, v{aE}
    v_lshrrev_b32 v{s_}, 2, v{p16}
    v_lshlrev_b32 v{m}, 3, v{s_}
    v_sub_u32 v{aE}, v{aE}, v{m}
    v_lshl_add_u32 v{m}, v{aK}, 1, v{g4}
    s_mul_i32 s{sT}, s{sCH}, {KIMG_CH}
    s_add_u32 s{sT}, s{sT}, {KIMG+4088-2*(16+480+1536)}
    v_add_u32 v{aK}, s{sT}, v{aE}
    s_lshl_b32 s{sT}, s{sHALF}, 3
    s_add_u32 s{sT}, s{sT}, 14
    v_lshl_add_u32 v{m}, v{s_}, 4, v{m}
    v_add_u32 v{m}, s{sT}, v{m}
    s_lshl_b32 s{sT}, s{sCH}, 8
    s_add_u32 s{sT}, s{sT}, {UB}
    """)
    for ph in range(4):
        A(f"""
        v_subrev_u32 v{a0}, {4*ph}, v{m}
        v_lshrrev_b32 v{a1}, 4, v{a0}
        v_mul_u32_u24 v{a1}, {UP-256}, v{a1}
        v_lshl_add_u32 v{a1}, v{a0}, 4, v{a1}
        v_add_u32 v{aU+ph}, s{sT}, v{a1}
        """)
    A(f"s_mov_b32 s{sSP}, 0")
    if "fp" not in X: stamp(A,5)
    A.label("ka_chk")
    A("s_waitcnt vmcnt(0)")
    A.label("ka_chk2")
    A(f"""
    v_xor_b32 v{a0}, v{vXG+1}, v{vXG+3}
    v_xor_b32 v{a1}, v{vXG+5}, v{vXG+7}
    v_xor_b32 v{m}, s{sTAG}, v{vXG+1}
    v_or3_b32 v{a0}, v{a0}, v{a1}, v{m}
    v_xor_b32 v{a1}, s{sTAG}, v{vXG+5}
    v_xor_b32 v{m}, s{sTAG}, v{vSG+1}
    v_or3_b32 v{a0}, v{a0}, v{a1}, v{m}
    v_xor_b32 v{a1}, s{sTAG}, v{vSG+3}
    v_xor_b32 v{m}, s{sTAG}, v{vSG+5}
    v_or3_b32 v{a0}, v{a0}, v{a1}, v{m}
    v_xor_b32 v{a1}, s{sTAG}, v{vSG+7}
    v_or_b32 v{a0}, v{a0}, v{a1}
    v_cmp_ne_u32 vcc, 0, v{a0}
    s_cbranch_vccnz ka_retry
    """)
    A.label("ka_ok")
    if "fp" not in X: stamp(A,6)
    xt=vX
    for j in range(4):
        st=vSG+2*j; xc=vXG+2*j
        A(f"""
        v_and_b32 v{s_}, 0xffff0000, v{st}
        v_rcp_f32 v{s_}, v{s_}
        v_lshlrev_b32 v{a0}, 16, v{xc}
        v_and_b32 v{a1}, 0xffff0000, v{xc}
        v_lshlrev_b32 v{m}, 16, v{st}
        v_sub_f32 v{a0}, v{a0}, v{m}
        v_sub_f32 v{a1}, v{a1}, v{m}
        v_cvt_pk_bf16_f32 v{a0}, v{a0}, v{a1}
        v_and_b32 v{a1}, 0xffff0000, v{a0}
        v_lshlrev_b32 v{a0}, 16, v{a0}
        v_mul_f32 v{u0+j}, v{a0}, v{s_}
        v_mul_f32 v{u1+j}, v{a1}, v{s_}
        """)
    A(f"""
    v_cvt_pk_bf16_f32 v{pu}, v{u0}, v{u0+1}
    v_cvt_pk_bf16_f32 v{pu+1}, v{u0+2}, v{u0+3}
    v_cvt_pk_bf16_f32 v{pu+2}, v{u1}, v{u1+1}
    v_cvt_pk_bf16_f32 v{pu+3}, v{u1+2}, v{u1+3}
    ds_write_b64 v{vW+6}, v[{pu}:{pu+1}]
    ds_write_b64 v{vW+6}, v[{pu+2}:{pu+3}] offset:256
    v_perm_b32 v{xt}, v{vXG+2}, v{vXG}, s{sSEL}
    v_perm_b32 v{xt+1}, v{vXG+6}, v{vXG+4}, s{sSEL}
    v_perm_b32 v{xt+2}, v{vXG+2}, v{vXG}, s{sSEL+3}
    v_perm_b32 v{xt+3}, v{vXG+6}, v{vXG+4}, s{sSEL+3}
    ds_write_b64 v{vW+6}, v[{xt}:{xt+1}] offset:512
    ds_write_b64 v{vW+6}, v[{xt+2}:{xt+3}] offset:768
    s_cmp_ge_u32 s{sW}, 4
    s_waitcnt lgkmcnt(0)
    s_barrier
    s_cbranch_scc1 ka_aux
    """)
    stamp(A,7)
    acc=vW+48; fr=vW+64; EU=vW+128; EX=vW+136; UD=vW+144; XF=vW+160
    def loads(s):
        b=fr+32*(s%2)
        def Ak(k): ko=2*(480+1536-32*s-512*k); return [f"ds_read_b64 v[{b+4*k}:{b+4*k+1}], v{aK} offset:{ko}",f"ds_read_b64 v[{b+4*k+2}:{b+4*k+3}], v{aK} offset:{ko+8}"]
        def Bj(j): return [f"ds_read_b128 v[{b+16+4*j}:{b+19+4*j}], v{aU+(s&3)} offset:{UP*(3-(s>>2)+4*j)}"]
        return Ak(0)+Bj(0)+Bj(1)+Ak(1)+Bj(2)+Ak(2)+Bj(3)+Ak(3)
    order=[(0,0,3),(1,0,4),(1,1,6),(2,0,7),(2,1,7),(2,2,9),(3,0,10),(3,1,10),(3,2,10),(3,3,12)]
    for l in loads(0): A(l)
    ex0=[f"v_lshrrev_b32 v{m}, 2, v{p16}",f"v_mul_u32_u24 v{aE}, {UP}, v{m}",f"v_and_b32 v{s_}, 3, v{vL}",f"v_lshlrev_b32 v{s_}, 5, v{s_}",
         f"v_lshl_add_u32 v{s_}, v{g4}, 3, v{s_}",f"s_lshl_b32 s{sT}, s{sHALF}, 7",f"s_lshl_b32 s{sT2}, s{sCH}, 8",f"s_add_u32 s{sT}, s{sT}, s{sT2}",
         f"v_add_u32 v{s_}, s{sT}, v{s_}",f"v_add3_u32 v{aE}, v{aE}, v{s_}, s{sONE}"]
    A(f"s_mov_b32 s{sONE}, {UB+4*UP}")
    for l in ex0: A(l)
    rdx={1:[f"ds_read_b64 v[{EU+2*c}:{EU+2*c+1}], v{aE} offset:{4*UP*c}" for c in range(4)],
         2:[f"ds_read_b64 v[{EX+2*c}:{EX+2*c+1}], v{aE} offset:{4*UP*c+512}" for c in range(4)]}
    ex=[f"v_lshl_add_u32 v{aH}, v{m}, 17, v{s_}",f"s_lshl_b32 s{sT}, s{sG}, 9",f"s_add_u32 s{sT}, s{sT}, {WS_HT}",f"v_add_u32 v{aH}, s{sT}, v{aH}"]
    ex+=[f"v_add_u32 v{aH+c}, {c*524288}, v{aH}" for c in (1,2,3)]
    ex+=[f"s_lshl_b32 s{sT}, s{sDS}, 16", f"s_and_b32 s{sT2}, s{sDS}, 0xffff0000", f"s_cmp_eq_u32 s{sCH}, 0", f"s_cselect_b32 s{sDS}, s{sT}, s{sT2}"]
    for i in range(8):
        d=UD+2*i
        ex+=[f"v_lshlrev_b32 v{d}, 16, v{EU+i}",f"v_and_b32 v{d+1}, 0xffff0000, v{EU+i}",f"v_mul_f32 v{d}, s{sDS}, v{d}",f"v_mul_f32 v{d+1}, s{sDS}, v{d+1}",
             f"v_cvt_pk_bf16_f32 v{d}, v{d}, v{d+1}",f"v_and_b32 v{d+1}, 0xffff0000, v{d}",f"v_lshlrev_b32 v{d}, 16, v{d}"]
    for i in range(8):
        ex+=[f"v_lshlrev_b32 v{XF+2*i}, 16, v{EX+i}",f"v_and_b32 v{XF+2*i+1}, 0xffff0000, v{EX+i}"]
    prevx=0
    for s in range(16):
        b=fr+32*(s%2)
        L=(loads(s+1) if s<15 else [])+rdx.get(s,[])
        iss=0; lastw=-1
        for i,(c,k,need) in enumerate(order):
            if need>lastw:
                A(f"s_waitcnt lgkmcnt({min(15,12-need+prevx+iss)})"); lastw=need
            cc="0" if (s==0 and k==0) else f"v[{acc+4*c}:{acc+4*c+3}]"
            A(f"v_mfma_f32_16x16x32_bf16 v[{acc+4*c}:{acc+4*c+3}], v[{b+4*k}:{b+4*k+3}], v[{b+16+4*(c-k)}:{b+19+4*(c-k)}], {cc}")
            n=(len(L)*(i+1))//10-(len(L)*i)//10
            for _ in range(n): A(L[iss]); iss+=1
            if s>=4 and ex and n<2: A(ex.pop(0))
        prevx=len(rdx.get(s,[]))
    for l in ex: A(l)
    stamp(A,8)
    for c in range(4):
        a=acc+4*c
        for src in (UD+4*c,XF+4*c):
            A(f"""
            v_cvt_pk_bf16_f32 v{a}, v{a}, v{a+1}
            v_cvt_pk_bf16_f32 v{a+2}, v{a+2}, v{a+3}
            v_and_b32 v{a+1}, 0xffff0000, v{a}
            v_and_b32 v{a+3}, 0xffff0000, v{a+2}
            v_lshlrev_b32 v{a}, 16, v{a}
            v_lshlrev_b32 v{a+2}, 16, v{a+2}
            v_pk_add_f32 v[{a}:{a+1}], v[{a}:{a+1}], v[{src}:{src+1}]
            v_pk_add_f32 v[{a+2}:{a+3}], v[{a+2}:{a+3}], v[{src+2}:{src+3}]
            """)
        A(f"""
        v_cvt_pk_bf16_f32 v{a}, v{a}, v{a+1}
        v_cvt_pk_bf16_f32 v{a+1}, v{a+2}, v{a+3}
        global_store_dwordx2 v{aH+c}, v[{a}:{a+1}], s[30:31]{WT}
        """)
    A(f"""
    s_lshl_b32 s{sT}, s{sG}, 2
    s_add_u32 s{sT}, s{sT}, {WS_FLH}
    v_lshl_add_u32 v{vW+2}, v{vL}, 10, s{sT}
    v_mov_b32 v{vW+3}, s{sTAG}
    s_waitcnt vmcnt(0)
    """)
    A.label("ka_fin")
    A("s_barrier")
    stamp(A,9)
    A(f"""
    s_cmp_lg_u32 s{sW}, 0
    s_cbranch_scc1 ka_nofl
    s_mov_b64 exec, 0xff
    global_store_dword v{vW+2}, v{vW+3}, s[30:31]{WT}
    """)
    A.label("ka_nofl")
    dump(A,1,10,sW)
    A("s_mov_b64 exec, -1")
    AA=A; A=tail
    A.label("ka_retry")
    A(f"""
    s_add_u32 s{sSP}, s{sSP}, 1
    s_cmp_ge_u32 s{sSP}, {SPIN}
    s_cbranch_scc1 ka_ok
    """)
    A("s_mov_b64 exec, vcc")
    gload(" sc0 sc1")
    A("s_mov_b64 exec, -1")
    A("s_branch ka_chk")
    A.label("ka_aux")
    stamp(A,7)
    ad=vW+40; S=vW+44; t=vW+52
    RD=176
    if "rp" in X.split("_"):
        A(f"""
        s_sub_u32 s{sROW}, s{sW}, 4
        s_lshl_b32 s{sROW}, s{sROW}, 8
        s_add_u32 s{sROW}, s{sROW}, s2
        s_lshl_b32 s{sT}, s{sROW}, 10
        v_lshl_add_u32 v{RD+8}, v{vL}, 4, s{sT}
        global_load_dwordx4 v[{RD}:{RD+3}], v{RD+8}, s[24:25]
        s_cmp_ge_u32 s{sROW}, {1376-1024}
        s_cbranch_scc1 ka_nod2
        v_add_u32 v{RD+8}, {1024*1024}, v{RD+8}
        global_load_dwordx4 v[{RD+4}:{RD+7}], v{RD+8}, s[24:25]
        """)
        A.label("ka_nod2")
    A(f"""
    s_sub_u32 s{sU}, s{sW}, 6
    s_lshl_b32 s{sU}, s{sU}, 8
    s_add_u32 s{sU}, s{sU}, s2
    s_cmp_ge_u32 s{sU}, 344
    s_cbranch_scc1 ka_nocs
    s_lshr_b32 s{sT}, s{sU}, 2
    s_cmp_ge_u32 s{sT}, 43
    s_cselect_b32 s62, s22, s20
    s_cselect_b32 s63, s23, s21
    s_cselect_b32 s{sT2}, 43, 0
    s_sub_u32 s{sT}, s{sT}, s{sT2}
    s_lshl_b32 s{sT}, s{sT}, 6
    s_and_b32 s{sT2}, s{sU}, 3
    s_mul_i32 s{sT2}, s{sT2}, {128*2752}
    s_add_u32 s{sT}, s{sT}, s{sT2}
    v_lshrrev_b32 v{vCA}, 2, v{vL}
    v_mul_u32_u24 v{vCA}, 2752, v{vCA}
    v_and_b32 v{vCA+1}, 3, v{vL}
    v_lshl_add_u32 v{vCA}, v{vCA+1}, 4, v{vCA}
    v_add_u32 v{vCA}, s{sT}, v{vCA}
    """)
    for i in range(8):
        A(f"global_load_dwordx4 v[{vCS+4*i}:{vCS+4*i+3}], v{vCA}, s[62:63]")
        if i<7: A(f"v_add_u32 v{vCA}, {16*2752}, v{vCA}")
    A.label("ka_nocs")
    c_=vW+56
    A(f"v_mov_b32 v{c_+5}, 0x40000000")
    for v in range(3):
        A(f"""
        v_add_u32 v{c_}, {64*v}, v{vL}
        v_mul_u32_u24 v{c_+1}, 0xaaab, v{c_}
        v_lshrrev_b32 v{c_+1}, 19, v{c_+1}
        v_mul_u32_u24 v{c_+2+v}, 12, v{c_+1}
        v_sub_u32 v{c_+2+v}, v{c_}, v{c_+2+v}
        v_mul_u32_u24 v{c_+1}, {2752-192}, v{c_+1}
        v_lshl_add_u32 v{vWo+v}, v{vL}, 4, v{c_+1}
        """)
    A(f"""
    s_and_b32 s{sT}, s2, 1
    s_lshr_b32 s{sT2}, s2, 5
    s_mul_i32 s{sCBg}, s{sT}, 7
    s_add_u32 s{sCBg}, s{sCBg}, s{sT2}
    s_add_u32 s{sT}, s{sT}, 14
    s_cmp_eq_u32 s{sT2}, 7
    s_cselect_b32 s{sCBg}, s{sT}, s{sCBg}
    s_cmp_eq_u32 s{sCBg}, 14
    s_cselect_b32 s{sT}, 4, 12
    s_cmp_eq_u32 s{sCBg}, 15
    s_cselect_b32 s{sT}, 0, s{sT}
    """)
    for v in range(3):
        A(f"""
        v_cmp_le_u32 vcc, s{sT}, v{c_+2+v}
        v_cndmask_b32 v{vWo+v}, v{vWo+v}, v{c_+5}, vcc
        """)
    A(f"""
    s_mul_i32 s{sWO}, s{sCH}, {16*2752}
    s_mul_i32 s{sT2}, s{sCBg}, 192
    s_add_u32 s{sWO}, s{sWO}, s{sT2}
    s_and_b32 s35, s2, {6 if ROTW else 0}
    s_lshl_b32 s35, s35, 1
    s_mul_i32 s{sT2}, s35, {32*2752}
    s_add_u32 s{sWO}, s{sWO}, s{sT2}
    s_mul_i32 s{sM0W}, s{sCH}, 3072
    s_mul_i32 s{sT}, s{sHALF}, {W_U}
    s_add_u32 s{sM0W}, s{sM0W}, s{sT}
    s_cmp_ge_u32 s{sW}, 6
    s_cselect_b32 s{sWt}, s22, s20
    s_cselect_b32 s{sWt+1}, s23, s21
    s_mov_b32 s{sWt+2}, {512*2752}
    s_mov_b32 s{sWt+3}, 0x20000
    """)
    def prefill():
        A(f"""
        s_mul_i32 s{sSP}, s{sCBg}, 3
        s_min_u32 s{sSP}, s{sSP}, 40
        s_and_b32 s{sT}, s2, 6
        s_lshl_b32 s{sT}, s{sT}, 1
        s_bfe_u32 s{sT2}, s2, 0x20003
        s_add_u32 s{sT}, s{sT}, s{sT2}
        s_lshl_b32 s{sT}, s{sT}, 2
        s_add_u32 s{sT}, s{sT}, s{sW}
        s_sub_u32 s{sT}, s{sT}, 4
        s_mul_i32 s{sT}, s{sT}, 86
        s_add_u32 s{sT}, s{sT}, s{sSP}
        s_lshl_b32 s{sT}, s{sT}, 10
        s_add_u32 s{sT}, s{sT}, {WS_HM}
        v_lshl_add_u32 v{c_}, v{vL}, 4, s{sT}
        v_add_u32 v{c_+1}, {43*1024}, v{c_}
        v_mov_b32 v{c_+4}, -1
        v_mov_b32 v{c_+5}, -1
        v_mov_b32 v{c_+6}, -1
        v_mov_b32 v{c_+7}, -1
        """)
        for o in (0,1024,2048):
            for r in (0,1): A(f"global_store_dwordx4 v{c_+r}, v[{c_+4}:{c_+7}], s[30:31] offset:{o}{WT}")
    prefill()
    for st in range(NPL//2): issue_w(A,st)
    A(f"""
    s_cmp_lg_u32 s{sW}, 4
    s_cbranch_scc1 ka_a3
    s_cmp_lg_u32 s2, 0
    s_cbranch_scc1 ka_a3
    s_add_u32 s{sT}, s{sEP}, 1
    v_mov_b32 v{t}, {WS_EPOCH}
    v_mov_b32 v{t+1}, s{sT}
    s_mov_b64 exec, 1
    global_store_dword v{t}, v{t+1}, s[30:31]
    """)
    A.label("ka_a3")
    A("s_mov_b64 exec, -1")
    if "rp" in X.split("_"):
        A(f"""
        s_bfe_u32 s{sT}, s{sROW}, 0x10001
        s_bfe_u32 s{sT2}, s{sROW}, 0x10003
        s_lshl_b32 s{sT2}, s{sT2}, 1
        s_or_b32 s{sT}, s{sT}, s{sT2}
        s_lshl_b32 s{sT}, s{sT}, 1
        v_and_b32 v{RD+8}, 7, v{vL}
        v_xor_b32 v{RD+8}, s{sT}, v{RD+8}
        v_lshrrev_b32 v{RD+9}, 3, v{vL}
        v_mul_u32_u24 v{RD+9}, {43*4096}, v{RD+9}
        v_lshl_add_u32 v{RD+8}, v{RD+8}, 4, v{RD+9}
        s_lshl_b32 s{sT}, s{sROW}, 7
        s_add_u32 s{sT}, s{sT}, {WS_WD2}
        v_add_u32 v{RD+8}, s{sT}, v{RD+8}
        s_waitcnt vmcnt({3*(NPL//2)+6})
        global_store_dwordx4 v{RD+8}, v[{RD}:{RD+3}], s[30:31]{WT}
        s_cmp_ge_u32 s{sROW}, {1376-1024}
        s_cbranch_scc1 ka_nod3
        v_add_u32 v{RD+8}, {1024*128}, v{RD+8}
        global_store_dwordx4 v{RD+8}, v[{RD+4}:{RD+7}], s[30:31]{WT}
        """)
        A.label("ka_nod3")
    if "dpf" in X:
        A(f"""
        s_cmp_ge_u32 s{sW}, 6
        s_cbranch_scc1 ka_nodpf
        s_lshr_b32 s{sT}, s2, 3
        s_lshl_b32 s{sT}, s{sT}, 1
        s_add_u32 s{sT}, s{sT}, s{sCH}
        s_mul_i32 s{sT}, s{sT}, {172*128}
        v_lshl_add_u32 v{c_}, v{vL}, 7, s{sT}
        global_load_dword v{vRA+3}, v{c_}, s[24:25]
        v_add_u32 v{c_}, 8192, v{c_}
        global_load_dword v{vRA+3}, v{c_}, s[24:25]
        v_add_u32 v{c_}, 8192, v{c_}
        s_mov_b32 exec_hi, 0xfff
        global_load_dword v{vRA+3}, v{c_}, s[24:25]
        s_mov_b32 exec_hi, -1
        """)
        A.label("ka_nodpf")
    A(f"""
    s_cmp_ge_u32 s{sU}, 344
    s_cbranch_scc1 ka_pfw
    s_waitcnt vmcnt({3*(NPL//2)+6+(1 if "rp" in X.split("_") else 0)})
    """)
    for i in range(8):
        for j in range(4):
            r=vCS+4*i+j
            if i==0:
                A(f"v_lshlrev_b32 v{S+2*j}, 16, v{r}")
                A(f"v_and_b32 v{S+2*j+1}, 0xffff0000, v{r}")
            else:
                A(f"v_lshlrev_b32 v{t}, 16, v{r}")
                A(f"v_and_b32 v{t+1}, 0xffff0000, v{r}")
                A(f"v_add_f32 v{S+2*j}, v{S+2*j}, v{t}")
                A(f"v_add_f32 v{S+2*j+1}, v{S+2*j+1}, v{t+1}")
    for j in range(4): A(f"v_permlane32_swap_b32 v{S+j}, v{S+j+4}")
    for j in range(4): A(f"v_add_f32 v{S+j}, v{S+j}, v{S+j+4}")
    for j in range(2): A(f"v_permlane16_swap_b32 v{S+j}, v{S+j+2}")
    for j in range(2): A(f"v_add_f32 v{S+j}, v{S+j}, v{S+j+2}")
    for ctl in ("row_ror:8","row_ror:4"):
        for j in range(2): A(f"v_add_f32_dpp v{S+j}, v{S+j}, v{S+j} {ctl} row_mask:0xf bank_mask:0xf")
    d=S+2
    A(f"""
    v_and_b32 v{t}, 4, v{vL}
    v_cmp_ne_u32 vcc, 0, v{t}
    v_cndmask_b32 v{S}, v{S}, v{S+1}, vcc
    v_cvt_pk_bf16_f32 v{S+1}, v{S}, v{S}
    v_and_b32 v{S+1}, 0xffff0000, v{S+1}
    v_sub_f32 v{S+1}, v{S}, v{S+1}
    v_cvt_pk_bf16_f32 v{d}, v{S}, v{S+1}
    v_mov_b32 v{d+1}, s{sTAG}
    v_lshlrev_b32 v{ad}, 8, v{vCA+1}
    v_lshl_add_u32 v{ad}, v{hh}, 7, v{ad}
    v_and_b32 v{t+1}, 16, v{vL}
    v_lshl_add_u32 v{ad}, v{t+1}, 2, v{ad}
    v_lshl_add_u32 v{ad}, v{t}, 3, v{ad}
    s_lshr_b32 s{sT}, s{sU}, 2
    s_lshl_b32 s{sT}, s{sT}, 10
    s_and_b32 s{sT2}, s{sU}, 3
    s_lshl_b32 s{sT2}, s{sT2}, 3
    s_add_u32 s{sT}, s{sT}, s{sT2}
    s_add_u32 s{sT}, s{sT}, {WS_CS}
    v_add_u32 v{ad}, s{sT}, v{ad}
    s_mov_b32 exec_lo, 0x00ff00ff
    s_mov_b32 exec_hi, 0x00ff00ff
    global_store_dwordx2 v{ad}, v[{d}:{d+1}], s[30:31]{WT}
    s_mov_b64 exec, -1
    """)
    A.label("ka_pfw")
    for st in range(NPL//2,NPL): issue_w(A,st)
    A(f"s_waitcnt vmcnt({3*NPL if 'rp' not in X.split('_') else 3*(NPL-NPL//2)})")
    stamp(A,8)
    A("s_branch ka_fin")
```

```python
from common import *
from mA import WSLOT,NWS,W_U,X_CNT,sTAG,sWt,sWO,sM0W,vWo,issue_w,NPL,WT,ROTW
GC1=-2.0*math.sqrt(2.0/math.pi)*LOG2E; GC2=GC1*0.044715
HR=NWS*WSLOT; HRN=4; SPARE=HR+HRN*8192
FS=int(os.environ.get('FS','5'))
NREG=6; SPIN=1<<16; NA=int(os.environ.get('NA','21'))
WS_SIZE=0x1000000
NPRE=int(os.environ.get('NPRE','10')); WPI=int(os.environ.get("WPI","3"))
RL=4
def make_sched():
    free=[(SPARE,-1 if 'rp' not in X.split('_') else 0)]
    for st in range(6,16):
        for i in range(3): free.append(((st%NWS)*WSLOT+4096*i, st+1))
        if st>=12:
            for i in range(2): free.append((HR+(st%HRN)*8192+4096*i, st+1))
    loc={}; issue={j:[] for j in range(-1,17)}; read={j:[] for j in range(17)}
    nb=0; res=None
    for j in range(-1,17):
        lim = 99 if j==16 else (1 if j<0 else (WPI if j+HRN-1<16 else WPI+2))
        c=0
        if j==7:
            res=6*WSLOT; free=[f for f in free if f[0] not in (res,res+4096)]
            issue[j].append("r"); c+=2; read[j+RL].append("r"); free+= [(res,j+RL+1),(res+4096,j+RL+1)]
        while nb<43 and c<lim:
            av=sorted([f for f in free if f[1]<=j],key=lambda f:f[1])
            if not av: break
            f=av[0]; free.remove(f); loc[nb]=f[0]; issue[j].append(nb)
            if nb<NPRE:
                jr=max(j+RL,1) if j>=0 else 1; read[jr].append(nb); free.append((f[0],jr+1 if jr<int(os.environ.get('LB','14')) else 99))
            nb+=1; c+=1
    assert nb==43 and len(free)>=4
    return loc,issue,read,res,[f[0] for f in free[:4]]
LOC,ISSUE,READ,X_RES,X_RED=make_sched()
def wd_loc(b): return LOC[b]
ORD=[b for b in range(43) if b%3!=2]+[b for b in range(43) if b%3==2]
LB=int(os.environ.get('LB','14'))
CUE=int(os.environ.get('CUE','4'))
def bc(r): return f"v[{r}:{r+1}]"

def phaseB(A):
    sW=36; sMB=37; sCB=38; sT=39; sT2=40; sJ=42; sHO=43; sOO=44; sM0H=45; sHM=46; sDO=47
    sNB=55; sHF=41; sRO=23; sS=48; sC=56; sOUT=60; sD=4; sM0D=16; sSP=17
    vL=1; vT=10
    SR=f"s[{sS}:{sS+3}]"
    stamp(A,0)
    A(f"""
    s_and_b32 s{sT}, s2, 1
    s_lshr_b32 s{sT2}, s2, 5
    s_mul_i32 s{sCB}, s{sT}, 7
    s_add_u32 s{sCB}, s{sCB}, s{sT2}
    s_add_u32 s{sT}, s{sT}, 14
    s_cmp_eq_u32 s{sT2}, 7
    s_cselect_b32 s{sCB}, s{sT}, s{sCB}
    s_and_b32 s{sT}, s{sT2}, 3
    s_cmp_eq_u32 s{sT}, 3
    s_cselect_b32 s{sT}, 4, 0
    s_xor_b32 s{sNB}, s{sT2}, s{sT}
    s_and_b32 s{sHF}, s2, 1
    s_and_b32 s{sRO}, s2, 7
    s_mul_i32 s{sRO}, s{sRO}, {0 if "norot" in X else 7}
    s_lshr_b32 s{sRO}, s{sRO}, 2
    s_mul_i32 s{sRO}, s{sRO}, 3072
    s_and_b32 s{sT}, s2, 6
    s_lshl_b32 s{sT}, s{sT}, 1
    s_bfe_u32 s{sT2}, s2, 0x20003
    s_add_u32 s{sMB}, s{sT}, s{sT2}
    v_mov_b32 v8, {X_CNT}
    s_mov_b32 s{sS}, s30
    s_mov_b32 s{sS+1}, s31
    s_mov_b32 s{sS+2}, {WS_SIZE}
    s_mov_b32 s{sS+3}, 0x20000
    s_cmp_lt_u32 s{sW}, 4
    s_cbranch_scc1 k2_lo
    """)
    vH=2; vLin=3; vR=7
    def p2_setup():
        A(f"""
        s_mov_b32 s{sT}, s{sNB}
        s_lshl_b32 s{sM0D}, s{sW}, 10
        v_bfe_u32 v{vT}, v{vL}, 4, 2
        v_lshlrev_b32 v{vT}, 1, v{vT}
        v_and_b32 v{vT+1}, 7, v{vL}
        v_xor_b32 v{vT}, v{vT}, v{vT+1}
        v_lshlrev_b32 v{vT}, 4, v{vT}
        v_lshrrev_b32 v{vT+2}, 3, v{vL}
        v_lshl_add_u32 v{vR}, v{vT+2}, 8, v{vT}
        s_lshl_b32 s{sDO}, s{sT}, 7
        s_lshl_b32 s{sT2}, s{sW}, 13
        s_add_u32 s{sDO}, s{sDO}, s{sT2}
        v_bfe_u32 v{vT}, v{vL}, 4, 1
        s_and_b32 s{sT}, s{sW}, 1
        s_lshl_b32 s{sT}, s{sT}, 1
        v_or_b32 v{vT}, s{sT}, v{vT}
        v_lshlrev_b32 v{vT}, 1, v{vT}
        v_xor_b32 v{vT}, v{vT}, v{vT+1}
        v_lshlrev_b32 v{vT}, 4, v{vT}
        v_lshl_add_u32 v{vLin}, v{vT+2}, 10, v{vT}
        """)
        srd(A,sD,24,0,1376*1024)
        if "rp" in X.split("_"):
            A(f"""
            s_mov_b32 s{sT}, s{sNB}
            s_mul_i32 s{sDO}, s{sT}, {43*4096}
            s_add_u32 s{sDO}, s{sDO}, s{sM0D}
            s_add_u32 s{sDO}, s{sDO}, {WS_WD2}
            v_lshlrev_b32 v{vLin}, 4, v{vL}
            """)
    def blk(b):
        o=ORD[b]
        if o==42: return [f"s_mov_b32 s{sT2}, {42*1024}"]
        return [f"s_add_u32 s{sT2}, s{sRO}, {o*1024}", f"s_sub_u32 s{sT}, s{sT2}, {42*1024}", f"s_cselect_b32 s{sT2}, s{sT2}, s{sT}"]
    def issue_wd(b,loc=None):
        if "rp" in X.split("_"):
            A(f"""
            s_add_u32 m0, s{sM0D}, {wd_loc(b) if loc is None else loc}
            s_add_u32 s{sT}, s{sDO}, {4096*ORD[b]}
            buffer_load_dwordx4 v{vLin}, {SR}, s{sT} offen lds
            """)
            return
        A(f"""
        {chr(10).join(blk(b))}
        s_lshl_b32 s{sT2}, s{sT2}, 5
        s_add_u32 m0, s{sM0D}, {wd_loc(b) if loc is None else loc}
        s_add_u32 s{sT}, s{sDO}, s{sT2}
        buffer_load_dwordx4 v{vLin}, s[{sD}:{sD+3}], s{sT} offen lds
        """)
    def issue_res():
        A(f"""
        s_mov_b32 s{sT}, s{sNB}
        s_lshl_b32 s{sT}, s{sT}, 14
        s_lshl_b32 s{sT2}, s{sW}, 12
        s_add_u32 s{sT}, s{sT}, s{sT2}
        s_lshl_b32 s{sT2}, s{sMB}, 17
        s_add_u32 s{sT}, s{sT}, s{sT2}
        s_mov_b32 s{sT2}, s{sHF}
        s_lshl_b32 s{sT2}, s{sT2}, 7
        s_add_u32 s{sT}, s{sT}, s{sT2}
        s_add_u32 s{sT}, s{sT}, {WS_HT}
        s_lshl_b32 s{sT2}, s{sW}, 11
        s_add_u32 m0, s{sT2}, {X_RES}
        s_add_u32 s{sT2}, s{sT}, 2048
        buffer_load_dwordx4 v{vR}, {SR}, s{sT} offen lds
        s_add_u32 m0, m0, 1024
        s_nop 0
        buffer_load_dwordx4 v{vR}, {SR}, s{sT2} offen lds
        """)
    def issue_h(st):
        A(f"""
        s_add_u32 m0, s{sM0H}, {HR+(st%HRN)*8192}
        s_nop 0
        buffer_load_dwordx4 v{vH}, {SR}, s{sHO} offen lds
        buffer_load_dwordx4 v{vH}, {SR}, s{sHO} offen offset:1024 lds
        s_add_u32 s{sHO}, s{sHO}, 8192
        """)
        if st in (3,7,11) and ROTW:
            A(f"""
            s_cmp_eq_u32 s35, {15-st}
            s_cselect_b32 s3, {16*8192}, 0
            s_sub_u32 s{sHO}, s{sHO}, s3
            """)
    def lbar(k):
        l=A.newlabel("k2_lb")
        A(f"""
        v_mov_b32 v9, 1
        s_mov_b64 exec, 1
        ds_add_u32 v8, v9
        s_mov_b64 exec, -1
        """)
        A.label(l)
        A(f"""
        ds_read_b32 v9, v8
        s_waitcnt lgkmcnt(0)
        v_cmp_gt_u32 vcc, {4*k}, v9
        s_cbranch_vccnz {l}
        """)
    aW=12; aRr=15; vF=16; vHo=17; vOo=18; vX=19
    NS=11
    ACC=20; RG=36; FW=RG+16*(NS-1); NH=7; FH=RG+16*NS; aWn=FH+4*NH
    def p2_addr(grpB):
        A(f"""
        v_bfe_u32 v{vT}, v{vL}, 2, 2
        v_lshrrev_b32 v{vT+1}, 4, v{vL}
        v_lshl_add_u32 v{aW}, v{vT+1}, 3, v{vT}
        v_lshlrev_b32 v{aW}, 7, v{aW}
        v_and_b32 v{aW+1}, 3, v{vL}
        v_lshl_add_u32 v{aW}, v{aW+1}, 3, v{aW}
        v_lshrrev_b32 v{aW+2}, 1, v{vT}
        v_and_b32 v{vF}, 1, v{vT+1}
        v_lshl_or_b32 v{aW+2}, v{vF}, 1, v{aW+2}
        """)
        for nt in range(4):
            A(f"v_xor_b32 v{vF}, {nt}, v{aW+2}")
            A(f"v_lshl_add_u32 v{aWn+nt}, v{vF}, 5, v{aW}")
            A(f"v_add_u32 v{aWn+4+nt}, 0xf000, v{aWn+nt}")
            A(f"v_add_u32 v{aWn+8+nt}, 0x1e000, v{aWn+nt}")
        if not grpB:
            A(f"""
            v_lshl_add_u32 v{aRr}, v{vT+1}, 2, v{vT}
            v_lshlrev_b32 v{aRr}, 7, v{aRr}
            v_lshl_add_u32 v{aRr}, v{aW+1}, 3, v{aRr}
            v_xor_b32 v{vF}, s{sW}, v{aW+2}
            v_lshl_add_u32 v{aRr}, v{vF}, 5, v{aRr}
            v_add_u32 v{aRr}, {X_RES}, v{aRr}
            """)
        A(f"""
        v_lshlrev_b32 v{vHo}, 4, v{vL}
        v_and_b32 v{vOo}, 15, v{vL}
        v_lshlrev_b32 v{vOo}, 10, v{vOo}
        v_lshl_add_u32 v{vOo}, v{vT+1}, 3, v{vOo}
        s_mov_b32 s{sT}, {X_RED[0]}
        s_cmp_eq_u32 s{sW}, 1
        s_cselect_b32 s{sT}, {X_RED[1]}, s{sT}
        s_cmp_eq_u32 s{sW}, 2
        s_cselect_b32 s{sT}, {X_RED[2]}, s{sT}
        s_cmp_eq_u32 s{sW}, 3
        s_cselect_b32 s{sT}, {X_RED[3]}, s{sT}
        v_add_u32 v{vX}, s{sT}, v{vHo}
        """)
        srd(A,sOUT,26,0,2048*1024)
        A(f"""
        s_lshl_b32 s{sT}, s{sMB}, 1
        s_mov_b32 s{sT2}, s{sHF}
        s_add_u32 s{sT}, s{sT}, s{sT2}
        s_lshl_b32 s{sT}, s{sT}, 2
        s_add_u32 s{sT}, s{sT}, s{sW}
        s_mul_i32 s{sHM}, s{sT}, {43*1024}
        s_add_u32 s{sHM}, s{sHM}, {WS_HM}
        s_lshl_b32 s{sOO}, s{sT}, 14
        s_mov_b32 s{sT2}, s{sNB}
        s_lshl_b32 s{sT2}, s{sT2}, 7
        s_add_u32 s{sOO}, s{sOO}, s{sT2}
        """)
    def rdw(dst,b,loc=None):
        loc=wd_loc(b) if loc is None else loc; win=loc//0xf000; off=loc-win*0xf000
        return [f"ds_read_b64_tr_b16 v[{dst+4*nt+2*e}:{dst+4*nt+2*e+1}], v{aWn+4*win+nt} offset:{off+512*e}" for nt in range(4) for e in range(2)]
    assert NPRE>=10
    stubs=[]
    def cnt_wait(off,val):
        l=A.newlabel("k2_cw")
        A.label(l)
        A(f"""
        ds_read_b32 v9, v8 offset:{off}
        s_waitcnt lgkmcnt(0)
        v_cmp_gt_u32 vcc, {val}, v9
        s_cbranch_vccnz {l}
        """)
    def cnt_add(off):
        A(f"""
        v_mov_b32 v9, 1
        s_mov_b64 exec, 1
        ds_add_u32 v8, v9 offset:{off}
        s_mov_b64 exec, -1
        """)
    def p2_loop(b0,n,grpB):
        def ldh(s,sc=""):
            d=FH+4*(s%NH)
            return blk(b0+s)+[f"s_add_u32 s{sT}, s{sHM}, s{sT2}", f"buffer_load_dwordx4 v[{d}:{d+3}], v{vHo}, {SR}, s{sT} offen{sc}"]
        D=min(NH-1,int(os.environ.get("P2D","6"))); PD=NPRE
        A(f"s_mov_b32 s{sSP}, 0")
        for s in range(D):
            for l in ldh(s): A(l)
        for s in range(n):
            src=RG+16*(s%NS)
            nr=rdw(RG+16*((s+PD)%NS),b0+s+PD) if s+PD<n else []
            lg=""
            if s>=NPRE:
                out=8*(min(n,s+PD)-s-1)
                if out<=15: lg=f" lgkmcnt({out})"
            A(f"s_waitcnt vmcnt({min(n,s+D)-s-1})"+lg)
            h=FH+4*(s%NH)
            lc=f"k2_c{b0+s}"; lr=f"k2_r{b0+s}"; lo=f"k2_o{b0+s}"
            A.label(lc)
            A(f"""
            v_max3_u32 v{vT}, v{h}, v{h+1}, v{h+2}
            v_max_u32 v{vT}, v{vT}, v{h+3}
            v_cmp_eq_u32 vcc, -1, v{vT}
            s_cbranch_vccnz {lr}
            """)
            A.label(lo)
            stubs.append((lr,lc,lo,ldh(s," sc0 sc1")))
            if s+D<n:
                for l in ldh(s+D): A(l)
            for nt in range(4):
                c="0" if (grpB and s==0) else f"v[{ACC+4*nt}:{ACC+4*nt+3}]"
                A(f"v_mfma_f32_16x16x32_bf16 v[{ACC+4*nt}:{ACC+4*nt+3}], v[{src+4*nt}:{src+4*nt+3}], v[{h}:{h+3}], {c}")
                if nt==0 and nr: A("s_waitcnt lgkmcnt(7)")
                for r in nr[2*nt:2*nt+2]: A(r)
        if not(grpB and 'prof' in X): stamp(A,7)
        give=ACC if grpB else ACC+8; keep=ACC+8 if grpB else ACC
        wo=0 if grpB else 2048; ro=2048 if grpB else 0
        A(f"""
        ds_write_b128 v{vX}, v[{give}:{give+3}] offset:{wo}
        ds_write_b128 v{vX}, v[{give+4}:{give+7}] offset:{wo+1024}
        s_waitcnt lgkmcnt(0)
        s_barrier
        ds_read_b128 v[{RG}:{RG+3}], v{vX} offset:{ro}
        ds_read_b128 v[{RG+4}:{RG+7}], v{vX} offset:{ro+1024}
        """)
        for i in range(2):
            A(f"s_waitcnt lgkmcnt({1-i})")
            for q in range(2):
                r=4*i+2*q
                A(f"v_pk_add_f32 {bc(keep+r)}, {bc(keep+r)}, {bc(RG+r)}")
            for q in range(2):
                r=4*i+2*q
                A(f"v_cvt_pk_bf16_f32 v{RG+8+2*i+q}, v{keep+r}, v{keep+r+1}")
            A(f"buffer_store_dwordx2 {bc(RG+8+2*i)}, v{vOo}, s[{sOUT}:{sOUT+3}], s{sOO} offen offset:{32*(i+(2 if grpB else 0))}")
    PF=200
    def hpoll(lab,sl=0):
        A(f"""
        s_cmp_lg_u32 s{sW}, 0
        s_cbranch_scc1 {lab}_d
        s_lshr_b32 s{sT}, s{sMB}, 1
        s_lshl_b32 s{sT}, s{sT}, 10
        s_add_u32 s{sT}, s{sT}, {WS_FLH}
        v_lshl_add_u32 v{PF+4}, v{vL}, 4, s{sT}
        s_mov_b32 s{sSP}, 0
        """)
        A.label(lab)
        A(f"""
        global_load_dwordx4 v[{PF}:{PF+3}], v{PF+4}, s[30:31] sc0 sc1
        s_add_u32 s{sSP}, s{sSP}, 1
        s_cmp_ge_u32 s{sSP}, {SPIN}
        s_cbranch_scc1 {lab}_d
        s_waitcnt vmcnt(0)
        v_xor_b32 v{PF}, s{sTAG}, v{PF}
        v_xor_b32 v{PF+1}, s{sTAG}, v{PF+1}
        v_xor_b32 v{PF+2}, s{sTAG}, v{PF+2}
        v_xor_b32 v{PF+3}, s{sTAG}, v{PF+3}
        v_or3_b32 v{PF}, v{PF}, v{PF+1}, v{PF+2}
        v_or_b32 v{PF}, v{PF}, v{PF+3}
        v_cmp_ne_u32 vcc, 0, v{PF}
        s_mov_b64 exec, vcc
        s_cbranch_vccnz {lab}
        """)
        A.label(lab+"_d")
        A("s_mov_b64 exec, -1")
    A(f"""
    s_cmp_eq_u32 s{sCB}, 15
    s_cbranch_scc1 k2_stats
    """)
    WPRE=int(os.environ.get('WPRE','10'))
    for st in range(NPL,WPRE): issue_w(A,st)
    nw=[WPRE]
    A(f"""
    s_sub_u32 s{sW}, s{sW}, 4
    v_lshrrev_b32 v{vT}, 4, v{vL}
    v_lshlrev_b32 v{vT+1}, 2, v{vT}
    v_and_b32 v{vT+2}, 15, v{vL}
    v_xor_b32 v{vT+1}, v{vT+1}, v{vT+2}
    v_lshlrev_b32 v{vT+1}, 4, v{vT+1}
    v_lshl_add_u32 v{vH}, v{vT}, 8, v{vT+1}
    s_lshl_b32 s{sM0H}, s{sW}, 11
    s_lshl_b32 s{sT}, s{sMB}, 17
    s_add_u32 s{sHO}, s{sM0H}, s{sT}
    s_add_u32 s{sHO}, s{sHO}, {WS_HT}
    s_lshl_b32 s{sT}, s35, 13
    s_add_u32 s{sHO}, s{sHO}, s{sT}
    """)
    p2_setup()
    p2_addr(False)
    def rd_res():
        for q in range(4): A(f"ds_read_b64_tr_b16 v[{FW+2*q}:{FW+2*q+1}], v{aRr} offset:{2048*q}")
        A("s_waitcnt lgkmcnt(0)")
        for q in range(8):
            A(f"v_lshlrev_b32 v{ACC+2*q}, 16, v{FW+q}")
            A(f"v_and_b32 v{ACC+2*q+1}, 0xffff0000, v{FW+q}")
    for b in ISSUE[-1]: issue_wd(b)
    stamp(A,1)
    if "lopoll" not in X: hpoll("k2_hp")
    A("s_barrier")
    stamp(A,2)
    issued=[]
    for st in range(HRN-1): issue_h(st); issued.append((("h",st),2))
    def after(keys):
        idx=max(i for i,(t,_) in enumerate(issued) if t in keys)
        return sum(c for _,c in issued[idx+1:])
    for j in range(17):
        if j<=LB:
            keys={('h',j),('w',j),('d',j-RL)} | ({('h',15)} if j==LB else set())
            A(f"s_waitcnt vmcnt({min(63,after(keys))}) lgkmcnt(0)")
            A("s_barrier")
        elif j==15: cnt_wait(8,4)
        else: cnt_wait(12,4)
        if j==0: stamp(A,3)
        if j+HRN-1<16: issue_h(j+HRN-1); issued.append((("h",j+HRN-1),2))
        if nw[0]<16 and nw[0]-NWS+1<=j:
            assert nw[0]>=j+2
            issue_w(A,nw[0]); issued.append((("w",nw[0]),3)); nw[0]+=1
        c=0; rl=list(READ[j])
        for b in ISSUE[j]:
            if b=="r": issue_res(); c+=2
            else: issue_wd(b); c+=1
            if rl:
                x=rl.pop(0)
                if x=="r": rd_res()
                else:
                    for r in rdw(RG+16*x,x): A(r)
        for x in rl:
            if x=="r": rd_res()
            else:
                for r in rdw(RG+16*x,x): A(r)
        if c: issued.append((("d",j),c))
    stamp(A,4)
    A.label("k2_p2")
    A("s_waitcnt vmcnt(0)")
    cnt_add(0)
    cnt_wait(0,4)
    stamp(A,5)
    cnt_wait(4,4)
    stamp(A,6)
    p2_loop(0,NA,False)
    dump(A,2,8,sW,4)
    A("s_endpgm")
    A.label("k2_lo")
    A(f"""
    s_cmp_eq_u32 s{sCB}, 15
    s_cbranch_scc1 k2_stats_lo
    """)
    p2_addr(True)
    sWT=18; sWF=19
    aH=2; aWc=4; cT=11; CSF=208; FA=30; FB=50; CAC=70; vS=166; vSt=170
    A(f"""
    s_setprio 1
    s_and_b32 s{sWT}, s{sW}, 1
    s_lshr_b32 s{sWF}, s{sW}, 1
    v_bfe_u32 v{cT}, v{vL}, 2, 2
    v_lshrrev_b32 v{cT+1}, 5, v{vL}
    v_lshl_add_u32 v{cT+1}, v{cT+1}, 3, v{cT}
    v_and_b32 v{cT+2}, 3, v{vL}
    v_bfe_u32 v{cT+3}, v{vL}, 4, 1
    v_lshlrev_b32 v{cT+4}, 8, v{cT+1}
    v_lshl_add_u32 v{cT+4}, v{cT+3}, 5, v{cT+4}
    v_lshl_add_u32 v{cT+4}, v{cT+2}, 3, v{cT+4}
    v_add_u32 v{cT+4}, {HR}, v{cT+4}
    s_lshl_b32 s{sT}, s{sWT}, 1
    v_xor_b32 v{cT+5}, s{sT}, v{cT}
    v_lshl_add_u32 v{aH}, v{cT+5}, 6, v{cT+4}
    v_xor_b32 v{cT+5}, 1, v{cT+5}
    v_lshl_add_u32 v{aH+1}, v{cT+5}, 6, v{cT+4}
    v_mul_u32_u24 v{aWc}, 192, v{cT+1}
    v_mul_u32_u24 v{cT+4}, {W_U}, v{cT+3}
    v_add_u32 v{aWc}, v{aWc}, v{cT+4}
    v_and_b32 v{cT+4}, 1, v{vL}
    v_lshl_add_u32 v{aWc}, v{cT+4}, 4, v{aWc}
    v_bfe_u32 v{cT+4}, v{vL}, 1, 1
    v_lshl_add_u32 v{aWc}, v{cT+4}, 3, v{aWc}
    s_lshl_b32 s{sT}, s{sWF}, 5
    v_add_u32 v{aWc+2}, s{sT}, v{aWc}
    v_add_u32 v{aWc}, s{sT}, v{aWc+2}
    v_add_u32 v{aWc+1}, {5*WSLOT}, v{aWc}
    v_add_u32 v{aWc+3}, {5*WSLOT}, v{aWc+2}
    v_and_b32 v{cT+4}, 1, v{cT}
    v_lshl_add_u32 v{cT+4}, v{cT+4}, 3, v{cT+2}
    v_lshrrev_b32 v{cT+5}, 1, v{cT}
    v_lshl_add_u32 v{cT+4}, v{cT+5}, 2, v{cT+4}
    v_mul_u32_u24 v{cT+5}, 1376, v{cT+3}
    v_add_u32 v{cT+4}, v{cT+4}, v{cT+5}
    v_and_b32 v{cT+5}, 32, v{vL}
    v_lshrrev_b32 v{cT+1}, 1, v{cT+5}
    v_lshl_add_u32 v{cT+4}, v{cT+4}, 5, v{cT+1}
    """)
    A(f"""
    s_mul_i32 s54, s{sCB}, 6
    s_add_u32 s54, s54, s{sWF}
    s_add_u32 s52, s54, s{sWF}
    s_add_u32 s53, s52, 1
    s_add_u32 s54, s54, 4
    """)
    for rt in range(3):
        A(f"""
        s_min_u32 s{20+rt}, s{52+rt}, 85
        s_lshl_b32 s{20+rt}, s{20+rt}, 9
        s_add_u32 s{20+rt}, s{20+rt}, {WS_CS}
        """)
    A(f"""
    s_lshl_b32 s{sT}, s{sMB}, 10
    s_lshl_b32 s{sT2}, s{sWT}, 9
    s_add_u32 s{sT}, s{sT}, s{sT2}
    s_add_u32 s{sT}, s{sT}, {WS_ST3}
    v_and_b32 v{cT}, 31, v{vL}
    v_lshl_add_u32 v{vSt}, v{cT}, 3, s{sT}
    v_mul_u32_u24 v{cT+1}, {43*1024}, v{cT+3}
    v_lshl_add_u32 v{cT+1}, v{cT+5}, 3, v{cT+1}
    v_and_b32 v{cT}, 15, v{vL}
    v_lshl_add_u32 v{cT+1}, v{cT}, 4, v{cT+1}
    s_lshl_b32 s{sT}, s{sMB}, 1
    s_add_u32 s{sT}, s{sT}, s{sWT}
    s_mul_i32 s{sJ}, s{sT}, {4*43*1024}
    s_add_u32 s{sJ}, s{sJ}, {WS_HM}
    v_mov_b32 v{vS}, 0
    """)
    for rt in range(3):
        A(f"buffer_load_dwordx4 v[{CSF+4*rt}:{CSF+4*rt+3}], v{cT+4}, {SR}, s{20+rt} offen")
    A(f"""
    s_cmp_lg_u32 s{sW}, 3
    s_cbranch_scc1 k2_now
    global_load_dword v{vS+1}, v{vS}, s[26:27]
    """)
    A.label("k2_now")
    if "lopoll" in X: hpoll("k2_hp")
    def rd(F,st,ks):
        sl=st%NWS; g=sl//5; so=(sl%5)*WSLOT; ho=(st%HRN)*8192
        def w(rt,e): return f"ds_read_b64_tr_b16 v[{F+8+4*rt+2*e}:{F+8+4*rt+2*e+1}], v{aWc+g+(2 if rt==2 else 0)} offset:{so+(16*ks+4*e)*192+(128 if rt==2 else 32*rt)}"
        def h(ct,e): return f"ds_read_b64_tr_b16 v[{F+4*ct+2*e}:{F+4*ct+2*e+1}], v{aH+ct} offset:{ho+(16*ks+4*e)*256}"
        return [w(0,0),w(0,1),h(0,0),h(0,1),h(1,0),h(1,1),w(1,0),w(1,1),w(2,0),w(2,1)]
    first=[True]*6
    def mm(F):
        out=[]
        for rt in range(3):
            for ct in range(2):
                a=CAC+16*(2*rt+ct)
                c="0" if first[2*rt+ct] else f"v[{a}:{a+15}]"
                first[2*rt+ct]=False
                out.append(f"v_mfma_f32_32x32x16_bf16 v[{a}:{a+15}], v[{F+8+4*rt}:{F+8+4*rt+3}], v[{F+4*ct}:{F+4*ct+3}], {c}")
        return out
    need_before=[4,6,8,8,10,10]
    def phase(ms,rs,prev_pending):
        issued=0; per=[2,2,2,2,2,0]; lastw=None
        for i,m in enumerate(ms):
            if prev_pending:
                n=(10-need_before[i])+issued
                if lastw is None or need_before[i]>lastw:
                    A(f"s_waitcnt lgkmcnt({min(n,15)})"); lastw=need_before[i]
            A(m)
            for _ in range(per[i]):
                if issued<len(rs): A(rs[issued]); issued+=1
    def ldst():
        A(f"global_load_dwordx2 {bc(vS)}, v{vSt}, s[30:31] sc0 sc1")
        A(f"global_load_dwordx2 {bc(vS+2)}, v{vSt}, s[30:31] offset:256 sc0 sc1")
    def ldcs(sc):
        for rt in range(3):
            A(f"buffer_load_dwordx4 v[{CSF+4*rt}:{CSF+4*rt+3}], v{cT+4}, {SR}, s{20+rt} offen{sc}")
    BF=172; K1=180; K3=184; K2=188; XX=192
    def stat_fix():
        A(f"s_mov_b32 s{sSP}, 0")
        A.label("k2_stchk")
        A("s_waitcnt vmcnt(0)")
        tg=[vS+1,vS+3]+[CSF+4*rt+o for rt in range(3) for o in (1,3)]
        for i,r in enumerate(tg): A(f"v_xor_b32 v{XX+i}, s{sTAG}, v{r}")
        A(f"""
        v_or3_b32 v{XX}, v{XX}, v{XX+1}, v{XX+2}
        v_or3_b32 v{XX+3}, v{XX+3}, v{XX+4}, v{XX+5}
        v_or3_b32 v{XX}, v{XX}, v{XX+6}, v{XX+7}
        v_or_b32 v{XX}, v{XX}, v{XX+3}
        v_cmp_ne_u32 vcc, 0, v{XX}
        s_cbranch_vccnz k2_stretry
        """)
        A.label("k2_stok")
        for rt in range(3):
            A(f"v_mov_b32 v{CSF+4*rt+1}, 0"); A(f"v_mov_b32 v{CSF+4*rt+3}, 0")
        for ct in range(2):
            A(f"""
            v_and_b32 v{BF+4*ct+1}, 0xffff, v{vS+2*ct}
            v_xor_b32 v{BF+4*ct+1}, 0x8000, v{BF+4*ct+1}
            v_lshl_or_b32 v{BF+4*ct}, v{BF+4*ct+1}, 16, v{BF+4*ct+1}
            v_mov_b32 v{BF+4*ct+3}, 0
            v_mov_b32 v{BF+4*ct+2}, v{BF+4*ct}
            """)
        B=Asm()
        for ct in range(2):
            x=XX+4*ct
            B(f"""
            v_and_b32 v{x+1}, 0xffff0000, v{vS+2*ct}
            v_rcp_f32 v{x+2}, v{x+1}
            v_mul_f32 v{K2+2*ct}, v{x+1}, v{x+1}
            v_mul_f32 v{K1+2*ct}, {f32(GC1)}, v{x+2}
            v_mul_f32 v{x+3}, v{x+2}, v{x+2}
            v_mul_f32 v{x+3}, v{x+3}, v{x+2}
            v_mul_f32 v{K3+2*ct}, {f32(GC2)}, v{x+3}
            """)
        bl=[l.strip() for l in B.l]; i=0
        for rt in range(3):
            for ct in range(2):
                a=CAC+16*(2*rt+ct)
                A(f"v_mfma_f32_32x32x16_bf16 v[{a}:{a+15}], v[{CSF+4*rt}:{CSF+4*rt+3}], v[{BF+4*ct}:{BF+4*ct+3}], v[{a}:{a+15}]")
                for l in bl[i*3:(i+1)*3]: A(l)
                i+=1
    if 'prof' not in X: stamp(A,1)
    A("s_barrier")
    for j in range(16):
        if j<=LB: A("s_barrier")
        else: cnt_add(8)
        if "prof" in X and j in (0,3,6,9,12,14): stamp(A,{0:1,3:3,6:4,9:5,12:6,14:7}[j])
        if j==0:
            for r in rd(FA,0,0): A(r)
        else:
            phase(mm(FB),rd(FA,j,0),False)
        if j==12: ldst()
        phase(mm(FA),rd(FB,j,1),True)
        if j==14: stat_fix()
        A("s_waitcnt lgkmcnt(0)")
    stamp(A,2)
    ms=mm(FB)
    A(ms[0])
    cnt_add(12)
    for m in ms[1:]: A(m)
    if 'prof' not in X: stamp(A,3)
    T=FA
    for rt in range(3):
        A(f"""
        s_cmp_ge_u32 s{52+rt}, 86
        s_cbranch_scc1 {"k2_sig" if 2*rt>=CUE else "k2_sig0"}
        s_lshl_b32 s{sT}, s{52+rt}, 9
        s_add_u32 s{sT}, s{sT}, s{sJ}
        s_add_u32 s{sT2}, s{sT}, {2*43*1024}
        """)
        a0=CAC+32*rt; a1=a0+16; t0=T; t1=T+8
        def st1(a,t,ct):
            return [f"v_pk_mul_f32 {bc(t+r)}, {bc(a+r)}, {bc(a+r)}" for r in (0,2,4,6)]+\
                   [f"v_pk_fma_f32 {bc(t+r)}, {bc(t+r)}, {bc(K3+2*ct)}, {bc(K1+2*ct)} op_sel_hi:[1,0,0]" for r in (0,2,4,6)]+\
                   [f"v_pk_mul_f32 {bc(t+r)}, {bc(t+r)}, {bc(a+r)}" for r in (0,2,4,6)]
        def ex(t): return [f"v_exp_f32 v{t+r}, v{t+r}" for r in range(8)]
        def gu(a): return [f"v_pk_mul_f32 {bc(a+r)}, {bc(a+r)}, {bc(a+8+r)}" for r in (0,2,4,6)]
        def dn(t,ct): return [f"v_pk_fma_f32 {bc(t+r)}, {bc(t+r)}, {bc(K2+2*ct)}, {bc(K2+2*ct)} op_sel_hi:[1,0,0]" for r in (0,2,4,6)]
        def rc(t): return [f"v_rcp_f32 v{t+r}, v{t+r}" for r in range(8)]
        def fin(a,t): return [f"v_pk_mul_f32 {bc(a+r)}, {bc(a+r)}, {bc(t+r)}" for r in (0,2,4,6)]+[f"v_cvt_pk_bf16_f32 v{a+8+r}, v{a+2*r}, v{a+2*r+1}" for r in range(4)]
        def mix(tr,ot):
            for i in range(max(len(tr),len(ot))):
                if i<len(tr): A(tr[i])
                if i<len(ot): A(ot[i])
        for l in st1(a0,t0,0): A(l)
        s1=st1(a1,t1,1)
        mix(ex(t0),s1[:8])
        for l in s1[8:]: A(l)
        mix(ex(t1),dn(t0,0)+gu(a0))
        mix(rc(t0),dn(t1,1)+gu(a1))
        mix(rc(t1),fin(a0,t0))
        for ct in range(2):
            a=CAC+16*(2*rt+ct)
            if ct==1:
                for l in fin(a1,t1): A(l)
            A(f"buffer_store_dwordx4 v[{a+8}:{a+11}], v{cT+1}, {SR}, s{sT if ct==0 else sT2} offen sc0 sc1")
            if 2*rt+ct+1==CUE:
                cnt_add(4)
                A(f"""
                s_lshl_b32 s45, s{sW}, 4
                s_add_u32 s45, s45, s{sCB}
                s_cmp_lg_u32 s45, 13
                s_cbranch_scc1 k2_nog
                s_lshl_b32 s45, s{sMB}, 7
                s_add_u32 s45, s45, {WS_FLAG+4096}
                v_mov_b32 v{vS}, s45
                v_mov_b32 v{vS+1}, s{sTAG}
                s_mov_b64 exec, 1
                global_store_dword v{vS}, v{vS+1}, s[30:31] sc0 sc1
                s_mov_b64 exec, -1
                """)
                A.label("k2_nog")
    A.label("k2_sig")
    if 'prof' not in X: stamp(A,4)
    A("s_setprio 0")
    A.label("k2_p2b")
    cnt_wait(0,4)
    if 'prof' not in X: stamp(A,5)
    for b in range(NPRE):
        for r in rdw(RG+16*b,NA+b): A(r)
    A("s_waitcnt lgkmcnt(0)")
    if 'prof' not in X: stamp(A,6)
    p2_loop(NA,43-NA,True)
    dump(A,2,8,sW)
    A("s_endpgm")
    A.label("k2_sig0")
    cnt_add(4)
    cnt_wait(4,4)
    A("s_branch k2_sig")
    for lr,lc,lo,ld in stubs:
        A.label(lr)
        A(f"""
        s_add_u32 s{sSP}, s{sSP}, 1
        s_cmp_ge_u32 s{sSP}, {SPIN}
        s_cbranch_scc1 {lo}
        """)
        for l in ld: A(l)
        A("s_waitcnt vmcnt(0)")
        A(f"s_branch {lc}")
    A.label("k2_stretry")
    A(f"""
    s_add_u32 s{sSP}, s{sSP}, 1
    s_cmp_ge_u32 s{sSP}, {SPIN}
    s_cbranch_scc1 k2_stok
    """)
    ldst(); ldcs(" sc0 sc1")
    A("s_branch k2_stchk")
    A.label("k2_stats")
    A(f"s_sub_u32 s{sW}, s{sW}, 4")
    p2_setup()
    p2_addr(False)
    for b in range(NPRE): issue_wd(b,8*WSLOT+4096*b)
    A("s_waitcnt vmcnt(0)")
    cnt_add(8)
    cnt_wait(8,4)
    for b in range(NPRE):
        for r in rdw(RG+16*b,b,8*WSLOT+4096*b): A(r)
    A("s_waitcnt lgkmcnt(0)")
    hpoll("k2_hq")
    A(f"s_add_u32 s{sW}, s{sW}, 4")
    A.label("k2_stats_lo")
    vD=196; S=228; Q=236; U=244; vA=2
    A(f"""
    s_lshl_b32 s{sT}, s{sMB}, 17
    s_lshl_b32 s{sT2}, s{sW}, 14
    s_add_u32 s{sT}, s{sT}, s{sT2}
    s_add_u32 s{sT}, s{sT}, {WS_HT}
    v_lshlrev_b32 v{vA}, 4, v{vL}
    s_barrier
    """)
    def sld(i):
        A(f"buffer_load_dwordx4 v[{vD+4*(i%8)}:{vD+4*(i%8)+3}], v{vA}, {SR}, s{sT} offen offset:{1024*(i%4)}")
        if i%4==3 and i<15: A(f"s_add_u32 s{sT}, s{sT}, 4096")
    for i in range(8): sld(i)
    for j in range(16): A(f"v_mov_b32 v{S+j}, 0")
    for i in range(16):
        A(f"s_waitcnt vmcnt({min(7,15-i)})")
        for j in range(4):
            A(f"v_lshlrev_b32 v{U+2*j}, 16, v{vD+4*(i%8)+j}")
            A(f"v_and_b32 v{U+2*j+1}, 0xffff0000, v{vD+4*(i%8)+j}")
        if i+8<16: sld(i+8)
        for j in range(4):
            A(f"v_pk_add_f32 {bc(S+2*j)}, {bc(S+2*j)}, {bc(U+2*j)}")
            A(f"v_pk_fma_f32 {bc(Q+2*j)}, {bc(U+2*j)}, {bc(U+2*j)}, {bc(Q+2*j)}")
    for j in range(8): A(f"v_permlane32_swap_b32 v{S+j}, v{Q+j}")
    for j in range(8): A(f"v_add_f32 v{S+j}, v{S+j}, v{Q+j}")
    for j in range(4): A(f"v_permlane16_swap_b32 v{S+j}, v{S+j+4}")
    A(f"""
    v_and_b32 v{vT}, 15, v{vL}
    v_lshlrev_b32 v{vT}, 5, v{vT}
    v_and_b32 v{vT+1}, 16, v{vL}
    v_add_u32 v{vT}, v{vT}, v{vT+1}
    v_and_b32 v{vT+1}, 32, v{vL}
    v_lshl_add_u32 v{vT}, v{vT+1}, 4, v{vT}
    s_lshl_b32 s{sT}, s{sW}, 10
    v_add_u32 v{vT}, s{sT}, v{vT}
    """)
    for j in range(4): A(f"v_add_f32 v{S+j}, v{S+j}, v{S+j+4}")
    A(f"""
    ds_write_b128 v{vT}, v[{S}:{S+3}]
    s_waitcnt lgkmcnt(0)
    s_barrier
    s_cmp_ge_u32 s{sW}, 4
    s_cbranch_scc1 k2_st_p2
    s_cmp_ge_u32 s{sW}, 2
    s_cbranch_scc1 k2_st_exit
    v_lshlrev_b32 v{vT}, 2, v0
    """)
    for i in range(8):
        A(f"ds_read_b32 v{vD+i}, v{vT} offset:{1024*i}")
        A(f"ds_read_b32 v{vD+8+i}, v{vT} offset:{1024*i+512}")
    A("s_waitcnt lgkmcnt(0)")
    for st in (4,2,1):
        for i in range(st):
            A(f"v_add_f32 v{vD+i}, v{vD+i}, v{vD+i+st}")
            A(f"v_add_f32 v{vD+8+i}, v{vD+8+i}, v{vD+8+i+st}")
    ln_finish(A,vD,vD+8,vD+1,512)
    A(f"""
    v_cvt_pk_bf16_f32 v{vD}, v{vD}, v{vD+8}
    v_mov_b32 v{vD+1}, s{sTAG}
    s_lshl_b32 s{sT}, s{sMB}, 10
    s_add_u32 s{sT}, s{sT}, {WS_ST3}
    v_lshl_add_u32 v{vT}, v0, 3, s{sT}
    global_store_dwordx2 v{vT}, {bc(vD)}, s[30:31] sc0 sc1
    """)
    A.label("k2_st_exit")
    A("s_barrier")
    p2_addr(True)
    A(f"""
    s_cmp_lg_u32 s{sW}, 0
    s_cbranch_scc1 k2_gd
    s_lshl_b32 s45, s{sMB}, 7
    s_add_u32 s45, s45, {WS_FLAG+4096}
    v_mov_b32 v{vF}, s45
    s_mov_b32 s{sSP}, 0
    """)
    A.label("k2_g")
    A(f"""
    global_load_dword v{vT}, v{vF}, s[30:31] sc0 sc1
    s_add_u32 s{sSP}, s{sSP}, 1
    s_cmp_ge_u32 s{sSP}, {SPIN}
    s_cbranch_scc1 k2_gd
    s_waitcnt vmcnt(0)
    v_cmp_ne_u32 vcc, s{sTAG}, v{vT}
    s_cbranch_vccnz k2_g
    """)
    A.label("k2_gd")
    cnt_add(4)
    cnt_wait(4,4)
    for i in range(1,6): stamp(A,i)
    A("s_branch k2_p2b")
    A.label("k2_st_p2")
    A("s_barrier")
    A(f"s_sub_u32 s{sW}, s{sW}, 4")
    issue_res()
    first=[b for b in range(NPRE,43) if wd_loc(b) not in (X_RES,X_RES+4096)]
    for b in first: issue_wd(b)
    p2_addr(False)
    A(f"s_waitcnt vmcnt({len(first)})")
    cnt_add(8)
    cnt_wait(8,8)
    rd_res()
    cnt_add(8)
    cnt_wait(8,12)
    for b in range(NPRE,43):
        if b not in first: issue_wd(b)
    for i in range(1,5): stamp(A,i)
    A("s_branch k2_p2")
```

```python
import sys, math, os, struct
from asmlib import *
NAME="sequential_preLN__ssm_conv_s4d__glu_gated_geglu__prompt"
WS_STATS=0x0000
WS_ST2  =0x4000
WS_ST3  =0x30000
WS_FLH  =0x34000
WS_FLAG =0x6000
WS_EPOCH=0x8000
WS_CS   =0x10000
WS_FL2  =0x80000
WS_KD   =0x40000
WS_HT   =0x100000
WS_HM   =0x400000
WS_XT   =0xA00000
WS_DBG  =0xC00000
WS_WD2  =0xA00000
WS_W1   =0x1000000
WS_WD   =0x1400000
WS_XG   =0x1600000
KD_CH=1536
LOG2E=1.4426950408889634
def split_hi_lo(x,bits=12):
    u=struct.unpack("<I",struct.pack("<f",x))[0] & (0xffffffff<<(23-bits+1)) & 0xffffffff
    hi=struct.unpack("<f",struct.pack("<I",u))[0]
    return hi, x-hi
L2E_HI,L2E_LO=split_hi_lo(LOG2E)
DBG=int(os.environ.get("DBG","0"))
X=os.environ.get("X","")
TIMER="s_memtime" if DBG==2 else "s_memrealtime"
SK_INVN=90
def kd(name,vgpr,sgpr,acc=None):
    ao=acc if acc is not None else (vgpr+3)//4*4
    return f""".p2align 6
.amdhsa_kernel {name}
  .amdhsa_next_free_vgpr {vgpr}
  .amdhsa_next_free_sgpr {sgpr}
  .amdhsa_accum_offset {ao}
  .amdhsa_group_segment_fixed_size 0
  .amdhsa_kernarg_size 112
  .amdhsa_user_sgpr_count 2
  .amdhsa_user_sgpr_kernarg_segment_ptr 1
  .amdhsa_system_sgpr_workgroup_id_x 1
  .amdhsa_float_denorm_mode_32 3
.end_amdhsa_kernel"""
_first=[True]
def stamp(A,i):
    if DBG==3:
        if _first[0]: A("s_memrealtime s[64:65]")
        _first[0]=False
        return
    if DBG: A(f"{TIMER} s[{64+2*i}:{65+2*i}]")
def dump(A,kidx,n,sW,woff=0,ws=30):
    if not DBG: return
    if DBG==3:
        if kidx==1: return
        n=1
    A("s_mov_b64 exec, 1")
    A(f"{TIMER} s[{64+2*n}:{65+2*n}]")
    A(f"s_lshl_b32 s92, s2, 4")
    A(f"s_add_u32 s92, s92, s{sW}")
    A(f"s_add_u32 s92, s92, {woff}")
    A(f"s_lshl_b32 s92, s92, 6")
    A(f"s_add_u32 s92, s92, {WS_DBG+kidx*0x40000}")
    A("v_mov_b32 v2, s92")
    A("s_waitcnt lgkmcnt(0)")
    for i in range(n+1):
        A(f"v_mov_b32 v3, s{64+2*i}")
        A(f"global_store_dword v2, v3, s[{ws}:{ws+1}] offset:{4*i}")
def head(A,name):
    A.l += [f".globl {name}", ".p2align 8", f".type {name},@function"]
    A.label(name)
def bf16round(A,dst,src):
    A(f"v_cvt_pk_bf16_f32 v{dst}, v{src}, v{src}")
    A(f"v_and_b32 v{dst}, 0xffff0000, v{dst}")
def wave_sum_dpp(A,regs_):
    for ctl in ("row_shr:1","row_shr:2","row_shr:4","row_shr:8"):
        for r in regs_:
            A(f"v_add_f32_dpp v{r}, v{r}, v{r} {ctl} row_mask:0xf bank_mask:0xf bound_ctrl:0")
    for r in regs_: A(f"v_add_f32_dpp v{r}, v{r}, v{r} row_bcast:15 row_mask:0xa bank_mask:0xf")
    for r in regs_: A(f"v_add_f32_dpp v{r}, v{r}, v{r} row_bcast:31 row_mask:0xc bank_mask:0xf")
def ln_finish(A,S,Q,T,n):
    A(f"v_mul_f32 v{S}, {f32(1.0/n)}, v{S}")
    A(f"v_mul_f32 v{T}, v{S}, v{S}")
    A(f"v_fma_f32 v{Q}, v{Q}, s{SK_INVN}, -v{T}")
    A(f"v_max_f32 v{Q}, 0, v{Q}")
    bf16round(A,Q,Q)
    A(f"v_add_f32 v{Q}, {f32(1e-5)}, v{Q}")
    bf16round(A,Q,Q)
    A(f"v_sqrt_f32 v{Q}, v{Q}")
def srd(A,d,base,off,size):
    if off:
        A(f"s_add_u32 s{d}, s{base}, {off}")
        A(f"s_addc_u32 s{d+1}, s{base+1}, 0")
    else:
        A(f"s_mov_b32 s{d}, s{base}")
        A(f"s_mov_b32 s{d+1}, s{base+1}")
    A(f"s_mov_b32 s{d+2}, {size}")
    A(f"s_mov_b32 s{d+3}, 0x20000")
def build(kernels, launches, path):
    src=open(f"cdna_kernels/{NAME}.s.ref").read().split("\n")
    hdr=[l for l in src if l.startswith(";") and "@launch" not in l and "Override launch" not in l and "grid=ceil" not in l]
    out=hdr+[f"; @launch kernel={k} grid=({g},1,1) block=({b},1,1) lds={l}" for k,g,b,l in launches]
    out+=['.amdgcn_target "amdgcn-amd-amdhsa--gfx950"',".text"]
    kds=[]
    for g in kernels:
        l,k=g(); out+=pad_hazards(l); kds.append(k)
    out+=["code_end:", "    s_endpgm"]
    out+=['.section .rodata,"a"']+kds
    open(path,"w").write("\n".join(out)+"\n")
```

```python
from common import *
from k01 import cmul, exp_bf16, cexp, row_stats
EF_PITCH=544; EF_CH=64*EF_PITCH
YP=9216
WSLOT=12320; NWS=10; W_U=6176
TB=2*EF_CH
XS=TB+2*KD_CH
SC=XS+8*1280
PB=SC+64
X_CNT=163824
UP=1152; UB=X_CNT-48-20*UP
IMG=4160; KIMG_CH=4*IMG; KIMG=UB-2*KIMG_CH
assert PB+2048+64<=KIMG and UB%16==0 and KIMG%16==0
sTAG=34; sWt=8; sWO=12; sM0W=13; sCBg=14; sMBg=15; vWo=253
ROTW='norw' not in X
BO=int(os.environ.get('BO','0'))
GL=int(os.environ.get('GL','1'))
NPL=int(os.environ.get("NPL","5"))
def issue_w(A,st):
    A(f"""
    s_add_u32 m0, s{sM0W}, {(st%NWS)*WSLOT}
    s_nop 0
    buffer_load_dwordx4 v{vWo}, s[{sWt}:{sWt+3}], s{sWO} offen lds
    buffer_load_dwordx4 v{vWo+1}, s[{sWt}:{sWt+3}], s{sWO} offen offset:1024 lds
    buffer_load_dwordx4 v{vWo+2}, s[{sWt}:{sWt+3}], s{sWO} offen offset:2048 lds
    s_add_u32 s{sWO}, s{sWO}, {32*2752}
    """)
    if st in (3,7,11) and ROTW:
        A(f"""
        s_cmp_eq_u32 s35, {15-st}
        s_cselect_b32 s3, {512*2752}, 0
        s_sub_u32 s{sWO}, s{sWO}, s3
        """)
SPIN=1<<16
WT=" sc0 sc1"
def phaseA(A,tail):
    sW=36; sCH=37; sG=38; sT=39; sT2=40; sHALF=41; sONE=42; sDT=43; sROW=46; sDS=50; sROLE=51; sSEL=52; sU=56; sSP=57; sEP=58; sEX=60
    vL=1; vT=2; vXR=4; vXS=8; vP=12; vAD=17; q5=18; hh=19
    vXG=20; vSG=28
    vX=36; vUD=44; vGA=52; vSA=53
    vW=56
    vRA=200; vRD=204; vCS=216
    A(f"""
    s_cmp_ge_u32 s2, 256
    s_cbranch_scc1 m_end
    s_load_dwordx16 s[4:19], s[0:1], 0
    s_load_dwordx2 s[30:31], s[0:1], 104
    s_load_dwordx8 s[20:27], s[0:1], 64
    """)
    stamp(A,0)
    A("s_getpc_b64 s[44:45]")
    A.label("ka_pf")
    A(f"""
    v_lshlrev_b32 v{vW}, 7, v0
    v_lshrrev_b32 v{vT}, 6, v0
    v_and_b32 v{vL}, 63, v0
    v_readfirstlane_b32 s{sW}, v{vT}
    s_lshr_b32 s{sT2}, s2, 3
    s_cmp_lg_u32 s{sW}, 0
    s_cbranch_scc1 ka_nopf
    s_mov_b32 exec_hi, 0xff
    global_load_dword v{vRA+3}, v{vW}, s[44:45] offset:512
    s_mov_b32 exec_hi, -1
    """)
    A.label("ka_nopf")
    A(f"""
    s_and_b32 s{sT}, s2, 7
    s_lshl_b32 s{sG}, s{sT}, 5
    s_add_u32 s{sG}, s{sG}, s{sT2}
    s_and_b32 s{sCH}, s{sW}, 1
    s_lshr_b32 s{sROLE}, s{sW}, 1
    s_and_b32 s{sHALF}, s{sROLE}, 1
    v_and_b32 v{q5}, 31, v{vL}
    v_lshrrev_b32 v{hh}, 5, v{vL}
    s_lshl_b32 s{sT}, s{sT}, 7
    s_lshl_b32 s{sT2}, s{sT2}, 16
    s_add_u32 s{sT}, s{sT}, s{sT2}
    s_lshl_b32 s{sT2}, s{sROLE}, 14
    s_add_u32 s{sT}, s{sT}, s{sT2}
    s_lshl_b32 s{sT2}, s{sCH}, 6
    s_add_u32 s{sT}, s{sT}, s{sT2}
    v_lshrrev_b32 v{vW}, 2, v{vL}
    v_and_b32 v{vW+1}, 3, v{vL}
    v_lshlrev_b32 v{vW+2}, 10, v{vW}
    v_lshl_add_u32 v{vW+2}, v{vW+1}, 4, v{vW+2}
    v_add_u32 v{vW+2}, s{sT}, v{vW+2}
    s_lshl_b32 s{sT}, s{sG}, 13
    v_lshl_add_u32 v{vAD}, v0, 4, s{sT}
    s_lshl_b32 s{sT}, s{sG}, 9
    v_lshl_add_u32 v{vT}, v{vL}, 3, s{sT}
    s_lshl_b32 s{sT2}, s{sG}, 2
    s_cmp_eq_u32 s{sCH}, 0
    s_waitcnt lgkmcnt(0)
    s_cselect_b64 s[62:63], s[6:7], s[8:9]
    s_cselect_b64 s[60:61], s[10:11], s[12:13]
    s_cmp_eq_u32 s{sHALF}, 0
    s_cselect_b64 s[62:63], s[62:63], s[60:61]
    s_cmp_ge_u32 s{sW}, 4
    s_cbranch_scc1 ka_nop
    global_load_dwordx2 v[{vP}:{vP+1}], v{vT}, s[62:63]
    """)
    A.label("ka_nop")
    if "fp" in X: stamp(A,5)
    A(f"""
    s_load_dword s{sEP}, s[30:31], {WS_EPOCH}
    s_load_dword s{sDT}, s[14:15], s{sT2}
    s_load_dword s{sDS}, s[16:17], s{sT2}
    global_load_dwordx4 v[{vXS}:{vXS+3}], v{vW+2}, s[4:5]
    global_load_dwordx4 v[{vXR}:{vXR+3}], v{vAD}, s[4:5]
    s_mov_b32 s{sONE}, 0x3f803f80
    s_mov_b32 s{SK_INVN}, {f32(1/512)}
    v_mov_b32 v{vW+9}, 0x9000
    global_load_dword v{vRA+2}, v{vW+9}, s[30:31]
    """)
    PA=36
    A(f"""
    s_mul_i32 s{sT}, s{sW}, 1280
    s_add_u32 s{sT}, s{sT}, {XS}
    v_mul_u32_u24 v{PA+0}, 80, v{vW}
    v_lshl_add_u32 v{PA+0}, v{vW+1}, 4, v{PA+0}
    v_add_u32 v{PA+0}, s{sT}, v{PA+0}
    v_and_b32 v{vW}, 7, v{vL}
    v_lshrrev_b32 v{vW+1}, 3, v{vL}
    v_mul_u32_u24 v{PA+1}, 160, v{vW}
    v_lshl_add_u32 v{PA+1}, v{vW+1}, 2, v{PA+1}
    v_add_u32 v{PA+1}, s{sT}, v{PA+1}
    s_and_b32 s{sT}, s2, 7
    s_lshl_b32 s{sT}, s{sT}, 19
    s_lshl_b32 s{sT2}, s{sCH}, 18
    s_add_u32 s{sT}, s{sT}, s{sT2}
    s_lshr_b32 s{sT2}, s2, 3
    s_lshl_b32 s{sT2}, s{sT2}, 9
    s_add_u32 s{sT}, s{sT}, s{sT2}
    s_lshl_b32 s{sT2}, s{sROLE}, 7
    s_add_u32 s{sT}, s{sT}, s{sT2}
    s_add_u32 s{sT}, s{sT}, {WS_XG}
    v_lshlrev_b32 v{PA+2}, 14, v{vW+1}
    v_lshl_add_u32 v{PA+2}, v{vW}, 4, v{PA+2}
    v_add_u32 v{PA+2}, s{sT}, v{PA+2}
    v_add_u32 v{PA+3}, {8*16384}, v{PA+2}
    s_lshl_b32 s{sT}, s{sG}, 6
    v_lshl_add_u32 v{PA+4}, v{vL}, 3, s{sT}
    v_lshlrev_b32 v{vSA}, 5, v0
    s_lshl_b32 s{sT}, s{sG}, 14
    s_add_u32 s{sT}, s{sT}, {WS_XG}
    v_add_u32 v{vGA}, s{sT}, v{vSA}
    s_mul_i32 s{sT}, s{sCH}, {EF_CH}
    s_lshl_b32 s{sT2}, s{sHALF}, 8
    s_add_u32 s{sT}, s{sT}, s{sT2}
    v_lshl_add_u32 v{vAD}, v{vL}, 2, s{sT}
    """)
    A(f"""
    v_mov_b32 v{vW+8}, 0
    v_mov_b32 v{vW+9}, 0
    s_and_b32 s{sT}, s{sW}, 3
    s_mul_i32 s{sT}, s{sT}, {UP}
    s_add_u32 s{sT}, s{sT}, {UB}
    v_lshl_add_u32 v{vW+10}, v{vL}, 3, s{sT}
    ds_write_b64 v{vW+10}, v[{vW+8}:{vW+9}]
    s_mov_b64 exec, 0x7f
    s_mul_i32 s{sT}, s{sW}, {IMG}
    s_add_u32 s{sT}, s{sT}, {KIMG+4096}
    v_lshl_add_u32 v{vW+10}, v{vL}, 3, s{sT}
    ds_write_b64 v{vW+10}, v[{vW+8}:{vW+9}]
    v_mov_b32 v{vW+10}, {X_CNT}
    ds_write_b64 v{vW+10}, v[{vW+8}:{vW+9}]
    ds_write_b64 v{vW+10}, v[{vW+8}:{vW+9}] offset:8
    v_mov_b32 v{vW+10}, {SC+32}
    ds_write_b32 v{vW+10}, v{vW+8}
    s_mov_b64 exec, -1
    """)
    A(f"""
    s_lshl_b32 s{sT}, s{sW}, 9
    s_add_u32 s{sT}, s{sT}, {PB}
    v_lshl_add_u32 v{vW+11}, v{vL}, 3, s{sT}
    s_lshl_b32 s{sT}, s{sCH}, 8
    s_lshl_b32 s{sT2}, s{sHALF}, 7
    s_add_u32 s{sT}, s{sT}, s{sT2}
    s_add_u32 s{sT}, s{sT}, {PB}
    v_lshl_add_u32 v{vW+12}, v{vL}, 1, s{sT}
    s_waitcnt lgkmcnt(0)
    s_mul_i32 s{sTAG}, s{sEP}, 0x9e3779b1
    s_add_u32 s{sTAG}, s{sTAG}, 0x7f4a7c15
    s_lshl_b32 s{sT}, s{sDT}, 16
    s_and_b32 s{sT2}, s{sDT}, 0xffff0000
    s_cmp_eq_u32 s{sCH}, 0
    s_cselect_b32 s{sDT}, s{sT}, s{sT2}
    v_mov_b32 v{vP+4}, s{sDT}
    v_mov_b32 v{vXG+1}, s{sTAG}
    v_mov_b32 v{vXG+3}, s{sTAG}
    v_mov_b32 v{vXG+5}, s{sTAG}
    v_mov_b32 v{vXG+7}, s{sTAG}
    """)
    if "fp" in X: stamp(A,6)
    exp_bf16(A,vP+4,vW+8)
    A(f"""
    s_cmp_ge_u32 s{sW}, 4
    s_cbranch_scc1 ka_nop2
    s_waitcnt vmcnt(3)
    ds_write_b64 v{vW+11}, v[{vP}:{vP+1}]
    """)
    A.label("ka_nop2")
    A("s_waitcnt lgkmcnt(0)")
    A("s_barrier")
    def publish(tagl):
        T=PA+5
        A(f"""
        s_waitcnt vmcnt(2)
        ds_write_b128 v{PA}, v[{vXS}:{vXS+3}]
        ds_read_b32 v{vXG}, v{PA+1}
        ds_read_b32 v{vXG+2}, v{PA+1} offset:80
        ds_read_b32 v{vXG+4}, v{PA+1} offset:32
        ds_read_b32 v{vXG+6}, v{PA+1} offset:112
        s_waitcnt vmcnt(1)
        """)
        stamp(A,1)
        B=Asm(); row_stats(B,vXR,vT,vT+1,T,sONE); bl=[l.strip() for l in B.l]
        for l in bl[:10]: A(l)
        A(f"""
        s_waitcnt lgkmcnt(0)
        global_store_dwordx4 v{PA+2}, v[{vXG}:{vXG+3}], s[30:31]{WT}
        global_store_dwordx4 v{PA+3}, v[{vXG+4}:{vXG+7}], s[30:31]{WT}
        """)
        for l in bl[10:]: A(l)
        A(f"""
        s_lshl_b32 s{sT}, s{sW}, 2
        s_add_u32 s{sT}, s{sT}, {SC}
        v_mov_b32 v{T}, s{sT}
        v_mov_b32 v{T+1}, {SC+32}
        v_mov_b32 v{T+2}, 1
        s_mov_b32 exec_lo, 0
        s_mov_b32 exec_hi, 0x80000000
        ds_write_b32 v{T}, v{vT}
        ds_add_rtn_u32 v{T+2}, v{T+1}, v{T+2}
        s_mov_b64 exec, -1
        v_lshlrev_b32 v{T}, 2, v{vL}
        v_add_u32 v{T}, {SC}, v{T}
        v_mov_b32 v{vT+1}, s{sTAG}
        s_waitcnt lgkmcnt(0)
        v_readlane_b32 s{sT}, v{T+2}, 63
        s_cmp_lg_u32 s{sT}, 7
        s_cbranch_scc1 {tagl}
        s_mov_b64 exec, 0xff
        ds_read_b32 v{vT}, v{T}
        s_waitcnt lgkmcnt(0)
        global_store_dwordx2 v{PA+4}, v[{vT}:{vT+1}], s[30:31] offset:{WS_STATS}{WT}
        s_mov_b64 exec, -1
        """)
        A.label(tagl)
        stamp(A,2)
    def warmups():
        A(f"""
        s_cmp_eq_u32 s{sCH}, 0
        s_cselect_b64 s[62:63], s[20:21], s[22:23]
        s_cselect_b64 s[60:61], s[24:25], s[44:45]
        s_cmp_eq_u32 s{sHALF}, 0
        s_cselect_b64 s[62:63], s[62:63], s[60:61]
        s_mul_i32 s{sT}, s2, {43*128}
        s_lshr_b32 s{sT2}, s2, 3
        s_lshl_b32 s{sT2}, s{sT2}, 10
        s_add_u32 s{sT2}, s{sT2}, 5632
        s_mov_b32 s{sU}, {1376*1024-4}
        s_cmp_eq_u32 s{sW}, 7
        s_cselect_b32 s{sT}, s{sT2}, s{sT}
        s_cselect_b32 s{sT2}, code_end-ka_pf, s{sU}
        s_cselect_b32 exec_lo, 0xff, -1
        s_cselect_b32 exec_hi, 0, 0x7ff
        v_lshl_add_u32 v{PA+5}, v{vL}, 7, s{sT}
        v_min_u32 v{PA+5}, s{sT2}, v{PA+5}
        global_load_dword v{vRA+3}, v{PA+5}, s[62:63]
        s_mov_b64 exec, -1
        """)
    A(f"""
    ds_read_u16 v{vP}, v{vW+12}
    ds_read_u16 v{vP+1}, v{vW+12} offset:512
    ds_read_u16 v{vP+2}, v{vW+12} offset:1024
    ds_read_u16 v{vP+3}, v{vW+12} offset:1536
    s_waitcnt lgkmcnt(0)
    """)
    zr=vP; zi=vP+1
    pk=[vW+20,vW+21,vW+22,vW+23]; pkc=[0]
    def put(reg,row):
        p=pk[pkc[0]%4]; pkc[0]+=1
        A(f"v_cvt_pk_bf16_f32 v{p}, v{reg}, v{reg+1}")
        A(f"ds_write_b32 v{vAD}, v{p} offset:{row*EF_PITCH}")
    w1=vW; w2=vW+2; w4=vW+4; w8=vW+6; wB=vW+8; q=vW+10; e=vW+12; e2=vW+14; t=vW+16; t2=vW+18; t3=vW+24; e3=vW+26
    A(f"""
    v_lshlrev_b32 v{vP}, 16, v{vP}
    v_lshlrev_b32 v{vP+1}, 16, v{vP+1}
    """)
    exp_bf16(A,vP,vW+28)
    A(f"""
    v_mul_f32 v{zi}, v{zi}, v{vP+4}
    v_mul_f32 v{zr}, v{zr}, v{vP+4}
    v_mul_f32 v{zr}, {f32(-LOG2E)}, v{zr}
    s_cmp_ge_u32 s{sW}, 4
    s_cbranch_scc1 ka_frole
    v_mul_f32 v{zi}, {f32(-1/(2*math.pi))}, v{zi}
    """)
    def gload(sc,part=3):
        if part&1: A(f"""
        global_load_dwordx4 v[{vXG}:{vXG+3}], v{vGA}, s[30:31]{sc}
        global_load_dwordx4 v[{vXG+4}:{vXG+7}], v{vGA}, s[30:31] offset:16{sc}
        """)
        if part&2: A(f"""
        global_load_dwordx4 v[{vSG}:{vSG+3}], v{vSA}, s[30:31] offset:{WS_STATS}{sc}
        global_load_dwordx4 v[{vSG+4}:{vSG+7}], v{vSA}, s[30:31] offset:{WS_STATS+16}{sc}
        """)
    cexp(A,w1,zr,zi,1,t); cexp(A,wB,zr,zi,256,t2)
    publish("ka_pe")
    A(f"""
    v_lshlrev_b32 v{vP+2}, 16, v{vP+2}
    v_lshlrev_b32 v{vP+3}, 16, v{vP+3}
    v_mul_f32 v{e}, v{vP+2}, v{vP+4}
    v_mul_f32 v{e+1}, v{vP+3}, v{vP+4}
    v_add_f32 v{e}, v{e}, v{e}
    v_mul_f32 v{e+1}, -2.0, v{e+1}
    """)
    cmul(A,w2,w1,w1,t); cmul(A,q,e,wB,t2); put(e,0)
    cmul(A,w4,w2,w2,t3)
    seqB=[("put",q,8),("mul",e2,q,w2),("mul",q,q,wB),("put",e2,9),("mul",e2,e2,w2),("put",q,12),("mul",e3,q,w4),("put",e2,10),("mul",e2,e2,w2),
          ("mul",q,q,wB),("put",e3,13),("put",e2,11),("put",q,14),("mul",e3,q,w4),("mul",q,q,wB),("put",e3,15),("put",q,16),("mul",q,q,wB),("put",q,20),
          ("mul",q,q,wB),("put",q,24),("mul",q,q,wB),("put",q,28),("mul",q,q,wB),("put",q,17)]
    seqA=[]
    for a in range(1,8): seqA+=[("mul",e,e,w1),("put",e,a)]
    ia=0; tt=[t2,t3]; tc=0
    for i,s in enumerate(seqB):
        if s[0]=="put": put(s[1],s[2])
        else: cmul(A,s[1],s[2],s[3],tt[tc%2]); tc+=1
        if (i<10 and i%3==0) or i>=15:
            x=seqA[ia]; ia+=1
            if x[0]=="put": put(x[1],x[2])
            else: cmul(A,x[1],x[2],x[3],t)
    aA=vW; aB=vW+1; r16=vW+2; g4=vW+3; acc=vW+4; oA=vW+12; oB=vW+13; oC=vW+14; fr=vW+32
    A(f"""
    v_and_b32 v{r16}, 15, v{vL}
    v_lshrrev_b32 v{g4}, 4, v{vL}
    s_mul_i32 s{sT}, s{sCH}, {EF_CH}
    v_mul_u32_u24 v{aA}, {EF_PITCH}, v{r16}
    v_lshl_add_u32 v{aA}, v{g4}, 4, v{aA}
    v_add_u32 v{aA}, s{sT}, v{aA}
    s_mul_i32 s{sT2}, s{sHALF}, {16*EF_PITCH}
    v_add_u32 v{aB}, s{sT2}, v{aA}
    s_lshl_b32 s{sT}, s{sHALF}, 4
    v_add_u32 v{r16}, s{sT}, v{r16}
    v_lshlrev_b32 v{oA}, 4, v{r16}
    v_lshl_add_u32 v{oA}, v{g4}, 3, v{oA}
    v_lshlrev_b32 v{oB}, 3, v{r16}
    v_add_u32 v{oB}, 512, v{oB}
    v_cmp_eq_u32 vcc, 2, v{g4}
    v_cndmask_b32 v{oA}, v{oA}, v{oB}, vcc
    v_lshlrev_b32 v{oB}, 2, v{r16}
    v_add_u32 v{oB}, 768, v{oB}
    v_cmp_eq_u32 vcc, 3, v{g4}
    v_cndmask_b32 v{oA}, v{oA}, v{oB}, vcc
    v_mov_b32 v{oB}, 4
    v_mov_b32 v{oC}, 128
    v_cndmask_b32 v{oB}, v{oB}, v{oC}, vcc
    s_mul_i32 s{sT}, s{sCH}, {KD_CH}
    s_add_u32 s{sT}, s{sT}, {TB}
    v_add_u32 v{oA}, s{sT}, v{oA}
    v_add_u32 v{oB}, v{oA}, v{oB}
    v_lshlrev_b32 v{oC}, 1, v{r16}
    v_lshl_add_u32 v{oC}, v{g4}, 6, v{oC}
    v_add_u32 v{oC}, s{sT}, v{oC}
    s_waitcnt lgkmcnt(0)
    s_barrier
    """)
    stamp(A,3)
    def rd(s):
        b=fr+12*s
        A(f"ds_read_b128 v[{b}:{b+3}], v{aB} offset:{32*EF_PITCH+64*s}")
        A(f"ds_read_b128 v[{b+4}:{b+7}], v{aA} offset:{64*s}")
        A(f"ds_read_b128 v[{b+8}:{b+11}], v{aA} offset:{16*EF_PITCH+64*s}")
    for s in range(4): rd(s)
    for s in range(8):
        b=fr+12*s
        n = 9 if s<=4 else 3*(7-s)
        A(f"s_waitcnt lgkmcnt({n})")
        c0="0" if s==0 else f"v[{acc}:{acc+3}]"; c1="0" if s==0 else f"v[{acc+4}:{acc+7}]"
        A(f"v_mfma_f32_16x16x32_bf16 v[{acc}:{acc+3}], v[{b+4}:{b+7}], v[{b}:{b+3}], {c0}")
        A(f"v_mfma_f32_16x16x32_bf16 v[{acc+4}:{acc+7}], v[{b+8}:{b+11}], v[{b}:{b+3}], {c1}")
        if s+4<8: rd(s+4)
    A(f"""
    v_cvt_pk_bf16_f32 v{acc}, v{acc}, v{acc+1}
    v_cvt_pk_bf16_f32 v{acc+1}, v{acc+2}, v{acc+3}
    v_cvt_pk_bf16_f32 v{acc+4}, v{acc+4}, v{acc+5}
    ds_write_b32 v{oA}, v{acc}
    ds_write_b32 v{oB}, v{acc+1}
    ds_write_b16 v{oC}, v{acc+4} offset:1024
    ds_write_b16_d16_hi v{oC}, v{acc+4} offset:1280
    """)
    if GL==0: gload("")
    if GL==2: gload("",1)
    A(f"s_mov_b32 s{sU}, 1000")
    A("s_branch ka_tab")
    A.label("ka_frole")
    A(f"v_mul_f32 v{zi}, {f32(1/(2*math.pi))}, v{zi}")
    cexp(A,w8,zr,zi,8,t)
    A(f"v_mov_b32 v{pk[3]}, 0x3f80")
    A(f"ds_write_b32 v{vAD}, v{pk[3]} offset:{32*EF_PITCH}")
    cmul(A,w2,w8,w8,t); put(w8,33)
    FPUB=int(os.environ.get("FPUB","3"))
    so=w8; se=w2; put(w2,34)
    eo=[e,e3]; ee=[e2,q]
    def pm(d,a_,b_): A(f"v_pk_mul_f32 v[{d}:{d+1}], v[{a_}:{a_+1}], v[{b_}:{b_+1}] op_sel:[0,0] op_sel_hi:[0,1]")
    def pf(d,a_,b_,t_): A(f"v_pk_fma_f32 v[{d}:{d+1}], v[{a_}:{a_+1}], v[{b_}:{b_+1}], v[{t_}:{t_+1}] op_sel:[1,1,0] op_sel_hi:[1,0,1] neg_lo:[1,0,0]")
    pend=[]
    for i,c in enumerate(range(3,32,2)):
        do=eo[i&1]; de=ee[i&1]
        pm(t,so,w2)
        if c+1<32: pm(t2,se,w2)
        if pend: put(*pend.pop(0))
        pf(do,so,w2,t)
        if c+1<32: pf(de,se,w2,t2)
        if pend: put(*pend.pop(0))
        pend=[(do,32+c)]+([(de,33+c)] if c+1<32 else [])
        so=do; se=de
        if c==FPUB:
            publish("ka_pf2")
            if "wuearly" in X: warmups()
            else:
                A(f"s_cmp_lg_u32 s{sW}, 7"); A("s_cbranch_scc1 ka_nw7")
                warmups()
                A.label("ka_nw7")
    for p_ in pend: put(*p_)
    A("s_waitcnt lgkmcnt(0)")
    A("s_barrier")
    stamp(A,3)
    if GL==0: gload("")
    if GL==2: gload("",1)
    vCA=vRD
    A.label("ka_tab")
    vK=vW+32; vK2=vW+36; wa=vW+4; wa2=vW+5; pr=vW+8
    A(f"""
    s_cmp_eq_u32 s{sROLE}, 0
    s_cselect_b32 s{sSEL}, 4, 1
    s_cselect_b32 s{sSEL+1}, 3, 6
    s_cselect_b32 s{sSEL+2}, 0, 768
    s_cmp_eq_u32 s{sROLE}, 1
    s_cselect_b32 s{sSEL}, 2, s{sSEL}
    s_cselect_b32 s{sSEL+1}, 7, s{sSEL+1}
    s_cselect_b32 s{sSEL+3}, 0, 128
    s_mul_i32 s{sSEL+3}, s{sSEL+3}, s{sROLE}
    s_add_u32 s{sSEL+2}, s{sSEL+2}, s{sSEL+3}
    v_lshlrev_b32 v{vW+2}, s{sSEL}, v{q5}
    v_and_b32 v{vW+2}, -4, v{vW+2}
    v_lshlrev_b32 v{vW+3}, s{sSEL+1}, v{hh}
    v_add_u32 v{vW+2}, v{vW+2}, v{vW+3}
    s_mul_i32 s{sT}, s{sCH}, {KD_CH}
    s_add_u32 s{sT}, s{sT}, {TB}
    s_add_u32 s{sSEL+2}, s{sSEL+2}, s{sT}
    v_add_u32 v{vW+2}, s{sSEL+2}, v{vW+2}
    v_lshlrev_b32 v{vW+3}, 3, v{q5}
    v_lshl_add_u32 v{vW+3}, v{hh}, 2, v{vW+3}
    v_add_u32 v{vW+3}, s{sT}, v{vW+3}
    s_mul_i32 s{sT}, s{sCH}, {KIMG_CH}
    s_add_u32 s{sT}, s{sT}, {KIMG}
    v_lshlrev_b32 v{vW+7}, 4, v{q5}
    v_sub_u32 v{vW+7}, s{sT}, v{vW+7}
    v_lshlrev_b32 v{vW+6}, 3, v{hh}
    v_sub_u32 v{vW}, v{vW+7}, v{vW+6}
    v_lshlrev_b32 v{vW+6}, 9, v{hh}
    v_sub_u32 v{vW+1}, v{vW+7}, v{vW+6}
    s_mov_b32 s{sSEL}, 0x05040100
    s_mov_b32 s{sSEL+1}, 0x05040302
    s_mov_b32 s{sSEL+2}, 0x07060100
    s_mov_b32 s{sSEL+3}, 0x07060302
    s_waitcnt lgkmcnt(0)
    s_barrier
    ds_read2_b32 v[{vK}:{vK+1}], v{vW+2} offset0:0 offset1:1
    ds_read2_b32 v[{vK+2}:{vK+3}], v{vW+2} offset0:2 offset1:3
    ds_read2_b32 v[{vK2}:{vK2+1}], v{vW+3} offset0:128 offset1:129
    """)
    wa=vW; wa2=vW+1
    if GL==1: gload("")
    if GL==2: gload("",2)
    stamp(A,4)
    A(f"""
    s_cmp_ge_u32 s{sROLE}, 2
    s_cbranch_scc1 ka_r23
    s_cmp_eq_u32 s{sROLE}, 1
    s_cbranch_scc1 ka_r1
    """)
    npair=[0]
    def pairop(d,lo,hi): A(f"v_perm_b32 v{d}, v{hi[0]}, v{lo[0]}, s{sSEL+lo[1]+2*hi[1]}")
    def wwin(addr,k,rho,bbase):
        lam=rho+3; iota=lam&3; b=bbase+(lam>>2)
        p=pr+2*(npair[0]%8); npair[0]+=1
        pairop(p,k[rho+3],k[rho+2]); pairop(p+1,k[rho+1],k[rho])
        A(f"ds_write_b64 v{addr}, v[{p}:{p+1}] offset:{iota*IMG+8*(511-b)}")
    A(f"""
    v_cmp_eq_u32 vcc, 63, v{vL}
    v_mov_b32 v{vW+7}, 0
    s_waitcnt lgkmcnt(0)
    v_lshrrev_b32 v{vW+2}, 16, v{vK+2}
    v_perm_b32 v{vW+3}, v{vK+2}, v{vK+2}, s{sSEL}
    v_perm_b32 v{vW+6}, v{vK2+1}, v{vK2+1}, s{sSEL}
    v_cndmask_b32 v{vK+3}, v{vK+3}, v{vW+2}, vcc
    v_cndmask_b32 v{vK+2}, v{vK+2}, v{vW+3}, vcc
    v_cndmask_b32 v{vK2+1}, v{vK2+1}, v{vW+6}, vcc
    """)
    k=[(vK+i//2,i&1) for i in range(8)]
    for rho in range(4): wwin(wa,k,rho,0)
    v=[(vK2+i//2,i&1) for i in range(4)]
    k1=[v[0],v[0],v[1],v[2],v[2],v[2],v[3]]
    for rho in range(4): wwin(wa,k1,rho,64)
    A("s_mov_b64 exec, 1")
    z=(vW+7,0); kz=[z,z,z,k[0],k[1],k[2]]
    for rho in range(3):
        p=pr+2*(npair[0]%8); npair[0]+=1
        pairop(p,kz[rho+3],kz[rho+2]); pairop(p+1,kz[rho+1],kz[rho])
        A(f"ds_write_b64 v{wa}, v[{p}:{p+1}] offset:{rho*IMG+8*511}")
    A("s_mov_b64 exec, -1")
    A("s_branch ka_norm")
    A.label("ka_r1")
    A("s_waitcnt lgkmcnt(0)")
    v=[(vK+i//2,i&1) for i in range(3)]
    k=[v[i] for i in (0,0,0,1,1,1,2,2,2,2,2)]
    for rho in range(8): wwin(wa2,k,rho,128)
    A("s_branch ka_norm")
    A.label("ka_r23")
    if "wuearly" not in X: warmups()
    A(f"""
    s_lshl_b32 s{sT}, s{sHALF}, 10
    v_subrev_u32 v{wa2}, s{sT}, v{wa2}
    v_and_b32 v{vW+6}, 1, v{vL}
    v_lshlrev_b32 v{vW+6}, 4, v{vW+6}
    s_waitcnt lgkmcnt(0)
    v_alignbit_b32 v{vK}, v{vK+1}, v{vK}, v{vW+6}
    v_lshrrev_b32 v{vK+1}, v{vW+6}, v{vK}
    """)
    k=[(vK,0)]*4+[(vK+1,0)]+[(vK,1)]*6
    for rho in range(8): wwin(wa2,k,rho,256)
    A.label("ka_norm")
    m=vW; s_=vW+1; u0=vW+24; u1=vW+28; pu=vW+32; a0=vW+2; a1=vW+3
    aK=vW+36; aU=vW+40; aE=vW+37; aH=vW+44; p16=vW+38; g4=vW+39
    A(f"""
    v_lshrrev_b32 v{vW+6}, 5, v0
    v_mul_u32_u24 v{vW+6}, {UP}, v{vW+6}
    v_lshl_add_u32 v{vW+6}, v{q5}, 3, v{vW+6}
    v_add_u32 v{vW+6}, {UB+4*UP}, v{vW+6}
    v_and_b32 v{p16}, 15, v{vL}
    v_lshrrev_b32 v{g4}, 4, v{vL}
    v_and_b32 v{aK}, 3, v{vL}
    v_mul_u32_u24 v{aE}, {IMG}, v{aK}
    v_lshl_add_u32 v{aE}, v{g4}, 4, v{aE}
    v_lshrrev_b32 v{s_}, 2, v{p16}
    v_lshlrev_b32 v{m}, 3, v{s_}
    v_sub_u32 v{aE}, v{aE}, v{m}
    v_lshl_add_u32 v{m}, v{aK}, 1, v{g4}
    s_mul_i32 s{sT}, s{sCH}, {KIMG_CH}
    s_add_u32 s{sT}, s{sT}, {KIMG+4088-2*(16+480+1536)}
    v_add_u32 v{aK}, s{sT}, v{aE}
    s_lshl_b32 s{sT}, s{sHALF}, 3
    s_add_u32 s{sT}, s{sT}, 14
    v_lshl_add_u32 v{m}, v{s_}, 4, v{m}
    v_add_u32 v{m}, s{sT}, v{m}
    s_lshl_b32 s{sT}, s{sCH}, 8
    s_add_u32 s{sT}, s{sT}, {UB}
    """)
    for ph in range(4):
        A(f"""
        v_subrev_u32 v{a0}, {4*ph}, v{m}
        v_lshrrev_b32 v{a1}, 4, v{a0}
        v_mul_u32_u24 v{a1}, {UP-256}, v{a1}
        v_lshl_add_u32 v{a1}, v{a0}, 4, v{a1}
        v_add_u32 v{aU+ph}, s{sT}, v{a1}
        """)
    A(f"s_mov_b32 s{sSP}, 0")
    if "fp" not in X: stamp(A,5)
    if "wuearly" not in X:
        A(f"""
        s_cmp_ge_u32 s{sW}, 4
        s_waitcnt vmcnt(1)
        s_cbranch_scc1 ka_chk2
        """)
    A.label("ka_chk")
    A("s_waitcnt vmcnt(0)")
    A.label("ka_chk2")
    A(f"""
    v_xor_b32 v{a0}, v{vXG+1}, v{vXG+3}
    v_xor_b32 v{a1}, v{vXG+5}, v{vXG+7}
    v_xor_b32 v{m}, s{sTAG}, v{vXG+1}
    v_or3_b32 v{a0}, v{a0}, v{a1}, v{m}
    v_xor_b32 v{a1}, s{sTAG}, v{vXG+5}
    v_xor_b32 v{m}, s{sTAG}, v{vSG+1}
    v_or3_b32 v{a0}, v{a0}, v{a1}, v{m}
    v_xor_b32 v{a1}, s{sTAG}, v{vSG+3}
    v_xor_b32 v{m}, s{sTAG}, v{vSG+5}
    v_or3_b32 v{a0}, v{a0}, v{a1}, v{m}
    v_xor_b32 v{a1}, s{sTAG}, v{vSG+7}
    v_or_b32 v{a0}, v{a0}, v{a1}
    v_cmp_ne_u32 vcc, 0, v{a0}
    s_cbranch_vccnz ka_retry
    """)
    A.label("ka_ok")
    if "fp" not in X: stamp(A,6)
    xt=vX
    for j in range(4):
        st=vSG+2*j; xc=vXG+2*j
        A(f"""
        v_and_b32 v{s_}, 0xffff0000, v{st}
        v_rcp_f32 v{s_}, v{s_}
        v_lshlrev_b32 v{a0}, 16, v{xc}
        v_and_b32 v{a1}, 0xffff0000, v{xc}
        v_lshlrev_b32 v{m}, 16, v{st}
        v_sub_f32 v{a0}, v{a0}, v{m}
        v_sub_f32 v{a1}, v{a1}, v{m}
        v_cvt_pk_bf16_f32 v{a0}, v{a0}, v{a1}
        v_and_b32 v{a1}, 0xffff0000, v{a0}
        v_lshlrev_b32 v{a0}, 16, v{a0}
        v_mul_f32 v{u0+j}, v{a0}, v{s_}
        v_mul_f32 v{u1+j}, v{a1}, v{s_}
        """)
    A(f"""
    v_cvt_pk_bf16_f32 v{pu}, v{u0}, v{u0+1}
    v_cvt_pk_bf16_f32 v{pu+1}, v{u0+2}, v{u0+3}
    v_cvt_pk_bf16_f32 v{pu+2}, v{u1}, v{u1+1}
    v_cvt_pk_bf16_f32 v{pu+3}, v{u1+2}, v{u1+3}
    ds_write_b64 v{vW+6}, v[{pu}:{pu+1}]
    ds_write_b64 v{vW+6}, v[{pu+2}:{pu+3}] offset:256
    v_perm_b32 v{xt}, v{vXG+2}, v{vXG}, s{sSEL}
    v_perm_b32 v{xt+1}, v{vXG+6}, v{vXG+4}, s{sSEL}
    v_perm_b32 v{xt+2}, v{vXG+2}, v{vXG}, s{sSEL+3}
    v_perm_b32 v{xt+3}, v{vXG+6}, v{vXG+4}, s{sSEL+3}
    ds_write_b64 v{vW+6}, v[{xt}:{xt+1}] offset:512
    ds_write_b64 v{vW+6}, v[{xt+2}:{xt+3}] offset:768
    s_cmp_ge_u32 s{sW}, 4
    s_waitcnt lgkmcnt(0)
    s_barrier
    s_cbranch_scc1 ka_aux
    """)
    stamp(A,7)
    acc=vW+48; fr=vW+64; EU=vW+128; EX=vW+136; UD=vW+144; XF=vW+160
    def loads(s):
        b=fr+32*(s%2)
        def Ak(k): ko=2*(480+1536-32*s-512*k); return [f"ds_read_b64 v[{b+4*k}:{b+4*k+1}], v{aK} offset:{ko}",f"ds_read_b64 v[{b+4*k+2}:{b+4*k+3}], v{aK} offset:{ko+8}"]
        def Bj(j): return [f"ds_read_b128 v[{b+16+4*j}:{b+19+4*j}], v{aU+(s&3)} offset:{UP*(3-(s>>2)+4*j)}"]
        return Ak(0)+Bj(0)+Bj(1)+Ak(1)+Bj(2)+Ak(2)+Bj(3)+Ak(3)
    order=[(0,0,3),(1,0,4),(1,1,6),(2,0,7),(2,1,7),(2,2,9),(3,0,10),(3,1,10),(3,2,10),(3,3,12)]
    for l in loads(0): A(l)
    ex0=[f"v_lshrrev_b32 v{m}, 2, v{p16}",f"v_mul_u32_u24 v{aE}, {UP}, v{m}",f"v_and_b32 v{s_}, 3, v{vL}",f"v_lshlrev_b32 v{s_}, 5, v{s_}",
         f"v_lshl_add_u32 v{s_}, v{g4}, 3, v{s_}",f"s_lshl_b32 s{sT}, s{sHALF}, 7",f"s_lshl_b32 s{sT2}, s{sCH}, 8",f"s_add_u32 s{sT}, s{sT}, s{sT2}",
         f"v_add_u32 v{s_}, s{sT}, v{s_}",f"v_add3_u32 v{aE}, v{aE}, v{s_}, s{sONE}"]
    A(f"s_mov_b32 s{sONE}, {UB+4*UP}")
    for l in ex0: A(l)
    rdx={1:[f"ds_read_b64 v[{EU+2*c}:{EU+2*c+1}], v{aE} offset:{4*UP*c}" for c in range(4)],
         2:[f"ds_read_b64 v[{EX+2*c}:{EX+2*c+1}], v{aE} offset:{4*UP*c+512}" for c in range(4)]}
    ex=[f"v_lshl_add_u32 v{aH}, v{m}, 17, v{s_}",f"s_lshl_b32 s{sT}, s{sG}, 9",f"s_add_u32 s{sT}, s{sT}, {WS_HT}",f"v_add_u32 v{aH}, s{sT}, v{aH}"]
    ex+=[f"v_add_u32 v{aH+c}, {c*524288}, v{aH}" for c in (1,2,3)]
    ex+=[f"s_lshl_b32 s{sT}, s{sDS}, 16", f"s_and_b32 s{sT2}, s{sDS}, 0xffff0000", f"s_cmp_eq_u32 s{sCH}, 0", f"s_cselect_b32 s{sDS}, s{sT}, s{sT2}"]
    for i in range(8):
        d=UD+2*i
        ex+=[f"v_lshlrev_b32 v{d}, 16, v{EU+i}",f"v_and_b32 v{d+1}, 0xffff0000, v{EU+i}",f"v_mul_f32 v{d}, s{sDS}, v{d}",f"v_mul_f32 v{d+1}, s{sDS}, v{d+1}",
             f"v_cvt_pk_bf16_f32 v{d}, v{d}, v{d+1}",f"v_and_b32 v{d+1}, 0xffff0000, v{d}",f"v_lshlrev_b32 v{d}, 16, v{d}"]
    for i in range(8):
        ex+=[f"v_lshlrev_b32 v{XF+2*i}, 16, v{EX+i}",f"v_and_b32 v{XF+2*i+1}, 0xffff0000, v{EX+i}"]
    prevx=0
    for s in range(16):
        b=fr+32*(s%2)
        L=(loads(s+1) if s<15 else [])+rdx.get(s,[])
        iss=0; lastw=-1
        for i,(c,k,need) in enumerate(order):
            if need>lastw:
                A(f"s_waitcnt lgkmcnt({min(15,12-need+prevx+iss)})"); lastw=need
            cc="0" if (s==0 and k==0) else f"v[{acc+4*c}:{acc+4*c+3}]"
            A(f"v_mfma_f32_16x16x32_bf16 v[{acc+4*c}:{acc+4*c+3}], v[{b+4*k}:{b+4*k+3}], v[{b+16+4*(c-k)}:{b+19+4*(c-k)}], {cc}")
            n=(len(L)*(i+1))//10-(len(L)*i)//10
            for _ in range(n): A(L[iss]); iss+=1
            if s>=4 and ex and n<2: A(ex.pop(0))
        prevx=len(rdx.get(s,[]))
    for l in ex: A(l)
    stamp(A,8)
    for c in range(4):
        a=acc+4*c
        for src in (UD+4*c,XF+4*c):
            A(f"""
            v_cvt_pk_bf16_f32 v{a}, v{a}, v{a+1}
            v_cvt_pk_bf16_f32 v{a+2}, v{a+2}, v{a+3}
            v_and_b32 v{a+1}, 0xffff0000, v{a}
            v_and_b32 v{a+3}, 0xffff0000, v{a+2}
            v_lshlrev_b32 v{a}, 16, v{a}
            v_lshlrev_b32 v{a+2}, 16, v{a+2}
            v_pk_add_f32 v[{a}:{a+1}], v[{a}:{a+1}], v[{src}:{src+1}]
            v_pk_add_f32 v[{a+2}:{a+3}], v[{a+2}:{a+3}], v[{src+2}:{src+3}]
            """)
        A(f"""
        v_cvt_pk_bf16_f32 v{a}, v{a}, v{a+1}
        v_cvt_pk_bf16_f32 v{a+1}, v{a+2}, v{a+3}
        global_store_dwordx2 v{aH+c}, v[{a}:{a+1}], s[30:31]{WT}
        """)
    A(f"""
    s_lshl_b32 s{sT}, s{sG}, 2
    s_add_u32 s{sT}, s{sT}, {WS_FLH}
    v_lshl_add_u32 v{vW+2}, v{vL}, 10, s{sT}
    v_mov_b32 v{vW+3}, s{sTAG}
    s_waitcnt vmcnt(0)
    """)
    A.label("ka_fin")
    A("s_barrier")
    stamp(A,9)
    A(f"""
    s_cmp_lg_u32 s{sW}, 0
    s_cbranch_scc1 ka_nofl
    s_mov_b64 exec, 0xff
    global_store_dword v{vW+2}, v{vW+3}, s[30:31]{WT}
    """)
    A.label("ka_nofl")
    dump(A,1,10,sW)
    A("s_mov_b64 exec, -1")
    AA=A; A=tail
    A.label("ka_retry")
    A(f"""
    s_add_u32 s{sSP}, s{sSP}, 1
    s_cmp_ge_u32 s{sSP}, {SPIN}
    s_cbranch_scc1 ka_ok
    """)
    if BO: A(f"s_sleep {BO}")
    A("s_mov_b64 exec, vcc")
    gload(" sc0 sc1")
    A("s_mov_b64 exec, -1")
    A("s_branch ka_chk")
    A.label("ka_aux")
    stamp(A,7)
    ad=vW+40; S=vW+44; t=vW+52
    RD=176
    if "rp" in X.split("_"):
        A(f"""
        s_sub_u32 s{sROW}, s{sW}, 4
        s_lshl_b32 s{sROW}, s{sROW}, 8
        s_add_u32 s{sROW}, s{sROW}, s2
        s_lshl_b32 s{sT}, s{sROW}, 10
        v_lshl_add_u32 v{RD+8}, v{vL}, 4, s{sT}
        global_load_dwordx4 v[{RD}:{RD+3}], v{RD+8}, s[24:25]
        s_cmp_ge_u32 s{sROW}, {1376-1024}
        s_cbranch_scc1 ka_nod2
        v_add_u32 v{RD+8}, {1024*1024}, v{RD+8}
        global_load_dwordx4 v[{RD+4}:{RD+7}], v{RD+8}, s[24:25]
        """)
        A.label("ka_nod2")
    A(f"""
    s_sub_u32 s{sU}, s{sW}, 6
    s_lshl_b32 s{sU}, s{sU}, 8
    s_add_u32 s{sU}, s{sU}, s2
    s_cmp_ge_u32 s{sU}, 344
    s_cbranch_scc1 ka_nocs
    s_lshr_b32 s{sT}, s{sU}, 2
    s_cmp_ge_u32 s{sT}, 43
    s_cselect_b32 s62, s22, s20
    s_cselect_b32 s63, s23, s21
    s_cselect_b32 s{sT2}, 43, 0
    s_sub_u32 s{sT}, s{sT}, s{sT2}
    s_lshl_b32 s{sT}, s{sT}, 6
    s_and_b32 s{sT2}, s{sU}, 3
    s_mul_i32 s{sT2}, s{sT2}, {128*2752}
    s_add_u32 s{sT}, s{sT}, s{sT2}
    v_lshrrev_b32 v{vCA}, 2, v{vL}
    v_mul_u32_u24 v{vCA}, 2752, v{vCA}
    v_and_b32 v{vCA+1}, 3, v{vL}
    v_lshl_add_u32 v{vCA}, v{vCA+1}, 4, v{vCA}
    v_add_u32 v{vCA}, s{sT}, v{vCA}
    """)
    for i in range(8):
        A(f"global_load_dwordx4 v[{vCS+4*i}:{vCS+4*i+3}], v{vCA}, s[62:63]")
        if i<7: A(f"v_add_u32 v{vCA}, {16*2752}, v{vCA}")
    A.label("ka_nocs")
    c_=vW+56
    A(f"v_mov_b32 v{c_+5}, 0x40000000")
    for v in range(3):
        A(f"""
        v_add_u32 v{c_}, {64*v}, v{vL}
        v_mul_u32_u24 v{c_+1}, 0xaaab, v{c_}
        v_lshrrev_b32 v{c_+1}, 19, v{c_+1}
        v_mul_u32_u24 v{c_+2+v}, 12, v{c_+1}
        v_sub_u32 v{c_+2+v}, v{c_}, v{c_+2+v}
        v_mul_u32_u24 v{c_+1}, {2752-192}, v{c_+1}
        v_lshl_add_u32 v{vWo+v}, v{vL}, 4, v{c_+1}
        """)
    A(f"""
    s_and_b32 s{sT}, s2, 1
    s_lshr_b32 s{sT2}, s2, 5
    s_mul_i32 s{sCBg}, s{sT}, 7
    s_add_u32 s{sCBg}, s{sCBg}, s{sT2}
    s_add_u32 s{sT}, s{sT}, 14
    s_cmp_eq_u32 s{sT2}, 7
    s_cselect_b32 s{sCBg}, s{sT}, s{sCBg}
    s_cmp_eq_u32 s{sCBg}, 14
    s_cselect_b32 s{sT}, 4, 12
    s_cmp_eq_u32 s{sCBg}, 15
    s_cselect_b32 s{sT}, 0, s{sT}
    """)
    for v in range(3):
        A(f"""
        v_cmp_le_u32 vcc, s{sT}, v{c_+2+v}
        v_cndmask_b32 v{vWo+v}, v{vWo+v}, v{c_+5}, vcc
        """)
    A(f"""
    s_mul_i32 s{sWO}, s{sCH}, {16*2752}
    s_mul_i32 s{sT2}, s{sCBg}, 192
    s_add_u32 s{sWO}, s{sWO}, s{sT2}
    s_and_b32 s35, s2, {6 if ROTW else 0}
    s_lshl_b32 s35, s35, 1
    s_mul_i32 s{sT2}, s35, {32*2752}
    s_add_u32 s{sWO}, s{sWO}, s{sT2}
    s_mul_i32 s{sM0W}, s{sCH}, 3072
    s_mul_i32 s{sT}, s{sHALF}, {W_U}
    s_add_u32 s{sM0W}, s{sM0W}, s{sT}
    s_cmp_ge_u32 s{sW}, 6
    s_cselect_b32 s{sWt}, s22, s20
    s_cselect_b32 s{sWt+1}, s23, s21
    s_mov_b32 s{sWt+2}, {512*2752}
    s_mov_b32 s{sWt+3}, 0x20000
    """)
    def prefill():
        A(f"""
        s_mul_i32 s{sSP}, s{sCBg}, 3
        s_min_u32 s{sSP}, s{sSP}, 40
        s_and_b32 s{sT}, s2, 6
        s_lshl_b32 s{sT}, s{sT}, 1
        s_bfe_u32 s{sT2}, s2, 0x20003
        s_add_u32 s{sT}, s{sT}, s{sT2}
        s_lshl_b32 s{sT}, s{sT}, 2
        s_add_u32 s{sT}, s{sT}, s{sW}
        s_sub_u32 s{sT}, s{sT}, 4
        s_mul_i32 s{sT}, s{sT}, 86
        s_add_u32 s{sT}, s{sT}, s{sSP}
        s_lshl_b32 s{sT}, s{sT}, 10
        s_add_u32 s{sT}, s{sT}, {WS_HM}
        v_lshl_add_u32 v{c_}, v{vL}, 4, s{sT}
        v_add_u32 v{c_+1}, {43*1024}, v{c_}
        v_mov_b32 v{c_+4}, -1
        v_mov_b32 v{c_+5}, -1
        v_mov_b32 v{c_+6}, -1
        v_mov_b32 v{c_+7}, -1
        """)
        for o in (0,1024,2048):
            for r in (0,1): A(f"global_store_dwordx4 v{c_+r}, v[{c_+4}:{c_+7}], s[30:31] offset:{o}{WT}")
    prefill()
    for st in range(NPL//2): issue_w(A,st)
    A(f"""
    s_cmp_lg_u32 s{sW}, 4
    s_cbranch_scc1 ka_a3
    s_cmp_lg_u32 s2, 0
    s_cbranch_scc1 ka_a3
    s_add_u32 s{sT}, s{sEP}, 1
    v_mov_b32 v{t}, {WS_EPOCH}
    v_mov_b32 v{t+1}, s{sT}
    s_mov_b64 exec, 1
    global_store_dword v{t}, v{t+1}, s[30:31]
    """)
    A.label("ka_a3")
    A("s_mov_b64 exec, -1")
    if "rp" in X.split("_"):
        A(f"""
        s_bfe_u32 s{sT}, s{sROW}, 0x10001
        s_bfe_u32 s{sT2}, s{sROW}, 0x10003
        s_lshl_b32 s{sT2}, s{sT2}, 1
        s_or_b32 s{sT}, s{sT}, s{sT2}
        s_lshl_b32 s{sT}, s{sT}, 1
        v_and_b32 v{RD+8}, 7, v{vL}
        v_xor_b32 v{RD+8}, s{sT}, v{RD+8}
        v_lshrrev_b32 v{RD+9}, 3, v{vL}
        v_mul_u32_u24 v{RD+9}, {43*4096}, v{RD+9}
        v_lshl_add_u32 v{RD+8}, v{RD+8}, 4, v{RD+9}
        s_lshl_b32 s{sT}, s{sROW}, 7
        s_add_u32 s{sT}, s{sT}, {WS_WD2}
        v_add_u32 v{RD+8}, s{sT}, v{RD+8}
        s_waitcnt vmcnt({3*(NPL//2)+6})
        global_store_dwordx4 v{RD+8}, v[{RD}:{RD+3}], s[30:31]{WT}
        s_cmp_ge_u32 s{sROW}, {1376-1024}
        s_cbranch_scc1 ka_nod3
        v_add_u32 v{RD+8}, {1024*128}, v{RD+8}
        global_store_dwordx4 v{RD+8}, v[{RD+4}:{RD+7}], s[30:31]{WT}
        """)
        A.label("ka_nod3")
    if "dpf" in X:
        A(f"""
        s_cmp_ge_u32 s{sW}, 6
        s_cbranch_scc1 ka_nodpf
        s_lshr_b32 s{sT}, s2, 3
        s_lshl_b32 s{sT}, s{sT}, 1
        s_add_u32 s{sT}, s{sT}, s{sCH}
        s_mul_i32 s{sT}, s{sT}, {172*128}
        v_lshl_add_u32 v{c_}, v{vL}, 7, s{sT}
        global_load_dword v{vRA+3}, v{c_}, s[24:25]
        v_add_u32 v{c_}, 8192, v{c_}
        global_load_dword v{vRA+3}, v{c_}, s[24:25]
        v_add_u32 v{c_}, 8192, v{c_}
        s_mov_b32 exec_hi, 0xfff
        global_load_dword v{vRA+3}, v{c_}, s[24:25]
        s_mov_b32 exec_hi, -1
        """)
        A.label("ka_nodpf")
    A(f"""
    s_cmp_ge_u32 s{sU}, 344
    s_cbranch_scc1 ka_pfw
    s_waitcnt vmcnt({3*(NPL//2)+6+(1 if "rp" in X.split("_") else 0)})
    """)
    for i in range(8):
        for j in range(4):
            r=vCS+4*i+j
            if i==0:
                A(f"v_lshlrev_b32 v{S+2*j}, 16, v{r}")
                A(f"v_and_b32 v{S+2*j+1}, 0xffff0000, v{r}")
            else:
                A(f"v_lshlrev_b32 v{t}, 16, v{r}")
                A(f"v_and_b32 v{t+1}, 0xffff0000, v{r}")
                A(f"v_add_f32 v{S+2*j}, v{S+2*j}, v{t}")
                A(f"v_add_f32 v{S+2*j+1}, v{S+2*j+1}, v{t+1}")
    for j in range(4): A(f"v_permlane32_swap_b32 v{S+j}, v{S+j+4}")
    for j in range(4): A(f"v_add_f32 v{S+j}, v{S+j}, v{S+j+4}")
    for j in range(2): A(f"v_permlane16_swap_b32 v{S+j}, v{S+j+2}")
    for j in range(2): A(f"v_add_f32 v{S+j}, v{S+j}, v{S+j+2}")
    for ctl in ("row_ror:8","row_ror:4"):
        for j in range(2): A(f"v_add_f32_dpp v{S+j}, v{S+j}, v{S+j} {ctl} row_mask:0xf bank_mask:0xf")
    d=S+2
    A(f"""
    v_and_b32 v{t}, 4, v{vL}
    v_cmp_ne_u32 vcc, 0, v{t}
    v_cndmask_b32 v{S}, v{S}, v{S+1}, vcc
    v_cvt_pk_bf16_f32 v{S+1}, v{S}, v{S}
    v_and_b32 v{S+1}, 0xffff0000, v{S+1}
    v_sub_f32 v{S+1}, v{S}, v{S+1}
    v_cvt_pk_bf16_f32 v{d}, v{S}, v{S+1}
    v_mov_b32 v{d+1}, s{sTAG}
    v_lshlrev_b32 v{ad}, 8, v{vCA+1}
    v_lshl_add_u32 v{ad}, v{hh}, 7, v{ad}
    v_and_b32 v{t+1}, 16, v{vL}
    v_lshl_add_u32 v{ad}, v{t+1}, 2, v{ad}
    v_lshl_add_u32 v{ad}, v{t}, 3, v{ad}
    s_lshr_b32 s{sT}, s{sU}, 2
    s_lshl_b32 s{sT}, s{sT}, 10
    s_and_b32 s{sT2}, s{sU}, 3
    s_lshl_b32 s{sT2}, s{sT2}, 3
    s_add_u32 s{sT}, s{sT}, s{sT2}
    s_add_u32 s{sT}, s{sT}, {WS_CS}
    v_add_u32 v{ad}, s{sT}, v{ad}
    s_mov_b32 exec_lo, 0x00ff00ff
    s_mov_b32 exec_hi, 0x00ff00ff
    global_store_dwordx2 v{ad}, v[{d}:{d+1}], s[30:31]{WT}
    s_mov_b64 exec, -1
    """)
    A.label("ka_pfw")
    for st in range(NPL//2,NPL): issue_w(A,st)
    A(f"s_waitcnt vmcnt({3*NPL if 'rp' not in X.split('_') else 3*(NPL-NPL//2)})")
    stamp(A,8)
    A("s_branch ka_fin")
```

```python
from common import *
from k01 import cmul, exp_bf16, cexp, row_stats
EF_PITCH=544; EF_CH=64*EF_PITCH
YP=9216
WSLOT=12320; NWS=10; W_U=6176
TB=2*EF_CH
XS=TB+2*KD_CH
SC=XS+8*1280
PB=SC+64
X_CNT=163824
UP=1152; UB=X_CNT-48-20*UP
IMG=4160; KIMG_CH=4*IMG; KIMG=UB-2*KIMG_CH
assert PB+2048+64<=KIMG and UB%16==0 and KIMG%16==0
sTAG=34; sWt=8; sWO=12; sM0W=13; sCBg=14; sMBg=15; vWo=253
ROTW='norw' not in X
BO=int(os.environ.get('BO','0'))
GL=int(os.environ.get('GL','1'))
NPL=int(os.environ.get("NPL","5"))
def issue_w(A,st):
    A(f"""
    s_add_u32 m0, s{sM0W}, {(st%NWS)*WSLOT}
    s_nop 0
    buffer_load_dwordx4 v{vWo}, s[{sWt}:{sWt+3}], s{sWO} offen lds
    buffer_load_dwordx4 v{vWo+1}, s[{sWt}:{sWt+3}], s{sWO} offen offset:1024 lds
    buffer_load_dwordx4 v{vWo+2}, s[{sWt}:{sWt+3}], s{sWO} offen offset:2048 lds
    s_add_u32 s{sWO}, s{sWO}, {32*2752}
    """)
    if st in (3,7,11) and ROTW:
        A(f"""
        s_cmp_eq_u32 s35, {15-st}
        s_cselect_b32 s3, {512*2752}, 0
        s_sub_u32 s{sWO}, s{sWO}, s3
        """)
SPIN=1<<16
WT=" sc0 sc1"
def phaseA(A,tail):
    sW=36; sCH=37; sG=38; sT=39; sT2=40; sHALF=41; sONE=42; sDT=43; sROW=46; sDS=50; sROLE=51; sSEL=52; sU=56; sSP=57; sEP=58; sEX=60
    vL=1; vT=2; vXR=4; vXS=8; vP=12; vAD=17; q5=18; hh=19
    vXG=20; vSG=28
    vX=36; vUD=44; vGA=52; vSA=53
    vW=56
    vRA=200; vRD=204; vCS=216
    A(f"""
    s_cmp_ge_u32 s2, 256
    s_cbranch_scc1 m_end
    s_load_dwordx16 s[4:19], s[0:1], 0
    s_load_dwordx2 s[30:31], s[0:1], 104
    s_load_dwordx8 s[20:27], s[0:1], 64
    """)
    stamp(A,0)
    A("s_getpc_b64 s[44:45]")
    A.label("ka_pf")
    A(f"""
    v_lshlrev_b32 v{vW}, 7, v0
    v_lshrrev_b32 v{vT}, 6, v0
    v_and_b32 v{vL}, 63, v0
    v_readfirstlane_b32 s{sW}, v{vT}
    s_lshr_b32 s{sT2}, s2, 3
    s_cmp_lg_u32 s{sW}, 0
    s_cbranch_scc1 ka_nopf
    s_mov_b32 exec_hi, 0xff
    global_load_dword v{vRA+3}, v{vW}, s[44:45] offset:512
    s_mov_b32 exec_hi, -1
    """)
    A.label("ka_nopf")
    A(f"""
    s_and_b32 s{sT}, s2, 7
    s_lshl_b32 s{sG}, s{sT}, 5
    s_add_u32 s{sG}, s{sG}, s{sT2}
    s_and_b32 s{sCH}, s{sW}, 1
    s_lshr_b32 s{sROLE}, s{sW}, 1
    s_and_b32 s{sHALF}, s{sROLE}, 1
    v_and_b32 v{q5}, 31, v{vL}
    v_lshrrev_b32 v{hh}, 5, v{vL}
    s_lshl_b32 s{sT}, s{sT}, 7
    s_lshl_b32 s{sT2}, s{sT2}, 16
    s_add_u32 s{sT}, s{sT}, s{sT2}
    s_lshl_b32 s{sT2}, s{sROLE}, 14
    s_add_u32 s{sT}, s{sT}, s{sT2}
    s_lshl_b32 s{sT2}, s{sCH}, 6
    s_add_u32 s{sT}, s{sT}, s{sT2}
    v_lshrrev_b32 v{vW}, 2, v{vL}
    v_and_b32 v{vW+1}, 3, v{vL}
    v_lshlrev_b32 v{vW+2}, 10, v{vW}
    v_lshl_add_u32 v{vW+2}, v{vW+1}, 4, v{vW+2}
    v_add_u32 v{vW+2}, s{sT}, v{vW+2}
    s_lshl_b32 s{sT}, s{sG}, 13
    v_lshl_add_u32 v{vAD}, v0, 4, s{sT}
    s_lshl_b32 s{sT}, s{sG}, 9
    v_lshl_add_u32 v{vT}, v{vL}, 3, s{sT}
    s_lshl_b32 s{sT2}, s{sG}, 2
    s_cmp_eq_u32 s{sCH}, 0
    s_waitcnt lgkmcnt(0)
    s_cselect_b64 s[62:63], s[6:7], s[8:9]
    s_cselect_b64 s[60:61], s[10:11], s[12:13]
    s_cmp_eq_u32 s{sHALF}, 0
    s_cselect_b64 s[62:63], s[62:63], s[60:61]
    s_cmp_ge_u32 s{sW}, 4
    s_cbranch_scc1 ka_nop
    global_load_dwordx2 v[{vP}:{vP+1}], v{vT}, s[62:63]
    """)
    A.label("ka_nop")
    if "fp" in X: stamp(A,5)
    A(f"""
    s_load_dword s{sEP}, s[30:31], {WS_EPOCH}
    s_load_dword s{sDT}, s[14:15], s{sT2}
    s_load_dword s{sDS}, s[16:17], s{sT2}
    global_load_dwordx4 v[{vXS}:{vXS+3}], v{vW+2}, s[4:5]
    global_load_dwordx4 v[{vXR}:{vXR+3}], v{vAD}, s[4:5]
    s_mov_b32 s{sONE}, 0x3f803f80
    s_mov_b32 s{SK_INVN}, {f32(1/512)}
    v_mov_b32 v{vW+9}, 0x9000
    global_load_dword v{vRA+2}, v{vW+9}, s[30:31]
    """)
    PA=36
    A(f"""
    s_mul_i32 s{sT}, s{sW}, 1280
    s_add_u32 s{sT}, s{sT}, {XS}
    v_mul_u32_u24 v{PA+0}, 80, v{vW}
    v_lshl_add_u32 v{PA+0}, v{vW+1}, 4, v{PA+0}
    v_add_u32 v{PA+0}, s{sT}, v{PA+0}
    v_and_b32 v{vW}, 7, v{vL}
    v_lshrrev_b32 v{vW+1}, 3, v{vL}
    v_mul_u32_u24 v{PA+1}, 160, v{vW}
    v_lshl_add_u32 v{PA+1}, v{vW+1}, 2, v{PA+1}
    v_add_u32 v{PA+1}, s{sT}, v{PA+1}
    s_and_b32 s{sT}, s2, 7
    s_lshl_b32 s{sT}, s{sT}, 19
    s_lshl_b32 s{sT2}, s{sCH}, 18
    s_add_u32 s{sT}, s{sT}, s{sT2}
    s_lshr_b32 s{sT2}, s2, 3
    s_lshl_b32 s{sT2}, s{sT2}, 9
    s_add_u32 s{sT}, s{sT}, s{sT2}
    s_lshl_b32 s{sT2}, s{sROLE}, 7
    s_add_u32 s{sT}, s{sT}, s{sT2}
    s_add_u32 s{sT}, s{sT}, {WS_XG}
    v_lshlrev_b32 v{PA+2}, 14, v{vW+1}
    v_lshl_add_u32 v{PA+2}, v{vW}, 4, v{PA+2}
    v_add_u32 v{PA+2}, s{sT}, v{PA+2}
    v_add_u32 v{PA+3}, {8*16384}, v{PA+2}
    s_lshl_b32 s{sT}, s{sG}, 6
    v_lshl_add_u32 v{PA+4}, v{vL}, 3, s{sT}
    v_lshlrev_b32 v{vSA}, 5, v0
    s_lshl_b32 s{sT}, s{sG}, 14
    s_add_u32 s{sT}, s{sT}, {WS_XG}
    v_add_u32 v{vGA}, s{sT}, v{vSA}
    s_mul_i32 s{sT}, s{sCH}, {EF_CH}
    s_lshl_b32 s{sT2}, s{sHALF}, 8
    s_add_u32 s{sT}, s{sT}, s{sT2}
    v_lshl_add_u32 v{vAD}, v{vL}, 2, s{sT}
    """)
    A(f"""
    v_mov_b32 v{vW+8}, 0
    v_mov_b32 v{vW+9}, 0
    s_and_b32 s{sT}, s{sW}, 3
    s_mul_i32 s{sT}, s{sT}, {UP}
    s_add_u32 s{sT}, s{sT}, {UB}
    v_lshl_add_u32 v{vW+10}, v{vL}, 3, s{sT}
    ds_write_b64 v{vW+10}, v[{vW+8}:{vW+9}]
    s_mov_b64 exec, 0x7f
    s_mul_i32 s{sT}, s{sW}, {IMG}
    s_add_u32 s{sT}, s{sT}, {KIMG+4096}
    v_lshl_add_u32 v{vW+10}, v{vL}, 3, s{sT}
    ds_write_b64 v{vW+10}, v[{vW+8}:{vW+9}]
    v_mov_b32 v{vW+10}, {X_CNT}
    ds_write_b64 v{vW+10}, v[{vW+8}:{vW+9}]
    ds_write_b64 v{vW+10}, v[{vW+8}:{vW+9}] offset:8
    v_mov_b32 v{vW+10}, {SC+32}
    ds_write_b32 v{vW+10}, v{vW+8}
    s_mov_b64 exec, -1
    """)
    A(f"""
    s_lshl_b32 s{sT}, s{sW}, 9
    s_add_u32 s{sT}, s{sT}, {PB}
    v_lshl_add_u32 v{vW+11}, v{vL}, 3, s{sT}
    s_lshl_b32 s{sT}, s{sCH}, 8
    s_lshl_b32 s{sT2}, s{sHALF}, 7
    s_add_u32 s{sT}, s{sT}, s{sT2}
    s_add_u32 s{sT}, s{sT}, {PB}
    v_lshl_add_u32 v{vW+12}, v{vL}, 1, s{sT}
    s_waitcnt lgkmcnt(0)
    s_mul_i32 s{sTAG}, s{sEP}, 0x9e3779b1
    s_add_u32 s{sTAG}, s{sTAG}, 0x7f4a7c15
    s_lshl_b32 s{sT}, s{sDT}, 16
    s_and_b32 s{sT2}, s{sDT}, 0xffff0000
    s_cmp_eq_u32 s{sCH}, 0
    s_cselect_b32 s{sDT}, s{sT}, s{sT2}
    v_mov_b32 v{vP+4}, s{sDT}
    v_mov_b32 v{vXG+1}, s{sTAG}
    v_mov_b32 v{vXG+3}, s{sTAG}
    v_mov_b32 v{vXG+5}, s{sTAG}
    v_mov_b32 v{vXG+7}, s{sTAG}
    """)
    if "fp" in X: stamp(A,6)
    exp_bf16(A,vP+4,vW+8)
    A(f"""
    s_cmp_ge_u32 s{sW}, 4
    s_cbranch_scc1 ka_nop2
    s_waitcnt vmcnt(3)
    ds_write_b64 v{vW+11}, v[{vP}:{vP+1}]
    """)
    A.label("ka_nop2")
    A("s_waitcnt lgkmcnt(0)")
    A("s_barrier")
    def publish(tagl):
        T=PA+5
        A(f"""
        s_waitcnt vmcnt(2)
        ds_write_b128 v{PA}, v[{vXS}:{vXS+3}]
        ds_read_b32 v{vXG}, v{PA+1}
        ds_read_b32 v{vXG+2}, v{PA+1} offset:80
        ds_read_b32 v{vXG+4}, v{PA+1} offset:32
        ds_read_b32 v{vXG+6}, v{PA+1} offset:112
        s_waitcnt vmcnt(1)
        """)
        stamp(A,1)
        B=Asm(); row_stats(B,vXR,vT,vT+1,T,sONE); bl=[l.strip() for l in B.l]
        for l in bl[:10]: A(l)
        A(f"""
        s_waitcnt lgkmcnt(0)
        global_store_dwordx4 v{PA+2}, v[{vXG}:{vXG+3}], s[30:31]{WT}
        global_store_dwordx4 v{PA+3}, v[{vXG+4}:{vXG+7}], s[30:31]{WT}
        """)
        for l in bl[10:]: A(l)
        A(f"""
        s_lshl_b32 s{sT}, s{sW}, 2
        s_add_u32 s{sT}, s{sT}, {SC}
        v_mov_b32 v{T}, s{sT}
        v_mov_b32 v{T+1}, {SC+32}
        v_mov_b32 v{T+2}, 1
        s_mov_b32 exec_lo, 0
        s_mov_b32 exec_hi, 0x80000000
        ds_write_b32 v{T}, v{vT}
        ds_add_rtn_u32 v{T+2}, v{T+1}, v{T+2}
        s_mov_b64 exec, -1
        v_lshlrev_b32 v{T}, 2, v{vL}
        v_add_u32 v{T}, {SC}, v{T}
        v_mov_b32 v{vT+1}, s{sTAG}
        s_waitcnt lgkmcnt(0)
        v_readlane_b32 s{sT}, v{T+2}, 63
        s_cmp_lg_u32 s{sT}, 7
        s_cbranch_scc1 {tagl}
        s_mov_b64 exec, 0xff
        ds_read_b32 v{vT}, v{T}
        s_waitcnt lgkmcnt(0)
        global_store_dwordx2 v{PA+4}, v[{vT}:{vT+1}], s[30:31] offset:{WS_STATS}{WT}
        s_mov_b64 exec, -1
        """)
        if "wulast" in X:
            A(f"""
            s_mul_i32 s{sT}, s2, {43*128}
            v_lshl_add_u32 v{T}, v{vL}, 7, s{sT}
            s_mov_b32 exec_hi, 0x7ff
            global_load_dword v{vRA+3}, v{T}, s[20:21]
            global_load_dword v{vRA+3}, v{T}, s[22:23]
            global_load_dword v{vRA+3}, v{T}, s[24:25]
            s_mov_b32 exec_hi, -1
            """)
        A.label(tagl)
        stamp(A,2)
    def warmups():
        A(f"""
        s_cmp_eq_u32 s{sCH}, 0
        s_cselect_b64 s[62:63], s[20:21], s[22:23]
        s_cselect_b64 s[60:61], s[24:25], s[44:45]
        s_cmp_eq_u32 s{sHALF}, 0
        s_cselect_b64 s[62:63], s[62:63], s[60:61]
        s_mul_i32 s{sT}, s2, {43*128}
        s_lshr_b32 s{sT2}, s2, 3
        s_lshl_b32 s{sT2}, s{sT2}, 10
        s_add_u32 s{sT2}, s{sT2}, 5632
        s_mov_b32 s{sU}, {1376*1024-4}
        s_cmp_eq_u32 s{sW}, 7
        s_cselect_b32 s{sT}, s{sT2}, s{sT}
        s_cselect_b32 s{sT2}, code_end-ka_pf, s{sU}
        s_cselect_b32 exec_lo, 0xff, -1
        s_cselect_b32 exec_hi, 0, 0x7ff
        v_lshl_add_u32 v{PA+5}, v{vL}, 7, s{sT}
        v_min_u32 v{PA+5}, s{sT2}, v{PA+5}
        global_load_dword v{vRA+3}, v{PA+5}, s[62:63]
        s_mov_b64 exec, -1
        """)
    A(f"""
    ds_read_u16 v{vP}, v{vW+12}
    ds_read_u16 v{vP+1}, v{vW+12} offset:512
    ds_read_u16 v{vP+2}, v{vW+12} offset:1024
    ds_read_u16 v{vP+3}, v{vW+12} offset:1536
    s_waitcnt lgkmcnt(0)
    """)
    zr=vP; zi=vP+1
    pk=[vW+20,vW+21,vW+22,vW+23]; pkc=[0]
    def put(reg,row):
        p=pk[pkc[0]%4]; pkc[0]+=1
        A(f"v_cvt_pk_bf16_f32 v{p}, v{reg}, v{reg+1}")
        A(f"ds_write_b32 v{vAD}, v{p} offset:{row*EF_PITCH}")
    w1=vW; w2=vW+2; w4=vW+4; w8=vW+6; wB=vW+8; q=vW+10; e=vW+12; e2=vW+14; t=vW+16; t2=vW+18; t3=vW+24; e3=vW+26
    A(f"""
    v_lshlrev_b32 v{vP}, 16, v{vP}
    v_lshlrev_b32 v{vP+1}, 16, v{vP+1}
    """)
    exp_bf16(A,vP,vW+28)
    A(f"""
    v_mul_f32 v{zi}, v{zi}, v{vP+4}
    v_mul_f32 v{zr}, v{zr}, v{vP+4}
    v_mul_f32 v{zr}, {f32(-LOG2E)}, v{zr}
    s_cmp_ge_u32 s{sW}, 4
    s_cbranch_scc1 ka_frole
    v_mul_f32 v{zi}, {f32(-1/(2*math.pi))}, v{zi}
    """)
    def gload(sc,part=3):
        if part&1: A(f"""
        global_load_dwordx4 v[{vXG}:{vXG+3}], v{vGA}, s[30:31]{sc}
        global_load_dwordx4 v[{vXG+4}:{vXG+7}], v{vGA}, s[30:31] offset:16{sc}
        """)
        if part&2: A(f"""
        global_load_dwordx4 v[{vSG}:{vSG+3}], v{vSA}, s[30:31] offset:{WS_STATS}{sc}
        global_load_dwordx4 v[{vSG+4}:{vSG+7}], v{vSA}, s[30:31] offset:{WS_STATS+16}{sc}
        """)
    cexp(A,w1,zr,zi,1,t); cexp(A,wB,zr,zi,256,t2)
    publish("ka_pe")
    A(f"""
    v_lshlrev_b32 v{vP+2}, 16, v{vP+2}
    v_lshlrev_b32 v{vP+3}, 16, v{vP+3}
    v_mul_f32 v{e}, v{vP+2}, v{vP+4}
    v_mul_f32 v{e+1}, v{vP+3}, v{vP+4}
    v_add_f32 v{e}, v{e}, v{e}
    v_mul_f32 v{e+1}, -2.0, v{e+1}
    """)
    cmul(A,w2,w1,w1,t); cmul(A,q,e,wB,t2); put(e,0)
    cmul(A,w4,w2,w2,t3)
    seqB=[("put",q,8),("mul",e2,q,w2),("mul",q,q,wB),("put",e2,9),("mul",e2,e2,w2),("put",q,12),("mul",e3,q,w4),("put",e2,10),("mul",e2,e2,w2),
          ("mul",q,q,wB),("put",e3,13),("put",e2,11),("put",q,14),("mul",e3,q,w4),("mul",q,q,wB),("put",e3,15),("put",q,16),("mul",q,q,wB),("put",q,20),
          ("mul",q,q,wB),("put",q,24),("mul",q,q,wB),("put",q,28),("mul",q,q,wB),("put",q,17)]
    seqA=[]
    for a in range(1,8): seqA+=[("mul",e,e,w1),("put",e,a)]
    ia=0; tt=[t2,t3]; tc=0
    for i,s in enumerate(seqB):
        if s[0]=="put": put(s[1],s[2])
        else: cmul(A,s[1],s[2],s[3],tt[tc%2]); tc+=1
        if (i<10 and i%3==0) or i>=15:
            x=seqA[ia]; ia+=1
            if x[0]=="put": put(x[1],x[2])
            else: cmul(A,x[1],x[2],x[3],t)
    aA=vW; aB=vW+1; r16=vW+2; g4=vW+3; acc=vW+4; oA=vW+12; oB=vW+13; oC=vW+14; fr=vW+32
    A(f"""
    v_and_b32 v{r16}, 15, v{vL}
    v_lshrrev_b32 v{g4}, 4, v{vL}
    s_mul_i32 s{sT}, s{sCH}, {EF_CH}
    v_mul_u32_u24 v{aA}, {EF_PITCH}, v{r16}
    v_lshl_add_u32 v{aA}, v{g4}, 4, v{aA}
    v_add_u32 v{aA}, s{sT}, v{aA}
    s_mul_i32 s{sT2}, s{sHALF}, {16*EF_PITCH}
    v_add_u32 v{aB}, s{sT2}, v{aA}
    s_lshl_b32 s{sT}, s{sHALF}, 4
    v_add_u32 v{r16}, s{sT}, v{r16}
    v_lshlrev_b32 v{oA}, 4, v{r16}
    v_lshl_add_u32 v{oA}, v{g4}, 3, v{oA}
    v_lshlrev_b32 v{oB}, 3, v{r16}
    v_add_u32 v{oB}, 512, v{oB}
    v_cmp_eq_u32 vcc, 2, v{g4}
    v_cndmask_b32 v{oA}, v{oA}, v{oB}, vcc
    v_lshlrev_b32 v{oB}, 2, v{r16}
    v_add_u32 v{oB}, 768, v{oB}
    v_cmp_eq_u32 vcc, 3, v{g4}
    v_cndmask_b32 v{oA}, v{oA}, v{oB}, vcc
    v_mov_b32 v{oB}, 4
    v_mov_b32 v{oC}, 128
    v_cndmask_b32 v{oB}, v{oB}, v{oC}, vcc
    s_mul_i32 s{sT}, s{sCH}, {KD_CH}
    s_add_u32 s{sT}, s{sT}, {TB}
    v_add_u32 v{oA}, s{sT}, v{oA}
    v_add_u32 v{oB}, v{oA}, v{oB}
    v_lshlrev_b32 v{oC}, 1, v{r16}
    v_lshl_add_u32 v{oC}, v{g4}, 6, v{oC}
    v_add_u32 v{oC}, s{sT}, v{oC}
    s_waitcnt lgkmcnt(0)
    s_barrier
    """)
    stamp(A,3)
    def rd(s):
        b=fr+12*s
        A(f"ds_read_b128 v[{b}:{b+3}], v{aB} offset:{32*EF_PITCH+64*s}")
        A(f"ds_read_b128 v[{b+4}:{b+7}], v{aA} offset:{64*s}")
        A(f"ds_read_b128 v[{b+8}:{b+11}], v{aA} offset:{16*EF_PITCH+64*s}")
    for s in range(4): rd(s)
    for s in range(8):
        b=fr+12*s
        n = 9 if s<=4 else 3*(7-s)
        A(f"s_waitcnt lgkmcnt({n})")
        c0="0" if s==0 else f"v[{acc}:{acc+3}]"; c1="0" if s==0 else f"v[{acc+4}:{acc+7}]"
        A(f"v_mfma_f32_16x16x32_bf16 v[{acc}:{acc+3}], v[{b+4}:{b+7}], v[{b}:{b+3}], {c0}")
        A(f"v_mfma_f32_16x16x32_bf16 v[{acc+4}:{acc+7}], v[{b+8}:{b+11}], v[{b}:{b+3}], {c1}")
        if s+4<8: rd(s+4)
    A(f"""
    v_cvt_pk_bf16_f32 v{acc}, v{acc}, v{acc+1}
    v_cvt_pk_bf16_f32 v{acc+1}, v{acc+2}, v{acc+3}
    v_cvt_pk_bf16_f32 v{acc+4}, v{acc+4}, v{acc+5}
    ds_write_b32 v{oA}, v{acc}
    ds_write_b32 v{oB}, v{acc+1}
    ds_write_b16 v{oC}, v{acc+4} offset:1024
    ds_write_b16_d16_hi v{oC}, v{acc+4} offset:1280
    """)
    if GL==0: gload("")
    if GL==2: gload("",1)
    A(f"s_mov_b32 s{sU}, 1000")
    A("s_branch ka_tab")
    A.label("ka_frole")
    A(f"v_mul_f32 v{zi}, {f32(1/(2*math.pi))}, v{zi}")
    cexp(A,w8,zr,zi,8,t)
    A(f"v_mov_b32 v{pk[3]}, 0x3f80")
    A(f"ds_write_b32 v{vAD}, v{pk[3]} offset:{32*EF_PITCH}")
    cmul(A,w2,w8,w8,t); put(w8,33)
    FPUB=int(os.environ.get("FPUB","3"))
    so=w8; se=w2; put(w2,34)
    eo=[e,e3]; ee=[e2,q]
    def pm(d,a_,b_): A(f"v_pk_mul_f32 v[{d}:{d+1}], v[{a_}:{a_+1}], v[{b_}:{b_+1}] op_sel:[0,0] op_sel_hi:[0,1]")
    def pf(d,a_,b_,t_): A(f"v_pk_fma_f32 v[{d}:{d+1}], v[{a_}:{a_+1}], v[{b_}:{b_+1}], v[{t_}:{t_+1}] op_sel:[1,1,0] op_sel_hi:[1,0,1] neg_lo:[1,0,0]")
    pend=[]
    for i,c in enumerate(range(3,32,2)):
        do=eo[i&1]; de=ee[i&1]
        pm(t,so,w2)
        if c+1<32: pm(t2,se,w2)
        if pend: put(*pend.pop(0))
        pf(do,so,w2,t)
        if c+1<32: pf(de,se,w2,t2)
        if pend: put(*pend.pop(0))
        pend=[(do,32+c)]+([(de,33+c)] if c+1<32 else [])
        so=do; se=de
        if c==FPUB:
            publish("ka_pf2")
            if "wuearly" in X: warmups()
            else:
                A(f"s_cmp_lg_u32 s{sW}, 7"); A("s_cbranch_scc1 ka_nw7")
                warmups()
                A.label("ka_nw7")
    for p_ in pend: put(*p_)
    A("s_waitcnt lgkmcnt(0)")
    A("s_barrier")
    stamp(A,3)
    if GL==0: gload("")
    if GL==2: gload("",1)
    vCA=vRD
    A.label("ka_tab")
    vK=vW+32; vK2=vW+36; wa=vW+4; wa2=vW+5; pr=vW+8
    A(f"""
    s_cmp_eq_u32 s{sROLE}, 0
    s_cselect_b32 s{sSEL}, 4, 1
    s_cselect_b32 s{sSEL+1}, 3, 6
    s_cselect_b32 s{sSEL+2}, 0, 768
    s_cmp_eq_u32 s{sROLE}, 1
    s_cselect_b32 s{sSEL}, 2, s{sSEL}
    s_cselect_b32 s{sSEL+1}, 7, s{sSEL+1}
    s_cselect_b32 s{sSEL+3}, 0, 128
    s_mul_i32 s{sSEL+3}, s{sSEL+3}, s{sROLE}
    s_add_u32 s{sSEL+2}, s{sSEL+2}, s{sSEL+3}
    v_lshlrev_b32 v{vW+2}, s{sSEL}, v{q5}
    v_and_b32 v{vW+2}, -4, v{vW+2}
    v_lshlrev_b32 v{vW+3}, s{sSEL+1}, v{hh}
    v_add_u32 v{vW+2}, v{vW+2}, v{vW+3}
    s_mul_i32 s{sT}, s{sCH}, {KD_CH}
    s_add_u32 s{sT}, s{sT}, {TB}
    s_add_u32 s{sSEL+2}, s{sSEL+2}, s{sT}
    v_add_u32 v{vW+2}, s{sSEL+2}, v{vW+2}
    v_lshlrev_b32 v{vW+3}, 3, v{q5}
    v_lshl_add_u32 v{vW+3}, v{hh}, 2, v{vW+3}
    v_add_u32 v{vW+3}, s{sT}, v{vW+3}
    s_mul_i32 s{sT}, s{sCH}, {KIMG_CH}
    s_add_u32 s{sT}, s{sT}, {KIMG}
    v_lshlrev_b32 v{vW+7}, 4, v{q5}
    v_sub_u32 v{vW+7}, s{sT}, v{vW+7}
    v_lshlrev_b32 v{vW+6}, 3, v{hh}
    v_sub_u32 v{vW}, v{vW+7}, v{vW+6}
    v_lshlrev_b32 v{vW+6}, 9, v{hh}
    v_sub_u32 v{vW+1}, v{vW+7}, v{vW+6}
    s_mov_b32 s{sSEL}, 0x05040100
    s_mov_b32 s{sSEL+1}, 0x05040302
    s_mov_b32 s{sSEL+2}, 0x07060100
    s_mov_b32 s{sSEL+3}, 0x07060302
    s_waitcnt lgkmcnt(0)
    s_barrier
    ds_read2_b32 v[{vK}:{vK+1}], v{vW+2} offset0:0 offset1:1
    ds_read2_b32 v[{vK+2}:{vK+3}], v{vW+2} offset0:2 offset1:3
    ds_read2_b32 v[{vK2}:{vK2+1}], v{vW+3} offset0:128 offset1:129
    """)
    wa=vW; wa2=vW+1
    if GL==1: gload("")
    if GL==2: gload("",2)
    stamp(A,4)
    A(f"""
    s_cmp_ge_u32 s{sROLE}, 2
    s_cbranch_scc1 ka_r23
    s_cmp_eq_u32 s{sROLE}, 1
    s_cbranch_scc1 ka_r1
    """)
    npair=[0]
    def pairop(d,lo,hi): A(f"v_perm_b32 v{d}, v{hi[0]}, v{lo[0]}, s{sSEL+lo[1]+2*hi[1]}")
    def wwin(addr,k,rho,bbase):
        lam=rho+3; iota=lam&3; b=bbase+(lam>>2)
        p=pr+2*(npair[0]%8); npair[0]+=1
        pairop(p,k[rho+3],k[rho+2]); pairop(p+1,k[rho+1],k[rho])
        A(f"ds_write_b64 v{addr}, v[{p}:{p+1}] offset:{iota*IMG+8*(511-b)}")
    A(f"""
    v_cmp_eq_u32 vcc, 63, v{vL}
    v_mov_b32 v{vW+7}, 0
    s_waitcnt lgkmcnt(0)
    v_lshrrev_b32 v{vW+2}, 16, v{vK+2}
    v_perm_b32 v{vW+3}, v{vK+2}, v{vK+2}, s{sSEL}
    v_perm_b32 v{vW+6}, v{vK2+1}, v{vK2+1}, s{sSEL}
    v_cndmask_b32 v{vK+3}, v{vK+3}, v{vW+2}, vcc
    v_cndmask_b32 v{vK+2}, v{vK+2}, v{vW+3}, vcc
    v_cndmask_b32 v{vK2+1}, v{vK2+1}, v{vW+6}, vcc
    """)
    k=[(vK+i//2,i&1) for i in range(8)]
    for rho in range(4): wwin(wa,k,rho,0)
    v=[(vK2+i//2,i&1) for i in range(4)]
    k1=[v[0],v[0],v[1],v[2],v[2],v[2],v[3]]
    for rho in range(4): wwin(wa,k1,rho,64)
    A("s_mov_b64 exec, 1")
    z=(vW+7,0); kz=[z,z,z,k[0],k[1],k[2]]
    for rho in range(3):
        p=pr+2*(npair[0]%8); npair[0]+=1
        pairop(p,kz[rho+3],kz[rho+2]); pairop(p+1,kz[rho+1],kz[rho])
        A(f"ds_write_b64 v{wa}, v[{p}:{p+1}] offset:{rho*IMG+8*511}")
    A("s_mov_b64 exec, -1")
    A("s_branch ka_norm")
    A.label("ka_r1")
    A("s_waitcnt lgkmcnt(0)")
    v=[(vK+i//2,i&1) for i in range(3)]
    k=[v[i] for i in (0,0,0,1,1,1,2,2,2,2,2)]
    for rho in range(8): wwin(wa2,k,rho,128)
    A("s_branch ka_norm")
    A.label("ka_r23")
    if "wuearly" not in X and "wulast" not in X: warmups()
    A(f"""
    s_lshl_b32 s{sT}, s{sHALF}, 10
    v_subrev_u32 v{wa2}, s{sT}, v{wa2}
    v_and_b32 v{vW+6}, 1, v{vL}
    v_lshlrev_b32 v{vW+6}, 4, v{vW+6}
    s_waitcnt lgkmcnt(0)
    v_alignbit_b32 v{vK}, v{vK+1}, v{vK}, v{vW+6}
    v_lshrrev_b32 v{vK+1}, v{vW+6}, v{vK}
    """)
    k=[(vK,0)]*4+[(vK+1,0)]+[(vK,1)]*6
    for rho in range(8): wwin(wa2,k,rho,256)
    A.label("ka_norm")
    m=vW; s_=vW+1; u0=vW+24; u1=vW+28; pu=vW+32; a0=vW+2; a1=vW+3
    aK=vW+36; aU=vW+40; aE=vW+37; aH=vW+44; p16=vW+38; g4=vW+39
    A(f"""
    v_lshrrev_b32 v{vW+6}, 5, v0
    v_mul_u32_u24 v{vW+6}, {UP}, v{vW+6}
    v_lshl_add_u32 v{vW+6}, v{q5}, 3, v{vW+6}
    v_add_u32 v{vW+6}, {UB+4*UP}, v{vW+6}
    v_and_b32 v{p16}, 15, v{vL}
    v_lshrrev_b32 v{g4}, 4, v{vL}
    v_and_b32 v{aK}, 3, v{vL}
    v_mul_u32_u24 v{aE}, {IMG}, v{aK}
    v_lshl_add_u32 v{aE}, v{g4}, 4, v{aE}
    v_lshrrev_b32 v{s_}, 2, v{p16}
    v_lshlrev_b32 v{m}, 3, v{s_}
    v_sub_u32 v{aE}, v{aE}, v{m}
    v_lshl_add_u32 v{m}, v{aK}, 1, v{g4}
    s_mul_i32 s{sT}, s{sCH}, {KIMG_CH}
    s_add_u32 s{sT}, s{sT}, {KIMG+4088-2*(16+480+1536)}
    v_add_u32 v{aK}, s{sT}, v{aE}
    s_lshl_b32 s{sT}, s{sHALF}, 3
    s_add_u32 s{sT}, s{sT}, 14
    v_lshl_add_u32 v{m}, v{s_}, 4, v{m}
    v_add_u32 v{m}, s{sT}, v{m}
    s_lshl_b32 s{sT}, s{sCH}, 8
    s_add_u32 s{sT}, s{sT}, {UB}
    """)
    for ph in range(4):
        A(f"""
        v_subrev_u32 v{a0}, {4*ph}, v{m}
        v_lshrrev_b32 v{a1}, 4, v{a0}
        v_mul_u32_u24 v{a1}, {UP-256}, v{a1}
        v_lshl_add_u32 v{a1}, v{a0}, 4, v{a1}
        v_add_u32 v{aU+ph}, s{sT}, v{a1}
        """)
    A(f"s_mov_b32 s{sSP}, 0")
    if "fp" not in X: stamp(A,5)
    if "wuearly" not in X and "wulast" not in X:
        A(f"""
        s_cmp_ge_u32 s{sW}, 4
        s_waitcnt vmcnt(1)
        s_cbranch_scc1 ka_chk2
        """)
    A.label("ka_chk")
    A("s_waitcnt vmcnt(0)")
    A.label("ka_chk2")
    A(f"""
    v_xor_b32 v{a0}, v{vXG+1}, v{vXG+3}
    v_xor_b32 v{a1}, v{vXG+5}, v{vXG+7}
    v_xor_b32 v{m}, s{sTAG}, v{vXG+1}
    v_or3_b32 v{a0}, v{a0}, v{a1}, v{m}
    v_xor_b32 v{a1}, s{sTAG}, v{vXG+5}
    v_xor_b32 v{m}, s{sTAG}, v{vSG+1}
    v_or3_b32 v{a0}, v{a0}, v{a1}, v{m}
    v_xor_b32 v{a1}, s{sTAG}, v{vSG+3}
    v_xor_b32 v{m}, s{sTAG}, v{vSG+5}
    v_or3_b32 v{a0}, v{a0}, v{a1}, v{m}
    v_xor_b32 v{a1}, s{sTAG}, v{vSG+7}
    v_or_b32 v{a0}, v{a0}, v{a1}
    v_cmp_ne_u32 vcc, 0, v{a0}
    s_cbranch_vccnz ka_retry
    """)
    A.label("ka_ok")
    if "fp" not in X: stamp(A,6)
    xt=vX
    for j in range(4):
        st=vSG+2*j; xc=vXG+2*j
        A(f"""
        v_and_b32 v{s_}, 0xffff0000, v{st}
        v_rcp_f32 v{s_}, v{s_}
        v_lshlrev_b32 v{a0}, 16, v{xc}
        v_and_b32 v{a1}, 0xffff0000, v{xc}
        v_lshlrev_b32 v{m}, 16, v{st}
        v_sub_f32 v{a0}, v{a0}, v{m}
        v_sub_f32 v{a1}, v{a1}, v{m}
        v_cvt_pk_bf16_f32 v{a0}, v{a0}, v{a1}
        v_and_b32 v{a1}, 0xffff0000, v{a0}
        v_lshlrev_b32 v{a0}, 16, v{a0}
        v_mul_f32 v{u0+j}, v{a0}, v{s_}
        v_mul_f32 v{u1+j}, v{a1}, v{s_}
        """)
    A(f"""
    v_cvt_pk_bf16_f32 v{pu}, v{u0}, v{u0+1}
    v_cvt_pk_bf16_f32 v{pu+1}, v{u0+2}, v{u0+3}
    v_cvt_pk_bf16_f32 v{pu+2}, v{u1}, v{u1+1}
    v_cvt_pk_bf16_f32 v{pu+3}, v{u1+2}, v{u1+3}
    ds_write_b64 v{vW+6}, v[{pu}:{pu+1}]
    ds_write_b64 v{vW+6}, v[{pu+2}:{pu+3}] offset:256
    v_perm_b32 v{xt}, v{vXG+2}, v{vXG}, s{sSEL}
    v_perm_b32 v{xt+1}, v{vXG+6}, v{vXG+4}, s{sSEL}
    v_perm_b32 v{xt+2}, v{vXG+2}, v{vXG}, s{sSEL+3}
    v_perm_b32 v{xt+3}, v{vXG+6}, v{vXG+4}, s{sSEL+3}
    ds_write_b64 v{vW+6}, v[{xt}:{xt+1}] offset:512
    ds_write_b64 v{vW+6}, v[{xt+2}:{xt+3}] offset:768
    s_cmp_ge_u32 s{sW}, 4
    s_waitcnt lgkmcnt(0)
    s_barrier
    s_cbranch_scc1 ka_aux
    """)
    stamp(A,7)
    acc=vW+48; fr=vW+64; EU=vW+128; EX=vW+136; UD=vW+144; XF=vW+160
    def loads(s):
        b=fr+32*(s%2)
        def Ak(k): ko=2*(480+1536-32*s-512*k); return [f"ds_read_b64 v[{b+4*k}:{b+4*k+1}], v{aK} offset:{ko}",f"ds_read_b64 v[{b+4*k+2}:{b+4*k+3}], v{aK} offset:{ko+8}"]
        def Bj(j): return [f"ds_read_b128 v[{b+16+4*j}:{b+19+4*j}], v{aU+(s&3)} offset:{UP*(3-(s>>2)+4*j)}"]
        return Ak(0)+Bj(0)+Bj(1)+Ak(1)+Bj(2)+Ak(2)+Bj(3)+Ak(3)
    order=[(0,0,3),(1,0,4),(1,1,6),(2,0,7),(2,1,7),(2,2,9),(3,0,10),(3,1,10),(3,2,10),(3,3,12)]
    for l in loads(0): A(l)
    ex0=[f"v_lshrrev_b32 v{m}, 2, v{p16}",f"v_mul_u32_u24 v{aE}, {UP}, v{m}",f"v_and_b32 v{s_}, 3, v{vL}",f"v_lshlrev_b32 v{s_}, 5, v{s_}",
         f"v_lshl_add_u32 v{s_}, v{g4}, 3, v{s_}",f"s_lshl_b32 s{sT}, s{sHALF}, 7",f"s_lshl_b32 s{sT2}, s{sCH}, 8",f"s_add_u32 s{sT}, s{sT}, s{sT2}",
         f"v_add_u32 v{s_}, s{sT}, v{s_}",f"v_add3_u32 v{aE}, v{aE}, v{s_}, s{sONE}"]
    A(f"s_mov_b32 s{sONE}, {UB+4*UP}")
    for l in ex0: A(l)
    rdx={1:[f"ds_read_b64 v[{EU+2*c}:{EU+2*c+1}], v{aE} offset:{4*UP*c}" for c in range(4)],
         2:[f"ds_read_b64 v[{EX+2*c}:{EX+2*c+1}], v{aE} offset:{4*UP*c+512}" for c in range(4)]}
    ex=[f"v_lshl_add_u32 v{aH}, v{m}, 17, v{s_}",f"s_lshl_b32 s{sT}, s{sG}, 9",f"s_add_u32 s{sT}, s{sT}, {WS_HT}",f"v_add_u32 v{aH}, s{sT}, v{aH}"]
    ex+=[f"v_add_u32 v{aH+c}, {c*524288}, v{aH}" for c in (1,2,3)]
    ex+=[f"s_lshl_b32 s{sT}, s{sDS}, 16", f"s_and_b32 s{sT2}, s{sDS}, 0xffff0000", f"s_cmp_eq_u32 s{sCH}, 0", f"s_cselect_b32 s{sDS}, s{sT}, s{sT2}"]
    for i in range(8):
        d=UD+2*i
        ex+=[f"v_lshlrev_b32 v{d}, 16, v{EU+i}",f"v_and_b32 v{d+1}, 0xffff0000, v{EU+i}",f"v_mul_f32 v{d}, s{sDS}, v{d}",f"v_mul_f32 v{d+1}, s{sDS}, v{d+1}",
             f"v_cvt_pk_bf16_f32 v{d}, v{d}, v{d+1}",f"v_and_b32 v{d+1}, 0xffff0000, v{d}",f"v_lshlrev_b32 v{d}, 16, v{d}"]
    for i in range(8):
        ex+=[f"v_lshlrev_b32 v{XF+2*i}, 16, v{EX+i}",f"v_and_b32 v{XF+2*i+1}, 0xffff0000, v{EX+i}"]
    prevx=0
    for s in range(16):
        b=fr+32*(s%2)
        L=(loads(s+1) if s<15 else [])+rdx.get(s,[])
        iss=0; lastw=-1
        for i,(c,k,need) in enumerate(order):
            if need>lastw:
                A(f"s_waitcnt lgkmcnt({min(15,12-need+prevx+iss)})"); lastw=need
            cc="0" if (s==0 and k==0) else f"v[{acc+4*c}:{acc+4*c+3}]"
            A(f"v_mfma_f32_16x16x32_bf16 v[{acc+4*c}:{acc+4*c+3}], v[{b+4*k}:{b+4*k+3}], v[{b+16+4*(c-k)}:{b+19+4*(c-k)}], {cc}")
            n=(len(L)*(i+1))//10-(len(L)*i)//10
            for _ in range(n): A(L[iss]); iss+=1
            if s>=4 and ex and n<2: A(ex.pop(0))
        prevx=len(rdx.get(s,[]))
    for l in ex: A(l)
    stamp(A,8)
    for c in range(4):
        a=acc+4*c
        for src in (UD+4*c,XF+4*c):
            A(f"""
            v_cvt_pk_bf16_f32 v{a}, v{a}, v{a+1}
            v_cvt_pk_bf16_f32 v{a+2}, v{a+2}, v{a+3}
            v_and_b32 v{a+1}, 0xffff0000, v{a}
            v_and_b32 v{a+3}, 0xffff0000, v{a+2}
            v_lshlrev_b32 v{a}, 16, v{a}
            v_lshlrev_b32 v{a+2}, 16, v{a+2}
            v_pk_add_f32 v[{a}:{a+1}], v[{a}:{a+1}], v[{src}:{src+1}]
            v_pk_add_f32 v[{a+2}:{a+3}], v[{a+2}:{a+3}], v[{src+2}:{src+3}]
            """)
        A(f"""
        v_cvt_pk_bf16_f32 v{a}, v{a}, v{a+1}
        v_cvt_pk_bf16_f32 v{a+1}, v{a+2}, v{a+3}
        global_store_dwordx2 v{aH+c}, v[{a}:{a+1}], s[30:31]{WT}
        """)
    A(f"""
    s_lshl_b32 s{sT}, s{sG}, 2
    s_add_u32 s{sT}, s{sT}, {WS_FLH}
    v_lshl_add_u32 v{vW+2}, v{vL}, 10, s{sT}
    v_mov_b32 v{vW+3}, s{sTAG}
    s_waitcnt vmcnt(0)
    """)
    A.label("ka_fin")
    A("s_barrier")
    stamp(A,9)
    A(f"""
    s_cmp_lg_u32 s{sW}, 0
    s_cbranch_scc1 ka_nofl
    s_mov_b64 exec, 0xff
    global_store_dword v{vW+2}, v{vW+3}, s[30:31]{WT}
    """)
    A.label("ka_nofl")
    dump(A,1,10,sW)
    A("s_mov_b64 exec, -1")
    AA=A; A=tail
    A.label("ka_retry")
    A(f"""
    s_add_u32 s{sSP}, s{sSP}, 1
    s_cmp_ge_u32 s{sSP}, {SPIN}
    s_cbranch_scc1 ka_ok
    """)
    if BO: A(f"s_sleep {BO}")
    A("s_mov_b64 exec, vcc")
    gload(" sc0 sc1")
    A("s_mov_b64 exec, -1")
    A("s_branch ka_chk")
    A.label("ka_aux")
    stamp(A,7)
    ad=vW+40; S=vW+44; t=vW+52
    RD=176
    if "rp" in X.split("_"):
        A(f"""
        s_sub_u32 s{sROW}, s{sW}, 4
        s_lshl_b32 s{sROW}, s{sROW}, 8
        s_add_u32 s{sROW}, s{sROW}, s2
        s_lshl_b32 s{sT}, s{sROW}, 10
        v_lshl_add_u32 v{RD+8}, v{vL}, 4, s{sT}
        global_load_dwordx4 v[{RD}:{RD+3}], v{RD+8}, s[24:25]
        s_cmp_ge_u32 s{sROW}, {1376-1024}
        s_cbranch_scc1 ka_nod2
        v_add_u32 v{RD+8}, {1024*1024}, v{RD+8}
        global_load_dwordx4 v[{RD+4}:{RD+7}], v{RD+8}, s[24:25]
        """)
        A.label("ka_nod2")
    A(f"""
    s_sub_u32 s{sU}, s{sW}, 6
    s_lshl_b32 s{sU}, s{sU}, 8
    s_add_u32 s{sU}, s{sU}, s2
    s_cmp_ge_u32 s{sU}, 344
    s_cbranch_scc1 ka_nocs
    s_lshr_b32 s{sT}, s{sU}, 2
    s_cmp_ge_u32 s{sT}, 43
    s_cselect_b32 s62, s22, s20
    s_cselect_b32 s63, s23, s21
    s_cselect_b32 s{sT2}, 43, 0
    s_sub_u32 s{sT}, s{sT}, s{sT2}
    s_lshl_b32 s{sT}, s{sT}, 6
    s_and_b32 s{sT2}, s{sU}, 3
    s_mul_i32 s{sT2}, s{sT2}, {128*2752}
    s_add_u32 s{sT}, s{sT}, s{sT2}
    v_lshrrev_b32 v{vCA}, 2, v{vL}
    v_mul_u32_u24 v{vCA}, 2752, v{vCA}
    v_and_b32 v{vCA+1}, 3, v{vL}
    v_lshl_add_u32 v{vCA}, v{vCA+1}, 4, v{vCA}
    v_add_u32 v{vCA}, s{sT}, v{vCA}
    """)
    for i in range(8):
        A(f"global_load_dwordx4 v[{vCS+4*i}:{vCS+4*i+3}], v{vCA}, s[62:63]")
        if i<7: A(f"v_add_u32 v{vCA}, {16*2752}, v{vCA}")
    A.label("ka_nocs")
    c_=vW+56
    A(f"v_mov_b32 v{c_+5}, 0x40000000")
    for v in range(3):
        A(f"""
        v_add_u32 v{c_}, {64*v}, v{vL}
        v_mul_u32_u24 v{c_+1}, 0xaaab, v{c_}
        v_lshrrev_b32 v{c_+1}, 19, v{c_+1}
        v_mul_u32_u24 v{c_+2+v}, 12, v{c_+1}
        v_sub_u32 v{c_+2+v}, v{c_}, v{c_+2+v}
        v_mul_u32_u24 v{c_+1}, {2752-192}, v{c_+1}
        v_lshl_add_u32 v{vWo+v}, v{vL}, 4, v{c_+1}
        """)
    A(f"""
    s_and_b32 s{sT}, s2, 1
    s_lshr_b32 s{sT2}, s2, 5
    s_mul_i32 s{sCBg}, s{sT}, 7
    s_add_u32 s{sCBg}, s{sCBg}, s{sT2}
    s_add_u32 s{sT}, s{sT}, 14
    s_cmp_eq_u32 s{sT2}, 7
    s_cselect_b32 s{sCBg}, s{sT}, s{sCBg}
    s_cmp_eq_u32 s{sCBg}, 14
    s_cselect_b32 s{sT}, 4, 12
    s_cmp_eq_u32 s{sCBg}, 15
    s_cselect_b32 s{sT}, 0, s{sT}
    """)
    for v in range(3):
        A(f"""
        v_cmp_le_u32 vcc, s{sT}, v{c_+2+v}
        v_cndmask_b32 v{vWo+v}, v{vWo+v}, v{c_+5}, vcc
        """)
    A(f"""
    s_mul_i32 s{sWO}, s{sCH}, {16*2752}
    s_mul_i32 s{sT2}, s{sCBg}, 192
    s_add_u32 s{sWO}, s{sWO}, s{sT2}
    s_and_b32 s35, s2, {6 if ROTW else 0}
    s_lshl_b32 s35, s35, 1
    s_mul_i32 s{sT2}, s35, {32*2752}
    s_add_u32 s{sWO}, s{sWO}, s{sT2}
    s_mul_i32 s{sM0W}, s{sCH}, 3072
    s_mul_i32 s{sT}, s{sHALF}, {W_U}
    s_add_u32 s{sM0W}, s{sM0W}, s{sT}
    s_cmp_ge_u32 s{sW}, 6
    s_cselect_b32 s{sWt}, s22, s20
    s_cselect_b32 s{sWt+1}, s23, s21
    s_mov_b32 s{sWt+2}, {512*2752}
    s_mov_b32 s{sWt+3}, 0x20000
    """)
    def prefill():
        A(f"""
        s_mul_i32 s{sSP}, s{sCBg}, 3
        s_min_u32 s{sSP}, s{sSP}, 40
        s_and_b32 s{sT}, s2, 6
        s_lshl_b32 s{sT}, s{sT}, 1
        s_bfe_u32 s{sT2}, s2, 0x20003
        s_add_u32 s{sT}, s{sT}, s{sT2}
        s_lshl_b32 s{sT}, s{sT}, 2
        s_add_u32 s{sT}, s{sT}, s{sW}
        s_sub_u32 s{sT}, s{sT}, 4
        s_mul_i32 s{sT}, s{sT}, 86
        s_add_u32 s{sT}, s{sT}, s{sSP}
        s_lshl_b32 s{sT}, s{sT}, 10
        s_add_u32 s{sT}, s{sT}, {WS_HM}
        v_lshl_add_u32 v{c_}, v{vL}, 4, s{sT}
        v_add_u32 v{c_+1}, {43*1024}, v{c_}
        v_mov_b32 v{c_+4}, -1
        v_mov_b32 v{c_+5}, -1
        v_mov_b32 v{c_+6}, -1
        v_mov_b32 v{c_+7}, -1
        """)
        for o in (0,1024,2048):
            for r in (0,1): A(f"global_store_dwordx4 v{c_+r}, v[{c_+4}:{c_+7}], s[30:31] offset:{o}{WT}")
    prefill()
    for st in range(NPL//2): issue_w(A,st)
    A(f"""
    s_cmp_lg_u32 s{sW}, 4
    s_cbranch_scc1 ka_a3
    s_cmp_lg_u32 s2, 0
    s_cbranch_scc1 ka_a3
    s_add_u32 s{sT}, s{sEP}, 1
    v_mov_b32 v{t}, {WS_EPOCH}
    v_mov_b32 v{t+1}, s{sT}
    s_mov_b64 exec, 1
    global_store_dword v{t}, v{t+1}, s[30:31]
    """)
    A.label("ka_a3")
    A("s_mov_b64 exec, -1")
    if "rp" in X.split("_"):
        A(f"""
        s_bfe_u32 s{sT}, s{sROW}, 0x10001
        s_bfe_u32 s{sT2}, s{sROW}, 0x10003
        s_lshl_b32 s{sT2}, s{sT2}, 1
        s_or_b32 s{sT}, s{sT}, s{sT2}
        s_lshl_b32 s{sT}, s{sT}, 1
        v_and_b32 v{RD+8}, 7, v{vL}
        v_xor_b32 v{RD+8}, s{sT}, v{RD+8}
        v_lshrrev_b32 v{RD+9}, 3, v{vL}
        v_mul_u32_u24 v{RD+9}, {43*4096}, v{RD+9}
        v_lshl_add_u32 v{RD+8}, v{RD+8}, 4, v{RD+9}
        s_lshl_b32 s{sT}, s{sROW}, 7
        s_add_u32 s{sT}, s{sT}, {WS_WD2}
        v_add_u32 v{RD+8}, s{sT}, v{RD+8}
        s_waitcnt vmcnt({3*(NPL//2)+6})
        global_store_dwordx4 v{RD+8}, v[{RD}:{RD+3}], s[30:31]{WT}
        s_cmp_ge_u32 s{sROW}, {1376-1024}
        s_cbranch_scc1 ka_nod3
        v_add_u32 v{RD+8}, {1024*128}, v{RD+8}
        global_store_dwordx4 v{RD+8}, v[{RD+4}:{RD+7}], s[30:31]{WT}
        """)
        A.label("ka_nod3")
    if "dpf" in X:
        A(f"""
        s_cmp_ge_u32 s{sW}, 6
        s_cbranch_scc1 ka_nodpf
        s_lshr_b32 s{sT}, s2, 3
        s_lshl_b32 s{sT}, s{sT}, 1
        s_add_u32 s{sT}, s{sT}, s{sCH}
        s_mul_i32 s{sT}, s{sT}, {172*128}
        v_lshl_add_u32 v{c_}, v{vL}, 7, s{sT}
        global_load_dword v{vRA+3}, v{c_}, s[24:25]
        v_add_u32 v{c_}, 8192, v{c_}
        global_load_dword v{vRA+3}, v{c_}, s[24:25]
        v_add_u32 v{c_}, 8192, v{c_}
        s_mov_b32 exec_hi, 0xfff
        global_load_dword v{vRA+3}, v{c_}, s[24:25]
        s_mov_b32 exec_hi, -1
        """)
        A.label("ka_nodpf")
    A(f"""
    s_cmp_ge_u32 s{sU}, 344
    s_cbranch_scc1 ka_pfw
    s_waitcnt vmcnt({3*(NPL//2)+6+(1 if "rp" in X.split("_") else 0)})
    """)
    for i in range(8):
        for j in range(4):
            r=vCS+4*i+j
            if i==0:
                A(f"v_lshlrev_b32 v{S+2*j}, 16, v{r}")
                A(f"v_and_b32 v{S+2*j+1}, 0xffff0000, v{r}")
            else:
                A(f"v_lshlrev_b32 v{t}, 16, v{r}")
                A(f"v_and_b32 v{t+1}, 0xffff0000, v{r}")
                A(f"v_add_f32 v{S+2*j}, v{S+2*j}, v{t}")
                A(f"v_add_f32 v{S+2*j+1}, v{S+2*j+1}, v{t+1}")
    for j in range(4): A(f"v_permlane32_swap_b32 v{S+j}, v{S+j+4}")
    for j in range(4): A(f"v_add_f32 v{S+j}, v{S+j}, v{S+j+4}")
    for j in range(2): A(f"v_permlane16_swap_b32 v{S+j}, v{S+j+2}")
    for j in range(2): A(f"v_add_f32 v{S+j}, v{S+j}, v{S+j+2}")
    for ctl in ("row_ror:8","row_ror:4"):
        for j in range(2): A(f"v_add_f32_dpp v{S+j}, v{S+j}, v{S+j} {ctl} row_mask:0xf bank_mask:0xf")
    d=S+2
    A(f"""
    v_and_b32 v{t}, 4, v{vL}
    v_cmp_ne_u32 vcc, 0, v{t}
    v_cndmask_b32 v{S}, v{S}, v{S+1}, vcc
    v_cvt_pk_bf16_f32 v{S+1}, v{S}, v{S}
    v_and_b32 v{S+1}, 0xffff0000, v{S+1}
    v_sub_f32 v{S+1}, v{S}, v{S+1}
    v_cvt_pk_bf16_f32 v{d}, v{S}, v{S+1}
    v_mov_b32 v{d+1}, s{sTAG}
    v_lshlrev_b32 v{ad}, 8, v{vCA+1}
    v_lshl_add_u32 v{ad}, v{hh}, 7, v{ad}
    v_and_b32 v{t+1}, 16, v{vL}
    v_lshl_add_u32 v{ad}, v{t+1}, 2, v{ad}
    v_lshl_add_u32 v{ad}, v{t}, 3, v{ad}
    s_lshr_b32 s{sT}, s{sU}, 2
    s_lshl_b32 s{sT}, s{sT}, 10
    s_and_b32 s{sT2}, s{sU}, 3
    s_lshl_b32 s{sT2}, s{sT2}, 3
    s_add_u32 s{sT}, s{sT}, s{sT2}
    s_add_u32 s{sT}, s{sT}, {WS_CS}
    v_add_u32 v{ad}, s{sT}, v{ad}
    s_mov_b32 exec_lo, 0x00ff00ff
    s_mov_b32 exec_hi, 0x00ff00ff
    global_store_dwordx2 v{ad}, v[{d}:{d+1}], s[30:31]{WT}
    s_mov_b64 exec, -1
    """)
    A.label("ka_pfw")
    for st in range(NPL//2,NPL): issue_w(A,st)
    A(f"s_waitcnt vmcnt({3*NPL if 'rp' not in X.split('_') else 3*(NPL-NPL//2)})")
    stamp(A,8)
    A("s_branch ka_fin")
```

```python
from common import *
from k01 import cmul, exp_bf16, cexp, row_stats
EF_PITCH=544; EF_CH=64*EF_PITCH
YP=9216
WSLOT=12320; NWS=10; W_U=6176
TB=2*EF_CH
XS=TB+2*KD_CH
SC=XS+8*1280
PB=SC+64
X_CNT=163824
UP=1152; UB=X_CNT-48-20*UP
IMG=4160; KIMG_CH=4*IMG; KIMG=UB-2*KIMG_CH
assert PB+2048+64<=KIMG and UB%16==0 and KIMG%16==0
sTAG=34; sWt=8; sWO=12; sM0W=13; sCBg=14; sMBg=15; vWo=253
ROTW='norw' not in X
BO=int(os.environ.get('BO','0'))
GL=int(os.environ.get('GL','1'))
NPL=int(os.environ.get("NPL","5"))
def issue_w(A,st):
    A(f"""
    s_add_u32 m0, s{sM0W}, {(st%NWS)*WSLOT}
    s_nop 0
    buffer_load_dwordx4 v{vWo}, s[{sWt}:{sWt+3}], s{sWO} offen lds
    buffer_load_dwordx4 v{vWo+1}, s[{sWt}:{sWt+3}], s{sWO} offen offset:1024 lds
    buffer_load_dwordx4 v{vWo+2}, s[{sWt}:{sWt+3}], s{sWO} offen offset:2048 lds
    s_add_u32 s{sWO}, s{sWO}, {32*2752}
    """)
    if st in (3,7,11) and ROTW:
        A(f"""
        s_cmp_eq_u32 s35, {15-st}
        s_cselect_b32 s3, {512*2752}, 0
        s_sub_u32 s{sWO}, s{sWO}, s3
        """)
SPIN=1<<16
WT=" sc0 sc1"
def phaseA(A,tail):
    sW=36; sCH=37; sG=38; sT=39; sT2=40; sHALF=41; sONE=42; sDT=43; sROW=46; sDS=50; sROLE=51; sSEL=52; sU=56; sSP=57; sEP=58; sEX=60
    vL=1; vT=2; vXR=4; vXS=8; vP=12; vAD=17; q5=18; hh=19
    vXG=20; vSG=28
    vX=36; vUD=44; vGA=52; vSA=53
    vW=56
    vRA=200; vRD=204; vCS=216
    A(f"""
    s_cmp_ge_u32 s2, 256
    s_cbranch_scc1 m_end
    s_load_dwordx16 s[4:19], s[0:1], 0
    s_load_dwordx2 s[30:31], s[0:1], 104
    s_load_dwordx8 s[20:27], s[0:1], 64
    """)
    stamp(A,0)
    A("s_getpc_b64 s[44:45]")
    A.label("ka_pf")
    A(f"""
    v_lshlrev_b32 v{vW}, 7, v0
    v_lshrrev_b32 v{vT}, 6, v0
    v_and_b32 v{vL}, 63, v0
    v_readfirstlane_b32 s{sW}, v{vT}
    s_lshr_b32 s{sT2}, s2, 3
    s_cmp_lg_u32 s{sW}, 0
    s_cbranch_scc1 ka_nopf
    s_mov_b32 exec_hi, 0xff
    global_load_dword v{vRA+3}, v{vW}, s[44:45] offset:512
    s_mov_b32 exec_hi, -1
    """)
    A.label("ka_nopf")
    A(f"""
    s_and_b32 s{sT}, s2, 7
    s_lshl_b32 s{sG}, s{sT}, 5
    s_add_u32 s{sG}, s{sG}, s{sT2}
    s_and_b32 s{sCH}, s{sW}, 1
    s_lshr_b32 s{sROLE}, s{sW}, 1
    s_and_b32 s{sHALF}, s{sROLE}, 1
    v_and_b32 v{q5}, 31, v{vL}
    v_lshrrev_b32 v{hh}, 5, v{vL}
    s_lshl_b32 s{sT}, s{sT}, 7
    s_lshl_b32 s{sT2}, s{sT2}, 16
    s_add_u32 s{sT}, s{sT}, s{sT2}
    s_lshl_b32 s{sT2}, s{sROLE}, 14
    s_add_u32 s{sT}, s{sT}, s{sT2}
    s_lshl_b32 s{sT2}, s{sCH}, 6
    s_add_u32 s{sT}, s{sT}, s{sT2}
    v_lshrrev_b32 v{vW}, 2, v{vL}
    v_and_b32 v{vW+1}, 3, v{vL}
    v_lshlrev_b32 v{vW+2}, 10, v{vW}
    v_lshl_add_u32 v{vW+2}, v{vW+1}, 4, v{vW+2}
    v_add_u32 v{vW+2}, s{sT}, v{vW+2}
    s_lshl_b32 s{sT}, s{sG}, 13
    v_lshl_add_u32 v{vAD}, v0, 4, s{sT}
    s_lshl_b32 s{sT}, s{sG}, 9
    v_lshl_add_u32 v{vT}, v{vL}, 3, s{sT}
    s_lshl_b32 s{sT2}, s{sG}, 2
    s_cmp_eq_u32 s{sCH}, 0
    s_waitcnt lgkmcnt(0)
    s_cselect_b64 s[62:63], s[6:7], s[8:9]
    s_cselect_b64 s[60:61], s[10:11], s[12:13]
    s_cmp_eq_u32 s{sHALF}, 0
    s_cselect_b64 s[62:63], s[62:63], s[60:61]
    s_cmp_ge_u32 s{sW}, 4
    s_cbranch_scc1 ka_nop
    global_load_dwordx2 v[{vP}:{vP+1}], v{vT}, s[62:63]
    """)
    A.label("ka_nop")
    if "fp" in X: stamp(A,5)
    A(f"""
    s_load_dword s{sEP}, s[30:31], {WS_EPOCH}
    s_load_dword s{sDT}, s[14:15], s{sT2}
    s_load_dword s{sDS}, s[16:17], s{sT2}
    global_load_dwordx4 v[{vXS}:{vXS+3}], v{vW+2}, s[4:5]
    global_load_dwordx4 v[{vXR}:{vXR+3}], v{vAD}, s[4:5]
    s_mov_b32 s{sONE}, 0x3f803f80
    s_mov_b32 s{SK_INVN}, {f32(1/512)}
    v_mov_b32 v{vW+9}, 0x9000
    global_load_dword v{vRA+2}, v{vW+9}, s[30:31]
    """)
    PA=36
    A(f"""
    s_mul_i32 s{sT}, s{sW}, 1280
    s_add_u32 s{sT}, s{sT}, {XS}
    v_mul_u32_u24 v{PA+0}, 80, v{vW}
    v_lshl_add_u32 v{PA+0}, v{vW+1}, 4, v{PA+0}
    v_add_u32 v{PA+0}, s{sT}, v{PA+0}
    v_and_b32 v{vW}, 7, v{vL}
    v_lshrrev_b32 v{vW+1}, 3, v{vL}
    v_mul_u32_u24 v{PA+1}, 160, v{vW}
    v_lshl_add_u32 v{PA+1}, v{vW+1}, 2, v{PA+1}
    v_add_u32 v{PA+1}, s{sT}, v{PA+1}
    s_and_b32 s{sT}, s2, 7
    s_lshl_b32 s{sT}, s{sT}, 19
    s_lshl_b32 s{sT2}, s{sCH}, 18
    s_add_u32 s{sT}, s{sT}, s{sT2}
    s_lshr_b32 s{sT2}, s2, 3
    s_lshl_b32 s{sT2}, s{sT2}, 9
    s_add_u32 s{sT}, s{sT}, s{sT2}
    s_lshl_b32 s{sT2}, s{sROLE}, 7
    s_add_u32 s{sT}, s{sT}, s{sT2}
    s_add_u32 s{sT}, s{sT}, {WS_XG}
    v_lshlrev_b32 v{PA+2}, 14, v{vW+1}
    v_lshl_add_u32 v{PA+2}, v{vW}, 4, v{PA+2}
    v_add_u32 v{PA+2}, s{sT}, v{PA+2}
    v_add_u32 v{PA+3}, {8*16384}, v{PA+2}
    s_lshl_b32 s{sT}, s{sG}, 6
    v_lshl_add_u32 v{PA+4}, v{vL}, 3, s{sT}
    v_lshlrev_b32 v{vSA}, 5, v0
    s_lshl_b32 s{sT}, s{sG}, 14
    s_add_u32 s{sT}, s{sT}, {WS_XG}
    v_add_u32 v{vGA}, s{sT}, v{vSA}
    s_mul_i32 s{sT}, s{sCH}, {EF_CH}
    s_lshl_b32 s{sT2}, s{sHALF}, 8
    s_add_u32 s{sT}, s{sT}, s{sT2}
    v_lshl_add_u32 v{vAD}, v{vL}, 2, s{sT}
    """)
    A(f"""
    v_mov_b32 v{vW+8}, 0
    v_mov_b32 v{vW+9}, 0
    s_and_b32 s{sT}, s{sW}, 3
    s_mul_i32 s{sT}, s{sT}, {UP}
    s_add_u32 s{sT}, s{sT}, {UB}
    v_lshl_add_u32 v{vW+10}, v{vL}, 3, s{sT}
    ds_write_b64 v{vW+10}, v[{vW+8}:{vW+9}]
    s_mov_b64 exec, 0x7f
    s_mul_i32 s{sT}, s{sW}, {IMG}
    s_add_u32 s{sT}, s{sT}, {KIMG+4096}
    v_lshl_add_u32 v{vW+10}, v{vL}, 3, s{sT}
    ds_write_b64 v{vW+10}, v[{vW+8}:{vW+9}]
    v_mov_b32 v{vW+10}, {X_CNT}
    ds_write_b64 v{vW+10}, v[{vW+8}:{vW+9}]
    ds_write_b64 v{vW+10}, v[{vW+8}:{vW+9}] offset:8
    v_mov_b32 v{vW+10}, {SC+32}
    ds_write_b32 v{vW+10}, v{vW+8}
    s_mov_b64 exec, -1
    """)
    A(f"""
    s_lshl_b32 s{sT}, s{sW}, 9
    s_add_u32 s{sT}, s{sT}, {PB}
    v_lshl_add_u32 v{vW+11}, v{vL}, 3, s{sT}
    s_lshl_b32 s{sT}, s{sCH}, 8
    s_lshl_b32 s{sT2}, s{sHALF}, 7
    s_add_u32 s{sT}, s{sT}, s{sT2}
    s_add_u32 s{sT}, s{sT}, {PB}
    v_lshl_add_u32 v{vW+12}, v{vL}, 1, s{sT}
    s_waitcnt lgkmcnt(0)
    s_mul_i32 s{sTAG}, s{sEP}, 0x9e3779b1
    s_add_u32 s{sTAG}, s{sTAG}, 0x7f4a7c15
    s_lshl_b32 s{sT}, s{sDT}, 16
    s_and_b32 s{sT2}, s{sDT}, 0xffff0000
    s_cmp_eq_u32 s{sCH}, 0
    s_cselect_b32 s{sDT}, s{sT}, s{sT2}
    v_mov_b32 v{vP+4}, s{sDT}
    v_mov_b32 v{vXG+1}, s{sTAG}
    v_mov_b32 v{vXG+3}, s{sTAG}
    v_mov_b32 v{vXG+5}, s{sTAG}
    v_mov_b32 v{vXG+7}, s{sTAG}
    """)
    if "fp" in X: stamp(A,6)
    exp_bf16(A,vP+4,vW+8)
    A(f"""
    s_cmp_ge_u32 s{sW}, 4
    s_cbranch_scc1 ka_nop2
    s_waitcnt vmcnt(3)
    ds_write_b64 v{vW+11}, v[{vP}:{vP+1}]
    """)
    A.label("ka_nop2")
    A("s_waitcnt lgkmcnt(0)")
    A("s_barrier")
    def publish(tagl):
        T=PA+5
        A(f"""
        s_waitcnt vmcnt(2)
        ds_write_b128 v{PA}, v[{vXS}:{vXS+3}]
        ds_read_b32 v{vXG}, v{PA+1}
        ds_read_b32 v{vXG+2}, v{PA+1} offset:80
        ds_read_b32 v{vXG+4}, v{PA+1} offset:32
        ds_read_b32 v{vXG+6}, v{PA+1} offset:112
        s_waitcnt vmcnt(1)
        """)
        stamp(A,1)
        B=Asm(); row_stats(B,vXR,vT,vT+1,T,sONE); bl=[l.strip() for l in B.l]
        for l in bl[:10]: A(l)
        A(f"""
        s_waitcnt lgkmcnt(0)
        global_store_dwordx4 v{PA+2}, v[{vXG}:{vXG+3}], s[30:31]{WT}
        global_store_dwordx4 v{PA+3}, v[{vXG+4}:{vXG+7}], s[30:31]{WT}
        """)
        for l in bl[10:]: A(l)
        A(f"""
        s_lshl_b32 s{sT}, s{sW}, 2
        s_add_u32 s{sT}, s{sT}, {SC}
        v_mov_b32 v{T}, s{sT}
        v_mov_b32 v{T+1}, {SC+32}
        v_mov_b32 v{T+2}, 1
        s_mov_b32 exec_lo, 0
        s_mov_b32 exec_hi, 0x80000000
        ds_write_b32 v{T}, v{vT}
        ds_add_rtn_u32 v{T+2}, v{T+1}, v{T+2}
        s_mov_b64 exec, -1
        v_lshlrev_b32 v{T}, 2, v{vL}
        v_add_u32 v{T}, {SC}, v{T}
        v_mov_b32 v{vT+1}, s{sTAG}
        s_waitcnt lgkmcnt(0)
        v_readlane_b32 s{sT}, v{T+2}, 63
        s_cmp_lg_u32 s{sT}, 7
        s_cbranch_scc1 {tagl}
        s_mov_b64 exec, 0xff
        ds_read_b32 v{vT}, v{T}
        s_waitcnt lgkmcnt(0)
        global_store_dwordx2 v{PA+4}, v[{vT}:{vT+1}], s[30:31] offset:{WS_STATS}{WT}
        s_mov_b64 exec, -1
        """)
        if "wul8" not in X:
            A(f"""
            s_mul_i32 s{sT}, s2, {43*128}
            v_lshl_add_u32 v{T}, v{vL}, 7, s{sT}
            s_mov_b32 exec_hi, 0x7ff
            global_load_dword v{vRA+3}, v{T}, s[20:21]
            global_load_dword v{vRA+3}, v{T}, s[22:23]
            global_load_dword v{vRA+3}, v{T}, s[24:25]
            s_mov_b32 exec_hi, -1
            """)
        A.label(tagl)
        stamp(A,2)
    def warmups():
        A(f"""
        s_cmp_eq_u32 s{sCH}, 0
        s_cselect_b64 s[62:63], s[20:21], s[22:23]
        s_cselect_b64 s[60:61], s[24:25], s[44:45]
        s_cmp_eq_u32 s{sHALF}, 0
        s_cselect_b64 s[62:63], s[62:63], s[60:61]
        s_mul_i32 s{sT}, s2, {43*128}
        s_lshr_b32 s{sT2}, s2, 3
        s_lshl_b32 s{sT2}, s{sT2}, 10
        s_add_u32 s{sT2}, s{sT2}, 5632
        s_mov_b32 s{sU}, {1376*1024-4}
        s_cmp_eq_u32 s{sW}, 7
        s_cselect_b32 s{sT}, s{sT2}, s{sT}
        s_cselect_b32 s{sT2}, code_end-ka_pf, s{sU}
        s_cselect_b32 exec_lo, 0xff, -1
        s_cselect_b32 exec_hi, 0, 0x7ff
        v_lshl_add_u32 v{PA+5}, v{vL}, 7, s{sT}
        v_min_u32 v{PA+5}, s{sT2}, v{PA+5}
        global_load_dword v{vRA+3}, v{PA+5}, s[62:63]
        s_mov_b64 exec, -1
        """)
    A(f"""
    ds_read_u16 v{vP}, v{vW+12}
    ds_read_u16 v{vP+1}, v{vW+12} offset:512
    ds_read_u16 v{vP+2}, v{vW+12} offset:1024
    ds_read_u16 v{vP+3}, v{vW+12} offset:1536
    s_waitcnt lgkmcnt(0)
    """)
    zr=vP; zi=vP+1
    pk=[vW+20,vW+21,vW+22,vW+23]; pkc=[0]
    def put(reg,row):
        p=pk[pkc[0]%4]; pkc[0]+=1
        A(f"v_cvt_pk_bf16_f32 v{p}, v{reg}, v{reg+1}")
        A(f"ds_write_b32 v{vAD}, v{p} offset:{row*EF_PITCH}")
    w1=vW; w2=vW+2; w4=vW+4; w8=vW+6; wB=vW+8; q=vW+10; e=vW+12; e2=vW+14; t=vW+16; t2=vW+18; t3=vW+24; e3=vW+26
    A(f"""
    v_lshlrev_b32 v{vP}, 16, v{vP}
    v_lshlrev_b32 v{vP+1}, 16, v{vP+1}
    """)
    exp_bf16(A,vP,vW+28)
    A(f"""
    v_mul_f32 v{zi}, v{zi}, v{vP+4}
    v_mul_f32 v{zr}, v{zr}, v{vP+4}
    v_mul_f32 v{zr}, {f32(-LOG2E)}, v{zr}
    s_cmp_ge_u32 s{sW}, 4
    s_cbranch_scc1 ka_frole
    v_mul_f32 v{zi}, {f32(-1/(2*math.pi))}, v{zi}
    """)
    def gload(sc,part=3):
        if part&1: A(f"""
        global_load_dwordx4 v[{vXG}:{vXG+3}], v{vGA}, s[30:31]{sc}
        global_load_dwordx4 v[{vXG+4}:{vXG+7}], v{vGA}, s[30:31] offset:16{sc}
        """)
        if part&2: A(f"""
        global_load_dwordx4 v[{vSG}:{vSG+3}], v{vSA}, s[30:31] offset:{WS_STATS}{sc}
        global_load_dwordx4 v[{vSG+4}:{vSG+7}], v{vSA}, s[30:31] offset:{WS_STATS+16}{sc}
        """)
    cexp(A,w1,zr,zi,1,t); cexp(A,wB,zr,zi,256,t2)
    publish("ka_pe")
    A(f"""
    v_lshlrev_b32 v{vP+2}, 16, v{vP+2}
    v_lshlrev_b32 v{vP+3}, 16, v{vP+3}
    v_mul_f32 v{e}, v{vP+2}, v{vP+4}
    v_mul_f32 v{e+1}, v{vP+3}, v{vP+4}
    v_add_f32 v{e}, v{e}, v{e}
    v_mul_f32 v{e+1}, -2.0, v{e+1}
    """)
    cmul(A,w2,w1,w1,t); cmul(A,q,e,wB,t2); put(e,0)
    cmul(A,w4,w2,w2,t3)
    seqB=[("put",q,8),("mul",e2,q,w2),("mul",q,q,wB),("put",e2,9),("mul",e2,e2,w2),("put",q,12),("mul",e3,q,w4),("put",e2,10),("mul",e2,e2,w2),
          ("mul",q,q,wB),("put",e3,13),("put",e2,11),("put",q,14),("mul",e3,q,w4),("mul",q,q,wB),("put",e3,15),("put",q,16),("mul",q,q,wB),("put",q,20),
          ("mul",q,q,wB),("put",q,24),("mul",q,q,wB),("put",q,28),("mul",q,q,wB),("put",q,17)]
    seqA=[]
    for a in range(1,8): seqA+=[("mul",e,e,w1),("put",e,a)]
    ia=0; tt=[t2,t3]; tc=0
    for i,s in enumerate(seqB):
        if s[0]=="put": put(s[1],s[2])
        else: cmul(A,s[1],s[2],s[3],tt[tc%2]); tc+=1
        if (i<10 and i%3==0) or i>=15:
            x=seqA[ia]; ia+=1
            if x[0]=="put": put(x[1],x[2])
            else: cmul(A,x[1],x[2],x[3],t)
    aA=vW; aB=vW+1; r16=vW+2; g4=vW+3; acc=vW+4; oA=vW+12; oB=vW+13; oC=vW+14; fr=vW+32
    A(f"""
    v_and_b32 v{r16}, 15, v{vL}
    v_lshrrev_b32 v{g4}, 4, v{vL}
    s_mul_i32 s{sT}, s{sCH}, {EF_CH}
    v_mul_u32_u24 v{aA}, {EF_PITCH}, v{r16}
    v_lshl_add_u32 v{aA}, v{g4}, 4, v{aA}
    v_add_u32 v{aA}, s{sT}, v{aA}
    s_mul_i32 s{sT2}, s{sHALF}, {16*EF_PITCH}
    v_add_u32 v{aB}, s{sT2}, v{aA}
    s_lshl_b32 s{sT}, s{sHALF}, 4
    v_add_u32 v{r16}, s{sT}, v{r16}
    v_lshlrev_b32 v{oA}, 4, v{r16}
    v_lshl_add_u32 v{oA}, v{g4}, 3, v{oA}
    v_lshlrev_b32 v{oB}, 3, v{r16}
    v_add_u32 v{oB}, 512, v{oB}
    v_cmp_eq_u32 vcc, 2, v{g4}
    v_cndmask_b32 v{oA}, v{oA}, v{oB}, vcc
    v_lshlrev_b32 v{oB}, 2, v{r16}
    v_add_u32 v{oB}, 768, v{oB}
    v_cmp_eq_u32 vcc, 3, v{g4}
    v_cndmask_b32 v{oA}, v{oA}, v{oB}, vcc
    v_mov_b32 v{oB}, 4
    v_mov_b32 v{oC}, 128
    v_cndmask_b32 v{oB}, v{oB}, v{oC}, vcc
    s_mul_i32 s{sT}, s{sCH}, {KD_CH}
    s_add_u32 s{sT}, s{sT}, {TB}
    v_add_u32 v{oA}, s{sT}, v{oA}
    v_add_u32 v{oB}, v{oA}, v{oB}
    v_lshlrev_b32 v{oC}, 1, v{r16}
    v_lshl_add_u32 v{oC}, v{g4}, 6, v{oC}
    v_add_u32 v{oC}, s{sT}, v{oC}
    s_waitcnt lgkmcnt(0)
    s_barrier
    """)
    stamp(A,3)
    def rd(s):
        b=fr+12*s
        A(f"ds_read_b128 v[{b}:{b+3}], v{aB} offset:{32*EF_PITCH+64*s}")
        A(f"ds_read_b128 v[{b+4}:{b+7}], v{aA} offset:{64*s}")
        A(f"ds_read_b128 v[{b+8}:{b+11}], v{aA} offset:{16*EF_PITCH+64*s}")
    for s in range(4): rd(s)
    for s in range(8):
        b=fr+12*s
        n = 9 if s<=4 else 3*(7-s)
        A(f"s_waitcnt lgkmcnt({n})")
        c0="0" if s==0 else f"v[{acc}:{acc+3}]"; c1="0" if s==0 else f"v[{acc+4}:{acc+7}]"
        A(f"v_mfma_f32_16x16x32_bf16 v[{acc}:{acc+3}], v[{b+4}:{b+7}], v[{b}:{b+3}], {c0}")
        A(f"v_mfma_f32_16x16x32_bf16 v[{acc+4}:{acc+7}], v[{b+8}:{b+11}], v[{b}:{b+3}], {c1}")
        if s+4<8: rd(s+4)
    A(f"""
    v_cvt_pk_bf16_f32 v{acc}, v{acc}, v{acc+1}
    v_cvt_pk_bf16_f32 v{acc+1}, v{acc+2}, v{acc+3}
    v_cvt_pk_bf16_f32 v{acc+4}, v{acc+4}, v{acc+5}
    ds_write_b32 v{oA}, v{acc}
    ds_write_b32 v{oB}, v{acc+1}
    ds_write_b16 v{oC}, v{acc+4} offset:1024
    ds_write_b16_d16_hi v{oC}, v{acc+4} offset:1280
    """)
    if GL==0: gload("")
    if GL==2: gload("",1)
    A(f"s_mov_b32 s{sU}, 1000")
    A("s_branch ka_tab")
    A.label("ka_frole")
    A(f"v_mul_f32 v{zi}, {f32(1/(2*math.pi))}, v{zi}")
    cexp(A,w8,zr,zi,8,t)
    A(f"v_mov_b32 v{pk[3]}, 0x3f80")
    A(f"ds_write_b32 v{vAD}, v{pk[3]} offset:{32*EF_PITCH}")
    cmul(A,w2,w8,w8,t); put(w8,33)
    FPUB=int(os.environ.get("FPUB","3"))
    so=w8; se=w2; put(w2,34)
    eo=[e,e3]; ee=[e2,q]
    def pm(d,a_,b_): A(f"v_pk_mul_f32 v[{d}:{d+1}], v[{a_}:{a_+1}], v[{b_}:{b_+1}] op_sel:[0,0] op_sel_hi:[0,1]")
    def pf(d,a_,b_,t_): A(f"v_pk_fma_f32 v[{d}:{d+1}], v[{a_}:{a_+1}], v[{b_}:{b_+1}], v[{t_}:{t_+1}] op_sel:[1,1,0] op_sel_hi:[1,0,1] neg_lo:[1,0,0]")
    pend=[]
    for i,c in enumerate(range(3,32,2)):
        do=eo[i&1]; de=ee[i&1]
        pm(t,so,w2)
        if c+1<32: pm(t2,se,w2)
        if pend: put(*pend.pop(0))
        pf(do,so,w2,t)
        if c+1<32: pf(de,se,w2,t2)
        if pend: put(*pend.pop(0))
        pend=[(do,32+c)]+([(de,33+c)] if c+1<32 else [])
        so=do; se=de
        if c==FPUB:
            publish("ka_pf2")
            if "wuearly" in X: warmups()
            else:
                A(f"s_cmp_lg_u32 s{sW}, 7"); A("s_cbranch_scc1 ka_nw7")
                warmups()
                A.label("ka_nw7")
    for p_ in pend: put(*p_)
    A("s_waitcnt lgkmcnt(0)")
    A("s_barrier")
    stamp(A,3)
    if GL==0: gload("")
    if GL==2: gload("",1)
    vCA=vRD
    A.label("ka_tab")
    vK=vW+32; vK2=vW+36; wa=vW+4; wa2=vW+5; pr=vW+8
    A(f"""
    s_cmp_eq_u32 s{sROLE}, 0
    s_cselect_b32 s{sSEL}, 4, 1
    s_cselect_b32 s{sSEL+1}, 3, 6
    s_cselect_b32 s{sSEL+2}, 0, 768
    s_cmp_eq_u32 s{sROLE}, 1
    s_cselect_b32 s{sSEL}, 2, s{sSEL}
    s_cselect_b32 s{sSEL+1}, 7, s{sSEL+1}
    s_cselect_b32 s{sSEL+3}, 0, 128
    s_mul_i32 s{sSEL+3}, s{sSEL+3}, s{sROLE}
    s_add_u32 s{sSEL+2}, s{sSEL+2}, s{sSEL+3}
    v_lshlrev_b32 v{vW+2}, s{sSEL}, v{q5}
    v_and_b32 v{vW+2}, -4, v{vW+2}
    v_lshlrev_b32 v{vW+3}, s{sSEL+1}, v{hh}
    v_add_u32 v{vW+2}, v{vW+2}, v{vW+3}
    s_mul_i32 s{sT}, s{sCH}, {KD_CH}
    s_add_u32 s{sT}, s{sT}, {TB}
    s_add_u32 s{sSEL+2}, s{sSEL+2}, s{sT}
    v_add_u32 v{vW+2}, s{sSEL+2}, v{vW+2}
    v_lshlrev_b32 v{vW+3}, 3, v{q5}
    v_lshl_add_u32 v{vW+3}, v{hh}, 2, v{vW+3}
    v_add_u32 v{vW+3}, s{sT}, v{vW+3}
    s_mul_i32 s{sT}, s{sCH}, {KIMG_CH}
    s_add_u32 s{sT}, s{sT}, {KIMG}
    v_lshlrev_b32 v{vW+7}, 4, v{q5}
    v_sub_u32 v{vW+7}, s{sT}, v{vW+7}
    v_lshlrev_b32 v{vW+6}, 3, v{hh}
    v_sub_u32 v{vW}, v{vW+7}, v{vW+6}
    v_lshlrev_b32 v{vW+6}, 9, v{hh}
    v_sub_u32 v{vW+1}, v{vW+7}, v{vW+6}
    s_mov_b32 s{sSEL}, 0x05040100
    s_mov_b32 s{sSEL+1}, 0x05040302
    s_mov_b32 s{sSEL+2}, 0x07060100
    s_mov_b32 s{sSEL+3}, 0x07060302
    s_waitcnt lgkmcnt(0)
    s_barrier
    ds_read2_b32 v[{vK}:{vK+1}], v{vW+2} offset0:0 offset1:1
    ds_read2_b32 v[{vK+2}:{vK+3}], v{vW+2} offset0:2 offset1:3
    ds_read2_b32 v[{vK2}:{vK2+1}], v{vW+3} offset0:128 offset1:129
    """)
    wa=vW; wa2=vW+1
    if GL==1: gload("")
    if GL==2: gload("",2)
    stamp(A,4)
    A(f"""
    s_cmp_ge_u32 s{sROLE}, 2
    s_cbranch_scc1 ka_r23
    s_cmp_eq_u32 s{sROLE}, 1
    s_cbranch_scc1 ka_r1
    """)
    npair=[0]
    def pairop(d,lo,hi): A(f"v_perm_b32 v{d}, v{hi[0]}, v{lo[0]}, s{sSEL+lo[1]+2*hi[1]}")
    def wwin(addr,k,rho,bbase):
        lam=rho+3; iota=lam&3; b=bbase+(lam>>2)
        p=pr+2*(npair[0]%8); npair[0]+=1
        pairop(p,k[rho+3],k[rho+2]); pairop(p+1,k[rho+1],k[rho])
        A(f"ds_write_b64 v{addr}, v[{p}:{p+1}] offset:{iota*IMG+8*(511-b)}")
    A(f"""
    v_cmp_eq_u32 vcc, 63, v{vL}
    v_mov_b32 v{vW+7}, 0
    s_waitcnt lgkmcnt(0)
    v_lshrrev_b32 v{vW+2}, 16, v{vK+2}
    v_perm_b32 v{vW+3}, v{vK+2}, v{vK+2}, s{sSEL}
    v_perm_b32 v{vW+6}, v{vK2+1}, v{vK2+1}, s{sSEL}
    v_cndmask_b32 v{vK+3}, v{vK+3}, v{vW+2}, vcc
    v_cndmask_b32 v{vK+2}, v{vK+2}, v{vW+3}, vcc
    v_cndmask_b32 v{vK2+1}, v{vK2+1}, v{vW+6}, vcc
    """)
    k=[(vK+i//2,i&1) for i in range(8)]
    for rho in range(4): wwin(wa,k,rho,0)
    v=[(vK2+i//2,i&1) for i in range(4)]
    k1=[v[0],v[0],v[1],v[2],v[2],v[2],v[3]]
    for rho in range(4): wwin(wa,k1,rho,64)
    A("s_mov_b64 exec, 1")
    z=(vW+7,0); kz=[z,z,z,k[0],k[1],k[2]]
    for rho in range(3):
        p=pr+2*(npair[0]%8); npair[0]+=1
        pairop(p,kz[rho+3],kz[rho+2]); pairop(p+1,kz[rho+1],kz[rho])
        A(f"ds_write_b64 v{wa}, v[{p}:{p+1}] offset:{rho*IMG+8*511}")
    A("s_mov_b64 exec, -1")
    A("s_branch ka_norm")
    A.label("ka_r1")
    A("s_waitcnt lgkmcnt(0)")
    v=[(vK+i//2,i&1) for i in range(3)]
    k=[v[i] for i in (0,0,0,1,1,1,2,2,2,2,2)]
    for rho in range(8): wwin(wa2,k,rho,128)
    A("s_branch ka_norm")
    A.label("ka_r23")
    if "wuearly" not in X and "wul8" in X: warmups()
    A(f"""
    s_lshl_b32 s{sT}, s{sHALF}, 10
    v_subrev_u32 v{wa2}, s{sT}, v{wa2}
    v_and_b32 v{vW+6}, 1, v{vL}
    v_lshlrev_b32 v{vW+6}, 4, v{vW+6}
    s_waitcnt lgkmcnt(0)
    v_alignbit_b32 v{vK}, v{vK+1}, v{vK}, v{vW+6}
    v_lshrrev_b32 v{vK+1}, v{vW+6}, v{vK}
    """)
    k=[(vK,0)]*4+[(vK+1,0)]+[(vK,1)]*6
    for rho in range(8): wwin(wa2,k,rho,256)
    A.label("ka_norm")
    m=vW; s_=vW+1; u0=vW+24; u1=vW+28; pu=vW+32; a0=vW+2; a1=vW+3
    aK=vW+36; aU=vW+40; aE=vW+37; aH=vW+44; p16=vW+38; g4=vW+39
    A(f"""
    v_lshrrev_b32 v{vW+6}, 5, v0
    v_mul_u32_u24 v{vW+6}, {UP}, v{vW+6}
    v_lshl_add_u32 v{vW+6}, v{q5}, 3, v{vW+6}
    v_add_u32 v{vW+6}, {UB+4*UP}, v{vW+6}
    v_and_b32 v{p16}, 15, v{vL}
    v_lshrrev_b32 v{g4}, 4, v{vL}
    v_and_b32 v{aK}, 3, v{vL}
    v_mul_u32_u24 v{aE}, {IMG}, v{aK}
    v_lshl_add_u32 v{aE}, v{g4}, 4, v{aE}
    v_lshrrev_b32 v{s_}, 2, v{p16}
    v_lshlrev_b32 v{m}, 3, v{s_}
    v_sub_u32 v{aE}, v{aE}, v{m}
    v_lshl_add_u32 v{m}, v{aK}, 1, v{g4}
    s_mul_i32 s{sT}, s{sCH}, {KIMG_CH}
    s_add_u32 s{sT}, s{sT}, {KIMG+4088-2*(16+480+1536)}
    v_add_u32 v{aK}, s{sT}, v{aE}
    s_lshl_b32 s{sT}, s{sHALF}, 3
    s_add_u32 s{sT}, s{sT}, 14
    v_lshl_add_u32 v{m}, v{s_}, 4, v{m}
    v_add_u32 v{m}, s{sT}, v{m}
    s_lshl_b32 s{sT}, s{sCH}, 8
    s_add_u32 s{sT}, s{sT}, {UB}
    """)
    for ph in range(4):
        A(f"""
        v_subrev_u32 v{a0}, {4*ph}, v{m}
        v_lshrrev_b32 v{a1}, 4, v{a0}
        v_mul_u32_u24 v{a1}, {UP-256}, v{a1}
        v_lshl_add_u32 v{a1}, v{a0}, 4, v{a1}
        v_add_u32 v{aU+ph}, s{sT}, v{a1}
        """)
    A(f"s_mov_b32 s{sSP}, 0")
    if "fp" not in X: stamp(A,5)
    if "wuearly" not in X and "wul8" in X:
        A(f"""
        s_cmp_ge_u32 s{sW}, 4
        s_waitcnt vmcnt(1)
        s_cbranch_scc1 ka_chk2
        """)
    A.label("ka_chk")
    A("s_waitcnt vmcnt(0)")
    A.label("ka_chk2")
    A(f"""
    v_xor_b32 v{a0}, v{vXG+1}, v{vXG+3}
    v_xor_b32 v{a1}, v{vXG+5}, v{vXG+7}
    v_xor_b32 v{m}, s{sTAG}, v{vXG+1}
    v_or3_b32 v{a0}, v{a0}, v{a1}, v{m}
    v_xor_b32 v{a1}, s{sTAG}, v{vXG+5}
    v_xor_b32 v{m}, s{sTAG}, v{vSG+1}
    v_or3_b32 v{a0}, v{a0}, v{a1}, v{m}
    v_xor_b32 v{a1}, s{sTAG}, v{vSG+3}
    v_xor_b32 v{m}, s{sTAG}, v{vSG+5}
    v_or3_b32 v{a0}, v{a0}, v{a1}, v{m}
    v_xor_b32 v{a1}, s{sTAG}, v{vSG+7}
    v_or_b32 v{a0}, v{a0}, v{a1}
    v_cmp_ne_u32 vcc, 0, v{a0}
    s_cbranch_vccnz ka_retry
    """)
    A.label("ka_ok")
    if "fp" not in X: stamp(A,6)
    xt=vX
    for j in range(4):
        st=vSG+2*j; xc=vXG+2*j
        A(f"""
        v_and_b32 v{s_}, 0xffff0000, v{st}
        v_rcp_f32 v{s_}, v{s_}
        v_lshlrev_b32 v{a0}, 16, v{xc}
        v_and_b32 v{a1}, 0xffff0000, v{xc}
        v_lshlrev_b32 v{m}, 16, v{st}
        v_sub_f32 v{a0}, v{a0}, v{m}
        v_sub_f32 v{a1}, v{a1}, v{m}
        v_cvt_pk_bf16_f32 v{a0}, v{a0}, v{a1}
        v_and_b32 v{a1}, 0xffff0000, v{a0}
        v_lshlrev_b32 v{a0}, 16, v{a0}
        v_mul_f32 v{u0+j}, v{a0}, v{s_}
        v_mul_f32 v{u1+j}, v{a1}, v{s_}
        """)
    A(f"""
    v_cvt_pk_bf16_f32 v{pu}, v{u0}, v{u0+1}
    v_cvt_pk_bf16_f32 v{pu+1}, v{u0+2}, v{u0+3}
    v_cvt_pk_bf16_f32 v{pu+2}, v{u1}, v{u1+1}
    v_cvt_pk_bf16_f32 v{pu+3}, v{u1+2}, v{u1+3}
    ds_write_b64 v{vW+6}, v[{pu}:{pu+1}]
    ds_write_b64 v{vW+6}, v[{pu+2}:{pu+3}] offset:256
    v_perm_b32 v{xt}, v{vXG+2}, v{vXG}, s{sSEL}
    v_perm_b32 v{xt+1}, v{vXG+6}, v{vXG+4}, s{sSEL}
    v_perm_b32 v{xt+2}, v{vXG+2}, v{vXG}, s{sSEL+3}
    v_perm_b32 v{xt+3}, v{vXG+6}, v{vXG+4}, s{sSEL+3}
    ds_write_b64 v{vW+6}, v[{xt}:{xt+1}] offset:512
    ds_write_b64 v{vW+6}, v[{xt+2}:{xt+3}] offset:768
    s_cmp_ge_u32 s{sW}, 4
    s_waitcnt lgkmcnt(0)
    s_barrier
    s_cbranch_scc1 ka_aux
    """)
    stamp(A,7)
    acc=vW+48; fr=vW+64; EU=vW+128; EX=vW+136; UD=vW+144; XF=vW+160
    def loads(s):
        b=fr+32*(s%2)
        def Ak(k): ko=2*(480+1536-32*s-512*k); return [f"ds_read_b64 v[{b+4*k}:{b+4*k+1}], v{aK} offset:{ko}",f"ds_read_b64 v[{b+4*k+2}:{b+4*k+3}], v{aK} offset:{ko+8}"]
        def Bj(j): return [f"ds_read_b128 v[{b+16+4*j}:{b+19+4*j}], v{aU+(s&3)} offset:{UP*(3-(s>>2)+4*j)}"]
        return Ak(0)+Bj(0)+Bj(1)+Ak(1)+Bj(2)+Ak(2)+Bj(3)+Ak(3)
    order=[(0,0,3),(1,0,4),(1,1,6),(2,0,7),(2,1,7),(2,2,9),(3,0,10),(3,1,10),(3,2,10),(3,3,12)]
    if "noprio" not in X: A("s_setprio 2")
    for l in loads(0): A(l)
    ex0=[f"v_lshrrev_b32 v{m}, 2, v{p16}",f"v_mul_u32_u24 v{aE}, {UP}, v{m}",f"v_and_b32 v{s_}, 3, v{vL}",f"v_lshlrev_b32 v{s_}, 5, v{s_}",
         f"v_lshl_add_u32 v{s_}, v{g4}, 3, v{s_}",f"s_lshl_b32 s{sT}, s{sHALF}, 7",f"s_lshl_b32 s{sT2}, s{sCH}, 8",f"s_add_u32 s{sT}, s{sT}, s{sT2}",
         f"v_add_u32 v{s_}, s{sT}, v{s_}",f"v_add3_u32 v{aE}, v{aE}, v{s_}, s{sONE}"]
    A(f"s_mov_b32 s{sONE}, {UB+4*UP}")
    for l in ex0: A(l)
    rdx={1:[f"ds_read_b64 v[{EU+2*c}:{EU+2*c+1}], v{aE} offset:{4*UP*c}" for c in range(4)],
         2:[f"ds_read_b64 v[{EX+2*c}:{EX+2*c+1}], v{aE} offset:{4*UP*c+512}" for c in range(4)]}
    ex=[f"v_lshl_add_u32 v{aH}, v{m}, 17, v{s_}",f"s_lshl_b32 s{sT}, s{sG}, 9",f"s_add_u32 s{sT}, s{sT}, {WS_HT}",f"v_add_u32 v{aH}, s{sT}, v{aH}"]
    ex+=[f"v_add_u32 v{aH+c}, {c*524288}, v{aH}" for c in (1,2,3)]
    ex+=[f"s_lshl_b32 s{sT}, s{sDS}, 16", f"s_and_b32 s{sT2}, s{sDS}, 0xffff0000", f"s_cmp_eq_u32 s{sCH}, 0", f"s_cselect_b32 s{sDS}, s{sT}, s{sT2}"]
    for i in range(8):
        d=UD+2*i
        ex+=[f"v_lshlrev_b32 v{d}, 16, v{EU+i}",f"v_and_b32 v{d+1}, 0xffff0000, v{EU+i}",f"v_mul_f32 v{d}, s{sDS}, v{d}",f"v_mul_f32 v{d+1}, s{sDS}, v{d+1}",
             f"v_cvt_pk_bf16_f32 v{d}, v{d}, v{d+1}",f"v_and_b32 v{d+1}, 0xffff0000, v{d}",f"v_lshlrev_b32 v{d}, 16, v{d}"]
    for i in range(8):
        ex+=[f"v_lshlrev_b32 v{XF+2*i}, 16, v{EX+i}",f"v_and_b32 v{XF+2*i+1}, 0xffff0000, v{EX+i}"]
    prevx=0
    for s in range(16):
        b=fr+32*(s%2)
        L=(loads(s+1) if s<15 else [])+rdx.get(s,[])
        iss=0; lastw=-1
        for i,(c,k,need) in enumerate(order):
            if need>lastw:
                A(f"s_waitcnt lgkmcnt({min(15,12-need+prevx+iss)})"); lastw=need
            cc="0" if (s==0 and k==0) else f"v[{acc+4*c}:{acc+4*c+3}]"
            A(f"v_mfma_f32_16x16x32_bf16 v[{acc+4*c}:{acc+4*c+3}], v[{b+4*k}:{b+4*k+3}], v[{b+16+4*(c-k)}:{b+19+4*(c-k)}], {cc}")
            n=(len(L)*(i+1))//10-(len(L)*i)//10
            for _ in range(n): A(L[iss]); iss+=1
            if s>=4 and ex and n<2: A(ex.pop(0))
        prevx=len(rdx.get(s,[]))
    for l in ex: A(l)
    stamp(A,8)
    for c in range(4):
        a=acc+4*c
        for src in (UD+4*c,XF+4*c):
            A(f"""
            v_cvt_pk_bf16_f32 v{a}, v{a}, v{a+1}
            v_cvt_pk_bf16_f32 v{a+2}, v{a+2}, v{a+3}
            v_and_b32 v{a+1}, 0xffff0000, v{a}
            v_and_b32 v{a+3}, 0xffff0000, v{a+2}
            v_lshlrev_b32 v{a}, 16, v{a}
            v_lshlrev_b32 v{a+2}, 16, v{a+2}
            v_pk_add_f32 v[{a}:{a+1}], v[{a}:{a+1}], v[{src}:{src+1}]
            v_pk_add_f32 v[{a+2}:{a+3}], v[{a+2}:{a+3}], v[{src+2}:{src+3}]
            """)
        A(f"""
        v_cvt_pk_bf16_f32 v{a}, v{a}, v{a+1}
        v_cvt_pk_bf16_f32 v{a+1}, v{a+2}, v{a+3}
        global_store_dwordx2 v{aH+c}, v[{a}:{a+1}], s[30:31]{WT}
        """)
    A(f"""
    s_lshl_b32 s{sT}, s{sG}, 2
    s_add_u32 s{sT}, s{sT}, {WS_FLH}
    v_lshl_add_u32 v{vW+2}, v{vL}, 10, s{sT}
    v_mov_b32 v{vW+3}, s{sTAG}
    s_waitcnt vmcnt(0)
    """)
    A.label("ka_fin")
    A("s_barrier")
    stamp(A,9)
    A(f"""
    s_cmp_lg_u32 s{sW}, 0
    s_cbranch_scc1 ka_nofl
    s_mov_b64 exec, 0xff
    global_store_dword v{vW+2}, v{vW+3}, s[30:31]{WT}
    """)
    A.label("ka_nofl")
    dump(A,1,10,sW)
    A("s_mov_b64 exec, -1")
    AA=A; A=tail
    A.label("ka_retry")
    A(f"""
    s_add_u32 s{sSP}, s{sSP}, 1
    s_cmp_ge_u32 s{sSP}, {SPIN}
    s_cbranch_scc1 ka_ok
    """)
    if BO: A(f"s_sleep {BO}")
    A("s_mov_b64 exec, vcc")
    gload(" sc0 sc1")
    A("s_mov_b64 exec, -1")
    A("s_branch ka_chk")
    A.label("ka_aux")
    stamp(A,7)
    ad=vW+40; S=vW+44; t=vW+52
    RD=176
    if "rp" in X.split("_"):
        A(f"""
        s_sub_u32 s{sROW}, s{sW}, 4
        s_lshl_b32 s{sROW}, s{sROW}, 8
        s_add_u32 s{sROW}, s{sROW}, s2
        s_lshl_b32 s{sT}, s{sROW}, 10
        v_lshl_add_u32 v{RD+8}, v{vL}, 4, s{sT}
        global_load_dwordx4 v[{RD}:{RD+3}], v{RD+8}, s[24:25]
        s_cmp_ge_u32 s{sROW}, {1376-1024}
        s_cbranch_scc1 ka_nod2
        v_add_u32 v{RD+8}, {1024*1024}, v{RD+8}
        global_load_dwordx4 v[{RD+4}:{RD+7}], v{RD+8}, s[24:25]
        """)
        A.label("ka_nod2")
    A(f"""
    s_sub_u32 s{sU}, s{sW}, 6
    s_lshl_b32 s{sU}, s{sU}, 8
    s_add_u32 s{sU}, s{sU}, s2
    s_cmp_ge_u32 s{sU}, 344
    s_cbranch_scc1 ka_nocs
    s_lshr_b32 s{sT}, s{sU}, 2
    s_cmp_ge_u32 s{sT}, 43
    s_cselect_b32 s62, s22, s20
    s_cselect_b32 s63, s23, s21
    s_cselect_b32 s{sT2}, 43, 0
    s_sub_u32 s{sT}, s{sT}, s{sT2}
    s_lshl_b32 s{sT}, s{sT}, 6
    s_and_b32 s{sT2}, s{sU}, 3
    s_mul_i32 s{sT2}, s{sT2}, {128*2752}
    s_add_u32 s{sT}, s{sT}, s{sT2}
    v_lshrrev_b32 v{vCA}, 2, v{vL}
    v_mul_u32_u24 v{vCA}, 2752, v{vCA}
    v_and_b32 v{vCA+1}, 3, v{vL}
    v_lshl_add_u32 v{vCA}, v{vCA+1}, 4, v{vCA}
    v_add_u32 v{vCA}, s{sT}, v{vCA}
    """)
    for i in range(8):
        A(f"global_load_dwordx4 v[{vCS+4*i}:{vCS+4*i+3}], v{vCA}, s[62:63]")
        if i<7: A(f"v_add_u32 v{vCA}, {16*2752}, v{vCA}")
    A.label("ka_nocs")
    c_=vW+56
    A(f"v_mov_b32 v{c_+5}, 0x40000000")
    for v in range(3):
        A(f"""
        v_add_u32 v{c_}, {64*v}, v{vL}
        v_mul_u32_u24 v{c_+1}, 0xaaab, v{c_}
        v_lshrrev_b32 v{c_+1}, 19, v{c_+1}
        v_mul_u32_u24 v{c_+2+v}, 12, v{c_+1}
        v_sub_u32 v{c_+2+v}, v{c_}, v{c_+2+v}
        v_mul_u32_u24 v{c_+1}, {2752-192}, v{c_+1}
        v_lshl_add_u32 v{vWo+v}, v{vL}, 4, v{c_+1}
        """)
    A(f"""
    s_and_b32 s{sT}, s2, 1
    s_lshr_b32 s{sT2}, s2, 5
    s_mul_i32 s{sCBg}, s{sT}, 7
    s_add_u32 s{sCBg}, s{sCBg}, s{sT2}
    s_add_u32 s{sT}, s{sT}, 14
    s_cmp_eq_u32 s{sT2}, 7
    s_cselect_b32 s{sCBg}, s{sT}, s{sCBg}
    s_cmp_eq_u32 s{sCBg}, 14
    s_cselect_b32 s{sT}, 4, 12
    s_cmp_eq_u32 s{sCBg}, 15
    s_cselect_b32 s{sT}, 0, s{sT}
    """)
    for v in range(3):
        A(f"""
        v_cmp_le_u32 vcc, s{sT}, v{c_+2+v}
        v_cndmask_b32 v{vWo+v}, v{vWo+v}, v{c_+5}, vcc
        """)
    A(f"""
    s_mul_i32 s{sWO}, s{sCH}, {16*2752}
    s_mul_i32 s{sT2}, s{sCBg}, 192
    s_add_u32 s{sWO}, s{sWO}, s{sT2}
    s_and_b32 s35, s2, {6 if ROTW else 0}
    s_lshl_b32 s35, s35, 1
    s_mul_i32 s{sT2}, s35, {32*2752}
    s_add_u32 s{sWO}, s{sWO}, s{sT2}
    s_mul_i32 s{sM0W}, s{sCH}, 3072
    s_mul_i32 s{sT}, s{sHALF}, {W_U}
    s_add_u32 s{sM0W}, s{sM0W}, s{sT}
    s_cmp_ge_u32 s{sW}, 6
    s_cselect_b32 s{sWt}, s22, s20
    s_cselect_b32 s{sWt+1}, s23, s21
    s_mov_b32 s{sWt+2}, {512*2752}
    s_mov_b32 s{sWt+3}, 0x20000
    """)
    def prefill():
        A(f"""
        s_mul_i32 s{sSP}, s{sCBg}, 3
        s_min_u32 s{sSP}, s{sSP}, 40
        s_and_b32 s{sT}, s2, 6
        s_lshl_b32 s{sT}, s{sT}, 1
        s_bfe_u32 s{sT2}, s2, 0x20003
        s_add_u32 s{sT}, s{sT}, s{sT2}
        s_lshl_b32 s{sT}, s{sT}, 2
        s_add_u32 s{sT}, s{sT}, s{sW}
        s_sub_u32 s{sT}, s{sT}, 4
        s_mul_i32 s{sT}, s{sT}, 86
        s_add_u32 s{sT}, s{sT}, s{sSP}
        s_lshl_b32 s{sT}, s{sT}, 10
        s_add_u32 s{sT}, s{sT}, {WS_HM}
        v_lshl_add_u32 v{c_}, v{vL}, 4, s{sT}
        v_add_u32 v{c_+1}, {43*1024}, v{c_}
        v_mov_b32 v{c_+4}, -1
        v_mov_b32 v{c_+5}, -1
        v_mov_b32 v{c_+6}, -1
        v_mov_b32 v{c_+7}, -1
        """)
        for o in (0,1024,2048):
            for r in (0,1): A(f"global_store_dwordx4 v{c_+r}, v[{c_+4}:{c_+7}], s[30:31] offset:{o}{WT}")
    prefill()
    for st in range(NPL//2): issue_w(A,st)
    A(f"""
    s_cmp_lg_u32 s{sW}, 4
    s_cbranch_scc1 ka_a3
    s_cmp_lg_u32 s2, 0
    s_cbranch_scc1 ka_a3
    s_add_u32 s{sT}, s{sEP}, 1
    v_mov_b32 v{t}, {WS_EPOCH}
    v_mov_b32 v{t+1}, s{sT}
    s_mov_b64 exec, 1
    global_store_dword v{t}, v{t+1}, s[30:31]
    """)
    A.label("ka_a3")
    A("s_mov_b64 exec, -1")
    if "rp" in X.split("_"):
        A(f"""
        s_bfe_u32 s{sT}, s{sROW}, 0x10001
        s_bfe_u32 s{sT2}, s{sROW}, 0x10003
        s_lshl_b32 s{sT2}, s{sT2}, 1
        s_or_b32 s{sT}, s{sT}, s{sT2}
        s_lshl_b32 s{sT}, s{sT}, 1
        v_and_b32 v{RD+8}, 7, v{vL}
        v_xor_b32 v{RD+8}, s{sT}, v{RD+8}
        v_lshrrev_b32 v{RD+9}, 3, v{vL}
        v_mul_u32_u24 v{RD+9}, {43*4096}, v{RD+9}
        v_lshl_add_u32 v{RD+8}, v{RD+8}, 4, v{RD+9}
        s_lshl_b32 s{sT}, s{sROW}, 7
        s_add_u32 s{sT}, s{sT}, {WS_WD2}
        v_add_u32 v{RD+8}, s{sT}, v{RD+8}
        s_waitcnt vmcnt({3*(NPL//2)+6})
        global_store_dwordx4 v{RD+8}, v[{RD}:{RD+3}], s[30:31]{WT}
        s_cmp_ge_u32 s{sROW}, {1376-1024}
        s_cbranch_scc1 ka_nod3
        v_add_u32 v{RD+8}, {1024*128}, v{RD+8}
        global_store_dwordx4 v{RD+8}, v[{RD+4}:{RD+7}], s[30:31]{WT}
        """)
        A.label("ka_nod3")
    if "dpf" in X:
        A(f"""
        s_cmp_ge_u32 s{sW}, 6
        s_cbranch_scc1 ka_nodpf
        s_lshr_b32 s{sT}, s2, 3
        s_lshl_b32 s{sT}, s{sT}, 1
        s_add_u32 s{sT}, s{sT}, s{sCH}
        s_mul_i32 s{sT}, s{sT}, {172*128}
        v_lshl_add_u32 v{c_}, v{vL}, 7, s{sT}
        global_load_dword v{vRA+3}, v{c_}, s[24:25]
        v_add_u32 v{c_}, 8192, v{c_}
        global_load_dword v{vRA+3}, v{c_}, s[24:25]
        v_add_u32 v{c_}, 8192, v{c_}
        s_mov_b32 exec_hi, 0xfff
        global_load_dword v{vRA+3}, v{c_}, s[24:25]
        s_mov_b32 exec_hi, -1
        """)
        A.label("ka_nodpf")
    A(f"""
    s_cmp_ge_u32 s{sU}, 344
    s_cbranch_scc1 ka_pfw
    s_waitcnt vmcnt({3*(NPL//2)+6+(1 if "rp" in X.split("_") else 0)})
    """)
    for i in range(8):
        for j in range(4):
            r=vCS+4*i+j
            if i==0:
                A(f"v_lshlrev_b32 v{S+2*j}, 16, v{r}")
                A(f"v_and_b32 v{S+2*j+1}, 0xffff0000, v{r}")
            else:
                A(f"v_lshlrev_b32 v{t}, 16, v{r}")
                A(f"v_and_b32 v{t+1}, 0xffff0000, v{r}")
                A(f"v_add_f32 v{S+2*j}, v{S+2*j}, v{t}")
                A(f"v_add_f32 v{S+2*j+1}, v{S+2*j+1}, v{t+1}")
    for j in range(4): A(f"v_permlane32_swap_b32 v{S+j}, v{S+j+4}")
    for j in range(4): A(f"v_add_f32 v{S+j}, v{S+j}, v{S+j+4}")
    for j in range(2): A(f"v_permlane16_swap_b32 v{S+j}, v{S+j+2}")
    for j in range(2): A(f"v_add_f32 v{S+j}, v{S+j}, v{S+j+2}")
    for ctl in ("row_ror:8","row_ror:4"):
        for j in range(2): A(f"v_add_f32_dpp v{S+j}, v{S+j}, v{S+j} {ctl} row_mask:0xf bank_mask:0xf")
    d=S+2
    A(f"""
    v_and_b32 v{t}, 4, v{vL}
    v_cmp_ne_u32 vcc, 0, v{t}
    v_cndmask_b32 v{S}, v{S}, v{S+1}, vcc
    v_cvt_pk_bf16_f32 v{S+1}, v{S}, v{S}
    v_and_b32 v{S+1}, 0xffff0000, v{S+1}
    v_sub_f32 v{S+1}, v{S}, v{S+1}
    v_cvt_pk_bf16_f32 v{d}, v{S}, v{S+1}
    v_mov_b32 v{d+1}, s{sTAG}
    v_lshlrev_b32 v{ad}, 8, v{vCA+1}
    v_lshl_add_u32 v{ad}, v{hh}, 7, v{ad}
    v_and_b32 v{t+1}, 16, v{vL}
    v_lshl_add_u32 v{ad}, v{t+1}, 2, v{ad}
    v_lshl_add_u32 v{ad}, v{t}, 3, v{ad}
    s_lshr_b32 s{sT}, s{sU}, 2
    s_lshl_b32 s{sT}, s{sT}, 10
    s_and_b32 s{sT2}, s{sU}, 3
    s_lshl_b32 s{sT2}, s{sT2}, 3
    s_add_u32 s{sT}, s{sT}, s{sT2}
    s_add_u32 s{sT}, s{sT}, {WS_CS}
    v_add_u32 v{ad}, s{sT}, v{ad}
    s_mov_b32 exec_lo, 0x00ff00ff
    s_mov_b32 exec_hi, 0x00ff00ff
    global_store_dwordx2 v{ad}, v[{d}:{d+1}], s[30:31]{WT}
    s_mov_b64 exec, -1
    """)
    A.label("ka_pfw")
    for st in range(NPL//2,NPL): issue_w(A,st)
    A(f"s_waitcnt vmcnt({3*NPL if 'rp' not in X.split('_') else 3*(NPL-NPL//2)})")
    stamp(A,8)
    A("s_branch ka_fin")
```

```python
from common import *
from mA import WSLOT,NWS,W_U,X_CNT,sTAG,sWt,sWO,sM0W,vWo,issue_w,NPL,WT,ROTW
GC1=-2.0*math.sqrt(2.0/math.pi)*LOG2E; GC2=GC1*0.044715
HR=NWS*WSLOT; HRN=4; SPARE=HR+HRN*8192
FS=int(os.environ.get('FS','5'))
NREG=6; SPIN=1<<16; NA=int(os.environ.get('NA','21'))
WS_SIZE=0x1000000
NPRE=int(os.environ.get('NPRE','10')); WPI=int(os.environ.get("WPI","3"))
RL=4
def make_sched():
    free=[(SPARE,-1 if 'rp' not in X.split('_') else 0)]
    for st in range(6,16):
        for i in range(3): free.append(((st%NWS)*WSLOT+4096*i, st+1))
        if st>=12:
            for i in range(2): free.append((HR+(st%HRN)*8192+4096*i, st+1))
    loc={}; issue={j:[] for j in range(-1,17)}; read={j:[] for j in range(17)}
    nb=0; res=None
    for j in range(-1,17):
        lim = 99 if j==16 else (1 if j<0 else (WPI if j+HRN-1<16 else WPI+2))
        c=0
        if j==7:
            res=6*WSLOT; free=[f for f in free if f[0] not in (res,res+4096)]
            issue[j].append("r"); c+=2; read[j+RL].append("r"); free+= [(res,j+RL+1),(res+4096,j+RL+1)]
        while nb<43 and c<lim:
            av=sorted([f for f in free if f[1]<=j],key=lambda f:f[1])
            if not av: break
            f=av[0]; free.remove(f); loc[nb]=f[0]; issue[j].append(nb)
            if nb<NPRE:
                jr=max(j+RL,1) if j>=0 else 1; read[jr].append(nb); free.append((f[0],jr+1 if jr<int(os.environ.get('LB','14')) else 99))
            nb+=1; c+=1
    assert nb==43 and len(free)>=4
    return loc,issue,read,res,[f[0] for f in free[:4]]
LOC,ISSUE,READ,X_RES,X_RED=make_sched()
def wd_loc(b): return LOC[b]
ORD=[b for b in range(43) if b%3!=2]+[b for b in range(43) if b%3==2]
LB=int(os.environ.get('LB','14'))
CS_=int(os.environ.get('CSL','1'))
CUE=int(os.environ.get('CUE','4'))
def bc(r): return f"v[{r}:{r+1}]"

def phaseB(A):
    sW=36; sMB=37; sCB=38; sT=39; sT2=40; sJ=42; sHO=43; sOO=44; sM0H=45; sHM=46; sDO=47
    sNB=55; sHF=41; sRO=23; sS=48; sC=56; sOUT=60; sD=4; sM0D=16; sSP=17
    vL=1; vT=10
    SR=f"s[{sS}:{sS+3}]"
    stamp(A,0)
    A(f"""
    s_and_b32 s{sT}, s2, 1
    s_lshr_b32 s{sT2}, s2, 5
    s_mul_i32 s{sCB}, s{sT}, 7
    s_add_u32 s{sCB}, s{sCB}, s{sT2}
    s_add_u32 s{sT}, s{sT}, 14
    s_cmp_eq_u32 s{sT2}, 7
    s_cselect_b32 s{sCB}, s{sT}, s{sCB}
    s_and_b32 s{sT}, s{sT2}, 3
    s_cmp_eq_u32 s{sT}, 3
    s_cselect_b32 s{sT}, 4, 0
    s_xor_b32 s{sNB}, s{sT2}, s{sT}
    s_and_b32 s{sHF}, s2, 1
    s_and_b32 s{sRO}, s2, 7
    s_mul_i32 s{sRO}, s{sRO}, {0 if "norot" in X else 7}
    s_lshr_b32 s{sRO}, s{sRO}, 2
    s_mul_i32 s{sRO}, s{sRO}, 3072
    s_and_b32 s{sT}, s2, 6
    s_lshl_b32 s{sT}, s{sT}, 1
    s_bfe_u32 s{sT2}, s2, 0x20003
    s_add_u32 s{sMB}, s{sT}, s{sT2}
    v_mov_b32 v8, {X_CNT}
    s_mov_b32 s{sS}, s30
    s_mov_b32 s{sS+1}, s31
    s_mov_b32 s{sS+2}, {WS_SIZE}
    s_mov_b32 s{sS+3}, 0x20000
    s_cmp_lt_u32 s{sW}, 4
    s_cbranch_scc1 k2_lo
    """)
    vH=2; vLin=3; vR=7
    def p2_setup():
        A(f"""
        s_mov_b32 s{sT}, s{sNB}
        s_lshl_b32 s{sM0D}, s{sW}, 10
        v_bfe_u32 v{vT}, v{vL}, 4, 2
        v_lshlrev_b32 v{vT}, 1, v{vT}
        v_and_b32 v{vT+1}, 7, v{vL}
        v_xor_b32 v{vT}, v{vT}, v{vT+1}
        v_lshlrev_b32 v{vT}, 4, v{vT}
        v_lshrrev_b32 v{vT+2}, 3, v{vL}
        v_lshl_add_u32 v{vR}, v{vT+2}, 8, v{vT}
        s_lshl_b32 s{sDO}, s{sT}, 7
        s_lshl_b32 s{sT2}, s{sW}, 13
        s_add_u32 s{sDO}, s{sDO}, s{sT2}
        v_bfe_u32 v{vT}, v{vL}, 4, 1
        s_and_b32 s{sT}, s{sW}, 1
        s_lshl_b32 s{sT}, s{sT}, 1
        v_or_b32 v{vT}, s{sT}, v{vT}
        v_lshlrev_b32 v{vT}, 1, v{vT}
        v_xor_b32 v{vT}, v{vT}, v{vT+1}
        v_lshlrev_b32 v{vT}, 4, v{vT}
        v_lshl_add_u32 v{vLin}, v{vT+2}, 10, v{vT}
        """)
        srd(A,sD,24,0,1376*1024)
        if "rp" in X.split("_"):
            A(f"""
            s_mov_b32 s{sT}, s{sNB}
            s_mul_i32 s{sDO}, s{sT}, {43*4096}
            s_add_u32 s{sDO}, s{sDO}, s{sM0D}
            s_add_u32 s{sDO}, s{sDO}, {WS_WD2}
            v_lshlrev_b32 v{vLin}, 4, v{vL}
            """)
    def blk(b):
        o=ORD[b]
        if o==42: return [f"s_mov_b32 s{sT2}, {42*1024}"]
        return [f"s_add_u32 s{sT2}, s{sRO}, {o*1024}", f"s_sub_u32 s{sT}, s{sT2}, {42*1024}", f"s_cselect_b32 s{sT2}, s{sT2}, s{sT}"]
    def issue_wd(b,loc=None):
        if "rp" in X.split("_"):
            A(f"""
            s_add_u32 m0, s{sM0D}, {wd_loc(b) if loc is None else loc}
            s_add_u32 s{sT}, s{sDO}, {4096*ORD[b]}
            buffer_load_dwordx4 v{vLin}, {SR}, s{sT} offen lds
            """)
            return
        A(f"""
        {chr(10).join(blk(b))}
        s_lshl_b32 s{sT2}, s{sT2}, 5
        s_add_u32 m0, s{sM0D}, {wd_loc(b) if loc is None else loc}
        s_add_u32 s{sT}, s{sDO}, s{sT2}
        buffer_load_dwordx4 v{vLin}, s[{sD}:{sD+3}], s{sT} offen lds
        """)
    def issue_res():
        A(f"""
        s_mov_b32 s{sT}, s{sNB}
        s_lshl_b32 s{sT}, s{sT}, 14
        s_lshl_b32 s{sT2}, s{sW}, 12
        s_add_u32 s{sT}, s{sT}, s{sT2}
        s_lshl_b32 s{sT2}, s{sMB}, 17
        s_add_u32 s{sT}, s{sT}, s{sT2}
        s_mov_b32 s{sT2}, s{sHF}
        s_lshl_b32 s{sT2}, s{sT2}, 7
        s_add_u32 s{sT}, s{sT}, s{sT2}
        s_add_u32 s{sT}, s{sT}, {WS_HT}
        s_lshl_b32 s{sT2}, s{sW}, 11
        s_add_u32 m0, s{sT2}, {X_RES}
        s_add_u32 s{sT2}, s{sT}, 2048
        buffer_load_dwordx4 v{vR}, {SR}, s{sT} offen lds
        s_add_u32 m0, m0, 1024
        s_nop 0
        buffer_load_dwordx4 v{vR}, {SR}, s{sT2} offen lds
        """)
    def issue_h(st):
        A(f"""
        s_add_u32 m0, s{sM0H}, {HR+(st%HRN)*8192}
        s_nop 0
        buffer_load_dwordx4 v{vH}, {SR}, s{sHO} offen lds
        buffer_load_dwordx4 v{vH}, {SR}, s{sHO} offen offset:1024 lds
        s_add_u32 s{sHO}, s{sHO}, 8192
        """)
        if st in (3,7,11) and ROTW:
            A(f"""
            s_cmp_eq_u32 s35, {15-st}
            s_cselect_b32 s3, {16*8192}, 0
            s_sub_u32 s{sHO}, s{sHO}, s3
            """)
    def lbar(k):
        l=A.newlabel("k2_lb")
        A(f"""
        v_mov_b32 v9, 1
        s_mov_b64 exec, 1
        ds_add_u32 v8, v9
        s_mov_b64 exec, -1
        """)
        A.label(l)
        A(f"""
        ds_read_b32 v9, v8
        s_waitcnt lgkmcnt(0)
        v_cmp_gt_u32 vcc, {4*k}, v9
        s_cbranch_vccnz {l}
        """)
    aW=12; aRr=15; vF=16; vHo=17; vOo=18; vX=19
    NS=11
    ACC=20; RG=36; FW=RG+16*(NS-1); NH=7; FH=RG+16*NS; aWn=FH+4*NH
    def p2_addr(grpB):
        A(f"""
        v_bfe_u32 v{vT}, v{vL}, 2, 2
        v_lshrrev_b32 v{vT+1}, 4, v{vL}
        v_lshl_add_u32 v{aW}, v{vT+1}, 3, v{vT}
        v_lshlrev_b32 v{aW}, 7, v{aW}
        v_and_b32 v{aW+1}, 3, v{vL}
        v_lshl_add_u32 v{aW}, v{aW+1}, 3, v{aW}
        v_lshrrev_b32 v{aW+2}, 1, v{vT}
        v_and_b32 v{vF}, 1, v{vT+1}
        v_lshl_or_b32 v{aW+2}, v{vF}, 1, v{aW+2}
        """)
        for nt in range(4):
            A(f"v_xor_b32 v{vF}, {nt}, v{aW+2}")
            A(f"v_lshl_add_u32 v{aWn+nt}, v{vF}, 5, v{aW}")
            A(f"v_add_u32 v{aWn+4+nt}, 0xf000, v{aWn+nt}")
            A(f"v_add_u32 v{aWn+8+nt}, 0x1e000, v{aWn+nt}")
        if not grpB:
            A(f"""
            v_lshl_add_u32 v{aRr}, v{vT+1}, 2, v{vT}
            v_lshlrev_b32 v{aRr}, 7, v{aRr}
            v_lshl_add_u32 v{aRr}, v{aW+1}, 3, v{aRr}
            v_xor_b32 v{vF}, s{sW}, v{aW+2}
            v_lshl_add_u32 v{aRr}, v{vF}, 5, v{aRr}
            v_add_u32 v{aRr}, {X_RES}, v{aRr}
            """)
        A(f"""
        v_lshlrev_b32 v{vHo}, 4, v{vL}
        v_and_b32 v{vOo}, 15, v{vL}
        v_lshlrev_b32 v{vOo}, 10, v{vOo}
        v_lshl_add_u32 v{vOo}, v{vT+1}, 3, v{vOo}
        s_mov_b32 s{sT}, {X_RED[0]}
        s_cmp_eq_u32 s{sW}, 1
        s_cselect_b32 s{sT}, {X_RED[1]}, s{sT}
        s_cmp_eq_u32 s{sW}, 2
        s_cselect_b32 s{sT}, {X_RED[2]}, s{sT}
        s_cmp_eq_u32 s{sW}, 3
        s_cselect_b32 s{sT}, {X_RED[3]}, s{sT}
        v_add_u32 v{vX}, s{sT}, v{vHo}
        """)
        srd(A,sOUT,26,0,2048*1024)
        A(f"""
        s_lshl_b32 s{sT}, s{sMB}, 1
        s_mov_b32 s{sT2}, s{sHF}
        s_add_u32 s{sT}, s{sT}, s{sT2}
        s_lshl_b32 s{sT}, s{sT}, 2
        s_add_u32 s{sT}, s{sT}, s{sW}
        s_mul_i32 s{sHM}, s{sT}, {43*1024}
        s_add_u32 s{sHM}, s{sHM}, {WS_HM}
        s_lshl_b32 s{sOO}, s{sT}, 14
        s_mov_b32 s{sT2}, s{sNB}
        s_lshl_b32 s{sT2}, s{sT2}, 7
        s_add_u32 s{sOO}, s{sOO}, s{sT2}
        """)
    def rdw(dst,b,loc=None):
        loc=wd_loc(b) if loc is None else loc; win=loc//0xf000; off=loc-win*0xf000
        return [f"ds_read_b64_tr_b16 v[{dst+4*nt+2*e}:{dst+4*nt+2*e+1}], v{aWn+4*win+nt} offset:{off+512*e}" for nt in range(4) for e in range(2)]
    assert NPRE>=10
    stubs=[]
    def cnt_wait(off,val):
        l=A.newlabel("k2_cw")
        if CS_:
            A(f"s_branch {l}_e")
        A.label(l)
        if CS_:
            A(f"s_sleep {CS_}")
            A.label(l+"_e")
        A(f"""
        ds_read_b32 v9, v8 offset:{off}
        s_waitcnt lgkmcnt(0)
        v_cmp_gt_u32 vcc, {val}, v9
        s_cbranch_vccnz {l}
        """)
    def cnt_add(off):
        A(f"""
        v_mov_b32 v9, 1
        s_mov_b64 exec, 1
        ds_add_u32 v8, v9 offset:{off}
        s_mov_b64 exec, -1
        """)
    def p2_loop(b0,n,grpB):
        def ldh(s,sc=""):
            d=FH+4*(s%NH)
            return blk(b0+s)+[f"s_add_u32 s{sT}, s{sHM}, s{sT2}", f"buffer_load_dwordx4 v[{d}:{d+3}], v{vHo}, {SR}, s{sT} offen{sc}"]
        D=min(NH-1,int(os.environ.get("P2D","6"))); PD=NPRE
        A(f"s_mov_b32 s{sSP}, 0")
        for s in range(D):
            for l in ldh(s): A(l)
        for s in range(n):
            src=RG+16*(s%NS)
            nr=rdw(RG+16*((s+PD)%NS),b0+s+PD) if s+PD<n else []
            lg=""
            if s>=NPRE:
                out=8*(min(n,s+PD)-s-1)
                if out<=15: lg=f" lgkmcnt({out})"
            A(f"s_waitcnt vmcnt({min(n,s+D)-s-1})"+lg)
            h=FH+4*(s%NH)
            lc=f"k2_c{b0+s}"; lr=f"k2_r{b0+s}"; lo=f"k2_o{b0+s}"
            A.label(lc)
            A(f"""
            v_max3_u32 v{vT}, v{h}, v{h+1}, v{h+2}
            v_max_u32 v{vT}, v{vT}, v{h+3}
            v_cmp_eq_u32 vcc, -1, v{vT}
            s_cbranch_vccnz {lr}
            """)
            A.label(lo)
            stubs.append((lr,lc,lo,ldh(s," sc0 sc1")+(ldh(s+1," sc0 sc1") if (s+1<n and "r1" not in X) else [])))
            if s+D<n:
                for l in ldh(s+D): A(l)
            for nt in range(4):
                c="0" if (grpB and s==0) else f"v[{ACC+4*nt}:{ACC+4*nt+3}]"
                A(f"v_mfma_f32_16x16x32_bf16 v[{ACC+4*nt}:{ACC+4*nt+3}], v[{src+4*nt}:{src+4*nt+3}], v[{h}:{h+3}], {c}")
                if nt==0 and nr: A("s_waitcnt lgkmcnt(7)")
                for r in nr[2*nt:2*nt+2]: A(r)
        if not(grpB and 'prof' in X): stamp(A,7)
        give=ACC if grpB else ACC+8; keep=ACC+8 if grpB else ACC
        wo=0 if grpB else 2048; ro=2048 if grpB else 0
        A(f"""
        ds_write_b128 v{vX}, v[{give}:{give+3}] offset:{wo}
        ds_write_b128 v{vX}, v[{give+4}:{give+7}] offset:{wo+1024}
        s_waitcnt lgkmcnt(0)
        s_barrier
        ds_read_b128 v[{RG}:{RG+3}], v{vX} offset:{ro}
        ds_read_b128 v[{RG+4}:{RG+7}], v{vX} offset:{ro+1024}
        """)
        for i in range(2):
            A(f"s_waitcnt lgkmcnt({1-i})")
            for q in range(2):
                r=4*i+2*q
                A(f"v_pk_add_f32 {bc(keep+r)}, {bc(keep+r)}, {bc(RG+r)}")
            for q in range(2):
                r=4*i+2*q
                A(f"v_cvt_pk_bf16_f32 v{RG+8+2*i+q}, v{keep+r}, v{keep+r+1}")
            A(f"buffer_store_dwordx2 {bc(RG+8+2*i)}, v{vOo}, s[{sOUT}:{sOUT+3}], s{sOO} offen offset:{32*(i+(2 if grpB else 0))}")
    PF=200
    def hpoll(lab,sl=0):
        A(f"""
        s_cmp_lg_u32 s{sW}, 0
        s_cbranch_scc1 {lab}_d
        s_lshr_b32 s{sT}, s{sMB}, 1
        s_lshl_b32 s{sT}, s{sT}, 10
        s_add_u32 s{sT}, s{sT}, {WS_FLH}
        v_lshl_add_u32 v{PF+4}, v{vL}, 4, s{sT}
        s_mov_b32 s{sSP}, 0
        """)
        A.label(lab)
        A(f"""
        global_load_dwordx4 v[{PF}:{PF+3}], v{PF+4}, s[30:31] sc0 sc1
        s_add_u32 s{sSP}, s{sSP}, 1
        s_cmp_ge_u32 s{sSP}, {SPIN}
        s_cbranch_scc1 {lab}_d
        s_waitcnt vmcnt(0)
        v_xor_b32 v{PF}, s{sTAG}, v{PF}
        v_xor_b32 v{PF+1}, s{sTAG}, v{PF+1}
        v_xor_b32 v{PF+2}, s{sTAG}, v{PF+2}
        v_xor_b32 v{PF+3}, s{sTAG}, v{PF+3}
        v_or3_b32 v{PF}, v{PF}, v{PF+1}, v{PF+2}
        v_or_b32 v{PF}, v{PF}, v{PF+3}
        v_cmp_ne_u32 vcc, 0, v{PF}
        s_mov_b64 exec, vcc
        s_cbranch_vccnz {lab}
        """)
        A.label(lab+"_d")
        A("s_mov_b64 exec, -1")
    A(f"""
    s_cmp_eq_u32 s{sCB}, 15
    s_cbranch_scc1 k2_stats
    """)
    WPRE=int(os.environ.get('WPRE','10'))
    for st in range(NPL,WPRE): issue_w(A,st)
    nw=[WPRE]
    A(f"""
    s_sub_u32 s{sW}, s{sW}, 4
    v_lshrrev_b32 v{vT}, 4, v{vL}
    v_lshlrev_b32 v{vT+1}, 2, v{vT}
    v_and_b32 v{vT+2}, 15, v{vL}
    v_xor_b32 v{vT+1}, v{vT+1}, v{vT+2}
    v_lshlrev_b32 v{vT+1}, 4, v{vT+1}
    v_lshl_add_u32 v{vH}, v{vT}, 8, v{vT+1}
    s_lshl_b32 s{sM0H}, s{sW}, 11
    s_lshl_b32 s{sT}, s{sMB}, 17
    s_add_u32 s{sHO}, s{sM0H}, s{sT}
    s_add_u32 s{sHO}, s{sHO}, {WS_HT}
    s_lshl_b32 s{sT}, s35, 13
    s_add_u32 s{sHO}, s{sHO}, s{sT}
    """)
    p2_setup()
    p2_addr(False)
    def rd_res():
        for q in range(4): A(f"ds_read_b64_tr_b16 v[{FW+2*q}:{FW+2*q+1}], v{aRr} offset:{2048*q}")
        A("s_waitcnt lgkmcnt(0)")
        for q in range(8):
            A(f"v_lshlrev_b32 v{ACC+2*q}, 16, v{FW+q}")
            A(f"v_and_b32 v{ACC+2*q+1}, 0xffff0000, v{FW+q}")
    for b in ISSUE[-1]: issue_wd(b)
    stamp(A,1)
    if "lopoll" not in X: hpoll("k2_hp")
    A("s_barrier")
    stamp(A,2)
    issued=[]
    for st in range(HRN-1): issue_h(st); issued.append((("h",st),2))
    def after(keys):
        idx=max(i for i,(t,_) in enumerate(issued) if t in keys)
        return sum(c for _,c in issued[idx+1:])
    for j in range(17):
        if j<=LB:
            keys={('h',j),('w',j),('d',j-RL)} | ({('h',15)} if j==LB else set())
            A(f"s_waitcnt vmcnt({min(63,after(keys))}) lgkmcnt(0)")
            A("s_barrier")
        elif j==15: cnt_wait(8,4)
        else: cnt_wait(12,4)
        if j==0: stamp(A,3)
        if j+HRN-1<16: issue_h(j+HRN-1); issued.append((("h",j+HRN-1),2))
        if nw[0]<16 and nw[0]-NWS+1<=j:
            assert nw[0]>=j+2
            issue_w(A,nw[0]); issued.append((("w",nw[0]),3)); nw[0]+=1
        c=0; rl=list(READ[j])
        for b in ISSUE[j]:
            if b=="r": issue_res(); c+=2
            else: issue_wd(b); c+=1
            if rl:
                x=rl.pop(0)
                if x=="r": rd_res()
                else:
                    for r in rdw(RG+16*x,x): A(r)
        for x in rl:
            if x=="r": rd_res()
            else:
                for r in rdw(RG+16*x,x): A(r)
        if c: issued.append((("d",j),c))
    stamp(A,4)
    A.label("k2_p2")
    A("s_waitcnt vmcnt(0)")
    cnt_add(0)
    cnt_wait(0,4)
    stamp(A,5)
    cnt_wait(4,4)
    stamp(A,6)
    p2_loop(0,NA,False)
    dump(A,2,8,sW,4)
    A("s_endpgm")
    A.label("k2_lo")
    A(f"""
    s_cmp_eq_u32 s{sCB}, 15
    s_cbranch_scc1 k2_stats_lo
    """)
    p2_addr(True)
    sWT=18; sWF=19
    aH=2; aWc=4; cT=11; CSF=208; FA=30; FB=50; CAC=70; vS=166; vSt=170
    A(f"""
    s_setprio 1
    s_and_b32 s{sWT}, s{sW}, 1
    s_lshr_b32 s{sWF}, s{sW}, 1
    v_bfe_u32 v{cT}, v{vL}, 2, 2
    v_lshrrev_b32 v{cT+1}, 5, v{vL}
    v_lshl_add_u32 v{cT+1}, v{cT+1}, 3, v{cT}
    v_and_b32 v{cT+2}, 3, v{vL}
    v_bfe_u32 v{cT+3}, v{vL}, 4, 1
    v_lshlrev_b32 v{cT+4}, 8, v{cT+1}
    v_lshl_add_u32 v{cT+4}, v{cT+3}, 5, v{cT+4}
    v_lshl_add_u32 v{cT+4}, v{cT+2}, 3, v{cT+4}
    v_add_u32 v{cT+4}, {HR}, v{cT+4}
    s_lshl_b32 s{sT}, s{sWT}, 1
    v_xor_b32 v{cT+5}, s{sT}, v{cT}
    v_lshl_add_u32 v{aH}, v{cT+5}, 6, v{cT+4}
    v_xor_b32 v{cT+5}, 1, v{cT+5}
    v_lshl_add_u32 v{aH+1}, v{cT+5}, 6, v{cT+4}
    v_mul_u32_u24 v{aWc}, 192, v{cT+1}
    v_mul_u32_u24 v{cT+4}, {W_U}, v{cT+3}
    v_add_u32 v{aWc}, v{aWc}, v{cT+4}
    v_and_b32 v{cT+4}, 1, v{vL}
    v_lshl_add_u32 v{aWc}, v{cT+4}, 4, v{aWc}
    v_bfe_u32 v{cT+4}, v{vL}, 1, 1
    v_lshl_add_u32 v{aWc}, v{cT+4}, 3, v{aWc}
    s_lshl_b32 s{sT}, s{sWF}, 5
    v_add_u32 v{aWc+2}, s{sT}, v{aWc}
    v_add_u32 v{aWc}, s{sT}, v{aWc+2}
    v_add_u32 v{aWc+1}, {5*WSLOT}, v{aWc}
    v_add_u32 v{aWc+3}, {5*WSLOT}, v{aWc+2}
    v_and_b32 v{cT+4}, 1, v{cT}
    v_lshl_add_u32 v{cT+4}, v{cT+4}, 3, v{cT+2}
    v_lshrrev_b32 v{cT+5}, 1, v{cT}
    v_lshl_add_u32 v{cT+4}, v{cT+5}, 2, v{cT+4}
    v_mul_u32_u24 v{cT+5}, 1376, v{cT+3}
    v_add_u32 v{cT+4}, v{cT+4}, v{cT+5}
    v_and_b32 v{cT+5}, 32, v{vL}
    v_lshrrev_b32 v{cT+1}, 1, v{cT+5}
    v_lshl_add_u32 v{cT+4}, v{cT+4}, 5, v{cT+1}
    """)
    A(f"""
    s_mul_i32 s54, s{sCB}, 6
    s_add_u32 s54, s54, s{sWF}
    s_add_u32 s52, s54, s{sWF}
    s_add_u32 s53, s52, 1
    s_add_u32 s54, s54, 4
    """)
    for rt in range(3):
        A(f"""
        s_min_u32 s{20+rt}, s{52+rt}, 85
        s_lshl_b32 s{20+rt}, s{20+rt}, 9
        s_add_u32 s{20+rt}, s{20+rt}, {WS_CS}
        """)
    A(f"""
    s_lshl_b32 s{sT}, s{sMB}, 10
    s_lshl_b32 s{sT2}, s{sWT}, 9
    s_add_u32 s{sT}, s{sT}, s{sT2}
    s_add_u32 s{sT}, s{sT}, {WS_ST3}
    v_and_b32 v{cT}, 31, v{vL}
    v_lshl_add_u32 v{vSt}, v{cT}, 3, s{sT}
    v_mul_u32_u24 v{cT+1}, {43*1024}, v{cT+3}
    v_lshl_add_u32 v{cT+1}, v{cT+5}, 3, v{cT+1}
    v_and_b32 v{cT}, 15, v{vL}
    v_lshl_add_u32 v{cT+1}, v{cT}, 4, v{cT+1}
    s_lshl_b32 s{sT}, s{sMB}, 1
    s_add_u32 s{sT}, s{sT}, s{sWT}
    s_mul_i32 s{sJ}, s{sT}, {4*43*1024}
    s_add_u32 s{sJ}, s{sJ}, {WS_HM}
    v_mov_b32 v{vS}, 0
    """)
    for rt in range(3):
        A(f"buffer_load_dwordx4 v[{CSF+4*rt}:{CSF+4*rt+3}], v{cT+4}, {SR}, s{20+rt} offen")
    A(f"""
    s_cmp_lg_u32 s{sW}, 3
    s_cbranch_scc1 k2_now
    global_load_dword v{vS+1}, v{vS}, s[26:27]
    """)
    A.label("k2_now")
    if "lopoll" in X: hpoll("k2_hp")
    def rd(F,st,ks):
        sl=st%NWS; g=sl//5; so=(sl%5)*WSLOT; ho=(st%HRN)*8192
        def w(rt,e): return f"ds_read_b64_tr_b16 v[{F+8+4*rt+2*e}:{F+8+4*rt+2*e+1}], v{aWc+g+(2 if rt==2 else 0)} offset:{so+(16*ks+4*e)*192+(128 if rt==2 else 32*rt)}"
        def h(ct,e): return f"ds_read_b64_tr_b16 v[{F+4*ct+2*e}:{F+4*ct+2*e+1}], v{aH+ct} offset:{ho+(16*ks+4*e)*256}"
        return [w(0,0),w(0,1),h(0,0),h(0,1),h(1,0),h(1,1),w(1,0),w(1,1),w(2,0),w(2,1)]
    first=[True]*6
    def mm(F):
        out=[]
        for rt in range(3):
            for ct in range(2):
                a=CAC+16*(2*rt+ct)
                c="0" if first[2*rt+ct] else f"v[{a}:{a+15}]"
                first[2*rt+ct]=False
                out.append(f"v_mfma_f32_32x32x16_bf16 v[{a}:{a+15}], v[{F+8+4*rt}:{F+8+4*rt+3}], v[{F+4*ct}:{F+4*ct+3}], {c}")
        return out
    need_before=[4,6,8,8,10,10]
    def phase(ms,rs,prev_pending):
        issued=0; per=[2,2,2,2,2,0]; lastw=None
        for i,m in enumerate(ms):
            if prev_pending:
                n=(10-need_before[i])+issued
                if lastw is None or need_before[i]>lastw:
                    A(f"s_waitcnt lgkmcnt({min(n,15)})"); lastw=need_before[i]
            A(m)
            for _ in range(per[i]):
                if issued<len(rs): A(rs[issued]); issued+=1
    def ldst():
        A(f"global_load_dwordx2 {bc(vS)}, v{vSt}, s[30:31] sc0 sc1")
        A(f"global_load_dwordx2 {bc(vS+2)}, v{vSt}, s[30:31] offset:256 sc0 sc1")
    def ldcs(sc):
        for rt in range(3):
            A(f"buffer_load_dwordx4 v[{CSF+4*rt}:{CSF+4*rt+3}], v{cT+4}, {SR}, s{20+rt} offen{sc}")
    BF=172; K1=180; K3=184; K2=188; XX=192
    def stat_fix():
        A(f"s_mov_b32 s{sSP}, 0")
        A.label("k2_stchk")
        A("s_waitcnt vmcnt(0)")
        tg=[vS+1,vS+3]+[CSF+4*rt+o for rt in range(3) for o in (1,3)]
        for i,r in enumerate(tg): A(f"v_xor_b32 v{XX+i}, s{sTAG}, v{r}")
        A(f"""
        v_or3_b32 v{XX}, v{XX}, v{XX+1}, v{XX+2}
        v_or3_b32 v{XX+3}, v{XX+3}, v{XX+4}, v{XX+5}
        v_or3_b32 v{XX}, v{XX}, v{XX+6}, v{XX+7}
        v_or_b32 v{XX}, v{XX}, v{XX+3}
        v_cmp_ne_u32 vcc, 0, v{XX}
        s_cbranch_vccnz k2_stretry
        """)
        A.label("k2_stok")
        for rt in range(3):
            A(f"v_mov_b32 v{CSF+4*rt+1}, 0"); A(f"v_mov_b32 v{CSF+4*rt+3}, 0")
        for ct in range(2):
            A(f"""
            v_and_b32 v{BF+4*ct+1}, 0xffff, v{vS+2*ct}
            v_xor_b32 v{BF+4*ct+1}, 0x8000, v{BF+4*ct+1}
            v_lshl_or_b32 v{BF+4*ct}, v{BF+4*ct+1}, 16, v{BF+4*ct+1}
            v_mov_b32 v{BF+4*ct+3}, 0
            v_mov_b32 v{BF+4*ct+2}, v{BF+4*ct}
            """)
        B=Asm()
        for ct in range(2):
            x=XX+4*ct
            B(f"""
            v_and_b32 v{x+1}, 0xffff0000, v{vS+2*ct}
            v_rcp_f32 v{x+2}, v{x+1}
            v_mul_f32 v{K2+2*ct}, v{x+1}, v{x+1}
            v_mul_f32 v{K1+2*ct}, {f32(GC1)}, v{x+2}
            v_mul_f32 v{x+3}, v{x+2}, v{x+2}
            v_mul_f32 v{x+3}, v{x+3}, v{x+2}
            v_mul_f32 v{K3+2*ct}, {f32(GC2)}, v{x+3}
            """)
        bl=[l.strip() for l in B.l]; i=0
        for rt in range(3):
            for ct in range(2):
                a=CAC+16*(2*rt+ct)
                A(f"v_mfma_f32_32x32x16_bf16 v[{a}:{a+15}], v[{CSF+4*rt}:{CSF+4*rt+3}], v[{BF+4*ct}:{BF+4*ct+3}], v[{a}:{a+15}]")
                for l in bl[i*3:(i+1)*3]: A(l)
                i+=1
    if 'prof' not in X: stamp(A,1)
    A("s_barrier")
    for j in range(16):
        if j<=LB: A("s_barrier")
        else: cnt_add(8)
        if "prof" in X and j in (0,3,6,9,12,14): stamp(A,{0:1,3:3,6:4,9:5,12:6,14:7}[j])
        if j==0:
            for r in rd(FA,0,0): A(r)
        else:
            phase(mm(FB),rd(FA,j,0),False)
        if j==12: ldst()
        phase(mm(FA),rd(FB,j,1),True)
        if j==14: stat_fix()
        A("s_waitcnt lgkmcnt(0)")
    stamp(A,2)
    ms=mm(FB)
    A(ms[0])
    cnt_add(12)
    for m in ms[1:]: A(m)
    if 'prof' not in X: stamp(A,3)
    T=FA
    for rt in range(3):
        A(f"""
        s_cmp_ge_u32 s{52+rt}, 86
        s_cbranch_scc1 {"k2_sig" if 2*rt>=CUE else "k2_sig0"}
        s_lshl_b32 s{sT}, s{52+rt}, 9
        s_add_u32 s{sT}, s{sT}, s{sJ}
        s_add_u32 s{sT2}, s{sT}, {2*43*1024}
        """)
        a0=CAC+32*rt; a1=a0+16; t0=T; t1=T+8
        def st1(a,t,ct):
            return [f"v_pk_mul_f32 {bc(t+r)}, {bc(a+r)}, {bc(a+r)}" for r in (0,2,4,6)]+\
                   [f"v_pk_fma_f32 {bc(t+r)}, {bc(t+r)}, {bc(K3+2*ct)}, {bc(K1+2*ct)} op_sel_hi:[1,0,0]" for r in (0,2,4,6)]+\
                   [f"v_pk_mul_f32 {bc(t+r)}, {bc(t+r)}, {bc(a+r)}" for r in (0,2,4,6)]
        def ex(t): return [f"v_exp_f32 v{t+r}, v{t+r}" for r in range(8)]
        def gu(a): return [f"v_pk_mul_f32 {bc(a+r)}, {bc(a+r)}, {bc(a+8+r)}" for r in (0,2,4,6)]
        def dn(t,ct): return [f"v_pk_fma_f32 {bc(t+r)}, {bc(t+r)}, {bc(K2+2*ct)}, {bc(K2+2*ct)} op_sel_hi:[1,0,0]" for r in (0,2,4,6)]
        def rc(t): return [f"v_rcp_f32 v{t+r}, v{t+r}" for r in range(8)]
        def fin(a,t): return [f"v_pk_mul_f32 {bc(a+r)}, {bc(a+r)}, {bc(t+r)}" for r in (0,2,4,6)]+[f"v_cvt_pk_bf16_f32 v{a+8+r}, v{a+2*r}, v{a+2*r+1}" for r in range(4)]
        def mix(tr,ot):
            for i in range(max(len(tr),len(ot))):
                if i<len(tr): A(tr[i])
                if i<len(ot): A(ot[i])
        for l in st1(a0,t0,0): A(l)
        s1=st1(a1,t1,1)
        mix(ex(t0),s1[:8])
        for l in s1[8:]: A(l)
        mix(ex(t1),dn(t0,0)+gu(a0))
        mix(rc(t0),dn(t1,1)+gu(a1))
        mix(rc(t1),fin(a0,t0))
        for ct in range(2):
            a=CAC+16*(2*rt+ct)
            if ct==1:
                for l in fin(a1,t1): A(l)
            A(f"buffer_store_dwordx4 v[{a+8}:{a+11}], v{cT+1}, {SR}, s{sT if ct==0 else sT2} offen sc0 sc1")
            if 2*rt+ct+1==CUE:
                cnt_add(4)
                A(f"""
                s_lshl_b32 s45, s{sW}, 4
                s_add_u32 s45, s45, s{sCB}
                s_cmp_lg_u32 s45, 13
                s_cbranch_scc1 k2_nog
                s_lshl_b32 s45, s{sMB}, 7
                s_add_u32 s45, s45, {WS_FLAG+4096}
                v_mov_b32 v{vS}, s45
                v_mov_b32 v{vS+1}, s{sTAG}
                s_mov_b64 exec, 1
                global_store_dword v{vS}, v{vS+1}, s[30:31] sc0 sc1
                s_mov_b64 exec, -1
                """)
                A.label("k2_nog")
    A.label("k2_sig")
    if 'prof' not in X: stamp(A,4)
    A("s_setprio 0")
    A.label("k2_p2b")
    cnt_wait(0,4)
    if 'prof' not in X: stamp(A,5)
    for b in range(NPRE):
        for r in rdw(RG+16*b,NA+b): A(r)
    A("s_waitcnt lgkmcnt(0)")
    if 'prof' not in X: stamp(A,6)
    p2_loop(NA,43-NA,True)
    dump(A,2,8,sW)
    A("s_endpgm")
    A.label("k2_sig0")
    cnt_add(4)
    cnt_wait(4,4)
    A("s_branch k2_sig")
    for lr,lc,lo,ld in stubs:
        A.label(lr)
        A(f"""
        s_add_u32 s{sSP}, s{sSP}, 1
        s_cmp_ge_u32 s{sSP}, {SPIN}
        s_cbranch_scc1 {lo}
        """)
        for l in ld: A(l)
        A("s_waitcnt vmcnt(0)")
        A(f"s_branch {lc}")
    A.label("k2_stretry")
    A(f"""
    s_add_u32 s{sSP}, s{sSP}, 1
    s_cmp_ge_u32 s{sSP}, {SPIN}
    s_cbranch_scc1 k2_stok
    """)
    ldst(); ldcs(" sc0 sc1")
    A("s_branch k2_stchk")
    A.label("k2_stats")
    A(f"s_sub_u32 s{sW}, s{sW}, 4")
    p2_setup()
    p2_addr(False)
    for b in range(NPRE): issue_wd(b,8*WSLOT+4096*b)
    A("s_waitcnt vmcnt(0)")
    cnt_add(8)
    cnt_wait(8,4)
    for b in range(NPRE):
        for r in rdw(RG+16*b,b,8*WSLOT+4096*b): A(r)
    A("s_waitcnt lgkmcnt(0)")
    hpoll("k2_hq")
    A(f"s_add_u32 s{sW}, s{sW}, 4")
    A.label("k2_stats_lo")
    A("s_setprio 0")
    vD=196; S=228; Q=236; U=244; vA=2
    A(f"""
    s_lshl_b32 s{sT}, s{sMB}, 17
    s_lshl_b32 s{sT2}, s{sW}, 14
    s_add_u32 s{sT}, s{sT}, s{sT2}
    s_add_u32 s{sT}, s{sT}, {WS_HT}
    v_lshlrev_b32 v{vA}, 4, v{vL}
    s_barrier
    """)
    def sld(i):
        A(f"buffer_load_dwordx4 v[{vD+4*(i%8)}:{vD+4*(i%8)+3}], v{vA}, {SR}, s{sT} offen offset:{1024*(i%4)}")
        if i%4==3 and i<15: A(f"s_add_u32 s{sT}, s{sT}, 4096")
    for i in range(8): sld(i)
    for j in range(16): A(f"v_mov_b32 v{S+j}, 0")
    for i in range(16):
        A(f"s_waitcnt vmcnt({min(7,15-i)})")
        for j in range(4):
            A(f"v_lshlrev_b32 v{U+2*j}, 16, v{vD+4*(i%8)+j}")
            A(f"v_and_b32 v{U+2*j+1}, 0xffff0000, v{vD+4*(i%8)+j}")
        if i+8<16: sld(i+8)
        for j in range(4):
            A(f"v_pk_add_f32 {bc(S+2*j)}, {bc(S+2*j)}, {bc(U+2*j)}")
            A(f"v_pk_fma_f32 {bc(Q+2*j)}, {bc(U+2*j)}, {bc(U+2*j)}, {bc(Q+2*j)}")
    for j in range(8): A(f"v_permlane32_swap_b32 v{S+j}, v{Q+j}")
    for j in range(8): A(f"v_add_f32 v{S+j}, v{S+j}, v{Q+j}")
    for j in range(4): A(f"v_permlane16_swap_b32 v{S+j}, v{S+j+4}")
    A(f"""
    v_and_b32 v{vT}, 15, v{vL}
    v_lshlrev_b32 v{vT}, 5, v{vT}
    v_and_b32 v{vT+1}, 16, v{vL}
    v_add_u32 v{vT}, v{vT}, v{vT+1}
    v_and_b32 v{vT+1}, 32, v{vL}
    v_lshl_add_u32 v{vT}, v{vT+1}, 4, v{vT}
    s_lshl_b32 s{sT}, s{sW}, 10
    v_add_u32 v{vT}, s{sT}, v{vT}
    """)
    for j in range(4): A(f"v_add_f32 v{S+j}, v{S+j}, v{S+j+4}")
    A(f"""
    ds_write_b128 v{vT}, v[{S}:{S+3}]
    s_waitcnt lgkmcnt(0)
    s_barrier
    s_cmp_ge_u32 s{sW}, 4
    s_cbranch_scc1 k2_st_p2
    s_cmp_ge_u32 s{sW}, 2
    s_cbranch_scc1 k2_st_exit
    v_lshlrev_b32 v{vT}, 2, v0
    """)
    for i in range(8):
        A(f"ds_read_b32 v{vD+i}, v{vT} offset:{1024*i}")
        A(f"ds_read_b32 v{vD+8+i}, v{vT} offset:{1024*i+512}")
    A("s_waitcnt lgkmcnt(0)")
    for st in (4,2,1):
        for i in range(st):
            A(f"v_add_f32 v{vD+i}, v{vD+i}, v{vD+i+st}")
            A(f"v_add_f32 v{vD+8+i}, v{vD+8+i}, v{vD+8+i+st}")
    ln_finish(A,vD,vD+8,vD+1,512)
    A(f"""
    v_cvt_pk_bf16_f32 v{vD}, v{vD}, v{vD+8}
    v_mov_b32 v{vD+1}, s{sTAG}
    s_lshl_b32 s{sT}, s{sMB}, 10
    s_add_u32 s{sT}, s{sT}, {WS_ST3}
    v_lshl_add_u32 v{vT}, v0, 3, s{sT}
    global_store_dwordx2 v{vT}, {bc(vD)}, s[30:31] sc0 sc1
    """)
    A.label("k2_st_exit")
    A("s_barrier")
    p2_addr(True)
    A(f"""
    s_cmp_lg_u32 s{sW}, 0
    s_cbranch_scc1 k2_gd
    s_lshl_b32 s45, s{sMB}, 7
    s_add_u32 s45, s45, {WS_FLAG+4096}
    v_mov_b32 v{vF}, s45
    s_mov_b32 s{sSP}, 0
    """)
    A.label("k2_g")
    A(f"""
    global_load_dword v{vT}, v{vF}, s[30:31] sc0 sc1
    s_add_u32 s{sSP}, s{sSP}, 1
    s_cmp_ge_u32 s{sSP}, {SPIN}
    s_cbranch_scc1 k2_gd
    s_waitcnt vmcnt(0)
    v_cmp_ne_u32 vcc, s{sTAG}, v{vT}
    s_cbranch_vccnz k2_g
    """)
    A.label("k2_gd")
    cnt_add(4)
    cnt_wait(4,4)
    for i in range(1,6): stamp(A,i)
    A("s_branch k2_p2b")
    A.label("k2_st_p2")
    A("s_barrier")
    A(f"s_sub_u32 s{sW}, s{sW}, 4")
    issue_res()
    first=[b for b in range(NPRE,43) if wd_loc(b) not in (X_RES,X_RES+4096)]
    for b in first: issue_wd(b)
    p2_addr(False)
    A(f"s_waitcnt vmcnt({len(first)})")
    cnt_add(8)
    cnt_wait(8,8)
    rd_res()
    cnt_add(8)
    cnt_wait(8,12)
    for b in range(NPRE,43):
        if b not in first: issue_wd(b)
    for i in range(1,5): stamp(A,i)
    A("s_branch k2_p2")
```

```python
from common import *
from k01 import cmul, exp_bf16, cexp, row_stats
EF_PITCH=544; EF_CH=64*EF_PITCH
YP=9216
WSLOT=12320; NWS=10; W_U=6176
TB=2*EF_CH
XS=TB+2*KD_CH
SC=XS+8*1280
PB=SC+64
X_CNT=163824
UP=1152; UB=X_CNT-48-20*UP
IMG=4160; KIMG_CH=4*IMG; KIMG=UB-2*KIMG_CH
assert PB+2048+64<=KIMG and UB%16==0 and KIMG%16==0
sTAG=34; sWt=8; sWO=12; sM0W=13; sCBg=14; sMBg=15; vWo=253
ROTW='norw' not in X
BO=int(os.environ.get('BO','0'))
GL=int(os.environ.get('GL','1'))
NPL=int(os.environ.get("NPL","5"))
def issue_w(A,st):
    A(f"""
    s_add_u32 m0, s{sM0W}, {(st%NWS)*WSLOT}
    s_nop 0
    buffer_load_dwordx4 v{vWo}, s[{sWt}:{sWt+3}], s{sWO} offen lds
    buffer_load_dwordx4 v{vWo+1}, s[{sWt}:{sWt+3}], s{sWO} offen offset:1024 lds
    buffer_load_dwordx4 v{vWo+2}, s[{sWt}:{sWt+3}], s{sWO} offen offset:2048 lds
    s_add_u32 s{sWO}, s{sWO}, {32*2752}
    """)
    if st in (3,7,11) and ROTW:
        A(f"""
        s_cmp_eq_u32 s35, {15-st}
        s_cselect_b32 s3, {512*2752}, 0
        s_sub_u32 s{sWO}, s{sWO}, s3
        """)
SPIN=1<<16
WT=" sc0 sc1"
def phaseA(A,tail):
    sW=36; sCH=37; sG=38; sT=39; sT2=40; sHALF=41; sONE=42; sDT=43; sROW=46; sDS=50; sROLE=51; sSEL=52; sU=56; sSP=57; sEP=58; sEX=60
    vL=1; vT=2; vXR=4; vXS=8; vP=12; vAD=17; q5=18; hh=19
    vXG=20; vSG=28
    vX=36; vUD=44; vGA=52; vSA=53
    vW=56
    vRA=200; vRD=204; vCS=216
    A(f"""
    s_cmp_ge_u32 s2, 256
    s_cbranch_scc1 m_end
    s_load_dwordx16 s[4:19], s[0:1], 0
    s_load_dwordx2 s[30:31], s[0:1], 104
    s_load_dwordx8 s[20:27], s[0:1], 64
    """)
    stamp(A,0)
    A("s_getpc_b64 s[44:45]")
    A.label("ka_pf")
    A(f"""
    v_lshlrev_b32 v{vW}, 7, v0
    v_lshrrev_b32 v{vT}, 6, v0
    v_and_b32 v{vL}, 63, v0
    v_readfirstlane_b32 s{sW}, v{vT}
    s_lshr_b32 s{sT2}, s2, 3
    s_cmp_lg_u32 s{sW}, 0
    s_cbranch_scc1 ka_nopf
    s_mov_b32 exec_hi, 0xff
    global_load_dword v{vRA+3}, v{vW}, s[44:45] offset:512
    s_mov_b32 exec_hi, -1
    """)
    A.label("ka_nopf")
    A(f"""
    s_and_b32 s{sT}, s2, 7
    s_lshl_b32 s{sG}, s{sT}, 5
    s_add_u32 s{sG}, s{sG}, s{sT2}
    s_and_b32 s{sCH}, s{sW}, 1
    s_lshr_b32 s{sROLE}, s{sW}, 1
    s_and_b32 s{sHALF}, s{sROLE}, 1
    v_and_b32 v{q5}, 31, v{vL}
    v_lshrrev_b32 v{hh}, 5, v{vL}
    s_lshl_b32 s{sT}, s{sT}, 7
    s_lshl_b32 s{sT2}, s{sT2}, 16
    s_add_u32 s{sT}, s{sT}, s{sT2}
    s_lshl_b32 s{sT2}, s{sROLE}, 14
    s_add_u32 s{sT}, s{sT}, s{sT2}
    s_lshl_b32 s{sT2}, s{sCH}, 6
    s_add_u32 s{sT}, s{sT}, s{sT2}
    v_lshrrev_b32 v{vW}, 2, v{vL}
    v_and_b32 v{vW+1}, 3, v{vL}
    v_lshlrev_b32 v{vW+2}, 10, v{vW}
    v_lshl_add_u32 v{vW+2}, v{vW+1}, 4, v{vW+2}
    v_add_u32 v{vW+2}, s{sT}, v{vW+2}
    s_lshl_b32 s{sT}, s{sG}, 13
    v_lshl_add_u32 v{vAD}, v0, 4, s{sT}
    s_lshl_b32 s{sT}, s{sG}, 9
    v_lshl_add_u32 v{vT}, v{vL}, 3, s{sT}
    s_lshl_b32 s{sT2}, s{sG}, 2
    s_cmp_eq_u32 s{sCH}, 0
    s_waitcnt lgkmcnt(0)
    s_cselect_b64 s[62:63], s[6:7], s[8:9]
    s_cselect_b64 s[60:61], s[10:11], s[12:13]
    s_cmp_eq_u32 s{sHALF}, 0
    s_cselect_b64 s[62:63], s[62:63], s[60:61]
    s_cmp_ge_u32 s{sW}, 4
    s_cbranch_scc1 ka_nop
    global_load_dwordx2 v[{vP}:{vP+1}], v{vT}, s[62:63]
    """)
    A.label("ka_nop")
    if "fp" in X: stamp(A,5)
    A(f"""
    s_load_dword s{sEP}, s[30:31], {WS_EPOCH}
    s_load_dword s{sDT}, s[14:15], s{sT2}
    s_load_dword s{sDS}, s[16:17], s{sT2}
    global_load_dwordx4 v[{vXS}:{vXS+3}], v{vW+2}, s[4:5]
    global_load_dwordx4 v[{vXR}:{vXR+3}], v{vAD}, s[4:5]
    s_mov_b32 s{sONE}, 0x3f803f80
    s_mov_b32 s{SK_INVN}, {f32(1/512)}
    v_mov_b32 v{vW+9}, 0x9000
    global_load_dword v{vRA+2}, v{vW+9}, s[30:31]
    """)
    PA=36
    A(f"""
    s_mul_i32 s{sT}, s{sW}, 1280
    s_add_u32 s{sT}, s{sT}, {XS}
    v_mul_u32_u24 v{PA+0}, 80, v{vW}
    v_lshl_add_u32 v{PA+0}, v{vW+1}, 4, v{PA+0}
    v_add_u32 v{PA+0}, s{sT}, v{PA+0}
    v_and_b32 v{vW}, 7, v{vL}
    v_lshrrev_b32 v{vW+1}, 3, v{vL}
    v_mul_u32_u24 v{PA+1}, 160, v{vW}
    v_lshl_add_u32 v{PA+1}, v{vW+1}, 2, v{PA+1}
    v_add_u32 v{PA+1}, s{sT}, v{PA+1}
    s_and_b32 s{sT}, s2, 7
    s_lshl_b32 s{sT}, s{sT}, 19
    s_lshl_b32 s{sT2}, s{sCH}, 18
    s_add_u32 s{sT}, s{sT}, s{sT2}
    s_lshr_b32 s{sT2}, s2, 3
    s_lshl_b32 s{sT2}, s{sT2}, 9
    s_add_u32 s{sT}, s{sT}, s{sT2}
    s_lshl_b32 s{sT2}, s{sROLE}, 7
    s_add_u32 s{sT}, s{sT}, s{sT2}
    s_add_u32 s{sT}, s{sT}, {WS_XG}
    v_lshlrev_b32 v{PA+2}, 14, v{vW+1}
    v_lshl_add_u32 v{PA+2}, v{vW}, 4, v{PA+2}
    v_add_u32 v{PA+2}, s{sT}, v{PA+2}
    v_add_u32 v{PA+3}, {8*16384}, v{PA+2}
    s_lshl_b32 s{sT}, s{sG}, 6
    v_lshl_add_u32 v{PA+4}, v{vL}, 3, s{sT}
    v_lshlrev_b32 v{vSA}, 5, v0
    s_lshl_b32 s{sT}, s{sG}, 14
    s_add_u32 s{sT}, s{sT}, {WS_XG}
    v_add_u32 v{vGA}, s{sT}, v{vSA}
    s_mul_i32 s{sT}, s{sCH}, {EF_CH}
    s_lshl_b32 s{sT2}, s{sHALF}, 8
    s_add_u32 s{sT}, s{sT}, s{sT2}
    v_lshl_add_u32 v{vAD}, v{vL}, 2, s{sT}
    """)
    A(f"""
    v_mov_b32 v{vW+8}, 0
    v_mov_b32 v{vW+9}, 0
    s_and_b32 s{sT}, s{sW}, 3
    s_mul_i32 s{sT}, s{sT}, {UP}
    s_add_u32 s{sT}, s{sT}, {UB}
    v_lshl_add_u32 v{vW+10}, v{vL}, 3, s{sT}
    ds_write_b64 v{vW+10}, v[{vW+8}:{vW+9}]
    s_mov_b64 exec, 0x7f
    s_mul_i32 s{sT}, s{sW}, {IMG}
    s_add_u32 s{sT}, s{sT}, {KIMG+4096}
    v_lshl_add_u32 v{vW+10}, v{vL}, 3, s{sT}
    ds_write_b64 v{vW+10}, v[{vW+8}:{vW+9}]
    v_mov_b32 v{vW+10}, {X_CNT}
    ds_write_b64 v{vW+10}, v[{vW+8}:{vW+9}]
    ds_write_b64 v{vW+10}, v[{vW+8}:{vW+9}] offset:8
    v_mov_b32 v{vW+10}, {SC+32}
    ds_write_b32 v{vW+10}, v{vW+8}
    s_mov_b64 exec, -1
    """)
    A(f"""
    s_lshl_b32 s{sT}, s{sW}, 9
    s_add_u32 s{sT}, s{sT}, {PB}
    v_lshl_add_u32 v{vW+11}, v{vL}, 3, s{sT}
    s_lshl_b32 s{sT}, s{sCH}, 8
    s_lshl_b32 s{sT2}, s{sHALF}, 7
    s_add_u32 s{sT}, s{sT}, s{sT2}
    s_add_u32 s{sT}, s{sT}, {PB}
    v_lshl_add_u32 v{vW+12}, v{vL}, 1, s{sT}
    s_waitcnt lgkmcnt(0)
    s_mul_i32 s{sTAG}, s{sEP}, 0x9e3779b1
    s_add_u32 s{sTAG}, s{sTAG}, 0x7f4a7c15
    s_lshl_b32 s{sT}, s{sDT}, 16
    s_and_b32 s{sT2}, s{sDT}, 0xffff0000
    s_cmp_eq_u32 s{sCH}, 0
    s_cselect_b32 s{sDT}, s{sT}, s{sT2}
    v_mov_b32 v{vP+4}, s{sDT}
    v_mov_b32 v{vXG+1}, s{sTAG}
    v_mov_b32 v{vXG+3}, s{sTAG}
    v_mov_b32 v{vXG+5}, s{sTAG}
    v_mov_b32 v{vXG+7}, s{sTAG}
    """)
    if "fp" in X: stamp(A,6)
    exp_bf16(A,vP+4,vW+8)
    A(f"""
    s_cmp_ge_u32 s{sW}, 4
    s_cbranch_scc1 ka_nop2
    s_waitcnt vmcnt(3)
    ds_write_b64 v{vW+11}, v[{vP}:{vP+1}]
    """)
    A.label("ka_nop2")
    A("s_waitcnt lgkmcnt(0)")
    A("s_barrier")
    def publish(tagl):
        T=PA+5
        A(f"""
        s_waitcnt vmcnt(2)
        ds_write_b128 v{PA}, v[{vXS}:{vXS+3}]
        ds_read_b32 v{vXG}, v{PA+1}
        ds_read_b32 v{vXG+2}, v{PA+1} offset:80
        ds_read_b32 v{vXG+4}, v{PA+1} offset:32
        ds_read_b32 v{vXG+6}, v{PA+1} offset:112
        s_waitcnt vmcnt(1)
        """)
        stamp(A,1)
        B=Asm(); row_stats(B,vXR,vT,vT+1,T,sONE); bl=[l.strip() for l in B.l]
        for l in bl[:10]: A(l)
        A(f"""
        s_waitcnt lgkmcnt(0)
        global_store_dwordx4 v{PA+2}, v[{vXG}:{vXG+3}], s[30:31]{WT}
        global_store_dwordx4 v{PA+3}, v[{vXG+4}:{vXG+7}], s[30:31]{WT}
        """)
        for l in bl[10:]: A(l)
        A(f"""
        s_lshl_b32 s{sT}, s{sW}, 2
        s_add_u32 s{sT}, s{sT}, {SC}
        v_mov_b32 v{T}, s{sT}
        v_mov_b32 v{T+1}, {SC+32}
        v_mov_b32 v{T+2}, 1
        s_mov_b32 exec_lo, 0
        s_mov_b32 exec_hi, 0x80000000
        ds_write_b32 v{T}, v{vT}
        ds_add_rtn_u32 v{T+2}, v{T+1}, v{T+2}
        s_mov_b64 exec, -1
        v_lshlrev_b32 v{T}, 2, v{vL}
        v_add_u32 v{T}, {SC}, v{T}
        v_mov_b32 v{vT+1}, s{sTAG}
        s_waitcnt lgkmcnt(0)
        v_readlane_b32 s{sT}, v{T+2}, 63
        s_cmp_lg_u32 s{sT}, 7
        s_cbranch_scc1 {tagl}
        s_mov_b64 exec, 0xff
        ds_read_b32 v{vT}, v{T}
        s_waitcnt lgkmcnt(0)
        global_store_dwordx2 v{PA+4}, v[{vT}:{vT+1}], s[30:31] offset:{WS_STATS}{WT}
        s_mov_b64 exec, -1
        """)
        if "wul8" not in X:
            A(f"""
            s_mul_i32 s{sT}, s2, {43*128}
            v_lshl_add_u32 v{T}, v{vL}, 7, s{sT}
            s_mov_b32 exec_hi, 0x7ff
            global_load_dword v{vRA+3}, v{T}, s[20:21]
            global_load_dword v{vRA+3}, v{T}, s[22:23]
            global_load_dword v{vRA+3}, v{T}, s[24:25]
            s_mov_b32 exec_hi, -1
            """)
        A.label(tagl)
        stamp(A,2)
    def warmups():
        A(f"""
        s_cmp_eq_u32 s{sCH}, 0
        s_cselect_b64 s[62:63], s[20:21], s[22:23]
        s_cselect_b64 s[60:61], s[24:25], s[44:45]
        s_cmp_eq_u32 s{sHALF}, 0
        s_cselect_b64 s[62:63], s[62:63], s[60:61]
        s_mul_i32 s{sT}, s2, {43*128}
        s_lshr_b32 s{sT2}, s2, 3
        s_lshl_b32 s{sT2}, s{sT2}, 10
        s_add_u32 s{sT2}, s{sT2}, 5632
        s_mov_b32 s{sU}, {1376*1024-4}
        s_cmp_eq_u32 s{sW}, 7
        s_cselect_b32 s{sT}, s{sT2}, s{sT}
        s_cselect_b32 s{sT2}, code_end-ka_pf, s{sU}
        s_cselect_b32 exec_lo, 0xff, -1
        s_cselect_b32 exec_hi, 0, 0x7ff
        v_lshl_add_u32 v{PA+5}, v{vL}, 7, s{sT}
        v_min_u32 v{PA+5}, s{sT2}, v{PA+5}
        global_load_dword v{vRA+3}, v{PA+5}, s[62:63]
        s_mov_b64 exec, -1
        """)
    A(f"""
    ds_read_u16 v{vP}, v{vW+12}
    ds_read_u16 v{vP+1}, v{vW+12} offset:512
    ds_read_u16 v{vP+2}, v{vW+12} offset:1024
    ds_read_u16 v{vP+3}, v{vW+12} offset:1536
    s_waitcnt lgkmcnt(0)
    """)
    zr=vP; zi=vP+1
    pk=[vW+20,vW+21,vW+22,vW+23]; pkc=[0]
    def put(reg,row):
        p=pk[pkc[0]%4]; pkc[0]+=1
        A(f"v_cvt_pk_bf16_f32 v{p}, v{reg}, v{reg+1}")
        A(f"ds_write_b32 v{vAD}, v{p} offset:{row*EF_PITCH}")
    w1=vW; w2=vW+2; w4=vW+4; w8=vW+6; wB=vW+8; q=vW+10; e=vW+12; e2=vW+14; t=vW+16; t2=vW+18; t3=vW+24; e3=vW+26
    A(f"""
    v_lshlrev_b32 v{vP}, 16, v{vP}
    v_lshlrev_b32 v{vP+1}, 16, v{vP+1}
    """)
    exp_bf16(A,vP,vW+28)
    A(f"""
    v_mul_f32 v{zi}, v{zi}, v{vP+4}
    v_mul_f32 v{zr}, v{zr}, v{vP+4}
    v_mul_f32 v{zr}, {f32(-LOG2E)}, v{zr}
    s_cmp_ge_u32 s{sW}, 4
    s_cbranch_scc1 ka_frole
    v_mul_f32 v{zi}, {f32(-1/(2*math.pi))}, v{zi}
    """)
    def gload(sc,part=3):
        if part&1: A(f"""
        global_load_dwordx4 v[{vXG}:{vXG+3}], v{vGA}, s[30:31]{sc}
        global_load_dwordx4 v[{vXG+4}:{vXG+7}], v{vGA}, s[30:31] offset:16{sc}
        """)
        if part&2: A(f"""
        global_load_dwordx4 v[{vSG}:{vSG+3}], v{vSA}, s[30:31] offset:{WS_STATS}{sc}
        global_load_dwordx4 v[{vSG+4}:{vSG+7}], v{vSA}, s[30:31] offset:{WS_STATS+16}{sc}
        """)
    cexp(A,w1,zr,zi,1,t); cexp(A,wB,zr,zi,256,t2)
    publish("ka_pe")
    A(f"""
    v_lshlrev_b32 v{vP+2}, 16, v{vP+2}
    v_lshlrev_b32 v{vP+3}, 16, v{vP+3}
    v_mul_f32 v{e}, v{vP+2}, v{vP+4}
    v_mul_f32 v{e+1}, v{vP+3}, v{vP+4}
    v_add_f32 v{e}, v{e}, v{e}
    v_mul_f32 v{e+1}, -2.0, v{e+1}
    """)
    cmul(A,w2,w1,w1,t); cmul(A,q,e,wB,t2); put(e,0)
    cmul(A,w4,w2,w2,t3)
    seqB=[("put",q,8),("mul",e2,q,w2),("mul",q,q,wB),("put",e2,9),("mul",e2,e2,w2),("put",q,12),("mul",e3,q,w4),("put",e2,10),("mul",e2,e2,w2),
          ("mul",q,q,wB),("put",e3,13),("put",e2,11),("put",q,14),("mul",e3,q,w4),("mul",q,q,wB),("put",e3,15),("put",q,16),("mul",q,q,wB),("put",q,20),
          ("mul",q,q,wB),("put",q,24),("mul",q,q,wB),("put",q,28),("mul",q,q,wB),("put",q,17)]
    seqA=[]
    for a in range(1,8): seqA+=[("mul",e,e,w1),("put",e,a)]
    ia=0; tt=[t2,t3]; tc=0
    for i,s in enumerate(seqB):
        if s[0]=="put": put(s[1],s[2])
        else: cmul(A,s[1],s[2],s[3],tt[tc%2]); tc+=1
        if (i<10 and i%3==0) or i>=15:
            x=seqA[ia]; ia+=1
            if x[0]=="put": put(x[1],x[2])
            else: cmul(A,x[1],x[2],x[3],t)
    aA=vW; aB=vW+1; r16=vW+2; g4=vW+3; acc=vW+4; oA=vW+12; oB=vW+13; oC=vW+14; fr=vW+32
    A(f"""
    v_and_b32 v{r16}, 15, v{vL}
    v_lshrrev_b32 v{g4}, 4, v{vL}
    s_mul_i32 s{sT}, s{sCH}, {EF_CH}
    v_mul_u32_u24 v{aA}, {EF_PITCH}, v{r16}
    v_lshl_add_u32 v{aA}, v{g4}, 4, v{aA}
    v_add_u32 v{aA}, s{sT}, v{aA}
    s_mul_i32 s{sT2}, s{sHALF}, {16*EF_PITCH}
    v_add_u32 v{aB}, s{sT2}, v{aA}
    s_lshl_b32 s{sT}, s{sHALF}, 4
    v_add_u32 v{r16}, s{sT}, v{r16}
    v_lshlrev_b32 v{oA}, 4, v{r16}
    v_lshl_add_u32 v{oA}, v{g4}, 3, v{oA}
    v_lshlrev_b32 v{oB}, 3, v{r16}
    v_add_u32 v{oB}, 512, v{oB}
    v_cmp_eq_u32 vcc, 2, v{g4}
    v_cndmask_b32 v{oA}, v{oA}, v{oB}, vcc
    v_lshlrev_b32 v{oB}, 2, v{r16}
    v_add_u32 v{oB}, 768, v{oB}
    v_cmp_eq_u32 vcc, 3, v{g4}
    v_cndmask_b32 v{oA}, v{oA}, v{oB}, vcc
    v_mov_b32 v{oB}, 4
    v_mov_b32 v{oC}, 128
    v_cndmask_b32 v{oB}, v{oB}, v{oC}, vcc
    s_mul_i32 s{sT}, s{sCH}, {KD_CH}
    s_add_u32 s{sT}, s{sT}, {TB}
    v_add_u32 v{oA}, s{sT}, v{oA}
    v_add_u32 v{oB}, v{oA}, v{oB}
    v_lshlrev_b32 v{oC}, 1, v{r16}
    v_lshl_add_u32 v{oC}, v{g4}, 6, v{oC}
    v_add_u32 v{oC}, s{sT}, v{oC}
    s_waitcnt lgkmcnt(0)
    s_barrier
    """)
    stamp(A,3)
    def rd(s):
        b=fr+12*s
        A(f"ds_read_b128 v[{b}:{b+3}], v{aB} offset:{32*EF_PITCH+64*s}")
        A(f"ds_read_b128 v[{b+4}:{b+7}], v{aA} offset:{64*s}")
        A(f"ds_read_b128 v[{b+8}:{b+11}], v{aA} offset:{16*EF_PITCH+64*s}")
    for s in range(4): rd(s)
    for s in range(8):
        b=fr+12*s
        n = 9 if s<=4 else 3*(7-s)
        A(f"s_waitcnt lgkmcnt({n})")
        c0="0" if s==0 else f"v[{acc}:{acc+3}]"; c1="0" if s==0 else f"v[{acc+4}:{acc+7}]"
        A(f"v_mfma_f32_16x16x32_bf16 v[{acc}:{acc+3}], v[{b+4}:{b+7}], v[{b}:{b+3}], {c0}")
        A(f"v_mfma_f32_16x16x32_bf16 v[{acc+4}:{acc+7}], v[{b+8}:{b+11}], v[{b}:{b+3}], {c1}")
        if s+4<8: rd(s+4)
    A(f"""
    v_cvt_pk_bf16_f32 v{acc}, v{acc}, v{acc+1}
    v_cvt_pk_bf16_f32 v{acc+1}, v{acc+2}, v{acc+3}
    v_cvt_pk_bf16_f32 v{acc+4}, v{acc+4}, v{acc+5}
    ds_write_b32 v{oA}, v{acc}
    ds_write_b32 v{oB}, v{acc+1}
    ds_write_b16 v{oC}, v{acc+4} offset:1024
    ds_write_b16_d16_hi v{oC}, v{acc+4} offset:1280
    """)
    if GL==0: gload("")
    if GL==2: gload("",1)
    A(f"s_mov_b32 s{sU}, 1000")
    A("s_branch ka_tab")
    A.label("ka_frole")
    A(f"v_mul_f32 v{zi}, {f32(1/(2*math.pi))}, v{zi}")
    cexp(A,w8,zr,zi,8,t)
    A(f"v_mov_b32 v{pk[3]}, 0x3f80")
    A(f"ds_write_b32 v{vAD}, v{pk[3]} offset:{32*EF_PITCH}")
    cmul(A,w2,w8,w8,t); put(w8,33)
    FPUB=int(os.environ.get("FPUB","3"))
    so=w8; se=w2; put(w2,34)
    eo=[e,e3]; ee=[e2,q]
    def pm(d,a_,b_): A(f"v_pk_mul_f32 v[{d}:{d+1}], v[{a_}:{a_+1}], v[{b_}:{b_+1}] op_sel:[0,0] op_sel_hi:[0,1]")
    def pf(d,a_,b_,t_): A(f"v_pk_fma_f32 v[{d}:{d+1}], v[{a_}:{a_+1}], v[{b_}:{b_+1}], v[{t_}:{t_+1}] op_sel:[1,1,0] op_sel_hi:[1,0,1] neg_lo:[1,0,0]")
    pend=[]
    for i,c in enumerate(range(3,32,2)):
        do=eo[i&1]; de=ee[i&1]
        pm(t,so,w2)
        if c+1<32: pm(t2,se,w2)
        if pend: put(*pend.pop(0))
        pf(do,so,w2,t)
        if c+1<32: pf(de,se,w2,t2)
        if pend: put(*pend.pop(0))
        pend=[(do,32+c)]+([(de,33+c)] if c+1<32 else [])
        so=do; se=de
        if c==FPUB:
            publish("ka_pf2")
            if "wuearly" in X: warmups()
            else:
                A(f"s_cmp_lg_u32 s{sW}, 7"); A("s_cbranch_scc1 ka_nw7")
                warmups()
                A.label("ka_nw7")
    for p_ in pend: put(*p_)
    A("s_waitcnt lgkmcnt(0)")
    A("s_barrier")
    stamp(A,3)
    if GL==0: gload("")
    if GL==2: gload("",1)
    vCA=vRD
    A.label("ka_tab")
    vK=vW+32; vK2=vW+36; wa=vW+4; wa2=vW+5; pr=vW+8
    A(f"""
    s_cmp_eq_u32 s{sROLE}, 0
    s_cselect_b32 s{sSEL}, 4, 1
    s_cselect_b32 s{sSEL+1}, 3, 6
    s_cselect_b32 s{sSEL+2}, 0, 768
    s_cmp_eq_u32 s{sROLE}, 1
    s_cselect_b32 s{sSEL}, 2, s{sSEL}
    s_cselect_b32 s{sSEL+1}, 7, s{sSEL+1}
    s_cselect_b32 s{sSEL+3}, 0, 128
    s_mul_i32 s{sSEL+3}, s{sSEL+3}, s{sROLE}
    s_add_u32 s{sSEL+2}, s{sSEL+2}, s{sSEL+3}
    v_lshlrev_b32 v{vW+2}, s{sSEL}, v{q5}
    v_and_b32 v{vW+2}, -4, v{vW+2}
    v_lshlrev_b32 v{vW+3}, s{sSEL+1}, v{hh}
    v_add_u32 v{vW+2}, v{vW+2}, v{vW+3}
    s_mul_i32 s{sT}, s{sCH}, {KD_CH}
    s_add_u32 s{sT}, s{sT}, {TB}
    s_add_u32 s{sSEL+2}, s{sSEL+2}, s{sT}
    v_add_u32 v{vW+2}, s{sSEL+2}, v{vW+2}
    v_lshlrev_b32 v{vW+3}, 3, v{q5}
    v_lshl_add_u32 v{vW+3}, v{hh}, 2, v{vW+3}
    v_add_u32 v{vW+3}, s{sT}, v{vW+3}
    s_mul_i32 s{sT}, s{sCH}, {KIMG_CH}
    s_add_u32 s{sT}, s{sT}, {KIMG}
    v_lshlrev_b32 v{vW+7}, 4, v{q5}
    v_sub_u32 v{vW+7}, s{sT}, v{vW+7}
    v_lshlrev_b32 v{vW+6}, 3, v{hh}
    v_sub_u32 v{vW}, v{vW+7}, v{vW+6}
    v_lshlrev_b32 v{vW+6}, 9, v{hh}
    v_sub_u32 v{vW+1}, v{vW+7}, v{vW+6}
    s_mov_b32 s{sSEL}, 0x05040100
    s_mov_b32 s{sSEL+1}, 0x05040302
    s_mov_b32 s{sSEL+2}, 0x07060100
    s_mov_b32 s{sSEL+3}, 0x07060302
    s_waitcnt lgkmcnt(0)
    s_barrier
    ds_read2_b32 v[{vK}:{vK+1}], v{vW+2} offset0:0 offset1:1
    ds_read2_b32 v[{vK+2}:{vK+3}], v{vW+2} offset0:2 offset1:3
    ds_read2_b32 v[{vK2}:{vK2+1}], v{vW+3} offset0:128 offset1:129
    """)
    wa=vW; wa2=vW+1
    if GL==1: gload("")
    if GL==2: gload("",2)
    stamp(A,4)
    A(f"""
    s_cmp_ge_u32 s{sROLE}, 2
    s_cbranch_scc1 ka_r23
    s_cmp_eq_u32 s{sROLE}, 1
    s_cbranch_scc1 ka_r1
    """)
    npair=[0]
    def pairop(d,lo,hi): A(f"v_perm_b32 v{d}, v{hi[0]}, v{lo[0]}, s{sSEL+lo[1]+2*hi[1]}")
    def wwin(addr,k,rho,bbase):
        lam=rho+3; iota=lam&3; b=bbase+(lam>>2)
        p=pr+2*(npair[0]%8); npair[0]+=1
        pairop(p,k[rho+3],k[rho+2]); pairop(p+1,k[rho+1],k[rho])
        A(f"ds_write_b64 v{addr}, v[{p}:{p+1}] offset:{iota*IMG+8*(511-b)}")
    A(f"""
    v_cmp_eq_u32 vcc, 63, v{vL}
    v_mov_b32 v{vW+7}, 0
    s_waitcnt lgkmcnt(0)
    v_lshrrev_b32 v{vW+2}, 16, v{vK+2}
    v_perm_b32 v{vW+3}, v{vK+2}, v{vK+2}, s{sSEL}
    v_perm_b32 v{vW+6}, v{vK2+1}, v{vK2+1}, s{sSEL}
    v_cndmask_b32 v{vK+3}, v{vK+3}, v{vW+2}, vcc
    v_cndmask_b32 v{vK+2}, v{vK+2}, v{vW+3}, vcc
    v_cndmask_b32 v{vK2+1}, v{vK2+1}, v{vW+6}, vcc
    """)
    k=[(vK+i//2,i&1) for i in range(8)]
    for rho in range(4): wwin(wa,k,rho,0)
    v=[(vK2+i//2,i&1) for i in range(4)]
    k1=[v[0],v[0],v[1],v[2],v[2],v[2],v[3]]
    for rho in range(4): wwin(wa,k1,rho,64)
    A("s_mov_b64 exec, 1")
    z=(vW+7,0); kz=[z,z,z,k[0],k[1],k[2]]
    for rho in range(3):
        p=pr+2*(npair[0]%8); npair[0]+=1
        pairop(p,kz[rho+3],kz[rho+2]); pairop(p+1,kz[rho+1],kz[rho])
        A(f"ds_write_b64 v{wa}, v[{p}:{p+1}] offset:{rho*IMG+8*511}")
    A("s_mov_b64 exec, -1")
    A("s_branch ka_norm")
    A.label("ka_r1")
    A("s_waitcnt lgkmcnt(0)")
    v=[(vK+i//2,i&1) for i in range(3)]
    k=[v[i] for i in (0,0,0,1,1,1,2,2,2,2,2)]
    for rho in range(8): wwin(wa2,k,rho,128)
    A("s_branch ka_norm")
    A.label("ka_r23")
    if "wuearly" not in X and "wul8" in X: warmups()
    A(f"""
    s_lshl_b32 s{sT}, s{sHALF}, 10
    v_subrev_u32 v{wa2}, s{sT}, v{wa2}
    v_and_b32 v{vW+6}, 1, v{vL}
    v_lshlrev_b32 v{vW+6}, 4, v{vW+6}
    s_waitcnt lgkmcnt(0)
    v_alignbit_b32 v{vK}, v{vK+1}, v{vK}, v{vW+6}
    v_lshrrev_b32 v{vK+1}, v{vW+6}, v{vK}
    """)
    k=[(vK,0)]*4+[(vK+1,0)]+[(vK,1)]*6
    for rho in range(8): wwin(wa2,k,rho,256)
    A.label("ka_norm")
    m=vW; s_=vW+1; u0=vW+24; u1=vW+28; pu=vW+32; a0=vW+2; a1=vW+3
    aK=vW+36; aU=vW+40; aE=vW+37; aH=vW+44; p16=vW+38; g4=vW+39
    A(f"""
    v_lshrrev_b32 v{vW+6}, 5, v0
    v_mul_u32_u24 v{vW+6}, {UP}, v{vW+6}
    v_lshl_add_u32 v{vW+6}, v{q5}, 3, v{vW+6}
    v_add_u32 v{vW+6}, {UB+4*UP}, v{vW+6}
    v_and_b32 v{p16}, 15, v{vL}
    v_lshrrev_b32 v{g4}, 4, v{vL}
    v_and_b32 v{aK}, 3, v{vL}
    v_mul_u32_u24 v{aE}, {IMG}, v{aK}
    v_lshl_add_u32 v{aE}, v{g4}, 4, v{aE}
    v_lshrrev_b32 v{s_}, 2, v{p16}
    v_lshlrev_b32 v{m}, 3, v{s_}
    v_sub_u32 v{aE}, v{aE}, v{m}
    v_lshl_add_u32 v{m}, v{aK}, 1, v{g4}
    s_mul_i32 s{sT}, s{sCH}, {KIMG_CH}
    s_add_u32 s{sT}, s{sT}, {KIMG+4088-2*(16+480+1536)}
    v_add_u32 v{aK}, s{sT}, v{aE}
    s_lshl_b32 s{sT}, s{sHALF}, 3
    s_add_u32 s{sT}, s{sT}, 14
    v_lshl_add_u32 v{m}, v{s_}, 4, v{m}
    v_add_u32 v{m}, s{sT}, v{m}
    s_lshl_b32 s{sT}, s{sCH}, 8
    s_add_u32 s{sT}, s{sT}, {UB}
    """)
    for ph in range(4):
        A(f"""
        v_subrev_u32 v{a0}, {4*ph}, v{m}
        v_lshrrev_b32 v{a1}, 4, v{a0}
        v_mul_u32_u24 v{a1}, {UP-256}, v{a1}
        v_lshl_add_u32 v{a1}, v{a0}, 4, v{a1}
        v_add_u32 v{aU+ph}, s{sT}, v{a1}
        """)
    A(f"s_mov_b32 s{sSP}, 0")
    if "fp" not in X: stamp(A,5)
    if "wuearly" not in X and "wul8" in X:
        A(f"""
        s_cmp_ge_u32 s{sW}, 4
        s_waitcnt vmcnt(1)
        s_cbranch_scc1 ka_chk2
        """)
    A.label("ka_chk")
    A("s_waitcnt vmcnt(0)")
    A.label("ka_chk2")
    A(f"""
    v_xor_b32 v{a0}, v{vXG+1}, v{vXG+3}
    v_xor_b32 v{a1}, v{vXG+5}, v{vXG+7}
    v_xor_b32 v{m}, s{sTAG}, v{vXG+1}
    v_or3_b32 v{a0}, v{a0}, v{a1}, v{m}
    v_xor_b32 v{a1}, s{sTAG}, v{vXG+5}
    v_xor_b32 v{m}, s{sTAG}, v{vSG+1}
    v_or3_b32 v{a0}, v{a0}, v{a1}, v{m}
    v_xor_b32 v{a1}, s{sTAG}, v{vSG+3}
    v_xor_b32 v{m}, s{sTAG}, v{vSG+5}
    v_or3_b32 v{a0}, v{a0}, v{a1}, v{m}
    v_xor_b32 v{a1}, s{sTAG}, v{vSG+7}
    v_or_b32 v{a0}, v{a0}, v{a1}
    v_cmp_ne_u32 vcc, 0, v{a0}
    s_cbranch_vccnz ka_retry
    """)
    A.label("ka_ok")
    if "fp" not in X: stamp(A,6)
    xt=vX
    for j in range(4):
        st=vSG+2*j; xc=vXG+2*j
        A(f"""
        v_and_b32 v{s_}, 0xffff0000, v{st}
        v_rcp_f32 v{s_}, v{s_}
        v_lshlrev_b32 v{a0}, 16, v{xc}
        v_and_b32 v{a1}, 0xffff0000, v{xc}
        v_lshlrev_b32 v{m}, 16, v{st}
        v_sub_f32 v{a0}, v{a0}, v{m}
        v_sub_f32 v{a1}, v{a1}, v{m}
        v_cvt_pk_bf16_f32 v{a0}, v{a0}, v{a1}
        v_and_b32 v{a1}, 0xffff0000, v{a0}
        v_lshlrev_b32 v{a0}, 16, v{a0}
        v_mul_f32 v{u0+j}, v{a0}, v{s_}
        v_mul_f32 v{u1+j}, v{a1}, v{s_}
        """)
    A(f"""
    v_cvt_pk_bf16_f32 v{pu}, v{u0}, v{u0+1}
    v_cvt_pk_bf16_f32 v{pu+1}, v{u0+2}, v{u0+3}
    v_cvt_pk_bf16_f32 v{pu+2}, v{u1}, v{u1+1}
    v_cvt_pk_bf16_f32 v{pu+3}, v{u1+2}, v{u1+3}
    ds_write_b64 v{vW+6}, v[{pu}:{pu+1}]
    ds_write_b64 v{vW+6}, v[{pu+2}:{pu+3}] offset:256
    v_perm_b32 v{xt}, v{vXG+2}, v{vXG}, s{sSEL}
    v_perm_b32 v{xt+1}, v{vXG+6}, v{vXG+4}, s{sSEL}
    v_perm_b32 v{xt+2}, v{vXG+2}, v{vXG}, s{sSEL+3}
    v_perm_b32 v{xt+3}, v{vXG+6}, v{vXG+4}, s{sSEL+3}
    ds_write_b64 v{vW+6}, v[{xt}:{xt+1}] offset:512
    ds_write_b64 v{vW+6}, v[{xt+2}:{xt+3}] offset:768
    s_cmp_ge_u32 s{sW}, 4
    s_waitcnt lgkmcnt(0)
    s_barrier
    s_cbranch_scc1 ka_aux
    """)
    stamp(A,7)
    acc=vW+48; fr=vW+64; EU=vW+128; EX=vW+136; UD=vW+144; XF=vW+160
    def loads(s):
        b=fr+32*(s%2)
        def Ak(k): ko=2*(480+1536-32*s-512*k); return [f"ds_read_b64 v[{b+4*k}:{b+4*k+1}], v{aK} offset:{ko}",f"ds_read_b64 v[{b+4*k+2}:{b+4*k+3}], v{aK} offset:{ko+8}"]
        def Bj(j): return [f"ds_read_b128 v[{b+16+4*j}:{b+19+4*j}], v{aU+(s&3)} offset:{UP*(3-(s>>2)+4*j)}"]
        return Ak(0)+Bj(0)+Bj(1)+Ak(1)+Bj(2)+Ak(2)+Bj(3)+Ak(3)
    order=[(0,0,3),(1,0,4),(1,1,6),(2,0,7),(2,1,7),(2,2,9),(3,0,10),(3,1,10),(3,2,10),(3,3,12)]
    order0=order
    CW=int(os.environ.get("CW","2"))
    if CW==3: order=[(c,k,7 if n<=7 else (10 if n<=10 else 12)) for c,k,n in order]
    if CW==2: order=[(c,k,7 if n<=7 else 12) for c,k,n in order]
    if "noprio" not in X: A("s_setprio 2")
    for l in loads(0): A(l)
    ex0=[f"v_lshrrev_b32 v{m}, 2, v{p16}",f"v_mul_u32_u24 v{aE}, {UP}, v{m}",f"v_and_b32 v{s_}, 3, v{vL}",f"v_lshlrev_b32 v{s_}, 5, v{s_}",
         f"v_lshl_add_u32 v{s_}, v{g4}, 3, v{s_}",f"s_lshl_b32 s{sT}, s{sHALF}, 7",f"s_lshl_b32 s{sT2}, s{sCH}, 8",f"s_add_u32 s{sT}, s{sT}, s{sT2}",
         f"v_add_u32 v{s_}, s{sT}, v{s_}",f"v_add3_u32 v{aE}, v{aE}, v{s_}, s{sONE}"]
    A(f"s_mov_b32 s{sONE}, {UB+4*UP}")
    for l in ex0: A(l)
    rdx={1:[f"ds_read_b64 v[{EU+2*c}:{EU+2*c+1}], v{aE} offset:{4*UP*c}" for c in range(4)],
         2:[f"ds_read_b64 v[{EX+2*c}:{EX+2*c+1}], v{aE} offset:{4*UP*c+512}" for c in range(4)]}
    ex=[f"v_lshl_add_u32 v{aH}, v{m}, 17, v{s_}",f"s_lshl_b32 s{sT}, s{sG}, 9",f"s_add_u32 s{sT}, s{sT}, {WS_HT}",f"v_add_u32 v{aH}, s{sT}, v{aH}"]
    ex+=[f"v_add_u32 v{aH+c}, {c*524288}, v{aH}" for c in (1,2,3)]
    ex+=[f"s_lshl_b32 s{sT}, s{sDS}, 16", f"s_and_b32 s{sT2}, s{sDS}, 0xffff0000", f"s_cmp_eq_u32 s{sCH}, 0", f"s_cselect_b32 s{sDS}, s{sT}, s{sT2}"]
    for i in range(8):
        d=UD+2*i
        ex+=[f"v_lshlrev_b32 v{d}, 16, v{EU+i}",f"v_and_b32 v{d+1}, 0xffff0000, v{EU+i}",f"v_mul_f32 v{d}, s{sDS}, v{d}",f"v_mul_f32 v{d+1}, s{sDS}, v{d+1}",
             f"v_cvt_pk_bf16_f32 v{d}, v{d}, v{d+1}",f"v_and_b32 v{d+1}, 0xffff0000, v{d}",f"v_lshlrev_b32 v{d}, 16, v{d}"]
    for i in range(8):
        ex+=[f"v_lshlrev_b32 v{XF+2*i}, 16, v{EX+i}",f"v_and_b32 v{XF+2*i+1}, 0xffff0000, v{EX+i}"]
    prevx=0
    for s in range(16):
        b=fr+32*(s%2)
        L=(loads(s+1) if s<15 else [])+rdx.get(s,[])
        iss=0; lastw=-1
        for i,(c,k,need) in enumerate(order if s else order0):
            if need>lastw:
                A(f"s_waitcnt lgkmcnt({min(15,12-need+prevx+iss)})"); lastw=need
            cc="0" if (s==0 and k==0) else f"v[{acc+4*c}:{acc+4*c+3}]"
            A(f"v_mfma_f32_16x16x32_bf16 v[{acc+4*c}:{acc+4*c+3}], v[{b+4*k}:{b+4*k+3}], v[{b+16+4*(c-k)}:{b+19+4*(c-k)}], {cc}")
            n=(len(L)*(i+1))//10-(len(L)*i)//10
            for _ in range(n): A(L[iss]); iss+=1
            if s>=4 and ex and n<2: A(ex.pop(0))
        prevx=len(rdx.get(s,[]))
    for l in ex: A(l)
    stamp(A,8)
    for c in range(4):
        a=acc+4*c
        for src in (UD+4*c,XF+4*c):
            A(f"""
            v_cvt_pk_bf16_f32 v{a}, v{a}, v{a+1}
            v_cvt_pk_bf16_f32 v{a+2}, v{a+2}, v{a+3}
            v_and_b32 v{a+1}, 0xffff0000, v{a}
            v_and_b32 v{a+3}, 0xffff0000, v{a+2}
            v_lshlrev_b32 v{a}, 16, v{a}
            v_lshlrev_b32 v{a+2}, 16, v{a+2}
            v_pk_add_f32 v[{a}:{a+1}], v[{a}:{a+1}], v[{src}:{src+1}]
            v_pk_add_f32 v[{a+2}:{a+3}], v[{a+2}:{a+3}], v[{src+2}:{src+3}]
            """)
        A(f"""
        v_cvt_pk_bf16_f32 v{a}, v{a}, v{a+1}
        v_cvt_pk_bf16_f32 v{a+1}, v{a+2}, v{a+3}
        global_store_dwordx2 v{aH+c}, v[{a}:{a+1}], s[30:31]{WT}
        """)
    A(f"""
    s_lshl_b32 s{sT}, s{sG}, 2
    s_add_u32 s{sT}, s{sT}, {WS_FLH}
    v_lshl_add_u32 v{vW+2}, v{vL}, 10, s{sT}
    v_mov_b32 v{vW+3}, s{sTAG}
    s_waitcnt vmcnt(0)
    """)
    A.label("ka_fin")
    A("s_barrier")
    stamp(A,9)
    A(f"""
    s_cmp_lg_u32 s{sW}, 0
    s_cbranch_scc1 ka_nofl
    s_mov_b64 exec, 0xff
    global_store_dword v{vW+2}, v{vW+3}, s[30:31]{WT}
    """)
    A.label("ka_nofl")
    dump(A,1,10,sW)
    A("s_mov_b64 exec, -1")
    AA=A; A=tail
    A.label("ka_retry")
    A(f"""
    s_add_u32 s{sSP}, s{sSP}, 1
    s_cmp_ge_u32 s{sSP}, {SPIN}
    s_cbranch_scc1 ka_ok
    """)
    if BO: A(f"s_sleep {BO}")
    A("s_mov_b64 exec, vcc")
    gload(" sc0 sc1")
    A("s_mov_b64 exec, -1")
    A("s_branch ka_chk")
    A.label("ka_aux")
    stamp(A,7)
    ad=vW+40; S=vW+44; t=vW+52
    RD=176
    if "rp" in X.split("_"):
        A(f"""
        s_sub_u32 s{sROW}, s{sW}, 4
        s_lshl_b32 s{sROW}, s{sROW}, 8
        s_add_u32 s{sROW}, s{sROW}, s2
        s_lshl_b32 s{sT}, s{sROW}, 10
        v_lshl_add_u32 v{RD+8}, v{vL}, 4, s{sT}
        global_load_dwordx4 v[{RD}:{RD+3}], v{RD+8}, s[24:25]
        s_cmp_ge_u32 s{sROW}, {1376-1024}
        s_cbranch_scc1 ka_nod2
        v_add_u32 v{RD+8}, {1024*1024}, v{RD+8}
        global_load_dwordx4 v[{RD+4}:{RD+7}], v{RD+8}, s[24:25]
        """)
        A.label("ka_nod2")
    A(f"""
    s_sub_u32 s{sU}, s{sW}, 6
    s_lshl_b32 s{sU}, s{sU}, 8
    s_add_u32 s{sU}, s{sU}, s2
    s_cmp_ge_u32 s{sU}, 344
    s_cbranch_scc1 ka_nocs
    s_lshr_b32 s{sT}, s{sU}, 2
    s_cmp_ge_u32 s{sT}, 43
    s_cselect_b32 s62, s22, s20
    s_cselect_b32 s63, s23, s21
    s_cselect_b32 s{sT2}, 43, 0
    s_sub_u32 s{sT}, s{sT}, s{sT2}
    s_lshl_b32 s{sT}, s{sT}, 6
    s_and_b32 s{sT2}, s{sU}, 3
    s_mul_i32 s{sT2}, s{sT2}, {128*2752}
    s_add_u32 s{sT}, s{sT}, s{sT2}
    v_lshrrev_b32 v{vCA}, 2, v{vL}
    v_mul_u32_u24 v{vCA}, 2752, v{vCA}
    v_and_b32 v{vCA+1}, 3, v{vL}
    v_lshl_add_u32 v{vCA}, v{vCA+1}, 4, v{vCA}
    v_add_u32 v{vCA}, s{sT}, v{vCA}
    """)
    for i in range(8):
        A(f"global_load_dwordx4 v[{vCS+4*i}:{vCS+4*i+3}], v{vCA}, s[62:63]")
        if i<7: A(f"v_add_u32 v{vCA}, {16*2752}, v{vCA}")
    A.label("ka_nocs")
    c_=vW+56
    A(f"v_mov_b32 v{c_+5}, 0x40000000")
    for v in range(3):
        A(f"""
        v_add_u32 v{c_}, {64*v}, v{vL}
        v_mul_u32_u24 v{c_+1}, 0xaaab, v{c_}
        v_lshrrev_b32 v{c_+1}, 19, v{c_+1}
        v_mul_u32_u24 v{c_+2+v}, 12, v{c_+1}
        v_sub_u32 v{c_+2+v}, v{c_}, v{c_+2+v}
        v_mul_u32_u24 v{c_+1}, {2752-192}, v{c_+1}
        v_lshl_add_u32 v{vWo+v}, v{vL}, 4, v{c_+1}
        """)
    A(f"""
    s_and_b32 s{sT}, s2, 1
    s_lshr_b32 s{sT2}, s2, 5
    s_mul_i32 s{sCBg}, s{sT}, 7
    s_add_u32 s{sCBg}, s{sCBg}, s{sT2}
    s_add_u32 s{sT}, s{sT}, 14
    s_cmp_eq_u32 s{sT2}, 7
    s_cselect_b32 s{sCBg}, s{sT}, s{sCBg}
    s_cmp_eq_u32 s{sCBg}, 14
    s_cselect_b32 s{sT}, 4, 12
    s_cmp_eq_u32 s{sCBg}, 15
    s_cselect_b32 s{sT}, 0, s{sT}
    """)
    for v in range(3):
        A(f"""
        v_cmp_le_u32 vcc, s{sT}, v{c_+2+v}
        v_cndmask_b32 v{vWo+v}, v{vWo+v}, v{c_+5}, vcc
        """)
    A(f"""
    s_mul_i32 s{sWO}, s{sCH}, {16*2752}
    s_mul_i32 s{sT2}, s{sCBg}, 192
    s_add_u32 s{sWO}, s{sWO}, s{sT2}
    s_and_b32 s35, s2, {6 if ROTW else 0}
    s_lshl_b32 s35, s35, 1
    s_mul_i32 s{sT2}, s35, {32*2752}
    s_add_u32 s{sWO}, s{sWO}, s{sT2}
    s_mul_i32 s{sM0W}, s{sCH}, 3072
    s_mul_i32 s{sT}, s{sHALF}, {W_U}
    s_add_u32 s{sM0W}, s{sM0W}, s{sT}
    s_cmp_ge_u32 s{sW}, 6
    s_cselect_b32 s{sWt}, s22, s20
    s_cselect_b32 s{sWt+1}, s23, s21
    s_mov_b32 s{sWt+2}, {512*2752}
    s_mov_b32 s{sWt+3}, 0x20000
    """)
    def prefill():
        A(f"""
        s_mul_i32 s{sSP}, s{sCBg}, 3
        s_min_u32 s{sSP}, s{sSP}, 40
        s_and_b32 s{sT}, s2, 6
        s_lshl_b32 s{sT}, s{sT}, 1
        s_bfe_u32 s{sT2}, s2, 0x20003
        s_add_u32 s{sT}, s{sT}, s{sT2}
        s_lshl_b32 s{sT}, s{sT}, 2
        s_add_u32 s{sT}, s{sT}, s{sW}
        s_sub_u32 s{sT}, s{sT}, 4
        s_mul_i32 s{sT}, s{sT}, 86
        s_add_u32 s{sT}, s{sT}, s{sSP}
        s_lshl_b32 s{sT}, s{sT}, 10
        s_add_u32 s{sT}, s{sT}, {WS_HM}
        v_lshl_add_u32 v{c_}, v{vL}, 4, s{sT}
        v_add_u32 v{c_+1}, {43*1024}, v{c_}
        v_mov_b32 v{c_+4}, -1
        v_mov_b32 v{c_+5}, -1
        v_mov_b32 v{c_+6}, -1
        v_mov_b32 v{c_+7}, -1
        """)
        for o in (0,1024,2048):
            for r in (0,1): A(f"global_store_dwordx4 v{c_+r}, v[{c_+4}:{c_+7}], s[30:31] offset:{o}{WT}")
    prefill()
    for st in range(NPL//2): issue_w(A,st)
    A(f"""
    s_cmp_lg_u32 s{sW}, 4
    s_cbranch_scc1 ka_a3
    s_cmp_lg_u32 s2, 0
    s_cbranch_scc1 ka_a3
    s_add_u32 s{sT}, s{sEP}, 1
    v_mov_b32 v{t}, {WS_EPOCH}
    v_mov_b32 v{t+1}, s{sT}
    s_mov_b64 exec, 1
    global_store_dword v{t}, v{t+1}, s[30:31]
    """)
    A.label("ka_a3")
    A("s_mov_b64 exec, -1")
    if "rp" in X.split("_"):
        A(f"""
        s_bfe_u32 s{sT}, s{sROW}, 0x10001
        s_bfe_u32 s{sT2}, s{sROW}, 0x10003
        s_lshl_b32 s{sT2}, s{sT2}, 1
        s_or_b32 s{sT}, s{sT}, s{sT2}
        s_lshl_b32 s{sT}, s{sT}, 1
        v_and_b32 v{RD+8}, 7, v{vL}
        v_xor_b32 v{RD+8}, s{sT}, v{RD+8}
        v_lshrrev_b32 v{RD+9}, 3, v{vL}
        v_mul_u32_u24 v{RD+9}, {43*4096}, v{RD+9}
        v_lshl_add_u32 v{RD+8}, v{RD+8}, 4, v{RD+9}
        s_lshl_b32 s{sT}, s{sROW}, 7
        s_add_u32 s{sT}, s{sT}, {WS_WD2}
        v_add_u32 v{RD+8}, s{sT}, v{RD+8}
        s_waitcnt vmcnt({3*(NPL//2)+6})
        global_store_dwordx4 v{RD+8}, v[{RD}:{RD+3}], s[30:31]{WT}
        s_cmp_ge_u32 s{sROW}, {1376-1024}
        s_cbranch_scc1 ka_nod3
        v_add_u32 v{RD+8}, {1024*128}, v{RD+8}
        global_store_dwordx4 v{RD+8}, v[{RD+4}:{RD+7}], s[30:31]{WT}
        """)
        A.label("ka_nod3")
    if "dpf" in X:
        A(f"""
        s_cmp_ge_u32 s{sW}, 6
        s_cbranch_scc1 ka_nodpf
        s_lshr_b32 s{sT}, s2, 3
        s_lshl_b32 s{sT}, s{sT}, 1
        s_add_u32 s{sT}, s{sT}, s{sCH}
        s_mul_i32 s{sT}, s{sT}, {172*128}
        v_lshl_add_u32 v{c_}, v{vL}, 7, s{sT}
        global_load_dword v{vRA+3}, v{c_}, s[24:25]
        v_add_u32 v{c_}, 8192, v{c_}
        global_load_dword v{vRA+3}, v{c_}, s[24:25]
        v_add_u32 v{c_}, 8192, v{c_}
        s_mov_b32 exec_hi, 0xfff
        global_load_dword v{vRA+3}, v{c_}, s[24:25]
        s_mov_b32 exec_hi, -1
        """)
        A.label("ka_nodpf")
    A(f"""
    s_cmp_ge_u32 s{sU}, 344
    s_cbranch_scc1 ka_pfw
    s_waitcnt vmcnt({3*(NPL//2)+6+(1 if "rp" in X.split("_") else 0)})
    """)
    for i in range(8):
        for j in range(4):
            r=vCS+4*i+j
            if i==0:
                A(f"v_lshlrev_b32 v{S+2*j}, 16, v{r}")
                A(f"v_and_b32 v{S+2*j+1}, 0xffff0000, v{r}")
            else:
                A(f"v_lshlrev_b32 v{t}, 16, v{r}")
                A(f"v_and_b32 v{t+1}, 0xffff0000, v{r}")
                A(f"v_add_f32 v{S+2*j}, v{S+2*j}, v{t}")
                A(f"v_add_f32 v{S+2*j+1}, v{S+2*j+1}, v{t+1}")
    for j in range(4): A(f"v_permlane32_swap_b32 v{S+j}, v{S+j+4}")
    for j in range(4): A(f"v_add_f32 v{S+j}, v{S+j}, v{S+j+4}")
    for j in range(2): A(f"v_permlane16_swap_b32 v{S+j}, v{S+j+2}")
    for j in range(2): A(f"v_add_f32 v{S+j}, v{S+j}, v{S+j+2}")
    for ctl in ("row_ror:8","row_ror:4"):
        for j in range(2): A(f"v_add_f32_dpp v{S+j}, v{S+j}, v{S+j} {ctl} row_mask:0xf bank_mask:0xf")
    d=S+2
    A(f"""
    v_and_b32 v{t}, 4, v{vL}
    v_cmp_ne_u32 vcc, 0, v{t}
    v_cndmask_b32 v{S}, v{S}, v{S+1}, vcc
    v_cvt_pk_bf16_f32 v{S+1}, v{S}, v{S}
    v_and_b32 v{S+1}, 0xffff0000, v{S+1}
    v_sub_f32 v{S+1}, v{S}, v{S+1}
    v_cvt_pk_bf16_f32 v{d}, v{S}, v{S+1}
    v_mov_b32 v{d+1}, s{sTAG}
    v_lshlrev_b32 v{ad}, 8, v{vCA+1}
    v_lshl_add_u32 v{ad}, v{hh}, 7, v{ad}
    v_and_b32 v{t+1}, 16, v{vL}
    v_lshl_add_u32 v{ad}, v{t+1}, 2, v{ad}
    v_lshl_add_u32 v{ad}, v{t}, 3, v{ad}
    s_lshr_b32 s{sT}, s{sU}, 2
    s_lshl_b32 s{sT}, s{sT}, 10
    s_and_b32 s{sT2}, s{sU}, 3
    s_lshl_b32 s{sT2}, s{sT2}, 3
    s_add_u32 s{sT}, s{sT}, s{sT2}
    s_add_u32 s{sT}, s{sT}, {WS_CS}
    v_add_u32 v{ad}, s{sT}, v{ad}
    s_mov_b32 exec_lo, 0x00ff00ff
    s_mov_b32 exec_hi, 0x00ff00ff
    global_store_dwordx2 v{ad}, v[{d}:{d+1}], s[30:31]{WT}
    s_mov_b64 exec, -1
    """)
    A.label("ka_pfw")
    for st in range(NPL//2,NPL): issue_w(A,st)
    A(f"s_waitcnt vmcnt({3*NPL if 'rp' not in X.split('_') else 3*(NPL-NPL//2)})")
    stamp(A,8)
    A("s_branch ka_fin")
```

```python
from common import *
from mA import WSLOT,NWS,W_U,X_CNT,sTAG,sWt,sWO,sM0W,vWo,issue_w,NPL,WT,ROTW
GC1=-2.0*math.sqrt(2.0/math.pi)*LOG2E; GC2=GC1*0.044715
HR=NWS*WSLOT; HRN=4; SPARE=HR+HRN*8192
FS=int(os.environ.get('FS','5'))
NREG=6; SPIN=1<<16; NA=int(os.environ.get('NA','21'))
WS_SIZE=0x1000000
NPRE=int(os.environ.get('NPRE','10')); WPI=int(os.environ.get("WPI","3"))
RL=4
def make_sched():
    free=[(SPARE,-1 if 'rp' not in X.split('_') else 0)]
    for st in range(6,16):
        for i in range(3): free.append(((st%NWS)*WSLOT+4096*i, st+1))
        if st>=12:
            for i in range(2): free.append((HR+(st%HRN)*8192+4096*i, st+1))
    loc={}; issue={j:[] for j in range(-1,17)}; read={j:[] for j in range(17)}
    nb=0; res=None
    for j in range(-1,17):
        lim = 99 if j==16 else (1 if j<0 else (WPI if j+HRN-1<16 else WPI+2))
        c=0
        if j==7:
            res=6*WSLOT; free=[f for f in free if f[0] not in (res,res+4096)]
            issue[j].append("r"); c+=2; read[j+RL].append("r"); free+= [(res,j+RL+1),(res+4096,j+RL+1)]
        while nb<43 and c<lim:
            av=sorted([f for f in free if f[1]<=j],key=lambda f:f[1])
            if not av: break
            f=av[0]; free.remove(f); loc[nb]=f[0]; issue[j].append(nb)
            if nb<NPRE:
                jr=max(j+RL,1) if j>=0 else 1; read[jr].append(nb); free.append((f[0],jr+1 if jr<int(os.environ.get('LB','14')) else 99))
            nb+=1; c+=1
    assert nb==43 and len(free)>=4
    return loc,issue,read,res,[f[0] for f in free[:4]]
LOC,ISSUE,READ,X_RES,X_RED=make_sched()
def wd_loc(b): return LOC[b]
ORD=[b for b in range(43) if b%3!=2]+[b for b in range(43) if b%3==2]
LB=int(os.environ.get('LB','14'))
CS_=int(os.environ.get('CSL','1'))
CUE=int(os.environ.get('CUE','4'))
def bc(r): return f"v[{r}:{r+1}]"

def phaseB(A):
    sW=36; sMB=37; sCB=38; sT=39; sT2=40; sJ=42; sHO=43; sOO=44; sM0H=45; sHM=46; sDO=47
    sNB=55; sHF=41; sRO=23; sS=48; sC=56; sOUT=60; sD=4; sM0D=16; sSP=17
    vL=1; vT=10
    SR=f"s[{sS}:{sS+3}]"
    stamp(A,0)
    A(f"""
    s_and_b32 s{sT}, s2, 1
    s_lshr_b32 s{sT2}, s2, 5
    s_mul_i32 s{sCB}, s{sT}, 7
    s_add_u32 s{sCB}, s{sCB}, s{sT2}
    s_add_u32 s{sT}, s{sT}, 14
    s_cmp_eq_u32 s{sT2}, 7
    s_cselect_b32 s{sCB}, s{sT}, s{sCB}
    s_and_b32 s{sT}, s{sT2}, 3
    s_cmp_eq_u32 s{sT}, 3
    s_cselect_b32 s{sT}, 4, 0
    s_xor_b32 s{sNB}, s{sT2}, s{sT}
    s_and_b32 s{sHF}, s2, 1
    s_and_b32 s{sRO}, s2, 7
    s_mul_i32 s{sRO}, s{sRO}, {0 if "norot" in X else 7}
    s_bfe_u32 s{sT}, s2, 0x20003
    s_mul_i32 s{sT}, s{sT}, 14
    s_add_u32 s{sRO}, s{sRO}, s{sT}
    s_mul_i32 s{sT}, s{sNB}, {int(os.environ.get("RN","0"))}
    s_add_u32 s{sRO}, s{sRO}, s{sT}
    s_lshr_b32 s{sRO}, s{sRO}, 2
    s_sub_u32 s{sT}, s{sRO}, 14
    s_cselect_b32 s{sRO}, s{sRO}, s{sT}
    s_sub_u32 s{sT}, s{sRO}, 14
    s_cselect_b32 s{sRO}, s{sRO}, s{sT}
    s_mul_i32 s{sRO}, s{sRO}, 3072
    s_and_b32 s{sT}, s2, 6
    s_lshl_b32 s{sT}, s{sT}, 1
    s_bfe_u32 s{sT2}, s2, 0x20003
    s_add_u32 s{sMB}, s{sT}, s{sT2}
    v_mov_b32 v8, {X_CNT}
    s_mov_b32 s{sS}, s30
    s_mov_b32 s{sS+1}, s31
    s_mov_b32 s{sS+2}, {WS_SIZE}
    s_mov_b32 s{sS+3}, 0x20000
    s_cmp_lt_u32 s{sW}, 4
    s_cbranch_scc1 k2_lo
    """)
    vH=2; vLin=3; vR=7
    def p2_setup():
        A(f"""
        s_mov_b32 s{sT}, s{sNB}
        s_lshl_b32 s{sM0D}, s{sW}, 10
        v_bfe_u32 v{vT}, v{vL}, 4, 2
        v_lshlrev_b32 v{vT}, 1, v{vT}
        v_and_b32 v{vT+1}, 7, v{vL}
        v_xor_b32 v{vT}, v{vT}, v{vT+1}
        v_lshlrev_b32 v{vT}, 4, v{vT}
        v_lshrrev_b32 v{vT+2}, 3, v{vL}
        v_lshl_add_u32 v{vR}, v{vT+2}, 8, v{vT}
        s_lshl_b32 s{sDO}, s{sT}, 7
        s_lshl_b32 s{sT2}, s{sW}, 13
        s_add_u32 s{sDO}, s{sDO}, s{sT2}
        v_bfe_u32 v{vT}, v{vL}, 4, 1
        s_and_b32 s{sT}, s{sW}, 1
        s_lshl_b32 s{sT}, s{sT}, 1
        v_or_b32 v{vT}, s{sT}, v{vT}
        v_lshlrev_b32 v{vT}, 1, v{vT}
        v_xor_b32 v{vT}, v{vT}, v{vT+1}
        v_lshlrev_b32 v{vT}, 4, v{vT}
        v_lshl_add_u32 v{vLin}, v{vT+2}, 10, v{vT}
        """)
        srd(A,sD,24,0,1376*1024)
        if "rp" in X.split("_"):
            A(f"""
            s_mov_b32 s{sT}, s{sNB}
            s_mul_i32 s{sDO}, s{sT}, {43*4096}
            s_add_u32 s{sDO}, s{sDO}, s{sM0D}
            s_add_u32 s{sDO}, s{sDO}, {WS_WD2}
            v_lshlrev_b32 v{vLin}, 4, v{vL}
            """)
    def blk(b):
        o=ORD[b]
        if o==42: return [f"s_mov_b32 s{sT2}, {42*1024}"]
        return [f"s_add_u32 s{sT2}, s{sRO}, {o*1024}", f"s_sub_u32 s{sT}, s{sT2}, {42*1024}", f"s_cselect_b32 s{sT2}, s{sT2}, s{sT}"]
    def issue_wd(b,loc=None):
        if "rp" in X.split("_"):
            A(f"""
            s_add_u32 m0, s{sM0D}, {wd_loc(b) if loc is None else loc}
            s_add_u32 s{sT}, s{sDO}, {4096*ORD[b]}
            buffer_load_dwordx4 v{vLin}, {SR}, s{sT} offen lds
            """)
            return
        A(f"""
        {chr(10).join(blk(b))}
        s_lshl_b32 s{sT2}, s{sT2}, 5
        s_add_u32 m0, s{sM0D}, {wd_loc(b) if loc is None else loc}
        s_add_u32 s{sT}, s{sDO}, s{sT2}
        buffer_load_dwordx4 v{vLin}, s[{sD}:{sD+3}], s{sT} offen lds
        """)
    def issue_res():
        A(f"""
        s_mov_b32 s{sT}, s{sNB}
        s_lshl_b32 s{sT}, s{sT}, 14
        s_lshl_b32 s{sT2}, s{sW}, 12
        s_add_u32 s{sT}, s{sT}, s{sT2}
        s_lshl_b32 s{sT2}, s{sMB}, 17
        s_add_u32 s{sT}, s{sT}, s{sT2}
        s_mov_b32 s{sT2}, s{sHF}
        s_lshl_b32 s{sT2}, s{sT2}, 7
        s_add_u32 s{sT}, s{sT}, s{sT2}
        s_add_u32 s{sT}, s{sT}, {WS_HT}
        s_lshl_b32 s{sT2}, s{sW}, 11
        s_add_u32 m0, s{sT2}, {X_RES}
        s_add_u32 s{sT2}, s{sT}, 2048
        buffer_load_dwordx4 v{vR}, {SR}, s{sT} offen lds
        s_add_u32 m0, m0, 1024
        s_nop 0
        buffer_load_dwordx4 v{vR}, {SR}, s{sT2} offen lds
        """)
    def issue_h(st):
        A(f"""
        s_add_u32 m0, s{sM0H}, {HR+(st%HRN)*8192}
        s_nop 0
        buffer_load_dwordx4 v{vH}, {SR}, s{sHO} offen lds
        buffer_load_dwordx4 v{vH}, {SR}, s{sHO} offen offset:1024 lds
        s_add_u32 s{sHO}, s{sHO}, 8192
        """)
        if st in (3,7,11) and ROTW:
            A(f"""
            s_cmp_eq_u32 s35, {15-st}
            s_cselect_b32 s3, {16*8192}, 0
            s_sub_u32 s{sHO}, s{sHO}, s3
            """)
    def lbar(k):
        l=A.newlabel("k2_lb")
        A(f"""
        v_mov_b32 v9, 1
        s_mov_b64 exec, 1
        ds_add_u32 v8, v9
        s_mov_b64 exec, -1
        """)
        A.label(l)
        A(f"""
        ds_read_b32 v9, v8
        s_waitcnt lgkmcnt(0)
        v_cmp_gt_u32 vcc, {4*k}, v9
        s_cbranch_vccnz {l}
        """)
    aW=12; aRr=15; vF=16; vHo=17; vOo=18; vX=19
    NS=11
    ACC=20; RG=36; FW=RG+16*(NS-1); NH=7; FH=RG+16*NS; aWn=FH+4*NH
    def p2_addr(grpB):
        A(f"""
        v_bfe_u32 v{vT}, v{vL}, 2, 2
        v_lshrrev_b32 v{vT+1}, 4, v{vL}
        v_lshl_add_u32 v{aW}, v{vT+1}, 3, v{vT}
        v_lshlrev_b32 v{aW}, 7, v{aW}
        v_and_b32 v{aW+1}, 3, v{vL}
        v_lshl_add_u32 v{aW}, v{aW+1}, 3, v{aW}
        v_lshrrev_b32 v{aW+2}, 1, v{vT}
        v_and_b32 v{vF}, 1, v{vT+1}
        v_lshl_or_b32 v{aW+2}, v{vF}, 1, v{aW+2}
        """)
        for nt in range(4):
            A(f"v_xor_b32 v{vF}, {nt}, v{aW+2}")
            A(f"v_lshl_add_u32 v{aWn+nt}, v{vF}, 5, v{aW}")
            A(f"v_add_u32 v{aWn+4+nt}, 0xf000, v{aWn+nt}")
            A(f"v_add_u32 v{aWn+8+nt}, 0x1e000, v{aWn+nt}")
        if not grpB:
            A(f"""
            v_lshl_add_u32 v{aRr}, v{vT+1}, 2, v{vT}
            v_lshlrev_b32 v{aRr}, 7, v{aRr}
            v_lshl_add_u32 v{aRr}, v{aW+1}, 3, v{aRr}
            v_xor_b32 v{vF}, s{sW}, v{aW+2}
            v_lshl_add_u32 v{aRr}, v{vF}, 5, v{aRr}
            v_add_u32 v{aRr}, {X_RES}, v{aRr}
            """)
        A(f"""
        v_lshlrev_b32 v{vHo}, 4, v{vL}
        v_and_b32 v{vOo}, 15, v{vL}
        v_lshlrev_b32 v{vOo}, 10, v{vOo}
        v_lshl_add_u32 v{vOo}, v{vT+1}, 3, v{vOo}
        s_mov_b32 s{sT}, {X_RED[0]}
        s_cmp_eq_u32 s{sW}, 1
        s_cselect_b32 s{sT}, {X_RED[1]}, s{sT}
        s_cmp_eq_u32 s{sW}, 2
        s_cselect_b32 s{sT}, {X_RED[2]}, s{sT}
        s_cmp_eq_u32 s{sW}, 3
        s_cselect_b32 s{sT}, {X_RED[3]}, s{sT}
        v_add_u32 v{vX}, s{sT}, v{vHo}
        """)
        srd(A,sOUT,26,0,2048*1024)
        A(f"""
        s_lshl_b32 s{sT}, s{sMB}, 1
        s_mov_b32 s{sT2}, s{sHF}
        s_add_u32 s{sT}, s{sT}, s{sT2}
        s_lshl_b32 s{sT}, s{sT}, 2
        s_add_u32 s{sT}, s{sT}, s{sW}
        s_mul_i32 s{sHM}, s{sT}, {43*1024}
        s_add_u32 s{sHM}, s{sHM}, {WS_HM}
        s_lshl_b32 s{sOO}, s{sT}, 14
        s_mov_b32 s{sT2}, s{sNB}
        s_lshl_b32 s{sT2}, s{sT2}, 7
        s_add_u32 s{sOO}, s{sOO}, s{sT2}
        """)
    def rdw(dst,b,loc=None):
        loc=wd_loc(b) if loc is None else loc; win=loc//0xf000; off=loc-win*0xf000
        return [f"ds_read_b64_tr_b16 v[{dst+4*nt+2*e}:{dst+4*nt+2*e+1}], v{aWn+4*win+nt} offset:{off+512*e}" for nt in range(4) for e in range(2)]
    assert NPRE>=10
    stubs=[]
    def cnt_wait(off,val):
        l=A.newlabel("k2_cw")
        if CS_:
            A(f"s_branch {l}_e")
        A.label(l)
        if CS_:
            A(f"s_sleep {CS_}")
            A.label(l+"_e")
        A(f"""
        ds_read_b32 v9, v8 offset:{off}
        s_waitcnt lgkmcnt(0)
        v_cmp_gt_u32 vcc, {val}, v9
        s_cbranch_vccnz {l}
        """)
    def cnt_add(off):
        A(f"""
        v_mov_b32 v9, 1
        s_mov_b64 exec, 1
        ds_add_u32 v8, v9 offset:{off}
        s_mov_b64 exec, -1
        """)
    def p2_loop(b0,n,grpB):
        def ldh(s,sc=""):
            d=FH+4*(s%NH)
            return blk(b0+s)+[f"s_add_u32 s{sT}, s{sHM}, s{sT2}", f"buffer_load_dwordx4 v[{d}:{d+3}], v{vHo}, {SR}, s{sT} offen{sc}"]
        D=min(NH-1,int(os.environ.get("P2D","6"))); PD=NPRE
        A(f"s_mov_b32 s{sSP}, 0")
        for s in range(D):
            for l in ldh(s): A(l)
        if not grpB and "early" in X:
            A(f"s_waitcnt vmcnt({D})")
            cnt_add(0)
            cnt_wait(0,4)
        for s in range(n):
            src=RG+16*(s%NS)
            nr=rdw(RG+16*((s+PD)%NS),b0+s+PD) if s+PD<n else []
            lg=""
            if s>=NPRE:
                out=8*(min(n,s+PD)-s-1)
                if out<=15: lg=f" lgkmcnt({out})"
            A(f"s_waitcnt vmcnt({min(n,s+D)-s-1})"+lg)
            h=FH+4*(s%NH)
            lc=f"k2_c{b0+s}"; lr=f"k2_r{b0+s}"; lo=f"k2_o{b0+s}"
            A.label(lc)
            A(f"""
            v_max3_u32 v{vT}, v{h}, v{h+1}, v{h+2}
            v_max_u32 v{vT}, v{vT}, v{h+3}
            v_cmp_eq_u32 vcc, -1, v{vT}
            s_cbranch_vccnz {lr}
            """)
            A.label(lo)
            stubs.append((lr,lc,lo,ldh(s," sc0 sc1")+(ldh(s+1," sc0 sc1") if (s+1<n and "r1" not in X) else [])))
            if s+D<n:
                for l in ldh(s+D): A(l)
            for nt in range(4):
                c="0" if (grpB and s==0) else f"v[{ACC+4*nt}:{ACC+4*nt+3}]"
                A(f"v_mfma_f32_16x16x32_bf16 v[{ACC+4*nt}:{ACC+4*nt+3}], v[{src+4*nt}:{src+4*nt+3}], v[{h}:{h+3}], {c}")
                if nt==0 and nr: A("s_waitcnt lgkmcnt(7)")
                for r in nr[2*nt:2*nt+2]: A(r)
        if not(grpB and 'prof' in X): stamp(A,7)
        give=ACC if grpB else ACC+8; keep=ACC+8 if grpB else ACC
        wo=0 if grpB else 2048; ro=2048 if grpB else 0
        A(f"""
        ds_write_b128 v{vX}, v[{give}:{give+3}] offset:{wo}
        ds_write_b128 v{vX}, v[{give+4}:{give+7}] offset:{wo+1024}
        s_waitcnt lgkmcnt(0)
        s_barrier
        ds_read_b128 v[{RG}:{RG+3}], v{vX} offset:{ro}
        ds_read_b128 v[{RG+4}:{RG+7}], v{vX} offset:{ro+1024}
        """)
        for i in range(2):
            A(f"s_waitcnt lgkmcnt({1-i})")
            for q in range(2):
                r=4*i+2*q
                A(f"v_pk_add_f32 {bc(keep+r)}, {bc(keep+r)}, {bc(RG+r)}")
            for q in range(2):
                r=4*i+2*q
                A(f"v_cvt_pk_bf16_f32 v{RG+8+2*i+q}, v{keep+r}, v{keep+r+1}")
            A(f"buffer_store_dwordx2 {bc(RG+8+2*i)}, v{vOo}, s[{sOUT}:{sOUT+3}], s{sOO} offen offset:{32*(i+(2 if grpB else 0))}")
    PF=200
    def hpoll(lab,sl=0):
        A(f"""
        s_cmp_lg_u32 s{sW}, 0
        s_cbranch_scc1 {lab}_d
        s_lshr_b32 s{sT}, s{sMB}, 1
        s_lshl_b32 s{sT}, s{sT}, 10
        s_add_u32 s{sT}, s{sT}, {WS_FLH}
        v_lshl_add_u32 v{PF+4}, v{vL}, 4, s{sT}
        s_mov_b32 s{sSP}, 0
        """)
        A.label(lab)
        A(f"""
        global_load_dwordx4 v[{PF}:{PF+3}], v{PF+4}, s[30:31] sc0 sc1
        s_add_u32 s{sSP}, s{sSP}, 1
        s_cmp_ge_u32 s{sSP}, {SPIN}
        s_cbranch_scc1 {lab}_d
        s_waitcnt vmcnt(0)
        v_xor_b32 v{PF}, s{sTAG}, v{PF}
        v_xor_b32 v{PF+1}, s{sTAG}, v{PF+1}
        v_xor_b32 v{PF+2}, s{sTAG}, v{PF+2}
        v_xor_b32 v{PF+3}, s{sTAG}, v{PF+3}
        v_or3_b32 v{PF}, v{PF}, v{PF+1}, v{PF+2}
        v_or_b32 v{PF}, v{PF}, v{PF+3}
        v_cmp_ne_u32 vcc, 0, v{PF}
        s_mov_b64 exec, vcc
        s_cbranch_vccnz {lab}
        """)
        A.label(lab+"_d")
        A("s_mov_b64 exec, -1")
    A(f"""
    s_cmp_eq_u32 s{sCB}, 15
    s_cbranch_scc1 k2_stats
    """)
    WPRE=int(os.environ.get('WPRE','8'))
    for st in range(NPL,WPRE): issue_w(A,st)
    nw=[WPRE]
    A(f"""
    s_sub_u32 s{sW}, s{sW}, 4
    v_lshrrev_b32 v{vT}, 4, v{vL}
    v_lshlrev_b32 v{vT+1}, 2, v{vT}
    v_and_b32 v{vT+2}, 15, v{vL}
    v_xor_b32 v{vT+1}, v{vT+1}, v{vT+2}
    v_lshlrev_b32 v{vT+1}, 4, v{vT+1}
    v_lshl_add_u32 v{vH}, v{vT}, 8, v{vT+1}
    s_lshl_b32 s{sM0H}, s{sW}, 11
    s_lshl_b32 s{sT}, s{sMB}, 17
    s_add_u32 s{sHO}, s{sM0H}, s{sT}
    s_add_u32 s{sHO}, s{sHO}, {WS_HT}
    s_lshl_b32 s{sT}, s35, 13
    s_add_u32 s{sHO}, s{sHO}, s{sT}
    """)
    p2_setup()
    p2_addr(False)
    def rd_res():
        for q in range(4): A(f"ds_read_b64_tr_b16 v[{FW+2*q}:{FW+2*q+1}], v{aRr} offset:{2048*q}")
        A("s_waitcnt lgkmcnt(0)")
        for q in range(8):
            A(f"v_lshlrev_b32 v{ACC+2*q}, 16, v{FW+q}")
            A(f"v_and_b32 v{ACC+2*q+1}, 0xffff0000, v{FW+q}")
    for b in ISSUE[-1]: issue_wd(b)
    stamp(A,1)
    if "lopoll" not in X: hpoll("k2_hp")
    A("s_barrier")
    stamp(A,2)
    if "lp" in X.split("_"): A("s_setprio 2")
    issued=[]
    for st in range(HRN-1): issue_h(st); issued.append((("h",st),2))
    def after(keys):
        idx=max(i for i,(t,_) in enumerate(issued) if t in keys)
        return sum(c for _,c in issued[idx+1:])
    for j in range(17):
        if j<=LB:
            keys={('h',j),('w',j),('d',j-RL)} | ({('h',15)} if j==LB else set())
            A(f"s_waitcnt vmcnt({min(63,after(keys))}) lgkmcnt(0)")
            A("s_barrier")
        elif j==15: cnt_wait(8,4)
        else: cnt_wait(12,4)
        if j==0: stamp(A,3)
        if j+HRN-1<16: issue_h(j+HRN-1); issued.append((("h",j+HRN-1),2))
        if nw[0]<16 and nw[0]-NWS+1<=j:
            assert nw[0]>=j+2
            issue_w(A,nw[0]); issued.append((("w",nw[0]),3)); nw[0]+=1
        c=0; rl=list(READ[j])
        for b in ISSUE[j]:
            if b=="r": issue_res(); c+=2
            else: issue_wd(b); c+=1
            if rl:
                x=rl.pop(0)
                if x=="r": rd_res()
                else:
                    for r in rdw(RG+16*x,x): A(r)
        for x in rl:
            if x=="r": rd_res()
            else:
                for r in rdw(RG+16*x,x): A(r)
        if c: issued.append((("d",j),c))
    stamp(A,4)
    A.label("k2_p2")
    if "lp" in X.split("_"): A("s_setprio 0")
    if "early" not in X:
        A("s_waitcnt vmcnt(0)")
        cnt_add(0)
        cnt_wait(0,4)
    stamp(A,5)
    cnt_wait(4,4)
    stamp(A,6)
    if "ap" in X.split("_"): A("s_setprio 1")
    p2_loop(0,NA,False)
    dump(A,2,8,sW,4)
    A("s_endpgm")
    A.label("k2_lo")
    A(f"""
    s_cmp_eq_u32 s{sCB}, 15
    s_cbranch_scc1 k2_stats_lo
    """)
    p2_addr(True)
    sWT=18; sWF=19
    aH=2; aWc=4; cT=11; CSF=208; FA=30; FB=50; CAC=70; vS=166; vSt=170
    A(f"""
    s_setprio 1
    s_and_b32 s{sWT}, s{sW}, 1
    s_lshr_b32 s{sWF}, s{sW}, 1
    v_bfe_u32 v{cT}, v{vL}, 2, 2
    v_lshrrev_b32 v{cT+1}, 5, v{vL}
    v_lshl_add_u32 v{cT+1}, v{cT+1}, 3, v{cT}
    v_and_b32 v{cT+2}, 3, v{vL}
    v_bfe_u32 v{cT+3}, v{vL}, 4, 1
    v_lshlrev_b32 v{cT+4}, 8, v{cT+1}
    v_lshl_add_u32 v{cT+4}, v{cT+3}, 5, v{cT+4}
    v_lshl_add_u32 v{cT+4}, v{cT+2}, 3, v{cT+4}
    v_add_u32 v{cT+4}, {HR}, v{cT+4}
    s_lshl_b32 s{sT}, s{sWT}, 1
    v_xor_b32 v{cT+5}, s{sT}, v{cT}
    v_lshl_add_u32 v{aH}, v{cT+5}, 6, v{cT+4}
    v_xor_b32 v{cT+5}, 1, v{cT+5}
    v_lshl_add_u32 v{aH+1}, v{cT+5}, 6, v{cT+4}
    v_mul_u32_u24 v{aWc}, 192, v{cT+1}
    v_mul_u32_u24 v{cT+4}, {W_U}, v{cT+3}
    v_add_u32 v{aWc}, v{aWc}, v{cT+4}
    v_and_b32 v{cT+4}, 1, v{vL}
    v_lshl_add_u32 v{aWc}, v{cT+4}, 4, v{aWc}
    v_bfe_u32 v{cT+4}, v{vL}, 1, 1
    v_lshl_add_u32 v{aWc}, v{cT+4}, 3, v{aWc}
    s_lshl_b32 s{sT}, s{sWF}, 5
    v_add_u32 v{aWc+2}, s{sT}, v{aWc}
    v_add_u32 v{aWc}, s{sT}, v{aWc+2}
    v_add_u32 v{aWc+1}, {5*WSLOT}, v{aWc}
    v_add_u32 v{aWc+3}, {5*WSLOT}, v{aWc+2}
    v_and_b32 v{cT+4}, 1, v{cT}
    v_lshl_add_u32 v{cT+4}, v{cT+4}, 3, v{cT+2}
    v_lshrrev_b32 v{cT+5}, 1, v{cT}
    v_lshl_add_u32 v{cT+4}, v{cT+5}, 2, v{cT+4}
    v_mul_u32_u24 v{cT+5}, 1376, v{cT+3}
    v_add_u32 v{cT+4}, v{cT+4}, v{cT+5}
    v_and_b32 v{cT+5}, 32, v{vL}
    v_lshrrev_b32 v{cT+1}, 1, v{cT+5}
    v_lshl_add_u32 v{cT+4}, v{cT+4}, 5, v{cT+1}
    """)
    A(f"""
    s_mul_i32 s54, s{sCB}, 6
    s_add_u32 s54, s54, s{sWF}
    s_add_u32 s52, s54, s{sWF}
    s_add_u32 s53, s52, 1
    s_add_u32 s54, s54, 4
    """)
    for rt in range(3):
        A(f"""
        s_min_u32 s{20+rt}, s{52+rt}, 85
        s_lshl_b32 s{20+rt}, s{20+rt}, 9
        s_add_u32 s{20+rt}, s{20+rt}, {WS_CS}
        """)
    A(f"""
    s_lshl_b32 s{sT}, s{sMB}, 10
    s_lshl_b32 s{sT2}, s{sWT}, 9
    s_add_u32 s{sT}, s{sT}, s{sT2}
    s_add_u32 s{sT}, s{sT}, {WS_ST3}
    v_and_b32 v{cT}, 31, v{vL}
    v_lshl_add_u32 v{vSt}, v{cT}, 3, s{sT}
    v_mul_u32_u24 v{cT+1}, {43*1024}, v{cT+3}
    v_lshl_add_u32 v{cT+1}, v{cT+5}, 3, v{cT+1}
    v_and_b32 v{cT}, 15, v{vL}
    v_lshl_add_u32 v{cT+1}, v{cT}, 4, v{cT+1}
    s_lshl_b32 s{sT}, s{sMB}, 1
    s_add_u32 s{sT}, s{sT}, s{sWT}
    s_mul_i32 s{sJ}, s{sT}, {4*43*1024}
    s_add_u32 s{sJ}, s{sJ}, {WS_HM}
    v_mov_b32 v{vS}, 0
    """)
    for rt in range(3):
        A(f"buffer_load_dwordx4 v[{CSF+4*rt}:{CSF+4*rt+3}], v{cT+4}, {SR}, s{20+rt} offen")
    A(f"""
    s_cmp_lg_u32 s{sW}, 3
    s_cbranch_scc1 k2_now
    global_load_dword v{vS+1}, v{vS}, s[26:27]
    """)
    A.label("k2_now")
    if "lopoll" in X: hpoll("k2_hp")
    def rd(F,st,ks):
        sl=st%NWS; g=sl//5; so=(sl%5)*WSLOT; ho=(st%HRN)*8192
        def w(rt,e): return f"ds_read_b64_tr_b16 v[{F+8+4*rt+2*e}:{F+8+4*rt+2*e+1}], v{aWc+g+(2 if rt==2 else 0)} offset:{so+(16*ks+4*e)*192+(128 if rt==2 else 32*rt)}"
        def h(ct,e): return f"ds_read_b64_tr_b16 v[{F+4*ct+2*e}:{F+4*ct+2*e+1}], v{aH+ct} offset:{ho+(16*ks+4*e)*256}"
        return [w(0,0),w(0,1),h(0,0),h(0,1),h(1,0),h(1,1),w(1,0),w(1,1),w(2,0),w(2,1)]
    first=[True]*6
    def mm(F):
        out=[]
        for rt in range(3):
            for ct in range(2):
                a=CAC+16*(2*rt+ct)
                c="0" if first[2*rt+ct] else f"v[{a}:{a+15}]"
                first[2*rt+ct]=False
                out.append(f"v_mfma_f32_32x32x16_bf16 v[{a}:{a+15}], v[{F+8+4*rt}:{F+8+4*rt+3}], v[{F+4*ct}:{F+4*ct+3}], {c}")
        return out
    need_before=[4,6,8,8,10,10]
    def phase(ms,rs,prev_pending):
        issued=0; per=[2,2,2,2,2,0]; lastw=None
        for i,m in enumerate(ms):
            if prev_pending:
                n=(10-need_before[i])+issued
                if lastw is None or need_before[i]>lastw:
                    A(f"s_waitcnt lgkmcnt({min(n,15)})"); lastw=need_before[i]
            A(m)
            for _ in range(per[i]):
                if issued<len(rs): A(rs[issued]); issued+=1
    def ldst():
        A(f"global_load_dwordx2 {bc(vS)}, v{vSt}, s[30:31] sc0 sc1")
        A(f"global_load_dwordx2 {bc(vS+2)}, v{vSt}, s[30:31] offset:256 sc0 sc1")
    def ldcs(sc):
        for rt in range(3):
            A(f"buffer_load_dwordx4 v[{CSF+4*rt}:{CSF+4*rt+3}], v{cT+4}, {SR}, s{20+rt} offen{sc}")
    BF=172; K1=180; K3=184; K2=188; XX=192
    def stat_fix():
        A(f"s_mov_b32 s{sSP}, 0")
        A.label("k2_stchk")
        A("s_waitcnt vmcnt(0)")
        tg=[vS+1,vS+3]+[CSF+4*rt+o for rt in range(3) for o in (1,3)]
        for i,r in enumerate(tg): A(f"v_xor_b32 v{XX+i}, s{sTAG}, v{r}")
        A(f"""
        v_or3_b32 v{XX}, v{XX}, v{XX+1}, v{XX+2}
        v_or3_b32 v{XX+3}, v{XX+3}, v{XX+4}, v{XX+5}
        v_or3_b32 v{XX}, v{XX}, v{XX+6}, v{XX+7}
        v_or_b32 v{XX}, v{XX}, v{XX+3}
        v_cmp_ne_u32 vcc, 0, v{XX}
        s_cbranch_vccnz k2_stretry
        """)
        A.label("k2_stok")
        for rt in range(3):
            A(f"v_mov_b32 v{CSF+4*rt+1}, 0"); A(f"v_mov_b32 v{CSF+4*rt+3}, 0")
        for ct in range(2):
            A(f"""
            v_and_b32 v{BF+4*ct+1}, 0xffff, v{vS+2*ct}
            v_xor_b32 v{BF+4*ct+1}, 0x8000, v{BF+4*ct+1}
            v_lshl_or_b32 v{BF+4*ct}, v{BF+4*ct+1}, 16, v{BF+4*ct+1}
            v_mov_b32 v{BF+4*ct+3}, 0
            v_mov_b32 v{BF+4*ct+2}, v{BF+4*ct}
            """)
        B=Asm()
        for ct in range(2):
            x=XX+4*ct
            B(f"""
            v_and_b32 v{x+1}, 0xffff0000, v{vS+2*ct}
            v_rcp_f32 v{x+2}, v{x+1}
            v_mul_f32 v{K2+2*ct}, v{x+1}, v{x+1}
            v_mul_f32 v{K1+2*ct}, {f32(GC1)}, v{x+2}
            v_mul_f32 v{x+3}, v{x+2}, v{x+2}
            v_mul_f32 v{x+3}, v{x+3}, v{x+2}
            v_mul_f32 v{K3+2*ct}, {f32(GC2)}, v{x+3}
            """)
        bl=[l.strip() for l in B.l]; i=0
        for rt in range(3):
            for ct in range(2):
                a=CAC+16*(2*rt+ct)
                A(f"v_mfma_f32_32x32x16_bf16 v[{a}:{a+15}], v[{CSF+4*rt}:{CSF+4*rt+3}], v[{BF+4*ct}:{BF+4*ct+3}], v[{a}:{a+15}]")
                for l in bl[i*3:(i+1)*3]: A(l)
                i+=1
    if 'prof' not in X: stamp(A,1)
    A("s_barrier")
    for j in range(16):
        if j<=LB: A("s_barrier")
        else: cnt_add(8)
        if "prof" in X and j in (0,3,6,9,12,14): stamp(A,{0:1,3:3,6:4,9:5,12:6,14:7}[j])
        if j==0:
            for r in rd(FA,0,0): A(r)
        else:
            phase(mm(FB),rd(FA,j,0),False)
        if j==12: ldst()
        phase(mm(FA),rd(FB,j,1),True)
        if j==14: stat_fix()
        A("s_waitcnt lgkmcnt(0)")
    stamp(A,2)
    ms=mm(FB)
    A(ms[0])
    cnt_add(12)
    for m in ms[1:]: A(m)
    if 'prof' not in X: stamp(A,3)
    T=FA
    for rt in range(3):
        A(f"""
        s_cmp_ge_u32 s{52+rt}, 86
        s_cbranch_scc1 {"k2_sig" if 2*rt>=CUE else "k2_sig0"}
        s_lshl_b32 s{sT}, s{52+rt}, 9
        s_add_u32 s{sT}, s{sT}, s{sJ}
        s_add_u32 s{sT2}, s{sT}, {2*43*1024}
        """)
        a0=CAC+32*rt; a1=a0+16; t0=T; t1=T+8
        def st1(a,t,ct):
            return [f"v_pk_mul_f32 {bc(t+r)}, {bc(a+r)}, {bc(a+r)}" for r in (0,2,4,6)]+\
                   [f"v_pk_fma_f32 {bc(t+r)}, {bc(t+r)}, {bc(K3+2*ct)}, {bc(K1+2*ct)} op_sel_hi:[1,0,0]" for r in (0,2,4,6)]+\
                   [f"v_pk_mul_f32 {bc(t+r)}, {bc(t+r)}, {bc(a+r)}" for r in (0,2,4,6)]
        def ex(t): return [f"v_exp_f32 v{t+r}, v{t+r}" for r in range(8)]
        def gu(a): return [f"v_pk_mul_f32 {bc(a+r)}, {bc(a+r)}, {bc(a+8+r)}" for r in (0,2,4,6)]
        def dn(t,ct): return [f"v_pk_fma_f32 {bc(t+r)}, {bc(t+r)}, {bc(K2+2*ct)}, {bc(K2+2*ct)} op_sel_hi:[1,0,0]" for r in (0,2,4,6)]
        def rc(t): return [f"v_rcp_f32 v{t+r}, v{t+r}" for r in range(8)]
        def fin(a,t): return [f"v_pk_mul_f32 {bc(a+r)}, {bc(a+r)}, {bc(t+r)}" for r in (0,2,4,6)]+[f"v_cvt_pk_bf16_f32 v{a+8+r}, v{a+2*r}, v{a+2*r+1}" for r in range(4)]
        def mix(tr,ot):
            for i in range(max(len(tr),len(ot))):
                if i<len(tr): A(tr[i])
                if i<len(ot): A(ot[i])
        for l in st1(a0,t0,0): A(l)
        s1=st1(a1,t1,1)
        mix(ex(t0),s1[:8])
        for l in s1[8:]: A(l)
        mix(ex(t1),dn(t0,0)+gu(a0))
        mix(rc(t0),dn(t1,1)+gu(a1))
        mix(rc(t1),fin(a0,t0))
        for ct in range(2):
            a=CAC+16*(2*rt+ct)
            if ct==1:
                for l in fin(a1,t1): A(l)
            A(f"buffer_store_dwordx4 v[{a+8}:{a+11}], v{cT+1}, {SR}, s{sT if ct==0 else sT2} offen sc0 sc1")
            if 2*rt+ct+1==min(CUE,6):
                if CUE==7: A("s_waitcnt vmcnt(0)")
                cnt_add(4)
                A(f"""
                s_lshl_b32 s45, s{sW}, 4
                s_add_u32 s45, s45, s{sCB}
                s_cmp_lg_u32 s45, 13
                s_cbranch_scc1 k2_nog
                s_lshl_b32 s45, s{sMB}, 7
                s_add_u32 s45, s45, {WS_FLAG+4096}
                v_mov_b32 v{vS}, s45
                v_mov_b32 v{vS+1}, s{sTAG}
                s_mov_b64 exec, 1
                global_store_dword v{vS}, v{vS+1}, s[30:31] sc0 sc1
                s_mov_b64 exec, -1
                """)
                A.label("k2_nog")
    A.label("k2_sig")
    if 'prof' not in X: stamp(A,4)
    A("s_setprio 0")
    A.label("k2_p2b")
    cnt_wait(0,4)
    if 'prof' not in X: stamp(A,5)
    for b in range(NPRE):
        for r in rdw(RG+16*b,NA+b): A(r)
    A("s_waitcnt lgkmcnt(0)")
    if 'prof' not in X: stamp(A,6)
    p2_loop(NA,43-NA,True)
    dump(A,2,8,sW)
    A("s_endpgm")
    A.label("k2_sig0")
    cnt_add(4)
    cnt_wait(4,4)
    A("s_branch k2_sig")
    for lr,lc,lo,ld in stubs:
        A.label(lr)
        A(f"""
        s_add_u32 s{sSP}, s{sSP}, 1
        s_cmp_ge_u32 s{sSP}, {SPIN}
        s_cbranch_scc1 {lo}
        """)
        for l in ld: A(l)
        A("s_waitcnt vmcnt(0)")
        A(f"s_branch {lc}")
    A.label("k2_stretry")
    A(f"""
    s_add_u32 s{sSP}, s{sSP}, 1
    s_cmp_ge_u32 s{sSP}, {SPIN}
    s_cbranch_scc1 k2_stok
    """)
    ldst(); ldcs(" sc0 sc1")
    A("s_branch k2_stchk")
    A.label("k2_stats")
    A(f"s_sub_u32 s{sW}, s{sW}, 4")
    p2_setup()
    p2_addr(False)
    for b in range(NPRE): issue_wd(b,8*WSLOT+4096*b)
    A("s_waitcnt vmcnt(0)")
    cnt_add(8)
    cnt_wait(8,4)
    for b in range(NPRE):
        for r in rdw(RG+16*b,b,8*WSLOT+4096*b): A(r)
    A("s_waitcnt lgkmcnt(0)")
    hpoll("k2_hq")
    A(f"s_add_u32 s{sW}, s{sW}, 4")
    A.label("k2_stats_lo")
    A("s_setprio 0")
    vD=196; S=228; Q=236; U=244; vA=2
    A(f"""
    s_lshl_b32 s{sT}, s{sMB}, 17
    s_lshl_b32 s{sT2}, s{sW}, 14
    s_add_u32 s{sT}, s{sT}, s{sT2}
    s_add_u32 s{sT}, s{sT}, {WS_HT}
    v_lshlrev_b32 v{vA}, 4, v{vL}
    s_barrier
    """)
    def sld(i):
        A(f"buffer_load_dwordx4 v[{vD+4*(i%8)}:{vD+4*(i%8)+3}], v{vA}, {SR}, s{sT} offen offset:{1024*(i%4)}")
        if i%4==3 and i<15: A(f"s_add_u32 s{sT}, s{sT}, 4096")
    for i in range(8): sld(i)
    for j in range(16): A(f"v_mov_b32 v{S+j}, 0")
    for i in range(16):
        A(f"s_waitcnt vmcnt({min(7,15-i)})")
        for j in range(4):
            A(f"v_lshlrev_b32 v{U+2*j}, 16, v{vD+4*(i%8)+j}")
            A(f"v_and_b32 v{U+2*j+1}, 0xffff0000, v{vD+4*(i%8)+j}")
        if i+8<16: sld(i+8)
        for j in range(4):
            A(f"v_pk_add_f32 {bc(S+2*j)}, {bc(S+2*j)}, {bc(U+2*j)}")
            A(f"v_pk_fma_f32 {bc(Q+2*j)}, {bc(U+2*j)}, {bc(U+2*j)}, {bc(Q+2*j)}")
    for j in range(8): A(f"v_permlane32_swap_b32 v{S+j}, v{Q+j}")
    for j in range(8): A(f"v_add_f32 v{S+j}, v{S+j}, v{Q+j}")
    for j in range(4): A(f"v_permlane16_swap_b32 v{S+j}, v{S+j+4}")
    A(f"""
    v_and_b32 v{vT}, 15, v{vL}
    v_lshlrev_b32 v{vT}, 5, v{vT}
    v_and_b32 v{vT+1}, 16, v{vL}
    v_add_u32 v{vT}, v{vT}, v{vT+1}
    v_and_b32 v{vT+1}, 32, v{vL}
    v_lshl_add_u32 v{vT}, v{vT+1}, 4, v{vT}
    s_lshl_b32 s{sT}, s{sW}, 10
    v_add_u32 v{vT}, s{sT}, v{vT}
    """)
    for j in range(4): A(f"v_add_f32 v{S+j}, v{S+j}, v{S+j+4}")
    A(f"""
    ds_write_b128 v{vT}, v[{S}:{S+3}]
    s_waitcnt lgkmcnt(0)
    s_barrier
    s_cmp_ge_u32 s{sW}, 4
    s_cbranch_scc1 k2_st_p2
    s_cmp_ge_u32 s{sW}, 2
    s_cbranch_scc1 k2_st_exit
    v_lshlrev_b32 v{vT}, 2, v0
    """)
    for i in range(8):
        A(f"ds_read_b32 v{vD+i}, v{vT} offset:{1024*i}")
        A(f"ds_read_b32 v{vD+8+i}, v{vT} offset:{1024*i+512}")
    A("s_waitcnt lgkmcnt(0)")
    for st in (4,2,1):
        for i in range(st):
            A(f"v_add_f32 v{vD+i}, v{vD+i}, v{vD+i+st}")
            A(f"v_add_f32 v{vD+8+i}, v{vD+8+i}, v{vD+8+i+st}")
    ln_finish(A,vD,vD+8,vD+1,512)
    A(f"""
    v_cvt_pk_bf16_f32 v{vD}, v{vD}, v{vD+8}
    v_mov_b32 v{vD+1}, s{sTAG}
    s_lshl_b32 s{sT}, s{sMB}, 10
    s_add_u32 s{sT}, s{sT}, {WS_ST3}
    v_lshl_add_u32 v{vT}, v0, 3, s{sT}
    global_store_dwordx2 v{vT}, {bc(vD)}, s[30:31] sc0 sc1
    """)
    A.label("k2_st_exit")
    A("s_barrier")
    p2_addr(True)
    A(f"""
    s_cmp_lg_u32 s{sW}, 0
    s_cbranch_scc1 k2_gd
    s_lshl_b32 s45, s{sMB}, 7
    s_add_u32 s45, s45, {WS_FLAG+4096}
    v_mov_b32 v{vF}, s45
    s_mov_b32 s{sSP}, 0
    """)
    A.label("k2_g")
    A(f"""
    global_load_dword v{vT}, v{vF}, s[30:31] sc0 sc1
    s_add_u32 s{sSP}, s{sSP}, 1
    s_cmp_ge_u32 s{sSP}, {SPIN}
    s_cbranch_scc1 k2_gd
    s_waitcnt vmcnt(0)
    v_cmp_ne_u32 vcc, s{sTAG}, v{vT}
    s_cbranch_vccnz k2_g
    """)
    A.label("k2_gd")
    cnt_add(4)
    cnt_wait(4,4)
    for i in range(1,6): stamp(A,i)
    A("s_branch k2_p2b")
    A.label("k2_st_p2")
    A("s_barrier")
    A(f"s_sub_u32 s{sW}, s{sW}, 4")
    issue_res()
    first=[b for b in range(NPRE,43) if wd_loc(b) not in (X_RES,X_RES+4096)]
    for b in first: issue_wd(b)
    p2_addr(False)
    A(f"s_waitcnt vmcnt({len(first)})")
    cnt_add(8)
    cnt_wait(8,8)
    rd_res()
    cnt_add(8)
    cnt_wait(8,12)
    for b in range(NPRE,43):
        if b not in first: issue_wd(b)
    for i in range(1,5): stamp(A,i)
    A("s_branch k2_p2")
```
